```python
import torch

def _softmax(x, axis=-1):
    return torch.softmax(x, dim=axis)

def _gelu(x):
    return torch.nn.functional.gelu(x, approximate='tanh')

def _silu(x):
    return torch.nn.functional.silu(x)

def _sigmoid(x):
    return torch.sigmoid(x)

def _layernorm(x, axis=-1, eps=1e-05):
    m = x.mean(dim=axis, keepdim=True)
    v = x.var(dim=axis, keepdim=True, unbiased=False)
    return (x - m) / torch.sqrt(v + eps)

def _scatter_add(tgt, idx, src, axis=0):
    return tgt.clone().index_add_(axis, idx, src)

def _segment_sum(src, seg, n):
    out = torch.zeros((n,) + src.shape[1:], dtype=src.dtype)
    return out.index_add_(0, seg, src)

def _pad(x, pw):
    flat = tuple((v for pair in reversed(pw) for v in pair))
    return torch.nn.functional.pad(x, flat)
kernel_name = 'interleave_layers__memory_aug_recurrent_mem_tr__spectral_gfnet__prompt'

def setup_inputs():

    _w = lambda a: (lambda t: t.to(torch.bfloat16) if t.is_floating_point() else t)(torch.as_tensor(a))

    def _A_setup():
        B, S, Dm = (1, 2048, 512)
        H, Dh = (32, 128)
        M, seg = (8, 32)
        seg = min(seg, S)
        S = S // seg * seg
        return {'x': _w((lambda *s: torch.randn(*s, dtype=torch.bfloat16) * 0.05)(B, S, Dm)), 'mem0': _w((lambda *s: torch.randn(*s, dtype=torch.bfloat16) * 0.2)(B, M, Dm)), 'Wq': _w((lambda *s: torch.randn(*s, dtype=torch.bfloat16) * 1.6)(Dm, H, Dh) * Dm ** (-0.5)), 'Wk': _w((lambda *s: torch.randn(*s, dtype=torch.bfloat16) * 1.6)(Dm, H, Dh) * Dm ** (-0.5)), 'Wv': _w((lambda *s: torch.randn(*s, dtype=torch.bfloat16) * 0.2)(Dm, H, Dh) * Dm ** (-0.5)), 'Wo': _w((lambda *s: torch.randn(*s, dtype=torch.bfloat16) * 0.2)(H, Dh, Dm) * (H * Dh) ** (-0.5)), 'seg_len': seg}
    _A_in = _A_setup()

    def _B_setup():
        B, S, D = (1, 2048, 512)
        Df = D // 2 + 1
        return {'x': _w((lambda *s: torch.randn(*s, dtype=torch.bfloat16) * 0.05)(B, S, D)), 'w_r': _w((lambda *s: torch.randn(*s, dtype=torch.bfloat16) * 0.4)(S, Df) * 0.02), 'w_i': _w((lambda *s: torch.randn(*s, dtype=torch.bfloat16) * 0.4)(S, Df) * 0.02)}
    _B_in = _B_setup()
    return {'A_x': _A_in['x'], 'A_mem0': _A_in['mem0'], 'A_Wq': _A_in['Wq'], 'A_Wk': _A_in['Wk'], 'A_Wv': _A_in['Wv'], 'A_Wo': _A_in['Wo'], 'A_seg_len': _A_in['seg_len'], 'B_x': _B_in['x'], 'B_w_r': _B_in['w_r'], 'B_w_i': _B_in['w_i']}

def reference(A_x, A_mem0, A_Wq, A_Wk, A_Wv, A_Wo, A_seg_len, B_x, B_w_r, B_w_i):

    def _A_ref(x, mem0, Wq, Wk, Wv, Wo, seg_len):
        B, S, Dm = x.shape
        H, Dh = (Wq.shape[1], Wq.shape[2])
        M = mem0.shape[1]
        scale = Dh ** (-0.5)
        n_seg = S // seg_len
        L = M + seg_len
        idx = torch.arange(L)
        mask = (idx[:, None] < M) | (idx[:, None] >= idx[None, :])
        mem = mem0
        outs = []
        for s in range(n_seg):
            xs = x[:, s * seg_len:(s + 1) * seg_len, :].clone()
            h = torch.concatenate([mem, xs], axis=1)
            q = torch.einsum('btd,dhe->bhte', h, Wq)
            k = torch.einsum('btd,dhe->bhte', h, Wk)
            v = torch.einsum('btd,dhe->bhte', h, Wv)
            scores = torch.einsum('bhqe,bhke->bhqk', q, k) * scale
            scores = torch.where(mask[None, None], scores, -1000000000.0)
            p = _softmax(scores, axis=-1)
            o = torch.einsum('bhqk,bhke->bhqe', p, v)
            o = torch.einsum('bhte,hed->btd', o, Wo)
            mem = o[:, :M, :].clone()
            outs.append(o[:, M:, :])
        return torch.concatenate(outs, axis=1)

    def _B_ref(x, w_r, w_i):
        B, S, D = x.shape
        X = (lambda x, axes=(-2, -1): torch.fft.rfft2(x.float(), dim=axes))(x, axes=(-2, -1))
        W = w_r + 1j * w_i
        X = X * W
        y = (lambda x, s, axes=(-2, -1): torch.fft.irfft2(x, s=s, dim=axes).to(torch.bfloat16))(X, (S, D), axes=(-2, -1))
        return y
    x = A_x
    x = x + _A_ref(_layernorm(x, axis=-1), A_mem0, A_Wq, A_Wk, A_Wv, A_Wo, A_seg_len)
    x = x + _B_ref(_layernorm(x, axis=-1), B_w_r, B_w_i)
    x = x + _A_ref(_layernorm(x, axis=-1), A_mem0, A_Wq, A_Wk, A_Wv, A_Wo, A_seg_len)
    x = x + _B_ref(_layernorm(x, axis=-1), B_w_r, B_w_i)
    return x
```

```python
import re

def v(i, n=1): return f"v{i}" if n == 1 else f"v[{i}:{i+n-1}]"
def a(i, n=1): return f"a{i}" if n == 1 else f"a[{i}:{i+n-1}]"
def s(i, n=1): return f"s{i}" if n == 1 else f"s[{i}:{i+n-1}]"

_REG = re.compile(r"^-?\|?([vas])(?:(\d+)|\[(\d+):(\d+)\])\|?$")
def regs_of(tok):
    tok = tok.strip()
    tok = re.sub(r"^(?:neg|abs)\((.*)\)$", r"\1", tok)
    if tok == "vcc": return {("s", 106), ("s", 107)}
    if tok == "vcc_lo": return {("s", 106)}
    if tok == "vcc_hi": return {("s", 107)}
    if tok == "exec": return {("s", 126), ("s", 127)}
    if tok == "exec_lo": return {("s", 126)}
    if tok == "exec_hi": return {("s", 127)}
    if tok == "m0": return {("s", 124)}
    m = _REG.match(tok)
    if not m: return set()
    f = m.group(1)
    if m.group(2) is not None: lo = hi = int(m.group(2))
    else: lo, hi = int(m.group(3)), int(m.group(4))
    return {(f, i) for i in range(lo, hi + 1)}

TRANS = ("v_exp_f32", "v_log_f32", "v_rcp_f32", "v_rsq_f32", "v_sqrt_f32", "v_sin_f32", "v_cos_f32", "v_rcp_iflag_f32")

class Ins:
    def __init__(self, text):
        self.text = text
        t = text.split(";")[0].strip()
        parts = t.split(None, 1)
        self.mn = parts[0]
        rest = parts[1] if len(parts) > 1 else ""
        toks = [x.strip() for x in re.split(r",(?![^\[]*\])", rest)] if rest else []
        ops = []
        self.mods = ""
        for i, x in enumerate(toks):
            sp = x.split()
            if not sp: continue
            ops.append(sp[0])
            if len(sp) > 1: self.mods += " " + " ".join(sp[1:])
        self.ops = ops
        mn = self.mn
        self.mfma = mn.startswith("v_mfma") or mn.startswith("v_smfmac")
        self.valu = mn.startswith("v_") and not self.mfma
        self.salu = mn.startswith("s_")
        self.ds = mn.startswith("ds_")
        self.vmem = mn.startswith(("buffer_", "global_"))
        self.trans = any(mn.startswith(x) for x in TRANS)
        self.dpp = "_dpp" in mn
        self.passes = 0
        self.wr, self.rd = set(), set()
        self.srcc = set()
        R = [regs_of(o) for o in ops]
        if self.mfma:
            self.passes = 8 if "32x32" in mn else (2 if "4x4" in mn else 4)
            if "_f32_32x32x2_f32" in mn: self.passes = 16
            if "_f32_16x16x4_f32" in mn: self.passes = 8
            self.wr = R[0]
            if mn.startswith("v_smfmac"):
                self.ab = R[1] | R[2] | R[3]; self.srcc = R[0]
            else:
                self.ab = R[1] | R[2]; self.srcc = R[3]
            self.rd = self.ab | self.srcc
        elif self.valu:
            if mn.startswith("v_cmp"):
                self.wr = R[0]; self.rd = set().union(*R[1:]) if len(R) > 1 else set()
            elif mn.startswith(("v_permlane32_swap", "v_permlane16_swap", "v_swap")):
                self.wr = R[0] | R[1]; self.rd = R[0] | R[1]
            elif mn.startswith(("v_add_co", "v_sub_co", "v_addc_co", "v_subb_co", "v_mad_u64_u32", "v_div_scale")):
                self.wr = R[0] | R[1]; self.rd = set().union(*R[2:])
            elif mn == "v_nop":
                pass
            else:
                self.wr = R[0]; self.rd = set().union(*R[1:]) if len(R) > 1 else set()
                if mn.startswith(("v_fmac", "v_dot2c", "v_writelane", "v_mac")) or self.dpp or "_sdwa" in mn: self.rd |= R[0]
                if mn.startswith("v_cndmask") and len(ops) == 3: self.rd |= regs_of("vcc")
        elif self.ds:
            if mn.startswith(("ds_read", "ds_bpermute", "ds_permute", "ds_swizzle")) or "_rtn_" in mn:
                self.wr = R[0]; self.rd = set().union(*R[1:])
            else:
                self.rd = set().union(*R) if R else set()
        elif self.vmem:
            lds = " lds" in (self.mods + " ") and mn.startswith("buffer_load") or mn.startswith("global_load_lds")
            self.ldsdma = lds
            if mn.startswith(("buffer_inv", "buffer_wbl2")):
                pass
            elif "load" in mn and not lds:
                self.wr = R[0]; self.rd = set().union(*R[1:])
            elif "atomic" in mn and "sc0" in self.mods:
                self.wr = R[0]; self.rd = set().union(*R)
            else:
                self.rd = set().union(*R)
            if lds: self.rd |= regs_of("m0")
            self.wide_store = "store" in mn and ("x4" in mn or "x3" in mn)
            if self.wide_store:
                self.sdata = R[0] if mn.startswith("buffer") else R[1]
        elif self.salu:
            nodst = ("s_cmp", "s_bitcmp", "s_branch", "s_cbranch", "s_waitcnt", "s_nop", "s_barrier", "s_endpgm", "s_sleep", "s_setprio", "s_setpc", "s_setreg")
            if mn.startswith(nodst): self.rd = set().union(*R) if R else set()
            else:
                self.wr = R[0] if R else set(); self.rd = set().union(*R[1:]) if len(R) > 1 else set()
                if "saveexec" in mn: self.wr |= regs_of("exec")
        self.states = 1
        if mn == "s_nop": self.states = int(ops[0], 0) + 1

class Asm:
    def __init__(self, strict=False):
        self.L = []
        self.lab = 0
        self.strict = strict
        self.lg = []
        self.vm = []
        self.nid = 0
    def __call__(self, txt):
        last = None
        for line in txt.split("\n"):
            line = line.strip()
            if not line: continue
            if line.startswith(";") or line.startswith(".") or line.split(";")[0].strip().endswith(":"):
                self.L.append(line); continue
            ins = Ins(line)
            self.L.append(ins)
            if ins.ds:
                self.nid += 1; self.lg.append(self.nid); last = self.nid
            elif ins.vmem and not ins.mn.startswith(("buffer_inv", "buffer_wbl2")):
                self.nid += 1; self.vm.append(self.nid); last = self.nid
            elif ins.mn == "s_waitcnt":
                m = re.search(r"lgkmcnt\((\d+)\)", line)
                if m:
                    n = int(m.group(1)); self.lg = self.lg[len(self.lg) - n:] if n > 0 else []
                m = re.search(r"vmcnt\((\d+)\)", line)
                if m:
                    n = int(m.group(1)); self.vm = self.vm[len(self.vm) - n:] if n > 0 else []
        return last
    def lgk_n(self, tok):
        if tok is None or tok not in self.lg: return None
        return min(15, len(self.lg) - 1 - self.lg.index(tok))
    def vm_n(self, tok):
        if tok is None or tok not in self.vm: return None
        return min(63, len(self.vm) - 1 - self.vm.index(tok))
    def wlg(self, tok):
        n = self.lgk_n(tok)
        if n is not None: self(f"s_waitcnt lgkmcnt({n})")
    def wvm(self, tok):
        n = self.vm_n(tok)
        if n is not None: self(f"s_waitcnt vmcnt({n})")
    def reset_counts(self): self.lg = []; self.vm = []
    def label(self, name): self.L.append(name + ":")
    def newlabel(self, p="L"):
        self.lab += 1
        return f"{p}_{self.lab}"
    def c(self, t): self.L.append("; " + t)

    def fix_hazards(self, verbose=False, name=""):
        out = []
        hist = []
        T = 0
        lastM = None
        nins = 0
        def need(cur):
            req = 0
            for (p, tp) in reversed(hist[-40:]):
                d = 0
                vregs = lambda S: {r for r in S if r[0] in "va"}
                sregs = lambda S: {r for r in S if r[0] == "s"}
                if p.valu:
                    if cur.mfma and (vregs(p.wr) & cur.rd): d = max(d, 2)
                    if cur.valu and cur.dpp and (vregs(p.wr) & cur.rd): d = max(d, 2)
                    if cur.valu and cur.mn.startswith("v_permlane") and (vregs(p.wr) & cur.rd): d = max(d, 2)
                    if cur.valu and cur.mn.startswith(("v_readlane", "v_readfirstlane")) and (vregs(p.wr) & cur.rd): d = max(d, 1)
                    if p.trans and cur.valu and not cur.trans and (vregs(p.wr) & cur.rd): d = max(d, 1)
                    if p.trans and (cur.mfma or cur.ds or cur.vmem) and (vregs(p.wr) & cur.rd): d = max(d, 2)
                    if sregs(p.wr) & cur.rd:
                        if cur.valu: d = max(d, 4 if cur.mn.startswith(("v_readlane", "v_writelane")) else 2)
                        if cur.vmem: d = max(d, 5)
                        if cur.salu and not cur.mn.startswith("s_cbranch"): d = max(d, 2)
                    if (regs_of("exec") & p.wr):
                        if cur.mfma: d = max(d, 4)
                        if cur.valu and cur.dpp: d = max(d, 5)
                    if ("_sdwa" in p.mn or "op_sel" in p.mods) and cur.valu and (vregs(p.wr) & (cur.rd | cur.wr)): d = max(d, 1)
                if p.mfma:
                    big = {2: 5, 4: 8, 8: 12, 16: 20}[p.passes]
                    ovl = {2: 4, 4: 6, 8: 10, 16: 18}[p.passes]
                    if cur.mfma:
                        if p.wr & cur.ab: d = max(d, big)
                        if p.wr & cur.srcc:
                            if not (p.wr == cur.srcc and p.passes == cur.passes): d = max(d, ovl)
                            elif p.passes == 2: d = max(d, 2)
                        elif p.wr & cur.wr: d = max(d, ovl)
                    else:
                        if p.wr & (cur.rd | cur.wr): d = max(d, big)
                        if cur.valu and (p.srcc & cur.wr): d = max(d, {2: 1, 4: 3, 8: 7, 16: 15}[p.passes])
                if p.vmem and getattr(p, "wide_store", False) and (p.sdata & cur.wr):
                    d = max(d, 2)
                if p.salu and (regs_of("m0") & p.wr) and cur.vmem and getattr(cur, "ldsdma", False): d = max(d, 1)
                if d: req = max(req, tp + p.states + d)
            return req
        for x in self.L:
            if not isinstance(x, Ins):
                out.append(x); continue
            t = T
            if x.mfma and lastM is not None and not self.strict:
                t = max(t, lastM[0] + lastM[1])
            r = need(x)
            if 'NOHAZ' in x.text and not self.strict: r = 0
            if r > t:
                k = r - T
                if verbose: print(f"[{name}] hazard: +{k} nop states before: {x.text}")
                nins += k
                while k > 0:
                    n = min(k, 16)
                    nop = Ins(f"s_nop {n-1}")
                    out.append(nop); hist.append((nop, T)); T += n; k -= n
                t = max(t, T)
            out.append(x); hist.append((x, t))
            T = t + x.states
            if x.mfma: lastM = (t, x.passes)
        self.L = out
        return nins
    def text(self):
        o = []
        for x in self.L:
            if isinstance(x, Ins): o.append("    " + x.text)
            elif x.endswith(":"): o.append(x)
            else: o.append("    " + x)
        return "\n".join(o) + "\n"

def kernel_begin(name):
    return f""".text
.globl {name}
.p2align 8
.type {name},@function
{name}:
"""
def kernel_desc(name, vgpr=512, sgpr=102, accum=256, wgy=False):
    t = f""".section .rodata,"a"
.p2align 6
.amdhsa_kernel {name}
  .amdhsa_next_free_vgpr {vgpr}
  .amdhsa_next_free_sgpr {sgpr}
  .amdhsa_accum_offset {accum}
  .amdhsa_group_segment_fixed_size 0
  .amdhsa_kernarg_size 104
  .amdhsa_user_sgpr_count 2
  .amdhsa_user_sgpr_kernarg_segment_ptr 1
  .amdhsa_system_sgpr_workgroup_id_x 1
"""
    if wgy: t += "  .amdhsa_system_sgpr_workgroup_id_y 1\n"
    t += "  .amdhsa_float_denorm_mode_32 3\n  .amdhsa_float_denorm_mode_16_64 3\n"
    t += ".end_amdhsa_kernel\n"
    return t
```

```python
import sys, json, re, collections
from common import *
def build_file(path, kernels, order, pre_comment=""):
    hdr = pre_comment
    for k in order:
        m = kernels[k][1]
        hdr += f"; @launch kernel={m['name']} grid=({m['grid']},1,1) block=({m['block']},1,1) lds={m['lds']}\n"
    used = [k for k in kernels if k in order or kernels[k][1].get("always")]
    cnt = collections.Counter()
    for k in used:
        for x in kernels[k][0].L:
            if isinstance(x, Ins): cnt[x.mn] += len(x.mn) - 2
    mac = {}
    al = "ABCDEFGHIJKLMNOPQRSTUVWXYZ"
    for i, (mn, c) in enumerate(cnt.most_common(60)):
        if mn.startswith(("s_cbranch", "s_branch", "s_endpgm", "s_barrier")) or len(mn) < 6: continue
        mac[mn] = "Q" + al[i // 26] + al[i % 26]
    body = '.amdgcn_target "amdgcn-amd-amdhsa--gfx950"\n'
    for mn, s_ in mac.items(): body += f".macro {s_} a:vararg\n{mn} \\a\n.endm\n"
    for k in used:
        A, m = kernels[k]
        body += kernel_begin(m["name"])
        o = []
        for x in A.L:
            if isinstance(x, Ins):
                t = x.text.split(";")[0].strip()
                p = t.split(None, 1)
                o.append(mac.get(p[0], p[0]) + (" " + p[1].replace(", ", ",") if len(p) > 1 else ""))
            elif x.startswith(";"): continue
            else: o.append(x)
        body += "\n".join(o) + "\n"
    for k in used:
        A, m = kernels[k]
        body += kernel_desc(m["name"], vgpr=m["vgpr"], accum=m["accum"])
    open(path, "w").write(hdr + body)
```

```python
from asmlib import *
from layout import *
import math

LDS_MEM, LDS_K, LDS_V, LDS_F, LDS_O, LDS_OD, LDS_WQ = 0, 8192, 24576, 0, 4096, 6144, 32768
vKr = 16; sKm = 47
FS = 1088
vL16, vG512, vFw, vFr, vOw, vOr, vPst, vMst, vSamp, vIK, vIN = 1, 2, 3, 4, 5, 6, 7, 8, 9, 10, 11
vGat = 0
vAS = 12; vM1 = 16; vWq0 = 17; vWq1 = 18; vSmp = 19
vKQ = 20; vVP = 24; vPm = 28; vT0 = 30; vT1 = 31
vMEM = 32
vSx0, vSx1, vSm, vE, vPx, vL = 32, 36, 40, 44, 54, 58
vAk0, vAq0, vAk1, vAq1 = 64, 68, 72, 76
vF = 64; vOUT = 64
vAv0, vAv1 = 80, 84
vO0, vO1 = 96, 100
vThr = 9
KVSEG = 8192
PUBSEG = 4096
vSTG = 88
vVx = 88; vKx = 96
vOF = 32; vPK = 48; vRL = 56; vRA = 48; vRT = 52
vWo = 128
sW, sH, sStep, sKV, sPub, sPart, sInb, sMemN, sMemP, sGat, sPh, sT, sC, sDead = 9, 12, 24, 25, 26, 27, 28, 29, 30, 31, 32, 33, 34, 3
sMask = 36
SRD = "s[16:19]"; SRDW = "s[20:23]"
TMO = 200000
CPS = 8192 + 0
MSL = 13

def f32bits(x):
    import struct
    return struct.unpack("<I", struct.pack("<f", x))[0]

def smf(A, d, am, b, idx): A(f"v_smfmac_f32_16x16x64_bf16 {v(d,4)}, {v(am,4)}, {b}, {v(idx)}")

def set_srd(A, base, lo, size):
    A(f"s_mov_b32 s{base}, s{lo}\ns_mov_b32 s{base+1}, s{lo+1}\ns_mov_b32 s{base+2}, {size}\ns_mov_b32 s{base+3}, 0x20000")

def role_code(A, P, force_fb):
    A(f"""s_cmp_ge_u32 s2, 256
s_cbranch_scc1 {P}_end
s_load_dwordx2 s[4:5], s[0:1], {KA_WS}
s_load_dwordx2 s[6:7], s[0:1], {KA_DBG}
s_load_dwordx2 s[40:41], s[0:1], {KA_WQ}
s_load_dwordx2 s[42:43], s[0:1], {KA_WK}
s_load_dwordx2 s[44:45], s[0:1], {KA_WV}
s_load_dwordx2 s[46:47], s[0:1], {KA_WO}
s_load_dwordx2 s[48:49], s[0:1], {KA_MEM0}
s_getreg_b32 s8, hwreg(HW_REG_XCC_ID)
v_lshrrev_b32 v1, 6, v0
v_and_b32 v0, 63, v0
v_readfirstlane_b32 s9, v1
s_and_b32 s8, s8, 15""")
    if force_fb: A("s_and_b32 s8, s2, 15")
    A(f"""s_waitcnt lgkmcnt(0)
s_mov_b32 s{sDead}, 1
v_mov_b32 v2, 0
v_mov_b32 v3, 1
v_mov_b32 v4, 0x7fffffff
s_cmp_lg_u32 s9, 0
s_cbranch_scc1 {P}_r1
v_cmp_eq_u32 vcc, 0, v0
s_and_saveexec_b64 s[10:11], vcc
s_cmp_lg_u32 s8, 0
s_cbranch_scc1 {P}_r0
global_atomic_add v4, v2, v3, s[6:7] offset:4 sc0
s_waitcnt vmcnt(0)
{P}_r0:
global_atomic_add v2, v3, s[6:7]
ds_write_b32 v2, v4
s_waitcnt lgkmcnt(0)
s_mov_b64 exec, s[10:11]
{P}_r1:
s_barrier
ds_read_b32 v4, v2
s_waitcnt lgkmcnt(0)
v_readfirstlane_b32 s12, v4
s_barrier""")

def mode_poll(A, P, tag):
    A(f"""s_mov_b32 s14, 0
{P}_mp{tag}:
global_load_dword v4, v2, s[6:7] sc1
s_waitcnt vmcnt(0)
global_load_dword v5, v2, s[6:7] offset:4 sc1
s_waitcnt vmcnt(0)
v_readfirstlane_b32 s15, v4
v_readfirstlane_b32 s13, v5
s_cmp_ge_u32 s13, 32
s_cbranch_scc1 {P}_mq{tag}
s_cmp_ge_u32 s15, 256
s_cbranch_scc1 {P}_mq{tag}
s_sleep 4
s_add_u32 s14, s14, 1
s_cmp_lt_u32 s14, {TMO}
s_cbranch_scc1 {P}_mp{tag}
s_branch {P}_end
{P}_mq{tag}:""")

def lane_consts(A, layer, opt):
    L = 0
    t0, t1, t2 = 20, 21, 22
    vGT = 30
    A(f"""v_lshlrev_b32 v{vL16}, 4, v0
v_lshrrev_b32 v{t0}, 4, v0
v_and_b32 v{t1}, 15, v0
v_lshlrev_b32 v{vG512}, 9, v{t0}
v_lshl_add_u32 v{vG512}, v{t1}, 4, v{vG512}
v_bfe_u32 v{t2}, v0, 3, 1
v_lshlrev_b32 v{vFw}, 8, v{t2}
v_lshl_add_u32 v{vFw}, v{t0}, 6, v{vFw}
v_and_b32 v{t2}, 7, v0
v_lshl_add_u32 v{vFw}, v{t2}, 3, v{vFw}
s_lshl_b32 s14, s9, 10
s_add_u32 s14, s14, {LDS_F}
v_add_u32 v{vFw}, s14, v{vFw}
v_and_b32 v{t2}, 3, v0
v_lshlrev_b32 v{vFr}, 6, v{t2}
v_bfe_u32 v{t2}, v0, 5, 1
v_lshl_add_u32 v{vFr}, v{t2}, 9, v{vFr}
v_bfe_u32 v{t2}, v0, 2, 3
v_lshl_add_u32 v{vFr}, v{t2}, 3, v{vFr}
v_add_u32 v{vFr}, {LDS_F}, v{vFr}
v_lshlrev_b32 v{vOw}, 7, v{t0}
v_bfe_u32 v{t2}, v0, 2, 2
v_lshl_add_u32 v{vOw}, v{t2}, 5, v{vOw}
v_and_b32 v{t2}, 1, v0
v_lshl_add_u32 v{vOw}, v{t2}, 4, v{vOw}
s_lshl_b32 s14, s9, 9
s_add_u32 s14, s14, {LDS_O}
v_add_u32 v{vOw}, s14, v{vOw}
v_add_u32 v{t2}, {LDS_OD}, v{vL16}
v_and_b32 v23, 2, v0
v_cmp_ne_u32 vcc, 0, v23
v_cndmask_b32 v{vOw}, v{t2}, v{vOw}, vcc
v_mov_b32 v{t2}, 0x4444
v_mov_b32 v23, 0xeeee
v_cndmask_b32 v{vIK}, v{t2}, v23, vcc
v_and_b32 v24, 8, v0
v_cmp_ne_u32 vcc, 0, v24
v_cndmask_b32 v{vIN}, v{t2}, v23, vcc
v_lshlrev_b32 v{vOr}, 7, v{t0}
v_and_b32 v{t2}, 7, v0
v_lshl_add_u32 v{vOr}, v{t2}, 4, v{vOr}
v_add_u32 v{vOr}, {LDS_O}, v{vOr}
; vPst = (2w+sel)*8192 + (2*g1+(n>>3))*2048 + h*64 + (n&7)*8
v_lshrrev_b32 v{vPst}, 5, v0
s_lshl_b32 s13, s9, 1
v_add_u32 v{vPst}, s13, v{vPst}
v_lshlrev_b32 v{vPst}, 13, v{vPst}
v_bfe_u32 v{t2}, v0, 3, 2
v_lshl_add_u32 v{vPst}, v{t2}, 11, v{vPst}
v_and_b32 v{t2}, 7, v0
v_lshl_add_u32 v{vPst}, v{t2}, 3, v{vPst}
s_lshl_b32 s14, s12, 6
v_add_u32 v{vPst}, s14, v{vPst}
; vMst = h*256 + w*64 + gt*16 + cw*4 (lanes with n>=4 out of range)
v_lshlrev_b32 v{vMst}, 4, v{t0}
v_and_b32 v{t2}, 3, v0
v_lshl_add_u32 v{vMst}, v{t2}, 2, v{vMst}
s_lshl_b32 s14, s12, 6
s_lshl_b32 s15, s9, 11
s_add_u32 s14, s14, s15
v_add_u32 v{vMst}, s14, v{vMst}
v_and_b32 v24, 12, v0
v_cmp_ne_u32 vcc, 0, v24
v_mov_b32 v24, 0x80000000
v_cndmask_b32 v{vMst}, v{vMst}, v24, vcc
v_and_b32 v23, 2, v0
v_cmp_ne_u32 vcc, 0, v23
v_mov_b32 v23, 0x7f800000
v_mov_b32 v24, {f32bits(40.0):#x}
v_cndmask_b32 v{vThr}, v23, v24, vcc
s_lshl_b32 s14, s9, 11
s_add_u32 s14, s14, {LDS_MEM}
v_add_u32 v19, s14, v{vL16}
v_lshlrev_b32 v{vGT}, 8, v{t0}
v_bfe_u32 v{t2}, v0, 3, 1
v_lshl_add_u32 v{vGT}, v{t2}, 7, v{vGT}
v_bfe_u32 v{t2}, v0, 1, 1
v_lshl_add_u32 v{vGT}, v{t2}, 6, v{vGT}
v_bfe_u32 v{t2}, v0, 2, 1
v_lshl_add_u32 v{vGT}, v{t2}, 5, v{vGT}
v_and_b32 v{t2}, 1, v0
v_lshl_add_u32 v{vGT}, v{t2}, 4, v{vGT}
v_lshrrev_b32 v{t2}, 2, v{t1}
v_and_b32 v23, 3, v{t1}
v_lshl_add_u32 v{t2}, v23, 2, v{t2}
v_mov_b32 v24, 0x3f80
v_mov_b32 v25, 0x3f800000
v_mov_b32 v26, 0x3f803f80""")
    for r in range(4):
        A(f"""v_mov_b32 v{vAS+r}, 0
v_cmp_eq_u32 vcc, {2*r}, v{t2}
v_cndmask_b32 v{vAS+r}, v{vAS+r}, v24, vcc
v_cmp_eq_u32 vcc, {2*r+1}, v{t2}
v_cndmask_b32 v{vAS+r}, v{vAS+r}, v25, vcc
v_cmp_le_u32 vcc, 8, v{t2}
v_cndmask_b32 v{vAS+r}, v{vAS+r}, v26, vcc""")
    A(f"""v_add_u32 v16, {LDS_K}, v{vG512}
s_lshl_b32 s13, s9, 14
s_add_u32 s13, s13, {LDS_WQ}
v_add_u32 v{vWq0}, s13, v{vL16}
v_add_u32 v{vWq1}, 0x10000, v{vWq0}
s_mov_b32 s{sC}, {f32bits(math.log2(math.e) / math.sqrt(128.0)):#x}""")

def weights_prologue(A):
    dA = [32, 33, 34, 35]; dO = [36, 37]; tA = [38, 39]; tO = 40; tc = [41, 42]
    x, y = 44, 45
    A(f"""; DMA source offsets for Wq/k/v : rr*8192 + ((cc ^ 2(rr&1) ^ 4j)*16)
v_lshrrev_b32 v{x}, 4, v0
v_and_b32 v{y}, 1, v{x}
v_lshlrev_b32 v{y}, 1, v{y}
v_and_b32 v46, 15, v0
v_xor_b32 v{y}, v{y}, v46
v_lshlrev_b32 v{x}, 13, v{x}""")
    for j in range(4):
        A(f"v_xor_b32 v46, {4*j}, v{y}\nv_lshl_add_u32 v{dA[j]}, v46, 4, v{x}")
    A(f"""; Wo DMA: (l ^ 4*((j&1) | ((w>>1)<<1)))*16
s_lshr_b32 s13, s9, 1
s_lshl_b32 s13, s13, 3
v_xor_b32 v{y}, s13, v0
v_lshlrev_b32 v{dO[0]}, 4, v{y}
v_xor_b32 v{y}, 4, v{y}
v_lshlrev_b32 v{dO[1]}, 4, v{y}
v_bfe_u32 v{x}, v0, 5, 1
v_lshlrev_b32 v{x}, 4, v{x}
v_bfe_u32 v46, v0, 4, 1
v_lshl_add_u32 v{x}, v46, 2, v{x}
v_lshlrev_b32 v{y}, 2, v46
v_bfe_u32 v46, v0, 2, 1
v_add_u32 v{x}, v{x}, v46
v_lshl_add_u32 v{y}, v46, 1, v{y}
v_bfe_u32 v46, v0, 3, 1
v_lshl_add_u32 v{x}, v46, 3, v{x}
v_lshl_add_u32 v{y}, v46, 3, v{y}
v_lshlrev_b32 v{x}, 8, v{x}
v_and_b32 v46, 1, v0
v_lshl_add_u32 v{x}, v46, 3, v{x}
v_bfe_u32 v46, v0, 1, 1
s_lshl_b32 s13, s9, 2
v_add_u32 v46, s13, v46
v_xor_b32 v46, v46, v{y}
v_lshl_add_u32 v{tA[0]}, v46, 4, v{x}
v_xor_b32 v46, 2, v46
v_lshl_add_u32 v{tA[1]}, v46, 4, v{x}
v_bfe_u32 v{x}, v0, 4, 1
v_lshlrev_b32 v{y}, 3, v{x}
v_lshlrev_b32 v{x}, 4, v{x}
v_bfe_u32 v46, v0, 5, 1
v_lshl_add_u32 v{x}, v46, 2, v{x}
v_bfe_u32 v46, v0, 2, 1
v_add_u32 v{x}, v{x}, v46
v_lshl_add_u32 v{y}, v46, 2, v{y}
v_lshlrev_b32 v{x}, 10, v{x}
v_and_b32 v46, 1, v0
v_lshl_add_u32 v{x}, v46, 3, v{x}
v_bfe_u32 v46, v0, 1, 1
v_bfe_u32 v47, v0, 3, 1
v_lshl_add_u32 v46, v47, 1, v46
v_add_u32 v46, s13, v46
v_xor_b32 v46, v46, v{y}
v_lshl_add_u32 v{tO}, v46, 4, v{x}
s_lshl_b32 s50, s12, 8
s_lshl_b32 s13, s9, 18
s_add_u32 s50, s50, s13        ; h*256 + w*32 rows*8192
s_lshl_b32 s51, s12, 17
s_lshl_b32 s13, s9, 13
s_add_u32 s51, s51, s13        ; h*131072 + w*8 rows*1024
s_lshl_b32 s52, s9, 13         ; w*8192 (lds)""")
    mats = [42] * 4 + [44] * 4 + [46] * 4 + [40] * 4
    slot = lambda i: ((i + 4) % 5) * 32768
    def issue(i):
        if i % 4 == 0: set_srd(A, 20, mats[i], 4 * MB)
        c = i % 4
        tok = None
        for j in range(8):
            A(f"s_add_u32 m0, s52, {slot(i) + j*1024}")
            if mats[i] == 46:
                A(f"s_add_u32 s13, s51, {c*32768 + j*1024}")
                tok = A(f"buffer_load_dwordx4 v{dO[j&1]}, {SRDW}, s13 offen lds")
            else:
                A(f"s_add_u32 s13, s50, {(128*c + 4*j)*8192}")
                tok = A(f"buffer_load_dwordx4 v{dA[j&3]}, {SRDW}, s13 offen lds")
        return tok
    toks = {}
    for i in range(4): toks[i] = issue(i)
    for i in range(16):
        A.wvm(toks[i])
        A("s_barrier")
        if i + 4 < 16: toks[i + 4] = issue(i + 4)
        c = i % 4
        if i == 14:
            for f in range(8):
                for part in range(2):
                    A(f"ds_write_b128 v{vWq0}, {v(64 + f*8 + part*4, 4)} offset:{f*2048 + part*1024}")
            A("s_waitcnt lgkmcnt(0)")
        if mats[i] == 46:
            A(f"v_add_u32 v{tc[0]}, {slot(i)}, v{tO}")
            for p in range(4):
                for xx in range(4):
                    A(f"ds_read_b64_tr_b16 {v(vWo + (p*4 + c)*8 + 2*xx, 2)}, v{tc[0]} offset:{(8*(xx>>1) + 2*(xx&1))*1024 + p*256}")
        else:
            A(f"v_add_u32 v{tc[0]}, {slot(i)}, v{tA[0]}\nv_add_u32 v{tc[1]}, {slot(i)}, v{tA[1]}")
            for tt in range(2):
                for te in range(2):
                    t = 2 * c + tt
                    for xx in range(4):
                        if mats[i] == 42: dst = a((t*2 + te)*8 + 2*xx, 2)
                        elif mats[i] == 44: dst = a(128 + (t*2 + te)*8 + 2*xx, 2)
                        else: dst = v(64 + (((t & 3)*2 + te)*8) + 2*xx, 2)
                        A(f"ds_read_b64_tr_b16 {dst}, v{tc[te]} offset:{(64*tt + 32*(xx>>1) + 2*(xx&1))*256}")
        A("s_waitcnt lgkmcnt(0)")
    A("s_barrier")
    for f in range(8):
        for part in range(2):
            A(f"ds_write_b128 v{vWq1}, {v(64 + f*8 + part*4, 4)} offset:{f*2048 + part*1024}")

NS = 6
SLQ = [5, 0, 1, 2, 3, 4]
def slot_reg(sl): return vAv0 if sl == 5 else vSTG + 8 * sl
def wq_read(A, i, sl):
    t, te = i >> 1, i & 1
    base = vWq0 if t < 4 else vWq1
    off = ((t & 3) * 2 + te) * 2048
    r = slot_reg(sl)
    return [f"ds_read_b128 {v(r,4)}, v{base} offset:{off}", f"ds_read_b128 {v(r+4,4)}, v{base} offset:{off+1024}"]

def step_scalars(A, layer, nxt):
    part = WS_PART + layer * 512 * 1024
    mem = WS_MEM + layer * (4 << MSL)
    return f"""s_and_b32 s13, s{sStep}, 1
s_lshl_b32 s13, s13, 18
s_add_u32 s{sPart}, s13, {part}
s_add_u32 s{sInb}, s{sPart}, s43
s_add_u32 s13, s{sStep}, 1
s_and_b32 s13, s13, 3
s_lshl_b32 s13, s13, {MSL}
s_add_u32 s{sMemN}, s13, {mem}
s_and_b32 s13, s{sStep}, 3
s_lshl_b32 s13, s13, {MSL}
s_add_u32 s{sMemP}, s13, {mem}
s_lshr_b32 s13, s{sStep}, 1
s_and_b32 s13, s13, 1
s_xor_b32 s{sPh}, s13, 1""".split("\n")

def delay(A, c):
    c = max(0, c) // 4
    while c > 0:
        n = min(c, 16); A(f"s_nop {n-1}"); c -= n

def kv_dma(A):
    for (ldsb, so) in [(LDS_K, 0), (LDS_V, WS_V - WS_K)]:
        A(f"s_add_u32 m0, s54, {ldsb}\ns_add_u32 s13, s{sKV}, {so}")
        A(f"buffer_load_dwordx4 v{vL16}, {SRD}, s13 offen lds\nbuffer_load_dwordx4 v{vL16}, {SRD}, s13 offen offset:1024 lds")

gS = [48, 56]
rS = [56, 80, 32]
vFA = 16; sF1, sF2, sFv = 44, 45, 46; sF1w, sF2w = 50, 51
vLw = 19
sGat2 = 42
CHKFIRST = [True]

def gload(r): return [f"buffer_load_dwordx4 {v(r,4)}, v{vGat}, {SRD}, s{sGat} offen sc1", f"buffer_load_dwordx4 {v(r+4,4)}, v{vGat}, {SRD}, s{sGat} offen offset:1024 sc1"]
def gwrite(r): return f"ds_write_b128 v{vLw}, {v(r,4)}\nds_write_b128 v{vLw}, {v(r+4,4)} offset:1024"
def gproc(A, r, ny, spec=True):
    A(f"s_waitcnt vmcnt({ny+1})")
    if spec: A(f"ds_write_b128 v{vLw}, {v(r,4)}")
    A(f"v_max3_u32 v{vT0}, v{r}, v{r+1}, v{r+2}\ns_waitcnt vmcnt({ny})")
    if spec: A(f"ds_write_b128 v{vLw}, {v(r+4,4)} offset:1024")
    A(f"""v_max3_u32 v{vT0}, v{vT0}, v{r+3}, v{r+4}
v_max3_u32 v{vT0}, v{vT0}, v{r+5}, v{r+6}
v_max_u32 v{vT0}, v{vT0}, v{r+7}
v_cmp_eq_u32 vcc, -1, v{vT0}""")
def g2dma(): return f"buffer_load_dwordx4 v{vGat}, {SRD}, s{sGat2} offen sc1 lds"
def rload(r): return [f"buffer_load_dwordx4 {v(r,4)}, v{vL16}, {SRD}, s{sInb} offen sc1", f"buffer_load_dwordx4 {v(r+4,4)}, v{vL16}, {SRD}, s{sInb} offen offset:1024 sc1"]
def rproc(A, r, n_younger, st=None):
    A(f"""s_waitcnt vmcnt({n_younger+1})
v_mfma_f32_16x16x32_bf16 {v(vRA,4)}, {v(vAS,4)}, {v(r,4)}, 0
v_bitop3_b32 v{vT0}, v{r}, v{r+2}, s{sPh} bitop3:0x7e
s_waitcnt vmcnt({n_younger})""")
    if st: st(7)
    A(f"""v_mfma_f32_16x16x32_bf16 {v(vRA,4)}, {v(vAS,4)}, {v(r+4,4)}, {v(vRA,4)}
v_bitop3_b32 v{vT1}, v{r+4}, v{r+6}, s{sPh} bitop3:0x7e
v_bitop3_b32 v{vT0}, v{vT0}, v{vT1}, 1 bitop3:0xa8
v_cmp_ne_u32 vcc, 0, v{vT0}""")

def fstore(sreg, nrep, SC):
    return [f"v_lshlrev_b32 v{vT0}, 4, v{vL16}", f"v_mov_b32 v{vT1}, s{sFv}", f"s_mov_b64 exec, {(1 << nrep) - 1}",
            f"buffer_store_dword v{vT1}, v{vT0}, {SRD}, s{sreg} offen{SC}", "s_mov_b64 exec, -1"]
def fpoll(r, sreg): return f"buffer_load_dword v{r}, v{vFA}, {SRD}, s{sreg} offen sc1"
def spin(A, lab, regs, sreg, ny0, cnt, cn, cidx):
    n = len(regs)
    A(f"s_waitcnt vmcnt({n - 1 + ny0})\nv_cmp_ne_u32 vcc, s{sFv}, v{regs[0]}\ns_cbranch_vccnz {lab}_sp\n{lab}_ok:")
def spin_ool(A, lab, regs, sreg, cnt, cn, cidx, tmo, first):
    n = len(regs)
    A(f"{lab}_sp:")
    for k_ in range(n - 1):
        cn(cidx)
        A(fpoll(regs[k_], sreg))
        A(f"s_waitcnt vmcnt({first[k_]})\nv_cmp_ne_u32 vcc, s{sFv}, v{regs[k_ + 1]}\ns_cbranch_vccz {lab}_ok")
    regs = regs[n - 1:] + regs[:n - 1]
    A(f"{lab}_lp:")
    for k_ in range(n):
        cn(cidx)
        A(fpoll(regs[k_], sreg))
        A(f"s_waitcnt vmcnt({n - 1})\nv_cmp_ne_u32 vcc, s{sFv}, v{regs[(k_ + 1) % n]}\ns_cbranch_vccz {lab}_ok")
    tmo(cnt, f"{lab}_to"); A(f"s_branch {lab}_lp\n{lab}_to:\ns_mov_b32 s{sDead}, {TMO}\ns_branch {lab}_ok")
F1R = [84, 85, 86]; F2R = [40, 41, 42]

def pf_setup(w, opt):
    return [f"s_add_u32 s{sKV}, s{sKV}, {KVSEG}", f"s_xor_b32 s{sKm}, s{sKm}, 0x6000", f"v_xor_b32 v{vKr}, 0x6000, v{vKr}", f"s_add_u32 m0, s39, {LDS_MEM + 4096}"]

def pubmix():
    q = "quad_perm:[0,1,0,1] row_mask:0xf bank_mask:0xf"
    return [f"v_cmp_ne_u32 vcc, 0x7f800000, v{vThr}", f"v_mov_b32_dpp v{vT0}, v{vVP} {q}", f"v_mov_b32_dpp v{vT1}, v{vVP+2} {q}",
            f"v_cndmask_b32 v{vKQ}, v{vKQ}, v{vVP}, vcc", f"v_cndmask_b32 v{vKQ+1}, v{vKQ+1}, v{vVP+2}, vcc",
            f"v_cndmask_b32 v{vKQ+2}, v{vKQ+2}, v{vT0}, vcc", f"v_cndmask_b32 v{vKQ+3}, v{vKQ+3}, v{vT1}, vcc"]

def gather_events(p, w, opt):
    n1 = opt.get("n1", 2) if w < 2 else 0
    dg = opt.get("dg", 128)
    t0 = opt.get("d2", [160, 100, 0, 0])[w]
    return [(t0 + k * dg, gS[k]) for k in range(n1)], n1

def body(A, P, layer, p, w, fast, last, opt):
    SC = "" if fast else " sc1"
    sfx = "_l" if last else ""
    stamp = opt.get("stamp")
    def st(k):
        if stamp and not last and k in opt.get("st", range(11)): A(f"s_memtime s[{60+2*k}:{61+2*k}]")
        if not last and opt.get("wv") == k: A("s_memtime s[62:63]\ns_waitcnt vmcnt(0) ;KEEP lgkm\ns_memtime s[64:65]\ns_waitcnt lgkmcnt(0)\ns_sub_u32 s13, s64, s62\ns_add_u32 s83, s83, s13\ns_max_u32 s84, s84, s13")
        if not last and opt.get("cut") == k: A(f"s_add_u32 s{sStep}, s{sStep}, 1\ns_branch {P}_cutend")
    A.reset_counts()
    ev, n1 = gather_events(p, w, opt)
    flags = opt.get("flags", 0)
    nxt = [0]
    tk = {}
    nab = 1 if opt.get("abs") else 0
    B1 = None
    if w < 2:
        spec = not opt.get("chk1", 1)
        gproc(A, gS[0], 2 * (n1 - 1) + nab, spec)
        A(f"s_cbranch_vccnz {P}_gr{sfx}")
        if not spec: A(gwrite(gS[0]))
        A(f"{P}_gok{sfx}:\ns_waitcnt lgkmcnt(0)")
        st(9)
    A("s_barrier")
    A(g2dma())
    A(f"{P}_entry{sfx}:")
    st(0)
    mrd = lambda t: f"ds_read_b128 {v(vMEM+4*t,4)}, v{vL16} offset:{LDS_MEM + t*1024}"
    mt = {}
    for t in range(3 if B1 is None else 2): mt[t] = A(mrd(t))
    A(f"s_mov_b32 m0, s{sKm}")
    seq = []
    for t in range(4): seq += [("k", 0, t), ("q", 0, t), ("k", 1, t), ("q", 1, t)]
    for te in range(2):
        for t in range(4, 8): seq += [("k", te, t), ("q", te, t)]
    N1 = 32
    V = [[] for _ in range(N1)]; S = [[] for _ in range(N1)]; X = [[] for _ in range(N1)]
    B2 = opt.get("b2", 13)
    quse = [(idx, 2 * t + te) for idx, (m, te, t) in enumerate(seq) if m == "q"]
    sl_seq = SLQ + [(n_ - 6) % 5 for n_ in range(6, 16)]
    slot = {f: sl_seq[n_] for n_, (idx, f) in enumerate(quse)}
    jobs = []
    lastuse = {}
    for n_, (idx, f) in enumerate(quse):
        if n_ >= NS:
            for x in wq_read(A, f, slot[f]): jobs.append((lastuse[slot[f]], idx, "wq", f, x))
        lastuse[slot[f]] = idx
    first = {}
    for idx, (m, te, t) in enumerate(seq): first.setdefault(t, idx)
    for t in range(3 if B1 is None else 2, 8): jobs.append(((0 if B1 is None else B1) if t < 4 else B2, first[t] - 3, "mem", t, mrd(t)))
    if not last:
        for n_, (c, u) in enumerate([(c, u) for c in range(2) for u in range(4)]):
            jobs.append((max(lastuse[1 + n_ // 2], opt.get("kx0", 24)), 100 + lastuse[1 + n_ // 2], "kx", n_, f"ds_read_b128 {v(vKx + (c*4+u)*4, 4)}, v{vKr} offset:{u*2048 + c*256}"))
        for n_ in range(2):
            jobs.append((max(lastuse[0], opt.get("kx0", 24)), 90, "kx", 8 + n_, f"ds_read_b128 {v(vVx+4*n_,4)}, v{vG512} offset:{LDS_V + w*2048 + 256*n_}"))
    D = [[] for _ in range(N1)]
    nod = set()
    for g_ in range(N1):
        cap = 2 if g_ in (B1, B2) else (0 if g_ in nod else 1)
        for _ in range(cap):
            av = [j for j in jobs if j[0] <= g_]
            if not av: break
            j = min(av, key=lambda j: j[1]); jobs.remove(j); D[g_].append(j[2:])
    assert all(j[2] == "kx" for j in jobs)
    X[B2].append(lambda: A(f"s_waitcnt vmcnt({nxt[0]})"))
    X[B2].append("s_barrier")
    for t in range(4, 8):
        r = vMEM + 4 * t
        V[first[t]].append(f"v_max_u32 v{vT0}, v{r}, v{r+1}" if t == 4 else f"v_max3_u32 v{vT0}, v{vT0}, v{r}, v{r+1}")
        V[first[t] + 1].append(f"v_max3_u32 v{vT0}, v{vT0}, v{r+2}, v{r+3}")
    V[24].append(f"v_cmp_eq_u32 vcc, -1, v{vT0}")
    f0 = [f"v_add_f32 v{vAk0}, v{vAk0}, v{vAk0+2}", f"v_add_f32 v{vAk0+1}, v{vAk0+1}, v{vAk0+3}",
          f"v_add_f32 v{vAq0}, v{vAq0}, v{vAq0+2}", f"v_add_f32 v{vAq0+1}, v{vAq0+1}, v{vAq0+3}",
          f"v_mul_f32 v{vAq0}, s{sC}, v{vAq0}", f"v_mul_f32 v{vAq0+1}, s{sC}, v{vAq0+1}",
          f"v_cvt_pk_bf16_f32 v{vKQ}, v{vAk0}, v{vAk0+1}"]
    for n_, x in enumerate(f0): V[25 + n_].append(x)
    for r in range(8): V[3 + r].append(f"v_mov_b32 v{vAv0+r}, 0")
    ext = []
    if not last and not opt.get("nokv"):
        ext.append(f"buffer_load_dwordx4 v{vL16}, {SRD}, s{sKV} offen lds")
        ext.append(f"buffer_load_dwordx4 v{vL16}, {SRD}, s{sKV} offen offset:1024 lds")
    if not opt.get("nopub"):
        ext.append(f"buffer_store_dwordx4 {v(vKQ,4)}, v{vL16}, {SRD}, s40 offen sc1")
        if w == 2: ext.append(f"v_mov_b32 v{vT1}, s41\ns_mov_b64 exec, 1\nbuffer_store_dword v{vT1}, off, {SRD}, s55 sc1\ns_mov_b64 exec, -1")
    pz = opt.get("pz", 2 if B1 is None else B1 + 1)
    pos_ = [pz + w + 4 * n_ for n_ in range(len(ext))]
    pos_ = [x if x < B2 - 1 else x + 4 for x in pos_]
    for n_, x in enumerate(ext): X[pos_[n_]].append(x)
    nxt[0] = sum(1 for x in pos_ if x < B2)
    S[26].append(f"s_add_u32 s{sGat}, s{sMemN}, s54"); S[28].append(f"s_add_u32 s{sGat2}, s{sMemN}, s52")
    wqtok = {}
    for idx, (m, te, t) in enumerate(seq):
        need = [mt[t]]
        if m == "q" and (2 * t + te) in wqtok: need.append(wqtok[2 * t + te])
        ns = [A.lgk_n(x) for x in need if A.lgk_n(x) is not None]
        if ns: A(f"s_waitcnt lgkmcnt({min(ns)})")
        if idx == 0 and not opt.get("abs"): st(1)
        if m == "k": smf(A, [vAk0, vAk1][te], vMEM + 4 * t, a((t * 2 + te) * 8, 8), vIK)
        else: smf(A, [vAq0, vAq1][te], vMEM + 4 * t, v(slot_reg(slot[2 * t + te]), 8), vIK)
        for x in X[idx]: (x() if callable(x) else A(x))
        for x in S[idx]: A(x)
        for (kind, key, txt) in D[idx]:
            tok = A(txt)
            {"wq": wqtok, "mem": mt, "kx": {}}[kind][key] = tok
        for x in V[idx]: A(x)
    st(2)
    def sv(j): smf(A, [vAv0, vAv1][j & 1], vMEM + 4 * (j >> 1), a(128 + j * 8, 8), vIK)
    kxr = [j[4] for j in jobs]
    if last: kxr = []
    def rdk(n_):
        for _ in range(n_):
            if kxr: A(kxr.pop(0))
    sv(0); rdk(1); A(f"v_cvt_pk_bf16_f32 v{vKQ+1}, v{vAq0}, v{vAq0+1}")
    sv(1); rdk(1); A(f"v_add_f32 v{vAk1}, v{vAk1}, v{vAk1+2}")
    A(f"""v_add_f32 v{vAk1+1}, v{vAk1+1}, v{vAk1+3}
v_add_f32 v{vAq1}, v{vAq1}, v{vAq1+2}
v_add_f32 v{vAq1+1}, v{vAq1+1}, v{vAq1+3}
v_cvt_pk_bf16_f32 v{vKQ+2}, v{vAk1}, v{vAk1+1}
v_mul_f32 v{vAq1}, s{sC}, v{vAq1}
v_mul_f32 v{vAq1+1}, s{sC}, v{vAq1+1}
v_cvt_pk_bf16_f32 v{vKQ+3}, v{vAq1}, v{vAq1+1}""")
    vfold = [f"v_add_f32 v{vAv0}, v{vAv0}, v{vAv0+2}", f"v_add_f32 v{vAv0+1}, v{vAv0+1}, v{vAv0+3}",
             f"v_cvt_pk_bf16_f32 v{vVP}, v{vAv0}, v{vAv0+1}", f"v_add_f32 v{vAv1}, v{vAv1}, v{vAv1+2}",
             f"v_add_f32 v{vAv1+1}, v{vAv1+1}, v{vAv1+3}", f"v_cvt_pk_bf16_f32 v{vVP+2}, v{vAv1}, v{vAv1+1}"]
    if last:
        A(f"s_cbranch_vccnz {P}_redo_l")
        A(f"ds_write2_b64 v{vFw}, {v(vKQ,2)}, {v(vKQ+2,2)} offset1:64")
        for j in range(2, 9): sv(j)
        A("s_waitcnt lgkmcnt(0)\ns_barrier")
        for jj in range(2): A(f"ds_read_b64_tr_b16 {v(vKQ + 2*jj, 2)}, v{vFr} offset:{1024*w + 256*jj}")
        for j in range(9, 16): sv(j)
        for x in vfold: A(x)
        A("s_waitcnt lgkmcnt(0)")
        for x in pubmix(): A(x)
        A(f"buffer_store_dwordx4 {v(vKQ,4)}, v{vL16}, {SRD}, s{sPub} offen sc1")
        return
    sv(2)
    fw = A(f"ds_write2_b64 v{vFw}, {v(vKQ,2)}, {v(vKQ+2,2)} offset1:64")
    NBF = opt.get("nbf", 7)
    for j in range(3, NBF):
        sv(j)
        if j == 3: A(f"s_cbranch_vccnz {P}_redo")
        else: rdk(1)
    rdk(10)
    A.wlg(fw); A("s_barrier")
    st(3)
    ft = []
    for tr in range(2): ft.append(A(f"ds_read_b64_tr_b16 {v(vF + 2*tr, 2)}, v{vFr} offset:{256*tr}"))
    dma = [f"buffer_load_dwordx4 v{vL16}, {SRD}, s13 offen lds",
           f"buffer_load_dwordx4 v{vL16}, {SRD}, s13 offen offset:1024 lds"]
    if opt.get("nokv"): dma = []
    NV1 = opt.get("nv1", 12)
    A(f"s_add_u32 m0, s54, {LDS_V}\ns_add_u32 s13, s{sKV}, {WS_V - WS_K}")
    dpos = {opt.get("dz", 0) + w + 4 * n_: x for n_, x in enumerate(dma)}
    gi = [0]
    def gap():
        if gi[0] in dpos: A(dpos.pop(gi[0]))
        gi[0] += 1
    for j in range(NBF, NV1):
        sv(j); gap()
        u = j - NBF + 1
        if u < 4:
            for jj in range(2):
                ft.append(A(f"ds_read_b64_tr_b16 {v(vF + 4*u + 2*jj, 2)}, v{vFr} offset:{1024*u + 256*jj}"))
    st(4)
    def mf(d, aa, bb, first_):
        A(f"v_mfma_f32_16x16x32_bf16 {v(d,4)}, {v(aa,4)}, {v(bb,4)}, " + ("0" if first_ else v(d, 4)))
    ex = lambda k_, src: f"v_exp_f32 v{vE+k_}, v{src}"
    cv = lambda d, x: f"v_cvt_pk_bf16_f32 v{d}, v{x}, v{x+1}"
    sq = [("x", 0, u) for u in range(4)] + [("x", 1, u) for u in range(4)]
    sq += [("v", j, 0) for j in range(NV1, 16)] + [("m", 0, u) for u in range(4)]
    G = {}
    fill = [ex(0, vSx0), ex(1, vSx0 + 1), ex(2, vSx0 + 2), ex(3, vSx0 + 3), ex(4, vSx1), ex(5, vSx1 + 1), ex(6, vSx1 + 2), ex(7, vSx1 + 3)]
    pos = 6
    while fill and pos < len(sq):
        G.setdefault(pos, []).append(fill.pop(0)); pos += 1
    tail = fill + [cv(vPx, vE), cv(vPx + 1, vE + 2), cv(vPx + 2, vE + 4), cv(vPx + 3, vE + 6)]
    while tail and pos < len(sq):
        G.setdefault(pos, []).extend(tail[:2]); tail = tail[2:]; pos += 1
    A.wlg(ft[-1])
    for r in range(4): G.setdefault(r, []).append(f"v_mov_b32 v{vKQ+r}, v{vF+4*w+r}")
    for n_, (kind, tile, u) in enumerate(sq):
        if kind == "x": mf([vSx0, vSx1][tile], vKx + (tile * 4 + u) * 4, vF + 4 * u, u == 0)
        elif kind == "m": mf(vSm, vF + 4 * u, vF + 4 * u, u == 0)
        else: sv(tile)
        gap()
        for x in G.get(n_, []): A(x)
    for k_ in sorted(dpos): A(dpos[k_])
    for x in tail: A(x)
    m16 = lambda d, aa, bb: A(f"v_mfma_f32_16x16x16_bf16 {v(d,4)}, {v(aa,2)}, {v(bb,2)}, {v(d,4)}")
    A(vfold[0]); A(vfold[1])
    mf(vL, vAS, vPx, True); A(vfold[2]); A(vfold[3])
    mf(vO0, vVx, vPx, True); A(ex(8, vSm))
    mf(vO1, vVx + 4, vPx, True); A(ex(9, vSm + 1))
    A(vfold[4]); A(cv(vPm, vE + 8)); A(vfold[5])
    A(f"v_max3_f32 v{vT1}, |v{vSx0}|, |v{vSx0+1}|, |v{vSx0+2}|")
    m16(vL, vAS, vPm)
    A(f"v_max3_f32 v{vT1}, v{vT1}, |v{vSx0+3}|, |v{vSx1}|\nv_max3_f32 v{vT1}, v{vT1}, |v{vSx1+1}|, |v{vSx1+2}|")
    m16(vO0, vVP, vPm)
    A(f"v_max3_f32 v{vT1}, v{vT1}, |v{vSx1+3}|, |v{vSm}|\nv_max_f32 v{vT1}, v{vT1}, |v{vSm+1}|")
    m16(vO1, vVP + 2, vPm)
    A(f"v_rcp_f32 v{vT0}, v{vL+2}")
    A(f"v_cmp_lt_f32 vcc, v{vThr}, v{vT1}")
    if opt.get("force_slow"): A(f"v_cmp_lt_f32 vcc, -1.0, v{vT1}")
    for r in range(4): A(f"v_mul_f32 v{vO0+r}, v{vT0}, v{vO0+r}")
    A(cv(vE, vO0)); A(cv(vE + 1, vO0 + 2))
    if opt.get("ow2", 1): A(f"ds_write_b64 v{vOw}, {v(vE,2)}")
    for r in range(2): A(f"v_pk_mul_f32 {v(vO1+2*r,2)}, {v(vO1+2*r,2)}, {v(vT0,2)} op_sel_hi:[1,0]")
    A(cv(vE + 2, vO1)); A(cv(vE + 3, vO1 + 2))
    ow = A(f"ds_write_b64 v{vOw}, {v(vE+2,2)} offset:8") if opt.get("ow2", 1) else A(f"ds_write_b128 v{vOw}, {v(vE,4)}")
    A(f"s_cbranch_vccnz {P}_slow")
    A(f"{P}_norm:")
    if w == 3 and flags:
        for x in fstore(sF1w, 8, SC): A(x)
    for r in range(0, 8, 2): A(f"v_mov_b64 {v(vOUT+r,2)}, 0")
    A.wlg(ow); A("s_barrier")
    st(5)
    ot = [A(f"ds_read_b128 {v(vOF+4*kk,4)}, v{vOr} offset:{kk*512}") for kk in range(4)]
    A(f"s_add_u32 s13, s{sPart}, 0")
    for r in range(8, 16, 2): A(f"v_mov_b64 {v(vOUT+r,2)}, 0")
    pre = []
    for n_ in range(1, 6): pre += wq_read(A, quse[n_][1], SLQ[n_])
    def epi(pp):
        return [f"v_cvt_pk_bf16_f32 v{vPK+2*pp}, v{vOUT+4*pp}, v{vOUT+4*pp+1}",
                f"v_cvt_pk_bf16_f32 v{vPK+2*pp+1}, v{vOUT+4*pp+2}, v{vOUT+4*pp+3}",
                f"v_bfi_b32 v{vPK+2*pp}, 1, s{sPh}, v{vPK+2*pp}",
                f"buffer_store_dwordx2 {v(vPK+2*pp,2)}, v{vPst}, {SRD}, s13 offen{SC}"]
    if opt.get("e1fast", 1):
        e1 = 6; E = {5: epi(0), 9: epi(1), 13: epi(2)[0:1], 14: epi(2)[1:2], 15: epi(2)[2:3]}
    else:
        e1 = 9; E = {5: epi(0), 9: epi(1)[0:1], 10: epi(1)[1:2], 11: epi(1)[2:3], 12: epi(1)[3:4], 13: epi(2)[0:1], 14: epi(2)[1:2], 15: epi(2)[2:3]}
    rsch = opt.get("rs", [[16, 200], [120, 250], [260, 390], [320, 450]])[w]
    rtk = []
    def rissue():
        if opt.get("abs") and not rtk: A("s_memtime s[68:69]")
        for x in rload(rS[len(rtk)]): t_ = A(x)
        rtk.append(t_)
    fpos = opt.get("fpos", [6, 11, 15]); ftok = []
    for n_ in range(16):
        pp, kk = n_ >> 2, n_ & 3
        A.wlg(ot[kk])
        smf(A, vOUT + 4 * pp, vOF + 4 * kk, v(vWo + n_ * 8, 8), vIN)
        if n_ == 8: A(f"s_add_u32 s13, s{sPart}, {65536}")
        if n_ == 13: A(f"s_add_u32 s13, s{sPart}, {2*65536}")
        if n_ in rsch: rissue()
        elif flags and n_ in fpos: ftok.append(A(fpoll(F1R[len(ftok)], sF1)))
        elif pre and n_ >= 3 and n_ not in (5, e1 + 3): A(pre.pop(0))
        for x in E.get(n_, []): A(x)
        if n_ == 5: st(10)
    A(epi(2)[3])
    A(f"s_add_u32 s13, s{sPart}, {3*65536}")
    while pre: A(pre.pop(0))
    A(f"s_mov_b32 s40, s{sPub}\ns_add_u32 s{sPub}, s{sPub}, {PUBSEG}\ns_mov_b32 s14, 0\ns_mov_b32 s15, 0")
    for x in epi(3)[:3]: A(x)
    if 16 in rsch: rissue()
    A(epi(3)[3])
    st(6)
    idle = [f"v_mov_b64 {v(vAk0+r,2)}, 0" for r in range(0, 16, 2)]
    idle2 = pubmix()
    def wait_fill(d):
        while idle and d >= 4: A(idle.pop(0)); d -= 4
        delay(A, d)
    if flags:
        for _ in range(4): A(idle.pop(0))
        opt["_f1first"] = [A.vm_n(ftok[k_]) + k_ for k_ in range(1, 3)]
        spin(A, f"{P}_f1", F1R, sF1, A.vm_n(ftok[0]) - 2, 14, None, 0)
        A.vm = []
    cur = 0
    for tm in [x - 100 for x in rsch if x >= 100]:
        wait_fill(tm - cur); cur = max(cur, tm) + 12
        rissue()
    if flags and w < 2:
        for x in fstore(sF2w, 4, SC): A(x)
        cur = 24
        for k_ in range(3):
            tm = opt.get("f2t", 110) + k_ * opt.get("f2d", 50)
            wait_fill(tm - cur); cur = tm + 6
            A(fpoll(F2R[k_], sF2))
    while idle: A(idle.pop(0))
    opt["_rfirst"] = [A.vm_n(rtk[k_]) + 2 * k_ for k_ in range(1, len(rtk))]
    rproc(A, rS[0], A.vm_n(rtk[0]), st)
    A(f"""s_cbranch_vccnz {P}_rr
{P}_rok:
{"s_memtime s[66:67]" if opt.get("abs") else "s_nop 0"}
v_add_f32_dpp v{vRT}, v{vRA}, v{vRA} row_ror:4 row_mask:0xf bank_mask:0xf ;NOHAZ
v_add_f32_dpp v{vRT+1}, v{vRA+1}, v{vRA+1} row_ror:4 row_mask:0xf bank_mask:0xf ;NOHAZ
v_add_f32_dpp v{vRT+2}, v{vRT}, v{vRT} row_ror:8 row_mask:0xf bank_mask:0xf
v_add_f32_dpp v{vRT+3}, v{vRT+1}, v{vRT+1} row_ror:8 row_mask:0xf bank_mask:0xf
v_cvt_pk_bf16_f32 v{vT0}, v{vRT+2}, v{vRT+3}
buffer_store_dword v{vT0}, v{vMst}, {SRD}, s{sMemN} offen{SC}""")
    st(8)
    A(f"v_mov_b32 v{vT1}, -1\nbuffer_store_dword v{vT1}, v{vMst}, {SRD}, s{sMemP} offen{SC}")
    if opt.get("dumpmem"):
        A(f"s_lshl_b32 s13, s{sStep}, 16\ns_add_u32 s13, s13, {WS_OP + 65536}\nbuffer_store_dword v{vT0}, v{vMst}, {SRD}, s13 offen")
    idle += [f"s_mov_b32 s41, s{sStep}", f"s_add_u32 s{sStep}, s{sStep}, 1"] + idle2
    post = step_scalars(A, layer, 0) + [f"s_add_u32 s{sFv}, s{sFv}, 1"] + pf_setup(w, opt)
    if stamp:
        idle += ["s_waitcnt lgkmcnt(0)"]
        for k_ in list(range(1, 9)) + [10]:
            idle += [f"s_sub_u32 s13, s{60+2*k_}, s60", f"s_add_u32 s{82+k_}, s{82+k_}, s13"]
        idle += ["s_sub_u32 s13, s60, s78", "s_add_u32 s91, s91, s13"]
    absd = []
    if opt.get("abs"):
        absd = ["s_waitcnt lgkmcnt(0)", f"s_lshl_b32 s13, s41, 13", f"s_lshl_b32 s38, s12, 8", "s_add_u32 s13, s13, s38", f"s_add_u32 s13, s13, {WS_OP + 8*MB + w*64}"]
        for k_ in range(11):
            absd += [f"v_writelane_b32 v{vT1}, s{60+2*k_}, {k_}"]
        absd += [f"v_lshrrev_b32 v{vT0}, 2, v{vL16}", f"s_mov_b64 exec, 0xffff", f"buffer_store_dword v{vT1}, v{vT0}, {SRD}, s13 offen", "s_mov_b64 exec, -1"]
    if flags and w < 2:
        spin(A, f"{P}_f2", F2R, sF2, 2 + (1 if opt.get("dumpmem") else 0), 15, None, 0)
    cur = 0
    for (tm, r) in ev:
        wait_fill(tm - cur); cur = max(cur, tm) + 12
        if r == gS[0]: st(1) if opt.get("abs") else None
        for x in gload(r): A(x)
    while idle: A(idle.pop(0))
    for x in post: A(x)
    A(f"s_waitcnt vmcnt({2 + 2 * n1})")
    for x in wq_read(A, 0, 5): A(x)
    for x in absd: A(x)

def variant(A, P, layer, p, w, fast, opt):
    A(f".p2align 6\n{P}_top:")
    body(A, P, layer, p, w, fast, False, opt)
    A(f"""{P}_cutend:
s_waitcnt lgkmcnt(0)
s_cmp_lt_u32 s{sStep}, 63
s_cbranch_scc1 {P}_top""")
    body(A, P, layer, p, w, fast, True, opt)
    A(f"""s_waitcnt vmcnt(0)
s_barrier
v_mov_b32 v{vT1}, 64
s_branch chain{layer}_fin""")
    cn = lambda r: A(f"s_add_u32 s{r}, s{r}, 1") if opt.get("cnt") else None
    def tmo(cnt, ok):
        A(f"""s_add_u32 s{cnt}, s{cnt}, s{sDead}
s_cmp_ge_u32 s{cnt}, {TMO}
s_cbranch_scc1 {ok}""")
    def retry(lab, sets, load, proc, okl, cnt, cidx, first):
        n = len(sets)
        A(f"{lab}:")
        for k_ in range(n - 1):
            cn(cidx)
            for x in load(sets[k_]): A(x)
            proc(A, sets[k_ + 1], first[k_])
            A(f"s_cbranch_vccz {okl}")
        sets = sets[n - 1:] + sets[:n - 1]
        A(f"{lab}_lp:")
        for k_ in range(n):
            cn(cidx)
            for x in load(sets[k_]): A(x)
            proc(A, sets[(k_ + 1) % n], len(load(0)) * (n - 1))
            A(f"s_cbranch_vccz {okl}")
        tmo(cnt, f"{lab}_to"); A(f"s_branch {lab}_lp\n{lab}_to:\ns_mov_b32 s{sDead}, {TMO}\ns_branch {okl}")
    retry(f"{P}_rr", rS[:len(opt["_rfirst"]) + 1], rload, rproc, f"{P}_rok", 14, 94, opt["_rfirst"])
    if opt.get("flags", 0):
        spin_ool(A, f"{P}_f1", F1R, sF1, 14, cn, 96, tmo, opt["_f1first"])
        if w < 2: spin_ool(A, f"{P}_f2", F2R, sF2, 15, cn, 97, tmo, [4, 4])
    for sfx in ["", "_l"]:
        ev, n1 = gather_events(p, w, opt)
        if w < 2: retry(f"{P}_gr{sfx}", gS[:n1], gload, gproc, f"{P}_gok{sfx}", 15, 95, [2 * (n1 - 1)] * (n1 - 1))
        A(f"{P}_redo{sfx}:")
        cn(96)
        A(f"""s_add_u32 s15, s15, s{sDead}
s_cmp_ge_u32 s15, {TMO}
s_cbranch_scc1 chain{layer}_end
s_waitcnt vmcnt(0) lgkmcnt(0)
s_barrier
s_add_u32 s40, s53, {WS_FLAG + 65536}
s_add_u32 s{sGat2}, s{sMemP}, s39
s_add_u32 s{sGat}, s{sMemP}, s39
s_add_u32 s{sGat2}, s{sGat2}, 4096
s_add_u32 m0, s39, {LDS_MEM}
s_nop 0
buffer_load_dwordx4 v{vGat}, {SRD}, s{sGat} offen sc1 lds
s_add_u32 m0, s39, {LDS_MEM + 4096}""")
        for r in range(0, 16, 2): A(f"v_mov_b64 {v(vAk0+r,2)}, 0")
        A(g2dma())
        for i in range(6):
            for x in wq_read(A, i, SLQ[i]): A(x)
        A(f"s_waitcnt vmcnt(0) lgkmcnt(0)\ns_barrier\ns_branch {P}_entry{sfx}")
    A(f"{P}_slow:\ns_waitcnt lgkmcnt(0)\ns_nop 7")
    A(f"""v_max3_f32 v{vT0}, v{vSx0}, v{vSx0+1}, v{vSx0+2}
v_max3_f32 v{vT1}, v{vSx0+3}, v{vSx1}, v{vSx1+1}
v_max3_f32 v{vT0}, v{vT0}, v{vSx1+2}, v{vSx1+3}
v_max3_f32 v{vT1}, v{vT1}, v{vSm}, v{vSm+1}
v_max_f32 v{vT0}, v{vT0}, v{vT1}
v_mov_b32 v{vT1}, v{vT0}
v_permlane32_swap_b32 v{vT0}, v{vT1}
v_max_f32 v{vT0}, v{vT0}, v{vT1}
v_mov_b32 v{vT1}, v{vT0}
v_permlane16_swap_b32 v{vT0}, v{vT1}
v_max_f32 v{vT0}, v{vT0}, v{vT1}""")
    srcs = [vSx0 + i for i in range(4)] + [vSx1 + i for i in range(4)] + [vSm, vSm + 1]
    for k_, x in enumerate(srcs): A(f"v_sub_f32 v{vE+k_}, v{x}, v{vT0}")
    for k_ in range(10): A(f"v_exp_f32 v{vE+k_}, v{vE+k_}")
    for k_ in range(4): A(f"v_cvt_pk_bf16_f32 v{vPx+k_}, v{vE+2*k_}, v{vE+2*k_+1}")
    A(f"v_cvt_pk_bf16_f32 v{vPm}, v{vE+8}, v{vE+9}")
    for (d, aa) in [(vO0, vVx), (vO1, vVx + 4), (vL, vAS)]:
        A(f"v_mfma_f32_16x16x32_bf16 {v(d,4)}, {v(aa,4)}, {v(vPx,4)}, 0")
    for (d, aa) in [(vL, vAS), (vO0, vVP), (vO1, vVP + 2)]:
        A(f"v_mfma_f32_16x16x16_bf16 {v(d,4)}, {v(aa,2)}, {v(vPm,2)}, {v(d,4)}")
    A("s_nop 7")
    A(f"v_rcp_f32 v{vT0}, v{vL+2}")
    for r in range(8): A(f"v_mul_f32 v{vO0+r}, v{vT0}, v{vO0+r}")
    for r in range(4): A(f"v_cvt_pk_bf16_f32 v{vE+r}, v{vO0+2*r}, v{vO0+2*r+1}")
    A(f"ds_write_b128 v{vOw}, {v(vE,4)}\ns_waitcnt lgkmcnt(0)\ns_branch {P}_norm")

def chain_kernel(layer, opt):
    A = Asm(strict=opt.get("strict", False))
    P = f"chain{layer}"
    role_code(A, P, opt.get("force_fb"))
    set_srd(A, 16, 4, WS_SIZE)
    A(f"""s_cmp_lt_u32 s12, 32
s_cbranch_scc1 {P}_member""")
    mode_poll(A, P, "a")
    A(f"""s_cmp_ge_u32 s13, 32
s_cbranch_scc1 {P}_end
s_mov_b32 s38, s13
s_cmp_lg_u32 s9, 0
s_cbranch_scc1 {P}_ad1
v_cmp_eq_u32 vcc, 0, v0
s_and_saveexec_b64 s[10:11], vcc
global_atomic_add v4, v2, v3, s[6:7] offset:8 sc0
s_waitcnt vmcnt(0)
ds_write_b32 v2, v4
s_waitcnt lgkmcnt(0)
s_mov_b64 exec, s[10:11]
{P}_ad1:
s_barrier
ds_read_b32 v4, v2
s_waitcnt lgkmcnt(0)
v_readfirstlane_b32 s12, v4
s_barrier
s_add_u32 s12, s12, s38
s_cmp_ge_u32 s12, 32
s_cbranch_scc1 {P}_end
{P}_member:""")
    lane_consts(A, layer, opt)
    weights_prologue(A)
    A(f"""s_lshl_b32 s54, s9, 11
s_lshl_b32 s53, s12, 13
s_add_u32 s53, s53, s54
s_lshl_b32 s39, s9, 10
s_lshl_b32 s{sKV}, s12, 19
s_add_u32 s{sKV}, s{sKV}, s54
s_add_u32 s{sKV}, s{sKV}, {WS_K}
s_lshl_b32 s{sPub}, s12, 18
s_add_u32 s{sPub}, s{sPub}, s39
s_add_u32 s{sPub}, s{sPub}, {WS_KVM}
s_add_u32 s40, s53, {WS_FLAG + 65536}
v_mov_b32 v32, 0
v_readfirstlane_b32 s{sStep}, v32
s_mov_b32 s41, 0
s_mov_b32 s{sFv}, 1
s_lshl_b32 s13, s12, 2
s_add_u32 s{sF1w}, s13, {WS_CFL + layer * 8192}
s_lshl_b32 s14, s9, 10
s_add_u32 s14, s14, {WS_CFL + layer * 8192 + 4096}
s_add_u32 s{sF2w}, s14, s13
s_and_b32 s13, s12, 3
s_lshl_b32 s13, s13, 8
s_add_u32 s{sF2}, s14, s13
s_and_b32 s13, s12, 1
s_lshl_b32 s14, s9, 1
s_add_u32 s13, s13, s14
s_lshl_b32 s13, s13, 8
s_add_u32 s{sF1}, s13, {WS_CFL + layer * 8192}
s_lshl_b32 s43, s9, 16
s_lshl_b32 s13, s12, 11
s_add_u32 s43, s43, s13
s_lshl_b32 s55, s12, 8
s_add_u32 s55, s55, {WS_PROG + layer * 8192}""")
    for x in step_scalars(A, layer, 0): A(x)
    set_srd(A, 20, 48, 8192)
    A(f"""v_lshrrev_b32 v32, 2, v0
v_and_b32 v32, 3, v32
v_lshlrev_b32 v32, 1, v32
v_and_b32 v33, 1, v0
v_add_u32 v32, v32, v33
v_lshlrev_b32 v32, 10, v32
v_lshrrev_b32 v33, 4, v0
v_lshl_add_u32 v32, v33, 5, v32
v_bfe_u32 v33, v0, 1, 1
v_lshl_add_u32 v32, v33, 4, v32
s_lshl_b32 s13, s9, 7
s_add_u32 m0, s39, {LDS_MEM}
s_nop 0
buffer_load_dwordx4 v32, {SRDW}, s13 offen lds
s_add_u32 m0, s39, {LDS_MEM + 4096}
s_add_u32 s13, s13, 512
buffer_load_dwordx4 v32, {SRDW}, s13 offen lds""")
    kv_dma(A)
    A(f"s_add_u32 s{sKV}, s{sKV}, {KVSEG}")
    A("s_waitcnt lgkmcnt(0)")
    for r in range(0, 16, 2): A(f"v_mov_b64 {v(vAk0+r,2)}, 0")
    A(f"v_mov_b32 v{vVP}, 0\nv_mov_b32 v{vVP+2}, 0\nv_mov_b32 v{vVP+1}, 0\nv_mov_b32 v{vVP+3}, 0\nv_mov_b32 v{vPm+1}, 0\nv_mov_b32 v2, 0")
    A("s_barrier")
    for i in range(6):
        for x in wq_read(A, i, SLQ[i]): A(x)
    A("v_mov_b32 v32, v4\nv_mov_b32 v33, v5")
    mode_poll(A, P, "b")
    A(f"""v_mov_b32 v4, v32
v_mov_b32 v5, v33
v_lshrrev_b32 v32, 4, v0
v_and_b32 v33, 15, v0
v_lshlrev_b32 v{vG512}, 9, v32
v_lshl_add_u32 v{vG512}, v33, 4, v{vG512}
v_mov_b32 v0, v30
s_mov_b32 s14, 0
s_mov_b32 s15, 0""")
    if opt.get("cnt"):
        for r in range(60, 98): A(f"s_mov_b32 s{r}, 0")
        A("s_memtime s[98:99]")
    A("s_waitcnt vmcnt(0) lgkmcnt(0)")
    A(f"s_add_u32 s{sKm}, s54, {LDS_K + 8192}\ns_add_u32 s52, s39, 4096\ns_barrier")
    A(f"s_cmp_lt_u32 s13, 32\ns_cbranch_scc1 {P}_fb")
    for (tg, c) in [("", "f"), (f"{P}_fb:", "s")]:
        if tg: A(tg)
        for q in range(3): A(f"s_cmp_eq_u32 s9, {q}\ns_cbranch_scc1 {P}_{c}{q}_entry")
        A(f"s_branch {P}_{c}3_entry")
    for q in range(4): variant(A, f"{P}_f{q}", layer, 0, q, True, opt)
    o2 = dict(opt); o2.update(d2=[0,0,0,0])
    for q in range(4): variant(A, f"{P}_s{q}", layer, 0, q, False, o2)
    A(f"""{P}_fin:
s_cmp_lg_u32 s9, 2
s_cbranch_scc1 {P}_fin2
s_mov_b64 exec, 1
buffer_store_dword v{vT1}, off, {SRD}, s55 sc1
s_mov_b64 exec, -1
{P}_fin2:""")
    if opt.get("trace"):
        A(f"s_lshl_b32 s13, s12, 2\ns_add_u32 s13, s13, s9\ns_lshl_b32 s13, s13, 6\ns_add_u32 s13, s13, {WS_FLAG + 16384}")
        for k_ in range(16):
            A(f"v_mov_b32 v32, s{60+2*k_}\nbuffer_store_dword v32, off, {SRD}, s13 offset:{4*k_}\ns_nop 1")
    if opt.get("cnt"):
        A(f"""s_memtime s[60:61]
s_waitcnt lgkmcnt(0)
s_sub_u32 s82, s60, s98
s_lshl_b32 s13, s12, 2
s_add_u32 s13, s13, s9
s_lshl_b32 s13, s13, 6
s_add_u32 s13, s13, {WS_FLAG}""")
        for k_ in range(16):
            A(f"v_mov_b32 v32, s{82+k_}\nbuffer_store_dword v32, off, {SRD}, s13 offset:{4*k_}\ns_nop 1")
    A(f"s_waitcnt vmcnt(0)\n{P}_end:\ns_endpgm")
    if opt.get("nocomm"):
        A.L = [x for x in A.L if not (isinstance(x, Ins) and x.mn == "s_cbranch_vccnz" and any(t in x.text for t in ("_rr", "_gr", "_redo")))]
    if opt.get("novm"):
        seen = False; L2 = []
        for x in A.L:
            if isinstance(x, str) and x.endswith("_top:"): seen = True
            if seen and isinstance(x, Ins) and x.mn == "s_waitcnt" and "vmcnt" in x.text and "lgkm" not in x.text: continue
            L2.append(x)
        A.L = L2
    if opt.get("drop"):
        seen = False; L2 = []
        for x in A.L:
            if isinstance(x, str) and x.endswith("_top:"): seen = True
            if seen and isinstance(x, Ins) and any(t in x.text for t in opt["drop"]): continue
            L2.append(x)
        A.L = L2
    n = A.fix_hazards(verbose=opt.get("verbose"), name=P)
    if opt.get("ldf"):
        fastreg = False
        for x in A.L:
            if isinstance(x, str) and x.endswith("_top:"): fastreg = "_f" in x
            if fastreg and isinstance(x, Ins) and x.mn.startswith("buffer_load") and x.text.endswith(" sc1"):
                x.text = x.text[:-4] + " " + opt["ldf"]
    if opt.get("trace"):
        a0, stride = opt["trace"]
        L2 = []; cnt = None; k_ = 0
        for x in A.L:
            if isinstance(x, str) and x.endswith("_top:"): cnt = 0; k_ = 0
            if isinstance(x, str) and x.endswith("_cutend:"): cnt = None
            L2.append(x)
            if cnt is not None and isinstance(x, Ins):
                if cnt >= a0 and (cnt - a0) % stride == 0 and k_ < 16:
                    L2.append(Ins(f"s_memtime s[{60+2*k_}:{61+2*k_}]")); k_ += 1
                cnt += 1
        A.L = L2
    return A
```

```python
from asmlib import *
from layout import *
import math, struct
def f32bits(x): return struct.unpack("<I", struct.pack("<f", x))[0]
def set_srd(A, base, lo, size):
    A(f"s_mov_b32 s{base}, s{lo}\ns_mov_b32 s{base+1}, s{lo+1}\ns_mov_b32 s{base+2}, {size}\ns_mov_b32 s{base+3}, 0x20000")
def mf32(A, d, aa, bb, first=False, c=None):
    A(f"v_mfma_f32_32x32x16_bf16 {d}, {aa}, {bb}, " + ("0" if first else (c or d)))
def dperm_code(A, dst, src, t):
    A(f"""v_and_b32 v{dst}, 19, v{src}
v_bfe_u32 v{t}, v{src}, 2, 1
v_lshl_or_b32 v{dst}, v{t}, 3, v{dst}
v_bfe_u32 v{t}, v{src}, 3, 1
v_lshl_or_b32 v{dst}, v{t}, 2, v{dst}""")

def layernorm(A, X, N, F, tmp, ldsaddr, lds_off, nw, out, sW=9):
    t0, t1, t2, t3, t4, t5 = range(tmp, tmp + 6)
    def wsum(slot):
        A(f"v_mov_b32 v{t1}, v{t0}\nv_permlane32_swap_b32 v{t0}, v{t1}\nv_add_f32 v{t0}, v{t0}, v{t1}")
        A(f"s_lshl_b32 s13, s{sW}, 7\nv_add_u32 v{t2}, s13, v{ldsaddr}\nds_write_b32 v{t2}, v{t0} offset:{lds_off + slot*nw*128}\ns_waitcnt lgkmcnt(0)\ns_barrier")
        for k in range(0, nw, 2):
            A(f"ds_read2_b32 {v(t2 if k % 4 == 0 else t4, 2)}, v{ldsaddr} offset0:{(lds_off + slot*nw*128)//4 + k*32} offset1:{(lds_off + slot*nw*128)//4 + k*32 + 32}") if False else None
        A(f"v_add_u32 v{t1}, {lds_off + slot*nw*128}, v{ldsaddr}")
        for k in range(0, nw, 4):
            A(f"ds_read2_b32 {v(t2,2)}, v{t1} offset0:{k*32} offset1:{k*32+32}\nds_read2_b32 {v(t4,2)}, v{t1} offset0:{k*32+64} offset1:{k*32+96}\ns_waitcnt lgkmcnt(0)")
            if k == 0: A(f"v_add_f32 v{t0}, v{t2}, v{t3}")
            else: A(f"v_add_f32 v{t0}, v{t0}, v{t2}\nv_add_f32 v{t0}, v{t0}, v{t3}")
            A(f"v_add_f32 v{t0}, v{t0}, v{t4}\nv_add_f32 v{t0}, v{t0}, v{t5}")
    assert tmp % 2 == 0
    A(f"v_add_f32 v{t0}, v{X}, v{X+1}\nv_add_f32 v{t1}, v{X+2}, v{X+3}")
    for i in range(4, N, 2): A(f"v_add_f32 v{t0}, v{t0}, v{X+i}\nv_add_f32 v{t1}, v{t1}, v{X+i+1}")
    A(f"v_add_f32 v{t0}, v{t0}, v{t1}")
    wsum(0)
    mean = out + N // 2 - 1 if False else None
    A(f"v_mul_f32 v{F}, {f32bits(1/512):#x}, v{t0}")
    A(f"v_sub_f32 v{t2}, v{X}, v{F}\nv_mul_f32 v{t0}, v{t2}, v{t2}\nv_sub_f32 v{t3}, v{X+1}, v{F}\nv_mul_f32 v{t1}, v{t3}, v{t3}")
    for i in range(2, N, 2):
        A(f"v_sub_f32 v{t2}, v{X+i}, v{F}\nv_sub_f32 v{t3}, v{X+i+1}, v{F}\nv_fmac_f32 v{t0}, v{t2}, v{t2}\nv_fmac_f32 v{t1}, v{t3}, v{t3}")
    A(f"v_add_f32 v{t0}, v{t0}, v{t1}")
    wsum(1)
    A(f"""v_mul_f32 v{t0}, {f32bits(1/512):#x}, v{t0}
v_cvt_pk_bf16_f32 v{t1}, v{t0}, v{F}
v_and_b32 v{F}, 0xffff0000, v{t1}
v_lshlrev_b32 v{t0}, 16, v{t1}
v_add_f32 v{t0}, {f32bits(1e-5):#x}, v{t0}
v_cvt_pk_bf16_f32 v{t0}, v{t0}, v{t0}
v_and_b32 v{t0}, 0xffff0000, v{t0}
v_sqrt_f32 v{t0}, v{t0}
v_cvt_pk_bf16_f32 v{t0}, v{t0}, v{t0}
v_and_b32 v{t0}, 0xffff0000, v{t0}
v_rcp_f32 v{t0}, v{t0}""")
    for i in range(0, N, 2):
        A(f"""v_sub_f32 v{t2}, v{X+i}, v{F}
v_sub_f32 v{t3}, v{X+i+1}, v{F}
v_cvt_pk_bf16_f32 v{t2}, v{t2}, v{t3}
v_and_b32 v{t3}, 0xffff0000, v{t2}
v_lshlrev_b32 v{t2}, 16, v{t2}
v_mul_f32 v{t3}, v{t0}, v{t3}
v_mul_f32 v{t2}, v{t0}, v{t2}
v_cvt_pk_bf16_f32 v{out + i//2}, v{t2}, v{t3}""")

def unpack(A, dst, src, n):
    for i in range(n):
        A(f"v_lshlrev_b32 v{dst+2*i}, 16, v{src+i}\nv_and_b32 v{dst+2*i+1}, 0xffff0000, v{src+i}")

def std_prologue(A, P, nwg, ptrs):
    A(f"s_cmp_ge_u32 s2, {nwg}\ns_cbranch_scc1 {P}_end")
    for (r, off) in ptrs: A(f"s_load_dwordx2 s[{r}:{r+1}], s[0:1], {off}")
    A("v_lshrrev_b32 v1, 6, v0\nv_and_b32 v0, 63, v0\nv_readfirstlane_b32 s9, v1\ns_waitcnt lgkmcnt(0)")
```

```python
from common import *

def cos_chunk(A, dst, ph0, step, amp, t):
    pass

def pre_kernel(opt):
    A = Asm(strict=opt.get("strict", False)); P = "pre"
    std_prologue(A, P, 256, [(4, KA_WS), (6, KA_X), (10, KA_WR), (14, KA_WI)])
    set_srd(A, 16, 4, WS_SIZE)
    A(f"""v_lshlrev_b32 v1, 4, v0
v_lshrrev_b32 v2, 5, v0
v_and_b32 v3, 31, v0
s_cmp_ge_u32 s2, 192
s_cbranch_scc1 {P}_wt
s_cmp_ge_u32 s2, 64
s_cbranch_scc1 {P}_tab""")
    set_srd(A, 20, 6, 2 * MB)
    A(f"""v_lshlrev_b32 v4, 10, v3
v_lshl_add_u32 v4, v2, 4, v4
s_lshl_b32 s12, s2, 15
s_lshl_b32 s13, s9, 8
s_add_u32 s13, s13, s12
s_lshl_b32 s14, s9, 13
s_add_u32 s14, s14, s12
s_add_u32 s15, s14, {WS_XA}
s_add_u32 s24, s15, 4096
s_add_u32 s25, s14, 4096
v_lshlrev_b32 v5, 2, v3""")
    for k in range(8): A(f"buffer_load_dwordx4 {v(16+4*k,4)}, v4, s[20:23], s13 offen offset:{32*k}")
    A("s_waitcnt vmcnt(0)")
    for k in range(8): A(f"buffer_store_dwordx4 {v(16+4*k,4)}, v1, s[16:19], s{15 if k < 4 else 24} offen offset:{1024*(k&3)}")
    unpack(A, 64, 16, 32)
    layernorm(A, 64, 64, 6, 8, 5, 0, 4, 128)
    for k in range(8): A(f"buffer_store_dwordx4 {v(128+4*k,4)}, v1, s[16:19], s{14 if k < 4 else 25} offen offset:{1024*(k&3)}")
    A(f"s_branch {P}_done")
    A(f"""{P}_tab:
s_and_b32 s12, s2, 63
s_lshl_b32 s12, s12, 3
s_lshl_b32 s13, s9, 1
s_add_u32 s12, s12, s13
s_lshr_b32 s14, s12, 5           ; tile
s_and_b32 s15, s12, 31           ; ks
s_lshl_b32 s24, s12, 10
s_cmp_ge_u32 s2, 128
s_cbranch_scc1 {P}_ti
s_lshl_b32 s14, s14, 5
v_add_u32 v4, s14, v3
v_lshrrev_b32 v5, 1, v4
v_and_b32 v6, 1, v4
v_lshlrev_b32 v6, 7, v6
v_cmp_eq_u32 vcc, 1, v4
v_mov_b32 v7, 256
v_cndmask_b32 v5, v5, v7, vcc
v_cndmask_b32 v6, v6, 0, vcc
s_lshl_b32 s15, s15, 4
v_lshl_add_u32 v7, v2, 3, s15
v_mul_u32_u24 v8, v7, v5
v_add_u32 v8, v8, v6
s_add_u32 s24, s24, {WS_TF}""")
    for half in range(2):
        for j in range(8):
            A(f"""v_and_b32 v9, 511, v8
v_cvt_f32_u32 v9, v9
v_mul_f32 v9, {f32bits(1/512):#x}, v9
v_cos_f32 v{16+j}, v9
v_add_u32 v8, v8, v5""")
        for j in range(4): A(f"v_cvt_pk_bf16_f32 v{24+4*half+j}, v{16+2*j}, v{17+2*j}")
        A(f"v_lshl_add_u32 v8, v5, 3, v8")
        A(f"buffer_store_dwordx4 {v(24+4*half,4)}, v1, s[16:19], s24 offen offset:{1024*half}")
    A(f"s_branch {P}_done\n{P}_ti:")
    dperm_code(A, 4, 3, 5)
    A(f"""s_lshl_b32 s14, s14, 5
v_add_u32 v4, s14, v4
s_lshl_b32 s15, s15, 4
v_lshl_add_u32 v7, v2, 3, s15
s_add_u32 s24, s24, {WS_TI}""")
    for half in range(2):
        for j in range(8):
            A(f"""v_add_u32 v5, {16*half + j}, v7
v_lshrrev_b32 v6, 1, v5
v_cmp_eq_u32 vcc, 1, v5
v_mov_b32 v9, 256
v_cndmask_b32 v6, v6, v9, vcc
v_mov_b32 v9, {128*(j&1)}
v_cndmask_b32 v9, v9, 0, vcc
v_mad_u32_u24 v8, v6, v4, v9
v_and_b32 v8, 511, v8
v_cvt_f32_u32 v8, v8
v_mul_f32 v8, {f32bits(1/512):#x}, v8
v_cos_f32 v8, v8
v_cmp_gt_u32 vcc, 2, v5
v_add_f32 v9, v8, v8
v_cndmask_b32 v{16+j}, v9, v8, vcc""")
        for j in range(4): A(f"v_cvt_pk_bf16_f32 v{24+4*half+j}, v{16+2*j}, v{17+2*j}")
        A(f"buffer_store_dwordx4 {v(24+4*half,4)}, v1, s[16:19], s24 offen offset:{1024*half}")
    A(f"s_branch {P}_done")
    A(f"""{P}_wt:
s_sub_u32 s12, s2, 192
s_lshl_b32 s12, s12, 2
s_add_u32 s12, s12, s9           ; gw = 0..255""")
    set_srd(A, 20, 10, 2048 * 257 * 2); set_srd(A, 24, 14, 2048 * 257 * 2)
    A(f"""v_mov_b32 v16, 0
v_mov_b32 v17, 0
v_mov_b32 v18, 0
v_mov_b32 v19, 0
v_mov_b32 v20, -1
v_mov_b32 v21, -1
v_mov_b32 v22, -1
v_mov_b32 v23, -1
s_lshl_b32 s13, s12, 12
s_add_u32 s13, s13, {WS_PART}""")
    for k in range(4): A(f"buffer_store_dwordx4 v[16:19], v1, s[16:19], s13 offen offset:{1024*k}")
    A(f"""s_and_b32 s13, s12, 63
s_lshl_b32 s13, s13, 10
s_add_u32 s13, s13, {WS_MEM}
buffer_store_dwordx4 v[20:23], v1, s[16:19], s13 offen
s_and_b32 s13, s12, 15
s_lshl_b32 s13, s13, 10
s_add_u32 s13, s13, {WS_PROG}
buffer_store_dwordx4 v[16:19], v1, s[16:19], s13 offen
v_lshl_add_u32 v4, v2, 8, v3
v_mul_u32_u24 v4, 514, v4
s_mov_b32 s28, s12
{P}_wtl:
s_lshl_b32 s13, s28, 1""")
    for tau in range(2):
        for r in range(16):
            k1 = 8 * (r >> 2) + (r & 3)
            A(f"s_add_u32 s14, s13, {(64 * k1 + 32 * tau) * 514}")
            A(f"buffer_load_ushort v{32 + 16*tau + r}, v4, s[20:23], s14 offen\nbuffer_load_ushort v{64 + 16*tau + r}, v4, s[24:27], s14 offen")
        if tau == 0: A("s_waitcnt vmcnt(16)")
    A("s_waitcnt vmcnt(0)")
    sc = f32bits(2.0 ** -20)
    for i in range(32):
        A(f"""v_lshlrev_b32 v{32+i}, 16, v{32+i}
v_lshlrev_b32 v{64+i}, 16, v{64+i}
v_mul_f32 v{32+i}, {sc:#x}, v{32+i}
v_mul_f32 v{64+i}, {sc:#x}, v{64+i}
v_cvt_pk_bf16_f32 v{96+i}, v{32+i}, v{64+i}""")
    A(f"s_lshl_b32 s13, s28, 13\ns_add_u32 s13, s13, {WS_WT}\ns_add_u32 s14, s13, 4096")
    for q in range(8): A(f"buffer_store_dwordx4 {v(96+4*q,4)}, v1, s[16:19], s{13 if q < 4 else 14} offen offset:{1024*(q&3)}")
    A(f"""s_cmp_lg_u32 s28, 255
s_cbranch_scc1 {P}_ct
s_mov_b32 s28, 256
s_waitcnt vmcnt(0)
s_branch {P}_wtl
{P}_ct:
s_cmp_ge_u32 s12, 60
s_cbranch_scc1 {P}_done""")
    dperm_code(A, 5, 3, 6)
    A("v_lshlrev_b32 v6, 2, v2")
    for q in range(60):
        A(f"s_cmp_lg_u32 s12, {q}\ns_cbranch_scc1 {P}_q{q}")
        pi = lambda r: 8 * (r >> 2) + (r & 3)
        def elem(dst, acst, bsrc, bcst, mul, off):
            A(f"""v_add_u32 v7, {acst}, v6
v_add_u32 v8, {bcst}, v{bsrc}
v_mul_u32_u24 v7, v7, v8
v_lshlrev_b32 v7, {mul}, v7
v_add_u32 v7, {off}, v7
v_and_b32 v7, 2047, v7
v_cvt_f32_u32 v7, v7
v_mul_f32 v7, {f32bits(1/2048):#x}, v7
v_cos_f32 v{dst}, v7""")
        SIN, NSIN = 1536, 512
        if q < 28:
            if q < 16:
                u, ks = (q & 7) >> 2, q & 3
                off = 0 if q < 8 else SIN
                for j in range(8): elem(32 + j, 32 * (ks >> 1) + pi(8 * (ks & 1) + j), 3, 32 * u, 5, off)
            else:
                z = q - 16; b = z >= 6; z %= 6
                off = [0, SIN, NSIN][z >> 1]
                for j in range(8): elem(32 + j, pi(8 * (z & 1) + j), 5 if b else 3, 0, 6, off)
            for j in range(4): A(f"v_cvt_pk_bf16_f32 v{44+j}, v{32+2*j}, v{33+2*j}")
        else:
            z = q - 28; second = z >= 16; z %= 16
            off = 0 if z < 8 else SIN
            tau, rq = (z & 7) >> 2, z & 3
            for i in range(4):
                if not second: elem(44 + i, pi(4 * rq + i), 3, 32 * tau, 0, off)
                else: elem(44 + i, 32 * tau + pi(4 * rq + i), 5, 0, 0, off)
        A(f"s_mov_b32 s13, {WS_CT + q*1024}\nbuffer_store_dwordx4 v[44:47], v1, s[16:19], s13 offen\ns_branch {P}_done\n{P}_q{q}:")
    A(f"{P}_done:\ns_waitcnt vmcnt(0)\n{P}_end:\ns_endpgm")
    A.fix_hazards(name=P)
    return A, dict(name="pre_kernel", grid=256, block=256, lds=4096, vgpr=192, accum=192)
```

```python
MB = 1 << 20
WS_SIZE = 256 * MB
WS_XN   = 0
WS_XA   = 2 * MB
WS_K    = 4 * MB
WS_V    = 20 * MB
WS_KVM  = 36 * MB
WS_XB   = 44 * MB
WS_FT   = 46 * MB
WS_GT   = 48 * MB
WS_TF   = 50 * MB
WS_TI   = 50 * MB + 512 * 1024
WS_CT   = 51 * MB
WS_PART = 52 * MB
WS_MEM  = 53 * MB
WS_CFL  = 53 * MB + 768 * 1024
WS_PROG = 53 * MB + 800 * 1024
WS_FLAG = 54 * MB
WS_WT   = 55 * MB
WS_SYNC = 58 * MB
SY_PART, SY_MEM, SY_PROG, SY_KVF, SY_CNT, SY_ROLE = 0, 512 * 1024, 544 * 1024, 552 * 1024, 560 * 1024, 564 * 1024
SY_XNF, SY_X1C, SY_FTC, SY_GTC, SY_TBL = 576 * 1024, 580 * 1024, 584 * 1024, 588 * 1024, 592 * 1024
SY_END = 640 * 1024
WS_OP   = 64 * MB
WS_Q    = 128 * MB
KA_X, KA_MEM0, KA_WQ, KA_WK, KA_WV, KA_WO, KA_SEG, KA_BX, KA_WR, KA_WI, KA_OUT, KA_DBG, KA_WS = [8 * i for i in range(13)]
```

```python
class Asm:
    def __init__(self):
        self.L = []
        self.lab = 0
    def __call__(self, s):
        for line in s.split("\n"):
            line = line.strip()
            if line: self.L.append("    " + line if not line.endswith(":") else line)
    def label(self, name): self.L.append(name + ":")
    def newlabel(self, p="L"):
        self.lab += 1
        return f"{p}_{self.lab}"
    def c(self, s): self.L.append("    ; " + s)
    def text(self): return "\n".join(self.L) + "\n"

def v(i, n=1): return f"v{i}" if n == 1 else f"v[{i}:{i+n-1}]"
def a(i, n=1): return f"a{i}" if n == 1 else f"a[{i}:{i+n-1}]"
def s(i, n=1): return f"s{i}" if n == 1 else f"s[{i}:{i+n-1}]"

def kernel_begin(name):
    return f""".text
.globl {name}
.p2align 8
.type {name},@function
{name}:
"""
def kernel_desc(name, vgpr=512, sgpr=102, accum=256, wgy=False):
    t = f""".section .rodata,"a"
.p2align 6
.amdhsa_kernel {name}
  .amdhsa_next_free_vgpr {vgpr}
  .amdhsa_next_free_sgpr {sgpr}
  .amdhsa_accum_offset {accum}
  .amdhsa_group_segment_fixed_size 0
  .amdhsa_kernarg_size 104
  .amdhsa_user_sgpr_count 2
  .amdhsa_user_sgpr_kernarg_segment_ptr 1
  .amdhsa_system_sgpr_workgroup_id_x 1
"""
    if wgy: t += "  .amdhsa_system_sgpr_workgroup_id_y 1\n"
    t += "  .amdhsa_float_denorm_mode_32 3\n  .amdhsa_float_denorm_mode_16_64 3\n"
    t += ".end_amdhsa_kernel\n"
    return t
```

```python
import sys, json
from kpre import *; from kkv import *; from katt import *; from kfft import *
import chain
from build import *
def make(path, opt, order=None):
    K = {}
    K["pre"] = pre_kernel(opt); K["kv"] = kv_kernel(opt); K["att"] = att_kernel(opt)
    K["red"] = red_kernel(0, opt); K["col"] = col_kernel(opt); K["inv"] = inv_kernel(False, opt); K["invf"] = inv_kernel(True, opt)
    for l in range(2):
        K[f"chain{l}"] = (chain.chain_kernel(l, dict(opt.get("chain", {}), strict=opt.get("strict", False))), dict(name=f"chain{l}_kernel", grid=256, block=256, lds=163840, vgpr=512, accum=256))
    order = order or ["pre", "kv", "chain0", "att", "red", "col", "inv", "kv", "chain1", "att", "red", "col", "invf"]
    build_file(path, K, order)
if __name__ == "__main__":
    make(sys.argv[1], json.loads(sys.argv[2]) if len(sys.argv) > 2 else {})
```

```python
from common import *

LDS_MEM, LDS_K, LDS_V, LDS_F, LDS_O, LDS_OD, LDS_WQ = 0, 8192, 24576, 0, 4096, 6144, 32768
vKr = 16; sKm = 47
FS = 1088
vL16, vG512, vFw, vFr, vOw, vOr, vPst, vMst, vSamp, vIK, vIN = 1, 2, 3, 4, 5, 6, 7, 8, 9, 10, 11
vGat = 0
vAS = 12; vM1 = 16; vWq0 = 17; vWq1 = 18; vSmp = 19
vKQ = 20; vVP = 24; vPm = 28; vT0 = 30; vT1 = 31
vMEM = 32
vSx0, vSx1, vSm, vE, vPx, vL = 32, 36, 40, 44, 54, 58
vAk0, vAq0, vAk1, vAq1 = 64, 68, 72, 76
vF = 64; vOUT = 64
vAv0, vAv1 = 80, 84
vO0, vO1 = 96, 100
vThr = 9
KVSEG = 8192
PUBSEG = 4096
vSTG = 88
vVx = 88; vKx = 96
vOF = 32; vPK = 48; vRL = 56; vRA = 48; vRT = 52
vWo = 128
sW, sH, sStep, sKV, sPub, sPart, sInb, sMemN, sMemP, sGat, sPh, sT, sC, sDead = 9, 12, 24, 25, 26, 27, 28, 29, 30, 31, 32, 33, 34, 3
sMask = 36; sSync, sPartB, sMemB, sKVF = 56, 57, 58, 59
vKF = 9
SRD = "s[16:19]"; SRDW = "s[20:23]"
TMO = 200000
CPS = 8192 + 0
MSL = 13

def smf(A, d, am, b, idx): A(f"v_smfmac_f32_16x16x64_bf16 {v(d,4)}, {v(am,4)}, {b}, {v(idx)}")

def lane_consts(A, layer, opt):
    L = 0
    t0, t1, t2 = 20, 21, 22
    vGT = 30
    A(f"""v_lshlrev_b32 v{vL16}, 4, v0
v_lshrrev_b32 v{t0}, 4, v0
v_and_b32 v{t1}, 15, v0
v_lshlrev_b32 v{vG512}, 9, v{t0}
v_lshl_add_u32 v{vG512}, v{t1}, 4, v{vG512}
v_bfe_u32 v{t2}, v0, 3, 1
v_lshlrev_b32 v{vFw}, 8, v{t2}
v_lshl_add_u32 v{vFw}, v{t0}, 6, v{vFw}
v_and_b32 v{t2}, 7, v0
v_lshl_add_u32 v{vFw}, v{t2}, 3, v{vFw}
s_lshl_b32 s14, s9, 10
s_add_u32 s14, s14, {LDS_F}
v_add_u32 v{vFw}, s14, v{vFw}
v_and_b32 v{t2}, 3, v0
v_lshlrev_b32 v{vFr}, 6, v{t2}
v_bfe_u32 v{t2}, v0, 5, 1
v_lshl_add_u32 v{vFr}, v{t2}, 9, v{vFr}
v_bfe_u32 v{t2}, v0, 2, 3
v_lshl_add_u32 v{vFr}, v{t2}, 3, v{vFr}
v_add_u32 v{vFr}, {LDS_F}, v{vFr}
v_lshlrev_b32 v{vOw}, 7, v{t0}
v_bfe_u32 v{t2}, v0, 2, 2
v_lshl_add_u32 v{vOw}, v{t2}, 5, v{vOw}
v_and_b32 v{t2}, 1, v0
v_lshl_add_u32 v{vOw}, v{t2}, 4, v{vOw}
s_lshl_b32 s14, s9, 9
s_add_u32 s14, s14, {LDS_O}
v_add_u32 v{vOw}, s14, v{vOw}
v_add_u32 v{t2}, {LDS_OD}, v{vL16}
v_and_b32 v23, 2, v0
v_cmp_ne_u32 vcc, 0, v23
v_cndmask_b32 v{vOw}, v{t2}, v{vOw}, vcc
v_mov_b32 v{t2}, 0x4444
v_mov_b32 v23, 0xeeee
v_cndmask_b32 v{vIK}, v{t2}, v23, vcc
v_and_b32 v24, 8, v0
v_cmp_ne_u32 vcc, 0, v24
v_cndmask_b32 v{vIN}, v{t2}, v23, vcc
v_lshlrev_b32 v{vOr}, 7, v{t0}
v_and_b32 v{t2}, 7, v0
v_lshl_add_u32 v{vOr}, v{t2}, 4, v{vOr}
v_add_u32 v{vOr}, {LDS_O}, v{vOr}
; vPst = (2w+sel)*8192 + (2*g1+(n>>3))*2048 + h*64 + (n&7)*8
v_lshrrev_b32 v{vPst}, 5, v0
s_lshl_b32 s13, s9, 1
v_add_u32 v{vPst}, s13, v{vPst}
v_lshlrev_b32 v{vPst}, 13, v{vPst}
v_bfe_u32 v{t2}, v0, 3, 2
v_lshl_add_u32 v{vPst}, v{t2}, 11, v{vPst}
v_and_b32 v{t2}, 7, v0
v_lshl_add_u32 v{vPst}, v{t2}, 3, v{vPst}
s_lshl_b32 s14, s12, 6
v_add_u32 v{vPst}, s14, v{vPst}
; vMst = h*256 + w*64 + gt*16 + cw*4 (lanes with n>=4 out of range)
v_lshlrev_b32 v{vMst}, 4, v{t0}
v_and_b32 v{t2}, 3, v0
v_lshl_add_u32 v{vMst}, v{t2}, 2, v{vMst}
s_lshl_b32 s14, s12, 6
s_lshl_b32 s15, s9, 11
s_add_u32 s14, s14, s15
v_add_u32 v{vMst}, s14, v{vMst}
v_and_b32 v24, 12, v0
v_cmp_ne_u32 vcc, 0, v24
v_mov_b32 v24, 0x80000000
v_cndmask_b32 v{vMst}, v{vMst}, v24, vcc
s_mov_b32 s{sMask}, 0xcccccccc
s_mov_b32 s{sMask+1}, 0xcccccccc
s_mov_b32 s{sT}, {f32bits(40.0):#x}
s_lshl_b32 s14, s9, 11
s_add_u32 s14, s14, {LDS_MEM}
v_add_u32 v19, s14, v{vL16}
v_lshlrev_b32 v{vGT}, 8, v{t0}
v_bfe_u32 v{t2}, v0, 3, 1
v_lshl_add_u32 v{vGT}, v{t2}, 7, v{vGT}
v_bfe_u32 v{t2}, v0, 1, 1
v_lshl_add_u32 v{vGT}, v{t2}, 6, v{vGT}
v_bfe_u32 v{t2}, v0, 2, 1
v_lshl_add_u32 v{vGT}, v{t2}, 5, v{vGT}
v_and_b32 v{t2}, 1, v0
v_lshl_add_u32 v{vGT}, v{t2}, 4, v{vGT}
v_lshrrev_b32 v{t2}, 2, v{t1}
v_and_b32 v23, 3, v{t1}
v_lshl_add_u32 v{t2}, v23, 2, v{t2}
v_mov_b32 v24, 0x3f80
v_mov_b32 v25, 0x3f800000
v_mov_b32 v26, 0x3f803f80""")
    for r in range(4):
        A(f"""v_mov_b32 v{vAS+r}, 0
v_cmp_eq_u32 vcc, {2*r}, v{t2}
v_cndmask_b32 v{vAS+r}, v{vAS+r}, v24, vcc
v_cmp_eq_u32 vcc, {2*r+1}, v{t2}
v_cndmask_b32 v{vAS+r}, v{vAS+r}, v25, vcc
v_cmp_le_u32 vcc, 8, v{t2}
v_cndmask_b32 v{vAS+r}, v{vAS+r}, v26, vcc""")
    A(f"""v_add_u32 v16, {LDS_K}, v{vG512}
s_lshl_b32 s13, s9, 14
s_add_u32 s13, s13, {LDS_WQ}
v_add_u32 v{vWq0}, s13, v{vL16}
v_add_u32 v{vWq1}, 0x10000, v{vWq0}
s_mov_b32 s{sC}, {f32bits(math.log2(math.e) / math.sqrt(128.0)):#x}""")

def weights_prologue(A):
    dA = [32, 33, 34, 35]; dO = [36, 37]; tA = [38, 39]; tO = 40; tc = [41, 42]
    x, y = 44, 45
    A(f"""; DMA source offsets for Wq/k/v : rr*8192 + ((cc ^ 2(rr&1) ^ 4j)*16)
v_lshrrev_b32 v{x}, 4, v0
v_and_b32 v{y}, 1, v{x}
v_lshlrev_b32 v{y}, 1, v{y}
v_and_b32 v46, 15, v0
v_xor_b32 v{y}, v{y}, v46
v_lshlrev_b32 v{x}, 13, v{x}""")
    for j in range(4):
        A(f"v_xor_b32 v46, {4*j}, v{y}\nv_lshl_add_u32 v{dA[j]}, v46, 4, v{x}")
    A(f"""; Wo DMA: (l ^ 4*((j&1) | ((w>>1)<<1)))*16
s_lshr_b32 s13, s9, 1
s_lshl_b32 s13, s13, 3
v_xor_b32 v{y}, s13, v0
v_lshlrev_b32 v{dO[0]}, 4, v{y}
v_xor_b32 v{y}, 4, v{y}
v_lshlrev_b32 v{dO[1]}, 4, v{y}
v_bfe_u32 v{x}, v0, 5, 1
v_lshlrev_b32 v{x}, 4, v{x}
v_bfe_u32 v46, v0, 4, 1
v_lshl_add_u32 v{x}, v46, 2, v{x}
v_lshlrev_b32 v{y}, 2, v46
v_bfe_u32 v46, v0, 2, 1
v_add_u32 v{x}, v{x}, v46
v_lshl_add_u32 v{y}, v46, 1, v{y}
v_bfe_u32 v46, v0, 3, 1
v_lshl_add_u32 v{x}, v46, 3, v{x}
v_lshl_add_u32 v{y}, v46, 3, v{y}
v_lshlrev_b32 v{x}, 8, v{x}
v_and_b32 v46, 1, v0
v_lshl_add_u32 v{x}, v46, 3, v{x}
v_bfe_u32 v46, v0, 1, 1
s_lshl_b32 s13, s9, 2
v_add_u32 v46, s13, v46
v_xor_b32 v46, v46, v{y}
v_lshl_add_u32 v{tA[0]}, v46, 4, v{x}
v_xor_b32 v46, 2, v46
v_lshl_add_u32 v{tA[1]}, v46, 4, v{x}
v_bfe_u32 v{x}, v0, 4, 1
v_lshlrev_b32 v{y}, 3, v{x}
v_lshlrev_b32 v{x}, 4, v{x}
v_bfe_u32 v46, v0, 5, 1
v_lshl_add_u32 v{x}, v46, 2, v{x}
v_bfe_u32 v46, v0, 2, 1
v_add_u32 v{x}, v{x}, v46
v_lshl_add_u32 v{y}, v46, 2, v{y}
v_lshlrev_b32 v{x}, 10, v{x}
v_and_b32 v46, 1, v0
v_lshl_add_u32 v{x}, v46, 3, v{x}
v_bfe_u32 v46, v0, 1, 1
v_bfe_u32 v47, v0, 3, 1
v_lshl_add_u32 v46, v47, 1, v46
v_add_u32 v46, s13, v46
v_xor_b32 v46, v46, v{y}
v_lshl_add_u32 v{tO}, v46, 4, v{x}
s_lshl_b32 s50, s12, 8
s_lshl_b32 s13, s9, 18
s_add_u32 s50, s50, s13        ; h*256 + w*32 rows*8192
s_lshl_b32 s51, s12, 17
s_lshl_b32 s13, s9, 13
s_add_u32 s51, s51, s13        ; h*131072 + w*8 rows*1024
s_lshl_b32 s52, s9, 13         ; w*8192 (lds)""")
    mats = [42] * 4 + [44] * 4 + [46] * 4 + [40] * 4
    slot = lambda i: ((i + 4) % 5) * 32768
    def issue(i):
        if i % 4 == 0: set_srd(A, 20, mats[i], 4 * MB)
        c = i % 4
        tok = None
        for j in range(8):
            A(f"s_add_u32 m0, s52, {slot(i) + j*1024}")
            if mats[i] == 46:
                A(f"s_add_u32 s13, s51, {c*32768 + j*1024}")
                tok = A(f"buffer_load_dwordx4 v{dO[j&1]}, {SRDW}, s13 offen lds")
            else:
                A(f"s_add_u32 s13, s50, {(128*c + 4*j)*8192}")
                tok = A(f"buffer_load_dwordx4 v{dA[j&3]}, {SRDW}, s13 offen lds")
        return tok
    toks = {}
    for i in range(4): toks[i] = issue(i)
    for i in range(16):
        A.wvm(toks[i])
        A("s_barrier")
        if i + 4 < 16: toks[i + 4] = issue(i + 4)
        c = i % 4
        if i == 14:
            for f in range(8):
                for part in range(2):
                    A(f"ds_write_b128 v{vWq0}, {v(64 + f*8 + part*4, 4)} offset:{f*2048 + part*1024}")
            A("s_waitcnt lgkmcnt(0)")
        if mats[i] == 46:
            A(f"v_add_u32 v{tc[0]}, {slot(i)}, v{tO}")
            for p in range(4):
                for xx in range(4):
                    A(f"ds_read_b64_tr_b16 {v(vWo + (p*4 + c)*8 + 2*xx, 2)}, v{tc[0]} offset:{(8*(xx>>1) + 2*(xx&1))*1024 + p*256}")
        else:
            A(f"v_add_u32 v{tc[0]}, {slot(i)}, v{tA[0]}\nv_add_u32 v{tc[1]}, {slot(i)}, v{tA[1]}")
            for tt in range(2):
                for te in range(2):
                    t = 2 * c + tt
                    for xx in range(4):
                        if mats[i] == 42: dst = a((t*2 + te)*8 + 2*xx, 2)
                        elif mats[i] == 44: dst = a(128 + (t*2 + te)*8 + 2*xx, 2)
                        else: dst = v(64 + (((t & 3)*2 + te)*8) + 2*xx, 2)
                        A(f"ds_read_b64_tr_b16 {dst}, v{tc[te]} offset:{(64*tt + 32*(xx>>1) + 2*(xx&1))*256}")
        A("s_waitcnt lgkmcnt(0)")
    A("s_barrier")
    for f in range(8):
        for part in range(2):
            A(f"ds_write_b128 v{vWq1}, {v(64 + f*8 + part*4, 4)} offset:{f*2048 + part*1024}")

NS = 6
SLQ = [5, 0, 1, 2, 3, 4]
def slot_reg(sl): return vAv0 if sl == 5 else vSTG + 8 * sl
def wq_read(A, i, sl):
    t, te = i >> 1, i & 1
    base = vWq0 if t < 4 else vWq1
    off = ((t & 3) * 2 + te) * 2048
    r = slot_reg(sl)
    return [f"ds_read_b128 {v(r,4)}, v{base} offset:{off}", f"ds_read_b128 {v(r+4,4)}, v{base} offset:{off+1024}"]

def step_scalars(A, layer, nxt):
    part = f"s{sPartB}"; mem = f"s{sMemB}"
    return f"""s_and_b32 s13, s{sStep}, 1
s_lshl_b32 s13, s13, 18
s_add_u32 s{sPart}, s13, {part}
s_add_u32 s{sInb}, s{sPart}, s43
s_add_u32 s13, s{sStep}, 1
s_and_b32 s13, s13, 3
s_lshl_b32 s13, s13, {MSL}
s_add_u32 s{sMemN}, s13, {mem}
s_and_b32 s13, s{sStep}, 3
s_lshl_b32 s13, s13, {MSL}
s_add_u32 s{sMemP}, s13, {mem}
s_lshr_b32 s13, s{sStep}, 1
s_and_b32 s13, s13, 1
s_xor_b32 s{sPh}, s13, 1""".split("\n")

def delay(A, c):
    c = max(0, c) // 4
    while c > 0:
        n = min(c, 16); A(f"s_nop {n-1}"); c -= n

def kv_dma(A):
    for (ldsb, so) in [(LDS_K, 0), (LDS_V, WS_V - WS_K)]:
        A(f"s_add_u32 m0, s54, {ldsb}\ns_add_u32 s13, s{sKV}, {so}")
        A(f"buffer_load_dwordx4 v{vL16}, {SRD}, s13 offen sc1 lds\nbuffer_load_dwordx4 v{vL16}, {SRD}, s13 offen offset:1024 sc1 lds")

gS = [48, 56]
rS = [56, 80, 32]
vFA = 16; sF1, sF2, sFv = 44, 45, 46; sF1w, sF2w = 50, 51
vLw = 19
sGat2 = 42
CHKFIRST = [True]

def gload(r): return [f"buffer_load_dwordx4 {v(r,4)}, v{vGat}, {SRD}, s{sGat} offen sc1", f"buffer_load_dwordx4 {v(r+4,4)}, v{vGat}, {SRD}, s{sGat} offen offset:1024 sc1"]
def gwrite(r): return f"ds_write_b128 v{vLw}, {v(r,4)}\nds_write_b128 v{vLw}, {v(r+4,4)} offset:1024"
def gproc(A, r, ny, spec=True):
    A(f"s_waitcnt vmcnt({ny+1})")
    if spec: A(f"ds_write_b128 v{vLw}, {v(r,4)}")
    A(f"v_max3_u32 v{vT0}, v{r}, v{r+1}, v{r+2}\ns_waitcnt vmcnt({ny})")
    if spec: A(f"ds_write_b128 v{vLw}, {v(r+4,4)} offset:1024")
    A(f"""v_max3_u32 v{vT0}, v{vT0}, v{r+3}, v{r+4}
v_max3_u32 v{vT0}, v{vT0}, v{r+5}, v{r+6}
v_max_u32 v{vT0}, v{vT0}, v{r+7}
v_cmp_eq_u32 vcc, -1, v{vT0}""")
def g2dma(): return f"buffer_load_dwordx4 v{vGat}, {SRD}, s{sGat2} offen sc1 lds"
def rload(r): return [f"buffer_load_dwordx4 {v(r,4)}, v{vL16}, {SRD}, s{sInb} offen sc1", f"buffer_load_dwordx4 {v(r+4,4)}, v{vL16}, {SRD}, s{sInb} offen offset:1024 sc1"]
def rproc(A, r, n_younger, st=None):
    A(f"""s_waitcnt vmcnt({n_younger+1})
v_mfma_f32_16x16x32_bf16 {v(vRA,4)}, {v(vAS,4)}, {v(r,4)}, 0
v_bitop3_b32 v{vT0}, v{r}, v{r+2}, s{sPh} bitop3:0x7e
s_waitcnt vmcnt({n_younger})""")
    if st: st(7)
    A(f"""v_mfma_f32_16x16x32_bf16 {v(vRA,4)}, {v(vAS,4)}, {v(r+4,4)}, {v(vRA,4)}
v_bitop3_b32 v{vT1}, v{r+4}, v{r+6}, s{sPh} bitop3:0x7e
v_bitop3_b32 v{vT0}, v{vT0}, v{vT1}, 1 bitop3:0xa8
v_cmp_ne_u32 vcc, 0, v{vT0}""")

def kvf_check(P):
    return f"""s_add_u32 s13, s{sStep}, 1
s_min_u32 s13, s13, 63
s_lshr_b32 s13, s13, 2
s_lshl_b32 s13, 2, s13
s_sub_u32 s13, s13, 1
{P}_kc:
v_cmp_ne_u32 vcc, 0, v{vKF}
s_and_b32 s38, vcc_lo, s13
s_cmp_lg_u32 s38, s13
s_cbranch_scc1 {P}_kw
{P}_kok:"""
def kvf_wait(A, P, tmo):
    A(f"{P}_kw:")
    tmo(15, f"{P}_kto")
    A(f"""s_sleep 8
v_lshrrev_b32 v{vKF}, 2, v{vL16}
buffer_load_dword v{vKF}, v{vKF}, {SRD}, s{sKVF} offen sc1
s_waitcnt vmcnt(0)
s_branch {P}_kc
{P}_kto:
s_mov_b32 s{sDead}, {TMO}
s_branch {P}_kok""")

def pf_setup(w, opt):
    return [f"s_add_u32 s{sKV}, s{sKV}, {KVSEG}", f"s_xor_b32 s{sKm}, s{sKm}, 0x6000", f"v_xor_b32 v{vKr}, 0x6000, v{vKr}", f"s_add_u32 m0, s39, {LDS_MEM + 4096}"]

def pubmix():
    q = "quad_perm:[0,1,0,1] row_mask:0xf bank_mask:0xf"
    return [f"s_mov_b64 vcc, s[{sMask}:{sMask+1}]", f"v_mov_b32_dpp v{vT0}, v{vVP} {q}", f"v_mov_b32_dpp v{vT1}, v{vVP+2} {q}",
            f"v_cndmask_b32 v{vKQ}, v{vKQ}, v{vVP}, vcc", f"v_cndmask_b32 v{vKQ+1}, v{vKQ+1}, v{vVP+2}, vcc",
            f"v_cndmask_b32 v{vKQ+2}, v{vKQ+2}, v{vT0}, vcc", f"v_cndmask_b32 v{vKQ+3}, v{vKQ+3}, v{vT1}, vcc"]

def gather_events(p, w, opt):
    n1 = opt.get("n1", 2) if w < 2 else 0
    dg = opt.get("dg", 128)
    t0 = opt.get("d2", [160, 100, 0, 0])[w]
    return [(t0 + k * dg, gS[k]) for k in range(n1)], n1

def body(A, P, layer, p, w, fast, last, opt):
    SC = "" if fast else " sc1"
    sfx = "_l" if last else ""
    stamp = opt.get("stamp")
    def st(k):
        if stamp and not last and k in opt.get("st", range(11)): A(f"s_memtime s[{60+2*k}:{61+2*k}]")
        if not last and opt.get("wv") == k: A("s_memtime s[62:63]\ns_waitcnt vmcnt(0)\ns_memtime s[64:65]\ns_waitcnt lgkmcnt(0)\ns_sub_u32 s13, s64, s62\ns_add_u32 s83, s83, s13\ns_max_u32 s84, s84, s13")
        if not last and opt.get("cut") == k: A(f"s_add_u32 s{sStep}, s{sStep}, 1\ns_branch {P}_cutend")
    A.reset_counts()
    ev, n1 = gather_events(p, w, opt)
    nxt = [0]
    tk = {}
    nab = 1 if opt.get("abs") else 0
    B1 = None
    if w < 2:
        spec = not opt.get("chk1", 1)
        gproc(A, gS[0], 2 * (n1 - 1) + nab, spec)
        A(f"s_cbranch_vccnz {P}_gr{sfx}")
        if not spec: A(gwrite(gS[0]))
        A(f"{P}_gok{sfx}:\ns_waitcnt lgkmcnt(0)")
        st(9)
    A("s_barrier")
    A(g2dma())
    A(f"{P}_entry{sfx}:")
    st(0)
    mrd = lambda t: f"ds_read_b128 {v(vMEM+4*t,4)}, v{vL16} offset:{LDS_MEM + t*1024}"
    mt = {}
    for t in range(3 if B1 is None else 2): mt[t] = A(mrd(t))
    A(f"s_mov_b32 m0, s{sKm}")
    seq = []
    for t in range(4): seq += [("k", 0, t), ("q", 0, t), ("k", 1, t), ("q", 1, t)]
    for te in range(2):
        for t in range(4, 8): seq += [("k", te, t), ("q", te, t)]
    N1 = 32
    V = [[] for _ in range(N1)]; S = [[] for _ in range(N1)]; X = [[] for _ in range(N1)]
    B2 = opt.get("b2", 13)
    quse = [(idx, 2 * t + te) for idx, (m, te, t) in enumerate(seq) if m == "q"]
    sl_seq = SLQ + [(n_ - 6) % 5 for n_ in range(6, 16)]
    slot = {f: sl_seq[n_] for n_, (idx, f) in enumerate(quse)}
    jobs = []
    lastuse = {}
    for n_, (idx, f) in enumerate(quse):
        if n_ >= NS:
            for x in wq_read(A, f, slot[f]): jobs.append((lastuse[slot[f]], idx, "wq", f, x))
        lastuse[slot[f]] = idx
    first = {}
    for idx, (m, te, t) in enumerate(seq): first.setdefault(t, idx)
    for t in range(3 if B1 is None else 2, 8): jobs.append(((0 if B1 is None else B1) if t < 4 else B2, first[t] - 3, "mem", t, mrd(t)))
    if not last:
        for n_, (c, u) in enumerate([(c, u) for c in range(2) for u in range(4)]):
            jobs.append((max(lastuse[1 + n_ // 2], opt.get("kx0", 24)), 100 + lastuse[1 + n_ // 2], "kx", n_, f"ds_read_b128 {v(vKx + (c*4+u)*4, 4)}, v{vKr} offset:{u*2048 + c*256}"))
        for n_ in range(2):
            jobs.append((max(lastuse[0], opt.get("kx0", 24)), 90, "kx", 8 + n_, f"ds_read_b128 {v(vVx+4*n_,4)}, v{vG512} offset:{LDS_V + w*2048 + 256*n_}"))
    D = [[] for _ in range(N1)]
    nod = set()
    for g_ in range(N1):
        cap = 2 if g_ in (B1, B2) else (0 if g_ in nod else 1)
        for _ in range(cap):
            av = [j for j in jobs if j[0] <= g_]
            if not av: break
            j = min(av, key=lambda j: j[1]); jobs.remove(j); D[g_].append(j[2:])
    assert all(j[2] == "kx" for j in jobs)
    X[B2].append(lambda: A(f"s_waitcnt vmcnt({nxt[0]})"))
    X[B2].append("s_barrier")
    for t in range(4, 8):
        r = vMEM + 4 * t
        V[first[t]].append(f"v_max_u32 v{vT0}, v{r}, v{r+1}" if t == 4 else f"v_max3_u32 v{vT0}, v{vT0}, v{r}, v{r+1}")
        V[first[t] + 1].append(f"v_max3_u32 v{vT0}, v{vT0}, v{r+2}, v{r+3}")
    V[24].append(f"v_cmp_eq_u32 vcc, -1, v{vT0}")
    f0 = [f"v_add_f32 v{vAk0}, v{vAk0}, v{vAk0+2}", f"v_add_f32 v{vAk0+1}, v{vAk0+1}, v{vAk0+3}",
          f"v_add_f32 v{vAq0}, v{vAq0}, v{vAq0+2}", f"v_add_f32 v{vAq0+1}, v{vAq0+1}, v{vAq0+3}",
          f"v_mul_f32 v{vAq0}, s{sC}, v{vAq0}", f"v_mul_f32 v{vAq0+1}, s{sC}, v{vAq0+1}",
          f"v_cvt_pk_bf16_f32 v{vKQ}, v{vAk0}, v{vAk0+1}"]
    for n_, x in enumerate(f0): V[25 + n_].append(x)
    for r in range(8): V[3 + r].append(f"v_mov_b32 v{vAv0+r}, 0")
    ext = []
    if not last and not opt.get("nokv"):
        ext.append(f"buffer_load_dwordx4 v{vL16}, {SRD}, s{sKV} offen sc1 lds")
        ext.append(f"buffer_load_dwordx4 v{vL16}, {SRD}, s{sKV} offen offset:1024 sc1 lds")
    if not opt.get("nopub"):
        ext.append(f"buffer_store_dwordx4 {v(vKQ,4)}, v{vL16}, {SRD}, s40 offen sc1")
        if w == 2: ext.append(f"v_mov_b32 v{vT1}, s41\ns_mov_b64 exec, 1\nbuffer_store_dword v{vT1}, off, {SRD}, s55 sc1\ns_mov_b64 exec, -1")
    if w == 3 and not last: ext.append(f"v_lshrrev_b32 v{vKF}, 2, v{vL16}\nbuffer_load_dword v{vKF}, v{vKF}, {SRD}, s{sKVF} offen sc1")
    pz = opt.get("pz", 2)
    pos_ = [pz + w + 4 * n_ for n_ in range(len(ext))]
    pos_ = [x if x < B2 - 1 else x + 4 for x in pos_]
    for n_, x in enumerate(ext): X[pos_[n_]].append(x)
    nxt[0] = sum(1 for x in pos_ if x < B2)
    S[26].append(f"s_add_u32 s{sGat}, s{sMemN}, s54"); S[28].append(f"s_add_u32 s{sGat2}, s{sMemN}, s52")
    wqtok = {}
    for idx, (m, te, t) in enumerate(seq):
        need = [mt[t]]
        if m == "q" and (2 * t + te) in wqtok: need.append(wqtok[2 * t + te])
        ns = [A.lgk_n(x) for x in need if A.lgk_n(x) is not None]
        if ns: A(f"s_waitcnt lgkmcnt({min(ns)})")
        if idx == 0 and not opt.get("abs"): st(1)
        if m == "k": smf(A, [vAk0, vAk1][te], vMEM + 4 * t, a((t * 2 + te) * 8, 8), vIK)
        else: smf(A, [vAq0, vAq1][te], vMEM + 4 * t, v(slot_reg(slot[2 * t + te]), 8), vIK)
        for x in X[idx]: (x() if callable(x) else A(x))
        for x in S[idx]: A(x)
        for (kind, key, txt) in D[idx]:
            tok = A(txt)
            {"wq": wqtok, "mem": mt, "kx": {}}[kind][key] = tok
        for x in V[idx]: A(x)
    st(2)
    def sv(j): smf(A, [vAv0, vAv1][j & 1], vMEM + 4 * (j >> 1), a(128 + j * 8, 8), vIK)
    kxr = [j[4] for j in jobs]
    if last: kxr = []
    def rdk(n_):
        for _ in range(n_):
            if kxr: A(kxr.pop(0))
    sv(0); rdk(1); A(f"v_cvt_pk_bf16_f32 v{vKQ+1}, v{vAq0}, v{vAq0+1}")
    sv(1); rdk(1); A(f"v_add_f32 v{vAk1}, v{vAk1}, v{vAk1+2}")
    A(f"""v_add_f32 v{vAk1+1}, v{vAk1+1}, v{vAk1+3}
v_add_f32 v{vAq1}, v{vAq1}, v{vAq1+2}
v_add_f32 v{vAq1+1}, v{vAq1+1}, v{vAq1+3}
v_cvt_pk_bf16_f32 v{vKQ+2}, v{vAk1}, v{vAk1+1}
v_mul_f32 v{vAq1}, s{sC}, v{vAq1}
v_mul_f32 v{vAq1+1}, s{sC}, v{vAq1+1}
v_cvt_pk_bf16_f32 v{vKQ+3}, v{vAq1}, v{vAq1+1}""")
    vfold = [f"v_add_f32 v{vAv0}, v{vAv0}, v{vAv0+2}", f"v_add_f32 v{vAv0+1}, v{vAv0+1}, v{vAv0+3}",
             f"v_cvt_pk_bf16_f32 v{vVP}, v{vAv0}, v{vAv0+1}", f"v_add_f32 v{vAv1}, v{vAv1}, v{vAv1+2}",
             f"v_add_f32 v{vAv1+1}, v{vAv1+1}, v{vAv1+3}", f"v_cvt_pk_bf16_f32 v{vVP+2}, v{vAv1}, v{vAv1+1}"]
    if last:
        A(f"s_cbranch_vccnz {P}_redo_l")
        A(f"ds_write2_b64 v{vFw}, {v(vKQ,2)}, {v(vKQ+2,2)} offset1:64")
        for j in range(2, 9): sv(j)
        A("s_waitcnt lgkmcnt(0)\ns_barrier")
        for jj in range(2): A(f"ds_read_b64_tr_b16 {v(vKQ + 2*jj, 2)}, v{vFr} offset:{1024*w + 256*jj}")
        for j in range(9, 16): sv(j)
        for x in vfold: A(x)
        A("s_waitcnt lgkmcnt(0)")
        for x in pubmix(): A(x)
        A(f"buffer_store_dwordx4 {v(vKQ,4)}, v{vL16}, {SRD}, s{sPub} offen sc1")
        return
    sv(2)
    fw = A(f"ds_write2_b64 v{vFw}, {v(vKQ,2)}, {v(vKQ+2,2)} offset1:64")
    NBF = opt.get("nbf", 7)
    for j in range(3, NBF):
        sv(j)
        if j == 3: A(f"s_cbranch_vccnz {P}_redo")
        else: rdk(1)
    rdk(10)
    A.wlg(fw); A("s_barrier")
    st(3)
    ft = []
    for tr in range(2): ft.append(A(f"ds_read_b64_tr_b16 {v(vF + 2*tr, 2)}, v{vFr} offset:{256*tr}"))
    dma = [f"buffer_load_dwordx4 v{vL16}, {SRD}, s13 offen sc1 lds",
           f"buffer_load_dwordx4 v{vL16}, {SRD}, s13 offen offset:1024 sc1 lds"]
    if opt.get("nokv"): dma = []
    NV1 = opt.get("nv1", 12)
    A(f"s_add_u32 m0, s54, {LDS_V}\ns_add_u32 s13, s{sKV}, {WS_V - WS_K}")
    dpos = {opt.get("dz", 0) + w + 4 * n_: x for n_, x in enumerate(dma)}
    gi = [0]
    def gap():
        if gi[0] in dpos: A(dpos.pop(gi[0]))
        gi[0] += 1
    for j in range(NBF, NV1):
        sv(j); gap()
        u = j - NBF + 1
        if u < 4:
            for jj in range(2):
                ft.append(A(f"ds_read_b64_tr_b16 {v(vF + 4*u + 2*jj, 2)}, v{vFr} offset:{1024*u + 256*jj}"))
    st(4)
    def mf(d, aa, bb, first_):
        A(f"v_mfma_f32_16x16x32_bf16 {v(d,4)}, {v(aa,4)}, {v(bb,4)}, " + ("0" if first_ else v(d, 4)))
    ex = lambda k_, src: f"v_exp_f32 v{vE+k_}, v{src}"
    cv = lambda d, x: f"v_cvt_pk_bf16_f32 v{d}, v{x}, v{x+1}"
    sq = [("x", 0, u) for u in range(4)] + [("x", 1, u) for u in range(4)]
    sq += [("v", j, 0) for j in range(NV1, 16)] + [("m", 0, u) for u in range(4)]
    G = {}
    fill = [ex(0, vSx0), ex(1, vSx0 + 1), ex(2, vSx0 + 2), ex(3, vSx0 + 3), ex(4, vSx1), ex(5, vSx1 + 1), ex(6, vSx1 + 2), ex(7, vSx1 + 3)]
    pos = 6
    while fill and pos < len(sq):
        G.setdefault(pos, []).append(fill.pop(0)); pos += 1
    tail = fill + [cv(vPx, vE), cv(vPx + 1, vE + 2), cv(vPx + 2, vE + 4), cv(vPx + 3, vE + 6)]
    while tail and pos < len(sq):
        G.setdefault(pos, []).extend(tail[:2]); tail = tail[2:]; pos += 1
    A.wlg(ft[-1])
    for r in range(4): G.setdefault(r, []).append(f"v_mov_b32 v{vKQ+r}, v{vF+4*w+r}")
    for n_, (kind, tile, u) in enumerate(sq):
        if kind == "x": mf([vSx0, vSx1][tile], vKx + (tile * 4 + u) * 4, vF + 4 * u, u == 0)
        elif kind == "m": mf(vSm, vF + 4 * u, vF + 4 * u, u == 0)
        else: sv(tile)
        gap()
        for x in G.get(n_, []): A(x)
    for k_ in sorted(dpos): A(dpos[k_])
    for x in tail: A(x)
    m16 = lambda d, aa, bb: A(f"v_mfma_f32_16x16x16_bf16 {v(d,4)}, {v(aa,2)}, {v(bb,2)}, {v(d,4)}")
    A(vfold[0]); A(vfold[1])
    mf(vL, vAS, vPx, True); A(vfold[2]); A(vfold[3])
    mf(vO0, vVx, vPx, True); A(ex(8, vSm))
    mf(vO1, vVx + 4, vPx, True); A(ex(9, vSm + 1))
    A(vfold[4]); A(cv(vPm, vE + 8)); A(vfold[5])
    A(f"v_max3_f32 v{vT1}, |v{vSx0}|, |v{vSx0+1}|, |v{vSx0+2}|")
    m16(vL, vAS, vPm)
    A(f"v_max3_f32 v{vT1}, v{vT1}, |v{vSx0+3}|, |v{vSx1}|\nv_max3_f32 v{vT1}, v{vT1}, |v{vSx1+1}|, |v{vSx1+2}|")
    m16(vO0, vVP, vPm)
    A(f"v_max3_f32 v{vT1}, v{vT1}, |v{vSx1+3}|, |v{vSm}|\nv_max_f32 v{vT1}, v{vT1}, |v{vSm+1}|")
    m16(vO1, vVP + 2, vPm)
    A(f"v_rcp_f32 v{vT0}, v{vL+2}")
    A(f"v_cmp_lt_f32 vcc, s{sT}, v{vT1}")
    if opt.get("force_slow"): A(f"v_cmp_lt_f32 vcc, -1.0, v{vT1}")
    for r in range(4): A(f"v_mul_f32 v{vO0+r}, v{vT0}, v{vO0+r}")
    A(cv(vE, vO0)); A(cv(vE + 1, vO0 + 2))
    if opt.get("ow2", 1): A(f"ds_write_b64 v{vOw}, {v(vE,2)}")
    for r in range(2): A(f"v_pk_mul_f32 {v(vO1+2*r,2)}, {v(vO1+2*r,2)}, {v(vT0,2)} op_sel_hi:[1,0]")
    A(cv(vE + 2, vO1)); A(cv(vE + 3, vO1 + 2))
    ow = A(f"ds_write_b64 v{vOw}, {v(vE+2,2)} offset:8") if opt.get("ow2", 1) else A(f"ds_write_b128 v{vOw}, {v(vE,4)}")
    A(f"s_and_b64 vcc, vcc, s[{sMask}:{sMask+1}]\ns_cbranch_vccnz {P}_slow")
    A(f"{P}_norm:")
    for r in range(0, 8, 2): A(f"v_mov_b64 {v(vOUT+r,2)}, 0")
    A.wlg(ow); A("s_barrier")
    st(5)
    ot = [A(f"ds_read_b128 {v(vOF+4*kk,4)}, v{vOr} offset:{kk*512}") for kk in range(4)]
    A(f"s_add_u32 s13, s{sPart}, 0")
    for r in range(8, 16, 2): A(f"v_mov_b64 {v(vOUT+r,2)}, 0")
    pre = []
    for n_ in range(1, 6): pre += wq_read(A, quse[n_][1], SLQ[n_])
    def epi(pp):
        return [f"v_cvt_pk_bf16_f32 v{vPK+2*pp}, v{vOUT+4*pp}, v{vOUT+4*pp+1}",
                f"v_cvt_pk_bf16_f32 v{vPK+2*pp+1}, v{vOUT+4*pp+2}, v{vOUT+4*pp+3}",
                f"v_bfi_b32 v{vPK+2*pp}, 1, s{sPh}, v{vPK+2*pp}",
                f"buffer_store_dwordx2 {v(vPK+2*pp,2)}, v{vPst}, {SRD}, s13 offen{SC}"]
    if opt.get("e1fast", 1):
        e1 = 6; E = {5: epi(0), 9: epi(1), 13: epi(2)[0:1], 14: epi(2)[1:2], 15: epi(2)[2:3]}
    else:
        e1 = 9; E = {5: epi(0), 9: epi(1)[0:1], 10: epi(1)[1:2], 11: epi(1)[2:3], 12: epi(1)[3:4], 13: epi(2)[0:1], 14: epi(2)[1:2], 15: epi(2)[2:3]}
    rsch = opt.get("rs", [[16, 200], [120, 250], [260, 390], [320, 450]])[w]
    rtk = []
    def rissue():
        if opt.get("abs") and not rtk: A("s_memtime s[68:69]")
        for x in rload(rS[len(rtk)]): t_ = A(x)
        rtk.append(t_)
    for n_ in range(16):
        pp, kk = n_ >> 2, n_ & 3
        A.wlg(ot[kk])
        smf(A, vOUT + 4 * pp, vOF + 4 * kk, v(vWo + n_ * 8, 8), vIN)
        if n_ == 8: A(f"s_add_u32 s13, s{sPart}, {65536}")
        if n_ == 13: A(f"s_add_u32 s13, s{sPart}, {2*65536}")
        if n_ in rsch: rissue()
        elif pre and n_ >= 3 and n_ not in (5, e1 + 3): A(pre.pop(0))
        for x in E.get(n_, []): A(x)
        if n_ == 5: st(10)
    A(epi(2)[3])
    A(f"s_add_u32 s13, s{sPart}, {3*65536}")
    while pre: A(pre.pop(0))
    A(f"s_mov_b32 s40, s{sPub}\ns_add_u32 s{sPub}, s{sPub}, {PUBSEG}\ns_mov_b32 s14, 0\ns_mov_b32 s15, 0")
    for x in epi(3)[:3]: A(x)
    if 16 in rsch: rissue()
    A(epi(3)[3])
    st(6)
    idle = [f"v_mov_b64 {v(vAk0+r,2)}, 0" for r in range(0, 16, 2)]
    idle2 = pubmix()
    def wait_fill(d):
        while idle and d >= 4: A(idle.pop(0)); d -= 4
        delay(A, d)
    cur = 0
    for tm in [x - 100 for x in rsch if x >= 100]:
        wait_fill(tm - cur); cur = max(cur, tm) + 12
        rissue()
    while idle: A(idle.pop(0))
    opt["_rfirst"] = [A.vm_n(rtk[k_]) + 2 * k_ for k_ in range(1, len(rtk))]
    rproc(A, rS[0], A.vm_n(rtk[0]), st)
    A(f"""s_cbranch_vccnz {P}_rr
{P}_rok:
{"s_memtime s[66:67]" if opt.get("abs") else "s_nop 0"}
v_add_f32_dpp v{vRT}, v{vRA}, v{vRA} row_ror:4 row_mask:0xf bank_mask:0xf ;NOHAZ
v_add_f32_dpp v{vRT+1}, v{vRA+1}, v{vRA+1} row_ror:4 row_mask:0xf bank_mask:0xf ;NOHAZ
v_add_f32_dpp v{vRT+2}, v{vRT}, v{vRT} row_ror:8 row_mask:0xf bank_mask:0xf
v_add_f32_dpp v{vRT+3}, v{vRT+1}, v{vRT+1} row_ror:8 row_mask:0xf bank_mask:0xf
v_cvt_pk_bf16_f32 v{vT0}, v{vRT+2}, v{vRT+3}
buffer_store_dword v{vT0}, v{vMst}, {SRD}, s{sMemN} offen{SC}""")
    st(8)
    A(f"v_mov_b32 v{vT1}, -1\nbuffer_store_dword v{vT1}, v{vMst}, {SRD}, s{sMemP} offen{SC}")
    if opt.get("dumpmem"):
        A(f"s_lshl_b32 s13, s{sStep}, 16\ns_add_u32 s13, s13, {WS_OP + 65536}\nbuffer_store_dword v{vT0}, v{vMst}, {SRD}, s13 offen")
    idle += [f"s_mov_b32 s41, s{sStep}", f"s_add_u32 s{sStep}, s{sStep}, 1"] + idle2
    post = step_scalars(A, layer, 0) + pf_setup(w, opt)
    if stamp:
        idle += ["s_waitcnt lgkmcnt(0)"]
        for k_ in list(range(1, 9)) + [10]:
            idle += [f"s_sub_u32 s13, s{60+2*k_}, s60", f"s_add_u32 s{82+k_}, s{82+k_}, s13"]
        idle += ["s_sub_u32 s13, s60, s78", "s_add_u32 s91, s91, s13"]
    absd = []
    if opt.get("abs"):
        absd = ["s_waitcnt lgkmcnt(0)", f"s_lshl_b32 s13, s41, 13", f"s_lshl_b32 s38, s12, 8", "s_add_u32 s13, s13, s38", f"s_add_u32 s13, s13, {WS_OP + 8*MB + w*64}"]
        for k_ in range(11):
            absd += [f"v_writelane_b32 v{vT1}, s{60+2*k_}, {k_}"]
        absd += [f"v_lshrrev_b32 v{vT0}, 2, v{vL16}", f"s_mov_b64 exec, 0xffff", f"buffer_store_dword v{vT1}, v{vT0}, {SRD}, s13 offen", "s_mov_b64 exec, -1"]
    cur = 0
    for (tm, r) in ev:
        wait_fill(tm - cur); cur = max(cur, tm) + 12
        if r == gS[0]: st(1) if opt.get("abs") else None
        for x in gload(r): A(x)
    while idle: A(idle.pop(0))
    for x in post: A(x)
    if w == 3:
        A(kvf_check(P))
    A(f"s_waitcnt vmcnt({2 + 2 * n1})")
    for x in wq_read(A, 0, 5): A(x)
    for x in absd: A(x)

def variant(A, P, layer, p, w, fast, opt):
    A(f".p2align 6\n{P}_top:")
    body(A, P, layer, p, w, fast, False, opt)
    A(f"""{P}_cutend:
s_waitcnt lgkmcnt(0)
s_cmp_lt_u32 s{sStep}, 63
s_cbranch_scc1 {P}_top""")
    body(A, P, layer, p, w, fast, True, opt)
    A(f"""s_waitcnt vmcnt(0)
s_barrier
v_mov_b32 v{vT1}, 64
s_branch {opt['_K']}_fin""")
    cn = lambda r: A(f"s_add_u32 s{r}, s{r}, 1") if opt.get("cnt") else None
    def tmo(cnt, ok):
        A(f"""s_add_u32 s{cnt}, s{cnt}, s{sDead}
s_cmp_ge_u32 s{cnt}, {TMO}
s_cbranch_scc1 {ok}""")
    def retry(lab, sets, load, proc, okl, cnt, cidx, first):
        n = len(sets)
        A(f"{lab}:")
        for k_ in range(n - 1):
            cn(cidx)
            for x in load(sets[k_]): A(x)
            proc(A, sets[k_ + 1], first[k_])
            A(f"s_cbranch_vccz {okl}")
        sets = sets[n - 1:] + sets[:n - 1]
        A(f"{lab}_lp:")
        for k_ in range(n):
            cn(cidx)
            for x in load(sets[k_]): A(x)
            proc(A, sets[(k_ + 1) % n], len(load(0)) * (n - 1))
            A(f"s_cbranch_vccz {okl}")
        tmo(cnt, f"{lab}_to"); A(f"s_branch {lab}_lp\n{lab}_to:\ns_mov_b32 s{sDead}, {TMO}\ns_branch {okl}")
    retry(f"{P}_rr", rS[:len(opt["_rfirst"]) + 1], rload, rproc, f"{P}_rok", 14, 94, opt["_rfirst"])
    for sfx in ["", "_l"]:
        ev, n1 = gather_events(p, w, opt)
        if w < 2: retry(f"{P}_gr{sfx}", gS[:n1], gload, gproc, f"{P}_gok{sfx}", 15, 95, [2 * (n1 - 1)] * (n1 - 1))
        A(f"{P}_redo{sfx}:")
        cn(96)
        A(f"""s_add_u32 s15, s15, s{sDead}
s_cmp_ge_u32 s15, {TMO}
s_cbranch_scc1 {opt['_K']}_end
s_waitcnt vmcnt(0) lgkmcnt(0)
s_barrier
s_add_u32 s40, s53, {WS_FLAG + 65536}
s_add_u32 s{sGat2}, s{sMemP}, s39
s_add_u32 s{sGat}, s{sMemP}, s39
s_add_u32 s{sGat2}, s{sGat2}, 4096
s_add_u32 m0, s39, {LDS_MEM}
s_nop 0
buffer_load_dwordx4 v{vGat}, {SRD}, s{sGat} offen sc1 lds
s_add_u32 m0, s39, {LDS_MEM + 4096}""")
        for r in range(0, 16, 2): A(f"v_mov_b64 {v(vAk0+r,2)}, 0")
        A(g2dma())
        for i in range(6):
            for x in wq_read(A, i, SLQ[i]): A(x)
        A(f"s_waitcnt vmcnt(0) lgkmcnt(0)\ns_barrier\ns_branch {P}_entry{sfx}")
    if w == 3: kvf_wait(A, P, tmo)
    A(f"{P}_slow:\ns_waitcnt lgkmcnt(0)\ns_nop 7")
    A(f"""v_max3_f32 v{vT0}, v{vSx0}, v{vSx0+1}, v{vSx0+2}
v_max3_f32 v{vT1}, v{vSx0+3}, v{vSx1}, v{vSx1+1}
v_max3_f32 v{vT0}, v{vT0}, v{vSx1+2}, v{vSx1+3}
v_max3_f32 v{vT1}, v{vT1}, v{vSm}, v{vSm+1}
v_max_f32 v{vT0}, v{vT0}, v{vT1}
v_mov_b32 v{vT1}, v{vT0}
v_permlane32_swap_b32 v{vT0}, v{vT1}
v_max_f32 v{vT0}, v{vT0}, v{vT1}
v_mov_b32 v{vT1}, v{vT0}
v_permlane16_swap_b32 v{vT0}, v{vT1}
v_max_f32 v{vT0}, v{vT0}, v{vT1}""")
    srcs = [vSx0 + i for i in range(4)] + [vSx1 + i for i in range(4)] + [vSm, vSm + 1]
    for k_, x in enumerate(srcs): A(f"v_sub_f32 v{vE+k_}, v{x}, v{vT0}")
    for k_ in range(10): A(f"v_exp_f32 v{vE+k_}, v{vE+k_}")
    for k_ in range(4): A(f"v_cvt_pk_bf16_f32 v{vPx+k_}, v{vE+2*k_}, v{vE+2*k_+1}")
    A(f"v_cvt_pk_bf16_f32 v{vPm}, v{vE+8}, v{vE+9}")
    for (d, aa) in [(vO0, vVx), (vO1, vVx + 4), (vL, vAS)]:
        A(f"v_mfma_f32_16x16x32_bf16 {v(d,4)}, {v(aa,4)}, {v(vPx,4)}, 0")
    for (d, aa) in [(vL, vAS), (vO0, vVP), (vO1, vVP + 2)]:
        A(f"v_mfma_f32_16x16x16_bf16 {v(d,4)}, {v(aa,2)}, {v(vPm,2)}, {v(d,4)}")
    A("s_nop 7")
    A(f"v_rcp_f32 v{vT0}, v{vL+2}")
    for r in range(8): A(f"v_mul_f32 v{vO0+r}, v{vT0}, v{vO0+r}")
    for r in range(4): A(f"v_cvt_pk_bf16_f32 v{vE+r}, v{vO0+2*r}, v{vO0+2*r+1}")
    A(f"ds_write_b128 v{vOw}, {v(vE,4)}\ns_waitcnt lgkmcnt(0)\ns_branch {P}_norm")

def chain_member(A, P, opt, modefn):
    layer = 0
    opt = dict(opt); opt["_K"] = P
    A(f"s_mov_b32 s{sDead}, 1")
    lane_consts(A, layer, opt)
    weights_prologue(A)
    A(f"""s_lshl_b32 s54, s9, 11
s_lshl_b32 s53, s12, 13
s_add_u32 s53, s53, s54
s_lshl_b32 s39, s9, 10
s_lshl_b32 s{sKV}, s12, 19
s_add_u32 s{sKV}, s{sKV}, s54
s_add_u32 s{sKV}, s{sKV}, {WS_K}
s_lshl_b32 s{sPub}, s12, 18
s_add_u32 s{sPub}, s{sPub}, s39
s_add_u32 s{sPub}, s{sPub}, {WS_KVM}
s_add_u32 s40, s53, {WS_FLAG + 65536}
v_mov_b32 v32, 0
v_readfirstlane_b32 s{sStep}, v32
s_mov_b32 s41, 0
s_lshl_b32 s43, s9, 16
s_lshl_b32 s13, s12, 11
s_add_u32 s43, s43, s13
s_add_u32 s{sPartB}, s{sSync}, {SY_PART}
s_add_u32 s{sMemB}, s{sSync}, {SY_MEM}
s_lshl_b32 s13, s12, 8
s_add_u32 s13, s13, s{sSync}
s_add_u32 s55, s13, {SY_PROG}
s_add_u32 s{sKVF}, s13, {SY_KVF}""")
    for x in step_scalars(A, layer, 0): A(x)
    set_srd(A, 20, 48, 8192)
    A(f"""v_lshrrev_b32 v32, 2, v0
v_and_b32 v32, 3, v32
v_lshlrev_b32 v32, 1, v32
v_and_b32 v33, 1, v0
v_add_u32 v32, v32, v33
v_lshlrev_b32 v32, 10, v32
v_lshrrev_b32 v33, 4, v0
v_lshl_add_u32 v32, v33, 5, v32
v_bfe_u32 v33, v0, 1, 1
v_lshl_add_u32 v32, v33, 4, v32
s_lshl_b32 s13, s9, 7
s_add_u32 m0, s39, {LDS_MEM}
s_nop 0
buffer_load_dwordx4 v32, {SRDW}, s13 offen lds
s_add_u32 m0, s39, {LDS_MEM + 4096}
s_add_u32 s13, s13, 512
buffer_load_dwordx4 v32, {SRDW}, s13 offen lds
s_mov_b32 s15, 0
{P}_k0:
buffer_load_dword v33, off, {SRD}, s{sKVF} sc1
s_waitcnt vmcnt(0)
v_readfirstlane_b32 s13, v33
s_add_u32 s15, s15, 1
s_cmp_ge_u32 s15, {TMO}
s_cbranch_scc1 {P}_k1
s_cmp_eq_u32 s13, 0
s_cbranch_scc1 {P}_k0
{P}_k1:""")
    kv_dma(A)
    A(f"s_add_u32 s{sKV}, s{sKV}, {KVSEG}")
    A("s_waitcnt lgkmcnt(0)")
    for r in range(0, 16, 2): A(f"v_mov_b64 {v(vAk0+r,2)}, 0")
    A(f"v_mov_b32 v{vVP}, 0\nv_mov_b32 v{vVP+2}, 0\nv_mov_b32 v{vVP+1}, 0\nv_mov_b32 v{vVP+3}, 0\nv_mov_b32 v{vPm+1}, 0")
    for i in range(6):
        for x in wq_read(A, i, SLQ[i]): A(x)
    modefn(A)
    A(f"v_mov_b32 v0, v30\ns_mov_b32 s14, 0\ns_mov_b32 s15, 0")
    if opt.get("cnt"):
        for r in range(60, 98): A(f"s_mov_b32 s{r}, 0")
        A("s_memtime s[98:99]")
    A("s_waitcnt vmcnt(0) lgkmcnt(0)")
    A(f"s_add_u32 s{sKm}, s54, {LDS_K + 8192}\ns_add_u32 s52, s39, 4096\ns_barrier")
    A(f"s_cmp_eq_u32 s13, 0\ns_cbranch_scc1 {P}_fb")
    for (tg, c) in [("", "f"), (f"{P}_fb:", "s")]:
        if tg: A(tg)
        for q in range(3): A(f"s_cmp_eq_u32 s9, {q}\ns_cbranch_scc1 {P}_{c}{q}_entry")
        A(f"s_branch {P}_{c}3_entry")
    for q in range(4): variant(A, f"{P}_f{q}", layer, 0, q, True, opt)
    o2 = dict(opt); o2.update(d2=[0,0,0,0])
    for q in range(4): variant(A, f"{P}_s{q}", layer, 0, q, False, o2)
    A(f"""{P}_fin:
s_cmp_lg_u32 s9, 2
s_cbranch_scc1 {P}_fin2
s_mov_b64 exec, 1
buffer_store_dword v{vT1}, off, {SRD}, s55 sc1
s_mov_b64 exec, -1
{P}_fin2:""")
    if opt.get("cnt"):
        A(f"""s_memtime s[60:61]
s_waitcnt lgkmcnt(0)
s_sub_u32 s82, s60, s98
s_sub_u32 s83, s98, s100
s_lshl_b32 s13, s12, 2
s_add_u32 s13, s13, s9
s_lshl_b32 s13, s13, 6
s_add_u32 s13, s13, {WS_FLAG}""")
        for k_ in range(16):
            A(f"v_mov_b32 v32, s{82+k_}\nbuffer_store_dword v32, off, {SRD}, s13 offset:{4*k_}\ns_nop 1")
```

```python
from common import *

STAMP = [False]
def att_task(A, P, sTB, sH0, sPart, sNH, sc1=False, waitfn=None, kvwait=None):
    SC = " sc1" if sc1 else ""
    def stp(A, k):
        if STAMP[0]: A(f"s_memtime s[{60+2*k}:{61+2*k}]")
    stp(A, 0)
    set_srd(A, 20, 40, 4 * MB); set_srd(A, 24, 46, 4 * MB)
    vD, vTq, vTo, vKm, vVm, vKV, t0, t1, t2 = 2, 3, 7, 11, 12, 13, 14, 15, 0
    vB = 16; vS = 32; vA = 64; vX = 128
    LKV = 65536
    if kvwait: kvwait(A)
    A(f"""s_lshl_b32 s28, s{sTB}, 2
s_add_u32 s28, s28, s9              ; seg
s_lshl_b32 s13, s28, 15
s_add_u32 s13, s13, {WS_XN}""")
    for k in range(32):
        if k % 4 == 0 and k: A("s_add_u32 s13, s13, 4096")
        A(f"buffer_load_dwordx4 {v(vX + 4*k, 4)}, v1, s[16:19], s13 offen offset:{(k&3)*1024}{SC}")
    A(f"""v_lshrrev_b32 v{t0}, 4, v0
v_and_b32 v{t1}, 15, v0
v_lshlrev_b32 v{vB}, 2, v{t0}
v_xor_b32 v{t1}, v{t1}, v{vB}
v_lshlrev_b32 v{t1}, 4, v{t1}
v_lshl_add_u32 v{vD}, v{t0}, 13, v{t1}
v_bfe_u32 v{t0}, v0, 2, 2
v_lshrrev_b32 v{t1}, 5, v0
v_lshl_add_u32 v{vB}, v{t1}, 3, v{t0}
v_lshlrev_b32 v{vB}, 8, v{vB}
v_bfe_u32 v{vB+1}, v0, 4, 1
v_lshl_add_u32 v{vB}, v{vB+1}, 5, v{vB}
v_and_b32 v{vB+2}, 3, v0
v_lshl_add_u32 v{vB}, v{vB+2}, 3, v{vB}
v_lshl_add_u32 v{vB+3}, v{t1}, 2, v{t0}
v_lshlrev_b32 v{vB+3}, 10, v{vB+3}
v_lshl_add_u32 v{vB+3}, v{vB+1}, 5, v{vB+3}
v_and_b32 v{vB+2}, 1, v0
v_lshl_add_u32 v{vB+3}, v{vB+2}, 4, v{vB+3}
v_bfe_u32 v{vB+2}, v0, 1, 1
v_lshl_add_u32 v{vB+3}, v{vB+2}, 3, v{vB+3}""")
    for te in range(4):
        A(f"v_xor_b32 v{vB+2}, {te}, v{t0}\nv_lshl_add_u32 v{vTq+te}, v{vB+2}, 6, v{vB}\nv_lshl_add_u32 v{vTo+te}, v{vB+2}, 6, v{vB+3}")
    A(f"""s_mul_i32 s29, s9, 20480
s_add_u32 s29, s29, {LKV}
v_add_u32 v{vKV}, s29, v1
v_bfe_u32 v{vB}, v0, 1, 2
v_lshlrev_b32 v{vB}, 2, v{vB}
v_and_b32 v{vB+1}, 1, v0
v_add_u32 v{vB}, v{vB}, v{vB+1}
v_lshl_add_u32 v{vB}, v{t1}, 4, v{vB}
v_lshlrev_b32 v{vB}, 4, v{vB}
s_add_u32 s13, s29, 16384
v_add_u32 v{vKm}, s13, v{vB}
v_and_b32 v{vB}, 15, v0
v_or_b32 v{vB}, 2, v{vB}
v_lshl_add_u32 v{vB}, v{t1}, 5, v{vB}
v_lshlrev_b32 v{vB}, 4, v{vB}
v_bfe_u32 v{vB+1}, v0, 1, 1
v_xor_b32 v{vB+1}, 1, v{vB+1}
v_lshl_add_u32 v{vB}, v{vB+1}, 3, v{vB}
v_bfe_u32 v{vB+1}, v0, 4, 1
v_lshl_add_u32 v{vB}, v{vB+1}, 2, v{vB}
v_add_u32 v{vVm}, s13, v{vB}
v_and_b32 v{vB}, 31, v0
v_lshlrev_b32 v{t1}, 2, v{t1}
v_sub_u32 v0, v{vB}, v{t1}
s_lshl_b32 s30, s9, 12              ; lds w*4096
s_lshl_b32 s31, s{sH0}, 8
s_lshl_b32 s13, s9, 17
s_add_u32 s31, s31, s13
s_lshl_b32 s32, s{sH0}, 17
s_add_u32 s32, s32, s30
s_lshl_b32 s33, s{sH0}, 6
s_add_u32 s33, s33, s28             ; h*64+seg
s_lshl_b32 s34, s33, 12
s_add_u32 s34, s34, {WS_KVM}
s_lshl_b32 s33, s33, 13
s_add_u32 s33, s33, {WS_K}
s_mov_b32 s39, 0x7ff00000
s_mov_b32 s35, {f32bits(math.log2(math.e) / math.sqrt(128.0)):#x}""")
    def dma(c, nxt):
        sl = (c % 4) * 16384
        L = []
        for j in range(4):
            if c < 8:
                L.append(f"s_add_u32 m0, s30, {sl + j*1024}\ns_add_u32 s13, s{38 if nxt else 31}, {(64*c + 4*j)*8192}\nbuffer_load_dwordx4 v{vD}, s[20:23], s13 offen lds")
            else:
                L.append(f"s_add_u32 m0, s30, {sl + j*1024}\ns_add_u32 s13, s32, {(c-8)*16384 + j*1024}\nv_xor_b32 v{t0}, {64*j}, v1\nbuffer_load_dwordx4 v{t0}, s[24:27], s13 offen lds")
        return L
    def kvdma(part):
        L = []
        if part == 0:
            for mtx in range(2):
                for j in range(8):
                    L.append(f"s_add_u32 m0, s29, {mtx*8192 + j*1024}\ns_add_u32 s13, s33, {mtx*(WS_V - WS_K) + j*1024}\nbuffer_load_dwordx4 v1, s[16:19], s13 offen{SC} lds")
        else:
            for j in range(4):
                L.append(f"s_add_u32 m0, s29, {16384 + j*1024}\ns_add_u32 s13, s34, {j*1024}\nbuffer_load_dwordx4 v1, s[16:19], s13 offen{SC} lds")
        return L
    def reads(st_):
        g, k = (st_ >> 2) & 15, st_ & 3
        sl = (g % 4) * 16384; b = vS + 16 * (st_ & 1)
        L = []
        for te in range(4):
            for jj in range(2):
                if g < 8: L.append(f"ds_read_b64_tr_b16 {v(b + 4*te + 2*jj, 2)}, v{vTq+te} offset:{sl + (16*k + 4*jj)*256}")
                else: L.append(f"ds_read_b64_tr_b16 {v(b + 4*te + 2*jj, 2)}, v{vTo+te} offset:{sl + jj*8192 + k*256}")
        return L
    def emit(A, waits, npass):
        rec = []
        ctok = {}; kvtok = {}
        def wv(tok):
            n = A.vm_n(tok)
            if waits is None:
                rec.append(63 if n is None else n)
                if n is not None: A(f"s_waitcnt vmcnt({n})")
            else:
                A(f"s_waitcnt vmcnt({waits.pop(0)})")
        for x in dma(0, 0): ctok[0] = A(x)
        for x in kvdma(0): kvtok[0] = A(x)
        if not waitfn:
            for x in kvdma(1): kvtok[0] = A(x)
        for c in (1, 2):
            for x in dma(c, 0): ctok[c] = A(x)
        stp(A, 1)
        A.wvm(ctok[0]); A("s_barrier")
        stp(A, 2)
        for x in reads(0): A(x)
        A(f"s_mov_b32 s36, 0\n{P}_hl:")
        pend = []
        for hh in range(npass):
            A(f"""s_add_u32 s13, s36, 1
s_cmp_lt_u32 s13, s{sNH}
s_cselect_b32 s38, 256, s39
s_add_u32 s38, s38, s31""")
            def steps(ph, rng, first):
                for i in rng:
                    st_ = ph * 32 + i
                    g, k = st_ >> 2, st_ & 3
                    G_ = hh * 16 + g
                    A("s_waitcnt lgkmcnt(0)")
                    if k == 3:
                        while pend and any(p[1] is ctok and p[2] <= G_ + 1 for p in pend):
                            x, st, key = pend.pop(0); st[key] = A(x)
                        wv(ctok[G_ + 1]); A("s_barrier")
                    if k == 0: pend[0:0] = [(x, ctok, G_ + 3) for x in dma((g + 3) & 15, g + 3 >= 16)]
                    fill = reads(st_ + 1) if st_ != 31 else []
                    b = vS + 16 * (st_ & 1)
                    for te in range(4):
                        wa = v(b + 4 * te, 4)
                        if ph == 0: mf32(A, v(vA + 16 * te, 16), wa, v(vX + 4 * i, 4), i == 0)
                        else: mf32(A, a(16 * (4 * k + te), 16), wa, v(vA + 4 * (i >> 2), 4), first)
                        for _ in range([3, 3, 2, 0][te]):
                            if fill: A(fill.pop(0))
                        if pend and te in (2, 3):
                            x, st, key = pend.pop(0); st[key] = A(x)
            steps(0, range(32), False)
            stp(A, 3)
            if waitfn and waits is not None:
                A(f"s_cmp_lg_u32 s36, 0\ns_cbranch_scc1 {P}_nw")
                waitfn(A)
                for x in kvdma(1): A(x)
                A(f"s_waitcnt vmcnt(0)\n{P}_nw:")
            for r in range(16):
                A(f"v_cmp_le_i32 vcc, {8*(r>>2) + (r&3)}, v0\nv_cndmask_b32 v{vB+r}, v{t1}, 0, vcc") if r else A(f"v_mov_b32 v{t1}, {f32bits(-1e30):#x}\nv_cmp_le_i32 vcc, 0, v0\nv_cndmask_b32 v{vB}, v{t1}, 0, vcc")
            while any(p[1] is kvtok for p in pend):
                x, st, key = pend.pop(0); st[key] = A(x)
            wv(kvtok[hh])
            kt = [A(f"ds_read_b128 {v(vS + 4*n, 4)}, v{vKV} offset:{n*1024}") for n in range(8)]
            for te in range(4):
                for i in range(8): A(f"v_cvt_pk_bf16_f32 v{vA + 8*te + i}, v{vA + 16*te + 2*i}, v{vA + 16*te + 2*i + 1}")
            mt = []
            for n in range(8):
                A.wlg(kt[n])
                mf32(A, v(96, 16), v(vS + 4*n, 4), v(vA + 4*n, 4), c=v(vB, 16) if n == 0 else None)
                mt.append(A(f"ds_read_b128 {v(vS + 4*n, 4)}, v{vKm} offset:{(n>>1)*1024 + (n&1)*512}"))
            for n in range(8):
                A.wlg(mt[n])
                mf32(A, v(112, 16), v(vS + 4*n, 4), v(vA + 4*n, 4), n == 0)
                A(f"ds_read_b128 {v(vS + 4*n, 4)}, v{vKV} offset:{8192 + n*1024}")
            for et in range(4): vmt = A(f"ds_read2_b32 {v(vB + 2*et, 2)}, v{vVm} offset0:0 offset1:64") if et == 0 else A(f"v_add_u32 v{t0}, {1024*et}, v{vVm}\nds_read2_b32 {v(vB + 2*et, 2)}, v{t0} offset0:0 offset1:64")
            A(f"v_mov_b32 v{vB+8}, 0\nv_mov_b32 v{vB+9}, 0")
            A(f"""s_add_u32 s13, s36, 1
s_cmp_lt_u32 s13, s{sNH}
s_cselect_b32 s13, {64*8192}, s39
s_add_u32 s33, s33, s13
s_lshr_b32 s13, s13, 1
s_add_u32 s34, s34, s13""")
            vals = list(range(96, 116))
            A(f"v_max3_f32 v{t0}, v96, v97, v98")
            for i in range(99, 113, 2): A(f"v_max3_f32 v{t0}, v{t0}, v{i}, v{i+1}")
            A(f"v_max3_f32 v{t0}, v{t0}, v113, v114\nv_max_f32 v{t0}, v{t0}, v115")
            A(f"v_mov_b32 v{t1}, v{t0}\nv_permlane32_swap_b32 v{t0}, v{t1}\nv_max_f32 v{t0}, v{t0}, v{t1}\nv_mul_f32 v{t0}, s35, v{t0}")
            for r in vals: A(f"v_fma_f32 v{r}, v{r}, s35, -v{t0}")
            for r in vals: A(f"v_exp_f32 v{r}, v{r}")
            A(f"v_add_f32 v{t0}, v96, v97\nv_add_f32 v{t1}, v98, v99")
            for i in range(100, 116, 2): A(f"v_add_f32 v{t0}, v{t0}, v{i}\nv_add_f32 v{t1}, v{t1}, v{i+1}")
            A(f"v_add_f32 v{t0}, v{t0}, v{t1}\nv_mov_b32 v{t1}, v{t0}\nv_permlane32_swap_b32 v{t0}, v{t1}\nv_add_f32 v{t0}, v{t0}, v{t1}\nv_rcp_f32 v{t0}, v{t0}")
            for r in range(96, 116, 2): A(f"v_pk_mul_f32 {v(r,2)}, {v(r,2)}, {v(t0,2)} op_sel_hi:[1,0]")
            A("v_cvt_pk_bf16_f32 v116, v112, v113\nv_cvt_pk_bf16_f32 v117, v114, v115\nv_mov_b32 v118, 0\nv_mov_b32 v119, 0")
            for q in range(2):
                for i, s_ in enumerate([4*q, 4*q + 2, 4*q + 8, 4*q + 10]): A(f"v_cvt_pk_bf16_f32 v{120 + 4*q + i}, v{96 + s_}, v{97 + s_}")
            A.wlg(vmt)
            oacc = [64, 80, 96, 32]
            for et in range(4):
                d = v(oacc[et], 16)
                mf32(A, d, v(vS + 8*et, 4), v(120, 4), True)
                mf32(A, d, v(vS + 8*et + 4, 4), v(124, 4))
                mf32(A, d, v(vB + 2*et, 4), v(116, 4))
            for et in range(4):
                for i in range(8): A(f"v_cvt_pk_bf16_f32 v{vA + 8*et + i}, v{oacc[et] + 2*i}, v{oacc[et] + 2*i + 1}")
            stp(A, 4)
            for x in reads(32): A(x)
            if waits is not None:
                sv_pend = list(pend); sv_w = list(waits); sv_vm = list(A.vm); sv_c = dict(ctok)
                A(f"s_cmp_lg_u32 s36, 0\ns_cbranch_scc1 {P}_w1")
                steps(1, range(4), True)
                A(f"s_branch {P}_w2\n{P}_w1:")
                pend[:] = sv_pend; waits[:] = sv_w; A.vm = sv_vm
                steps(1, range(4), False)
                A(f"{P}_w2:")
            else:
                steps(1, range(4), False)
            pend.extend([(x, kvtok, hh + 1) for x in kvdma(0) + kvdma(1)])
            steps(1, range(4, 32), False)
            assert not pend, len(pend)
            if STAMP[0]: A("s_cmp_lg_u32 s36, 0\ns_cbranch_scc1 att_nst\ns_waitcnt lgkmcnt(0)\ns_mov_b32 s80, s66\ns_mov_b32 s81, s68\ns_memtime s[82:83]\natt_nst:")
            A(f"""s_add_u32 s31, s31, 256
s_add_u32 s32, s32, 131072
s_add_u32 s36, s36, 1
s_cmp_lt_u32 s36, s{sNH}
s_cbranch_scc1 {P}_hl""")
        return rec
    rec = emit(Asm(), None, 2)
    n = len(rec) // 2
    waits = [min(rec[i], rec[n + i]) for i in range(n)]
    emit(A, waits, 1)
    stp(A, 5)
    A("s_waitcnt lgkmcnt(0)")
    A(f"s_lshl_b32 s13, s{sPart}, 21\ns_lshl_b32 s14, s28, 15\ns_add_u32 s13, s13, s14\ns_add_u32 s13, s13, {WS_OP}\ns_nop 7")
    for dt in range(16):
        b = 32 + 16 * (dt & 1); o = 64 + 8 * (dt & 3)
        for i in range(16): A(f"v_accvgpr_read_b32 v{b+i}, a{16*dt+i}")
        for i in range(8): A(f"v_cvt_pk_bf16_f32 v{o+i}, v{b+2*i}, v{b+2*i+1}")
        if dt and dt % 2 == 0: A("s_add_u32 s13, s13, 4096")
        for q in range(2): A(f"buffer_store_dwordx4 {v(o + 4*q, 4)}, v1, s[16:19], s13 offen offset:{(dt&1)*2048 + q*1024}{SC}")

def att_kernel(opt):
    NH = opt.get("nh", 2)
    A = Asm(strict=opt.get("strict", False)); P = "att"
    NG = 32 // NH
    STAMP[0] = bool(opt.get("stamp"))
    std_prologue(A, P, 16 * NG, [(4, KA_WS), (40, KA_WQ), (46, KA_WO)])
    set_srd(A, 16, 4, WS_SIZE)
    k = NG // 8
    A(f"""v_lshlrev_b32 v1, 4, v0
s_and_b32 s50, s2, 7
s_mul_i32 s50, s50, {k}
s_lshr_b32 s13, s2, 3
s_and_b32 s13, s13, {k-1}
s_add_u32 s50, s50, s13
s_lshr_b32 s51, s2, {int(math.log2(NG))}
s_mul_i32 s52, s50, {NH}
s_mov_b32 s53, {NH}""")
    att_task(A, P, 51, 52, 50, 53)
    if opt.get("stamp"):
        A("s_memtime s[72:73]\ns_waitcnt vmcnt(0)\ns_memtime s[74:75]\ns_waitcnt lgkmcnt(0)")
        A(f"s_lshl_b32 s13, s2, 2\ns_add_u32 s13, s13, s9\ns_lshl_b32 s13, s13, 6\ns_add_u32 s13, s13, {WS_FLAG}")
        for k_, r in enumerate([62, 64, 80, 81, 82, 66, 68, 70, 72, 74]):
            A(f"s_sub_u32 s14, s{r}, s60\nv_mov_b32 v2, s14\nbuffer_store_dword v2, off, s[16:19], s13 offset:{4*k_}")
    A(f"s_waitcnt vmcnt(0)\n{P}_end:\ns_endpgm")
    A.fix_hazards(name=P, verbose=opt.get("verbose"))
    return A, dict(name="att_kernel", grid=16 * NG, block=256, lds=65536 + 4 * 20480, vgpr=512, accum=256)
```

```python
from common import *

def kv_setup(A):
    set_srd(A, 20, 42, 4 * MB); set_srd(A, 24, 44, 4 * MB)

def kv_task(A, P, sTB, sH, sc1=False):
    SC = " sc1" if sc1 else ""
    kv_setup(A)
    vD, vT, vX = 2, 4, 8
    A(f"""s_lshl_b32 s28, s{sTB}, 17
s_lshl_b32 s13, s9, 15
s_add_u32 s28, s28, s13
s_add_u32 s28, s28, {WS_XN}
s_lshl_b32 s29, s{sH}, 8
s_lshl_b32 s13, s9, 17
s_add_u32 s29, s29, s13
s_lshl_b32 s30, s9, 12
v_lshrrev_b32 v9, 4, v0
v_and_b32 v10, 15, v0
v_lshlrev_b32 v11, 2, v9
v_xor_b32 v10, v10, v11
v_lshlrev_b32 v10, 4, v10
v_lshl_add_u32 v{vD}, v9, 13, v10""")
    def dma():
        L = []
        for j in range(4):
            L.append(f"s_add_u32 m0, s30, {j*1024}\ns_add_u32 s13, s28, {j*1024}\nbuffer_load_dwordx4 v1, s[16:19], s13 offen{SC} lds")
        for mtx in range(2):
            for j in range(4):
                L.append(f"s_add_u32 m0, s30, {16384*(1+mtx) + j*1024}\ns_add_u32 s13, s29, {4*j*8192}\nbuffer_load_dwordx4 v{vD}, s[{20+4*mtx}:{23+4*mtx}], s13 offen lds")
        return L
    adv = f"s_add_u32 s28, s28, 4096\ns_add_u32 s29, s29, {64*8192}"
    A(f"s_mov_b32 s31, 0\n{P}_pl:")
    for x in dma(): A(x)
    A(adv)
    A(f"""s_add_u32 s30, s30, 49152
s_add_u32 s31, s31, 1
s_cmp_lt_u32 s31, 3
s_cbranch_scc1 {P}_pl
s_lshl_b32 s30, s9, 12
v_bfe_u32 v9, v0, 2, 2
v_lshrrev_b32 v10, 5, v0
v_lshl_add_u32 v10, v10, 3, v9
v_lshlrev_b32 v10, 8, v10
v_bfe_u32 v11, v0, 4, 1
v_lshl_add_u32 v10, v11, 5, v10
v_and_b32 v11, 3, v0
v_lshl_add_u32 v10, v11, 3, v10
s_lshr_b32 s13, s9, 1
s_lshl_b32 s13, s13, 14
s_add_u32 s13, s13, 16384
v_add_u32 v10, s13, v10""")
    for te in range(4): A(f"v_xor_b32 v11, {te}, v9\nv_lshl_add_u32 v{vT+te}, v11, 6, v10")
    A(f"""s_and_b32 s13, s9, 1
s_lshl_b32 s13, s13, 13
v_add_u32 v{vX}, s13, v1
s_mov_b32 s31, 0                 ; chunk
s_mov_b32 s32, 0
s_mov_b32 s34, 49152
s_waitcnt vmcnt(24)
s_barrier""")
    FR = [32, 56]
    def reads(k):
        b = FR[k & 1]
        L = [f"ds_read_b128 {v(b + 4*s_, 4)}, v{vX} offset:{s_*4096 + k*1024}" for s_ in range(2)]
        for te in range(4):
            for jj in range(2):
                L.append(f"ds_read_b64_tr_b16 {v(b + 8 + 4*te + 2*jj, 2)}, v{vT+te} offset:{(16*k + 4*jj)*256}")
        return L
    for x in reads(0): A(x)
    A(f"s_cmp_ge_u32 s9, 2\ns_cbranch_scc1 {P}_vw")
    for isv in range(2):
        Q = f"{P}_{isv}"
        if isv: A(f"{P}_vw:")
        def step(k, first, pend):
            fill = reads((k + 1) & 3)
            b = FR[k & 1]; n = 0
            for s_ in range(2):
                for te in range(4):
                    d = v(128 + (s_ * 4 + te) * 16, 16); xa = v(b + 4 * s_, 4); wa = v(b + 8 + 4 * te, 4)
                    if isv: mf32(A, d, xa, wa, first)
                    else: mf32(A, d, wa, xa, first)
                    for _ in range([3, 3, 2, 2, 0, 0, 0, 0][n]):
                        if fill: A(fill.pop(0))
                    if n in (4, 5, 6) and pend: A(pend.pop(0))
                    n += 1
        A("s_waitcnt lgkmcnt(0)")
        step(0, True, [])
        A("s_waitcnt lgkmcnt(0)"); step(1, False, [])
        A("s_waitcnt lgkmcnt(0)"); step(2, False, [])
        A(f"{Q}_lp:")
        A(f"""s_waitcnt vmcnt(12) lgkmcnt(0)
s_barrier
s_add_u32 s32, s32, 1
s_cmp_eq_u32 s32, 3
s_cselect_b32 s33, {(-98304) & 0xffffffff:#x}, s34
s_cselect_b32 s32, 0, s32
s_cmp_ge_u32 s31, 5
s_cselect_b32 s28, 0x7ff00000, s28
s_cselect_b32 s29, 0x7ff00000, s29""")
        for r in [vT, vT+1, vT+2, vT+3, vX]: A(f"v_add_u32 v{r}, s33, v{r}")
        pend = dma()
        step(3, False, pend)
        A(f"s_cmp_eq_u32 s31, 7\ns_cbranch_scc1 {Q}_ex")
        for k in range(3):
            A("s_waitcnt lgkmcnt(0)"); step(k, False, pend)
        A(adv)
        A(f"s_add_u32 s30, s30, s33\ns_add_u32 s31, s31, 1\ns_branch {Q}_lp\n{Q}_ex:")
        A(f"""s_lshl_b32 s31, s{sH}, 6
s_lshl_b32 s13, s{sTB}, 2
s_add_u32 s31, s31, s13
s_and_b32 s13, s9, 1
s_lshl_b32 s13, s13, 1
s_add_u32 s31, s31, s13
s_lshl_b32 s31, s31, 13
s_add_u32 s31, s31, {WS_V if isv else WS_K}
s_waitcnt lgkmcnt(0)""")
        for s_ in range(2):
            for te in range(4):
                d = 128 + (s_ * 4 + te) * 16
                o = 32 + ((s_ * 4 + te) & 3) * 8
                for q in range(2):
                    src = [d + 4*q, d + 4*q + 2, d + 4*q + 8, d + 4*q + 10] if isv else [d + 8*q + 2*i for i in range(4)]
                    for i in range(4): A(f"v_cvt_pk_bf16_f32 v{o + 4*q + i}, v{src[i]}, v{src[i]+1}")
                A(f"s_add_u32 s13, s31, {s_*8192 + te*2048}")
                for q in range(2): A(f"buffer_store_dwordx4 {v(o + 4*q, 4)}, v1, s[16:19], s13 offen offset:{q*1024}{SC}")
        if not isv: A(f"s_branch {P}_kvdone")
    A(f"{P}_kvdone:")

def kv_kernel(opt):
    A = Asm(strict=opt.get("strict", False)); P = "kv"
    std_prologue(A, P, 512, [(4, KA_WS), (42, KA_WK), (44, KA_WV)])
    set_srd(A, 16, 4, WS_SIZE)
    A("""v_lshlrev_b32 v1, 4, v0
s_and_b32 s36, s2, 7
s_lshl_b32 s36, s36, 2
s_lshr_b32 s13, s2, 3
s_and_b32 s13, s13, 3
s_add_u32 s36, s36, s13
s_lshr_b32 s37, s2, 5""")
    kv_task(A, P, 37, 36)
    A(f"s_waitcnt vmcnt(0)\n{P}_end:\ns_endpgm")
    A.fix_hazards(name=P, verbose=opt.get("verbose"))
    return A, dict(name="kv_kernel", grid=512, block=256, lds=147456, vgpr=256, accum=256)
```

```python
from common import *
import chain
from kkv import kv_task
from katt import att_task
TMO = 400000

def poll_until(A, lab, load, cond, sleep=4):
    A(f"s_mov_b32 s15, 0\n{lab}:\n{load}\ns_waitcnt vmcnt(0)\n{cond}\ns_cbranch_scc1 {lab}_ok\ns_sleep {sleep}\ns_add_u32 s15, s15, 1\ns_cmp_lt_u32 s15, {TMO}\ns_cbranch_scc1 {lab}\n{lab}_ok:")

def wg_atomic(A, lab, soff_reg, dst):
    A(f"""v_mov_b32 v2, 0
v_mov_b32 v3, 1
s_cmp_lg_u32 s9, 0
s_cbranch_scc1 {lab}_a
s_mov_b64 exec, 1
buffer_atomic_add v3, off, s[16:19], s{soff_reg} sc0
s_waitcnt vmcnt(0)
ds_write_b32 v2, v3
s_waitcnt lgkmcnt(0)
s_mov_b64 exec, -1
{lab}_a:
s_barrier
ds_read_b32 v3, v2
s_waitcnt lgkmcnt(0)
v_readfirstlane_b32 s{dst}, v3
s_barrier""")

def role_poll(A, lab, r0):
    poll_until(A, lab, f"v_lshlrev_b32 v{r0}, 4, v1\ns_add_u32 s13, s56, {SY_ROLE}\ns_mov_b64 exec, 0xffff\nbuffer_load_dword v{r0+1}, v{r0}, s[16:19], s13 offen sc1\ns_mov_b64 exec, -1",
               "\n".join([f"v_readlane_b32 s14, v{r0+1}, 0"] + [f"v_readlane_b32 s13, v{r0+1}, {i}\ns_add_u32 s14, s14, s13" for i in range(1, 16)]) + "\ns_cmp_ge_u32 s14, 256")
    A(f"v_cmp_eq_u32 vcc, 32, v{r0+1}\ns_and_b32 s13, vcc_lo, 0xff\ns_cmp_eq_u32 s13, 0xff\ns_cselect_b32 s13, 1, 0\nv_readlane_b32 s14, v{r0+1}, 0")

def r1_task(A, P, sTB, sPart, sLg):
    X = 160; T = 168; R = 176
    A(f"""s_add_u32 s13, s{sLg}, 3
s_lshl_b32 s14, s9, s13
s_add_u32 s14, s14, s{sPart}
s_lshl_b32 s14, s14, 10
s_lshl_b32 s28, s{sTB}, 17
s_add_u32 s28, s28, s14
s_lshl_b32 s29, 4096, s13
s_lshl_b32 s30, 1, s{sLg}
s_sub_u32 s30, s30, 1
s_add_u32 s31, s28, {WS_OP}
s_mov_b32 s32, s31
s_add_u32 s33, s28, {WS_XA}""")
    for g in range(4):
        for p in range(8):
            A(f"buffer_load_dwordx4 {v(32 + 32*g + 4*p, 4)}, v1, s[16:19], s32 offen sc1\ns_add_u32 s32, s32, {2*MB}")
        A(f"buffer_load_dwordx4 {v(R + 4*g, 4)}, v1, s[16:19], s33 offen")
        if g < 3:
            A(f"""s_and_b32 s13, s30, {g+1}
s_cmp_eq_u32 s13, 0
s_cselect_b32 s13, s29, 0
s_add_u32 s31, s31, s13
s_add_u32 s33, s33, s13
s_cmp_lg_u32 s13, 0
s_cselect_b32 s32, s31, s32""")
    A(f"s_add_u32 s33, s28, {WS_XB}")
    for r in range(0, 8, 2): A(f"v_mov_b64 {v(X + r, 2)}, 0")
    for g in range(4):
        A(f"s_waitcnt vmcnt({9*(3-g)})") if g == 0 else A(f"s_waitcnt vmcnt({9*(3-g)})")
        for p in range(8):
            for i in range(4):
                s_ = 32 + 32*g + 4*p + i
                A(f"v_lshlrev_b32 v{T}, 16, v{s_}\nv_and_b32 v{T+1}, 0xffff0000, v{s_}\nv_pk_add_f32 {v(X + 2*i, 2)}, {v(X + 2*i, 2)}, {v(T, 2)}")
        A(f"s_and_b32 s13, s30, {g+1}\ns_cmp_lg_u32 s13, 0\ns_cbranch_scc1 {P}_r{g}")
        for i in range(4):
            A(f"""v_cvt_pk_bf16_f32 v{T}, v{X+2*i}, v{X+2*i+1}
v_lshlrev_b32 v{T+2}, 16, v{T}
v_and_b32 v{T+3}, 0xffff0000, v{T}
v_lshlrev_b32 v{T+4}, 16, v{R+4*g+i}
v_and_b32 v{T+5}, 0xffff0000, v{R+4*g+i}
v_pk_add_f32 {v(T+2,2)}, {v(T+2,2)}, {v(T+4,2)}
v_cvt_pk_bf16_f32 v{R+4*g+i}, v{T+2}, v{T+3}
v_mov_b64 {v(X + 2*i, 2)}, 0""")
        A(f"buffer_store_dwordx4 {v(R + 4*g, 4)}, v1, s[16:19], s33 offen\ns_add_u32 s33, s33, s29\ns_waitcnt vmcnt(0)\n{P}_r{g}:") if False else \
          A(f"buffer_store_dwordx4 {v(R + 4*g, 4)}, v{T+6}, s[16:19], s33 offen\ns_add_u32 s33, s33, s29\n{P}_r{g}:".replace(f"v{T+6}", "v1"))

def layer_body(opt):
    A = Asm(strict=opt.get("strict", False)); P = "lay"
    A(f"""{P}_start:
s_cmp_ge_u32 s2, 256
s_cbranch_scc1 {P}_end
s_load_dwordx2 s[4:5], s[0:1], {KA_WS}
s_load_dwordx4 s[40:43], s[0:1], {KA_WQ}
s_load_dwordx4 s[44:47], s[0:1], {KA_WV}
s_load_dwordx2 s[48:49], s[0:1], {KA_MEM0}
s_getreg_b32 s8, hwreg(HW_REG_XCC_ID)
v_lshrrev_b32 v1, 6, v0
v_and_b32 v0, 63, v0
v_readfirstlane_b32 s9, v1
s_and_b32 s8, s8, 15
v_lshlrev_b32 v1, 4, v0""")
    if opt.get("cnt"): A("s_memtime s[100:101]")
    if opt.get("force_fb"): A("s_and_b32 s8, s2, 15")
    A("s_waitcnt lgkmcnt(0)")
    set_srd(A, 16, 4, WS_SIZE)
    A(f"s_lshl_b32 s13, s8, 8\ns_add_u32 s13, s13, s56\ns_add_u32 s10, s13, {SY_ROLE}")
    wg_atomic(A, f"{P}_t", 10, 12)
    A(f"""s_cmp_ge_u32 s12, 32
s_cbranch_scc1 {P}_slowrole
s_cmp_eq_u32 s8, 0
s_cbranch_scc1 {P}_member
s_cmp_ge_u32 s8, 8
s_cbranch_scc1 {P}_slowrole
s_sub_u32 s60, s8, 1
s_lshl_b32 s60, s60, 5
s_add_u32 s60, s60, s12            ; speculative rank
s_mov_b32 s61, 0                   ; unverified
{P}_bulk:
s_lshr_b32 s62, s60, 5             ; vx
s_and_b32 s63, s60, 31             ; t
s_cmp_lt_u32 s62, 4
s_cselect_b32 s64, 5, 4            ; nh
s_cselect_b32 s65, 13108, 16384
{P}_kvl:
s_mul_i32 s66, s63, s65
s_lshr_b32 s66, s66, 16            ; tb
s_mul_i32 s13, s66, s64
s_sub_u32 s13, s63, s13
s_mul_i32 s13, s13, 7
s_add_u32 s67, s13, s62            ; head""".replace("s_cselect_b32 s65, 13108, 16384", "s_movk_i32 s65, 16384\ns_cselect_b32 s65, 13108, s65"))
    kv_task(A, "lkv", 66, 67, sc1=True)
    A(f"""s_waitcnt vmcnt(0)
s_barrier
s_lshl_b32 s13, s67, 8
s_lshl_b32 s14, s66, 2
s_add_u32 s13, s13, s14
s_add_u32 s13, s13, s56
s_add_u32 s13, s13, {SY_KVF}
v_mov_b32 v2, 1
s_cmp_lg_u32 s9, 0
s_cbranch_scc1 {P}_nf
s_mov_b64 exec, 1
buffer_store_dword v2, off, s[16:19], s13 sc1
s_mov_b64 exec, -1
{P}_nf:
s_cmp_lg_u32 s61, 0
s_cbranch_scc1 {P}_ver""")
    role_poll(A, f"{P}_rp1", 2)
    A(f"""s_cmp_eq_u32 s13, 0
s_cbranch_scc1 {P}_irr
s_mov_b32 s61, 1
{P}_ver:
s_add_u32 s63, s63, 32
s_lshl_b32 s13, s64, 4
s_cmp_lt_u32 s63, s13
s_cbranch_scc1 {P}_kvl
s_lshr_b32 s68, s60, 6
s_min_u32 s68, s68, 2
s_lshl_b32 s13, s68, 6
s_sub_u32 s13, s60, s13
s_add_u32 s14, s68, 3
s_lshr_b32 s66, s13, s14
s_lshl_b32 s15, s66, s14
s_sub_u32 s67, s13, s15
s_cmp_eq_u32 s68, 0
s_cselect_b32 s13, 0, 4
s_lshl_b32 s14, s68, 2
s_add_u32 s13, s13, s14
s_add_u32 s66, s66, s13            ; +0, +8, +12
{P}_att:
s_lshr_b32 s69, 4, s68
s_mul_i32 s70, s67, s69
s_lshl_b32 s71, 1, s69
s_sub_u32 s71, s71, 1
s_lshl_b32 s72, s70, 8
s_add_u32 s72, s72, s56""")
    def kvwait(B):
        poll_until(B, f"{P}_kw", f"v_lshlrev_b32 v14, 4, v1\ns_lshl_b32 s13, s66, 2\ns_add_u32 s13, s13, s72\ns_add_u32 s13, s13, {SY_KVF}\ns_mov_b64 exec, 15\nbuffer_load_dword v15, v14, s[16:19], s13 offen sc1\ns_mov_b64 exec, -1",
                   "v_cmp_ne_u32 vcc, 0, v15\ns_and_b32 s13, vcc_lo, s71\ns_cmp_eq_u32 s13, s71")
    def pwait(B):
        poll_until(B, f"{P}_pw", f"v_lshlrev_b32 v14, 4, v1\ns_add_u32 s13, s72, {SY_PROG}\ns_mov_b64 exec, 15\nbuffer_load_dword v15, v14, s[16:19], s13 offen sc1\ns_mov_b64 exec, -1",
                   "s_lshl_b32 s14, s66, 2\ns_add_u32 s14, s14, 4\nv_cmp_le_u32 vcc, s14, v15\ns_and_b32 s13, vcc_lo, s71\ns_cmp_eq_u32 s13, s71", sleep=8)
    att_task(A, "lat", 66, 70, 67, 69, sc1=True, waitfn=pwait, kvwait=kvwait)
    A(f"""s_waitcnt vmcnt(0)
s_barrier
s_lshl_b32 s73, s66, 8
s_add_u32 s73, s73, s56
s_add_u32 s73, s73, {SY_CNT}
v_mov_b32 v2, 1
s_cmp_lg_u32 s9, 0
s_cbranch_scc1 {P}_na
s_mov_b64 exec, 1
buffer_atomic_add v2, off, s[16:19], s73
s_mov_b64 exec, -1""")
    poll_until(A, f"{P}_cw", "buffer_load_dword v2, off, s[16:19], s73 sc1", "v_readfirstlane_b32 s13, v2\ns_lshl_b32 s14, 8, s68\ns_cmp_ge_u32 s13, s14")
    A(f"{P}_na:\ns_barrier")
    r1_task(A, P, 66, 67, 68)
    A(f"""s_cmp_ge_u32 s60, 32
s_cbranch_scc1 {P}_done
s_cmp_eq_u32 s66, 15
s_cbranch_scc1 {P}_done
s_mov_b32 s66, 15
s_mov_b32 s67, s60
s_mov_b32 s68, 2
v_lshrrev_b32 v0, 4, v1
s_waitcnt vmcnt(0)
s_branch {P}_att
{P}_slowrole:""")
    role_poll(A, f"{P}_rp2", 2)
    A(f"""{P}_irr:
s_min_u32 s74, s14, 32
s_sub_u32 s74, 32, s74
s_add_u32 s10, s56, {SY_ROLE + 4096}""")
    wg_atomic(A, f"{P}_g", 10, 60)
    A(f"""s_mov_b32 s61, 1
s_cmp_ge_u32 s60, s74
s_cbranch_scc0 {P}_adopt
s_sub_u32 s60, s60, s74
s_cmp_ge_u32 s60, 224
s_cbranch_scc1 {P}_done
s_branch {P}_bulk
{P}_adopt:
s_sub_u32 s12, 31, s60
{P}_member:""")
    def modefn(B):
        role_poll(B, f"{P}_rp3", 32)
        B("s_cmp_ge_u32 s14, 32\ns_cselect_b32 s13, 1, 0")
    chain.chain_member(A, P, opt.get("chain", {}), modefn)
    A(f"{P}_done:\ns_waitcnt vmcnt(0)\n{P}_end:\ns_endpgm")
    A.fix_hazards(name=P, verbose=opt.get("verbose"))
    return A

def layer_kernels(opt):
    body = layer_body(opt)
    A0 = Asm(); A0(f"s_mov_b32 s56, {WS_SYNC + MB}\ns_branch lay_start")
    A1 = Asm(); A1(f"s_mov_b32 s56, {WS_SYNC}"); A1.L += body.L
    meta = lambda n: dict(name=n, grid=256, block=256, lds=163840, vgpr=512, accum=256)
    return (A1, meta("lay0_kernel")), (A0, meta("lay1_kernel"))
```

```python
from common import *

def cos_chunk(A, dst, ph0, step, amp, t):
    pass

def pre_kernel(opt):
    A = Asm(strict=opt.get("strict", False)); P = "pre"
    std_prologue(A, P, 256, [(4, KA_WS), (6, KA_X), (10, KA_WR), (14, KA_WI)])
    set_srd(A, 16, 4, WS_SIZE)
    A(f"""v_lshlrev_b32 v1, 4, v0
v_lshrrev_b32 v2, 5, v0
v_and_b32 v3, 31, v0
s_cmp_ge_u32 s2, 192
s_cbranch_scc1 {P}_wt
s_cmp_ge_u32 s2, 64
s_cbranch_scc1 {P}_tab""")
    set_srd(A, 20, 6, 2 * MB)
    A(f"""v_lshlrev_b32 v4, 10, v3
v_lshl_add_u32 v4, v2, 4, v4
s_lshl_b32 s12, s2, 15
s_lshl_b32 s13, s9, 8
s_add_u32 s13, s13, s12
s_lshl_b32 s14, s9, 13
s_add_u32 s14, s14, s12
s_add_u32 s15, s14, {WS_XA}
s_add_u32 s24, s15, 4096
s_add_u32 s25, s14, 4096
v_lshlrev_b32 v5, 2, v3""")
    for k in range(8): A(f"buffer_load_dwordx4 {v(16+4*k,4)}, v4, s[20:23], s13 offen offset:{32*k}")
    A("s_waitcnt vmcnt(0)")
    for k in range(8): A(f"buffer_store_dwordx4 {v(16+4*k,4)}, v1, s[16:19], s{15 if k < 4 else 24} offen offset:{1024*(k&3)}")
    unpack(A, 64, 16, 32)
    layernorm(A, 64, 64, 6, 8, 5, 0, 4, 128)
    for k in range(8): A(f"buffer_store_dwordx4 {v(128+4*k,4)}, v1, s[16:19], s{14 if k < 4 else 25} offen offset:{1024*(k&3)}")
    A(f"s_branch {P}_done")
    A(f"""{P}_tab:
s_and_b32 s12, s2, 63
s_lshl_b32 s12, s12, 3
s_lshl_b32 s13, s9, 1
s_add_u32 s12, s12, s13
s_lshr_b32 s14, s12, 5           ; tile
s_and_b32 s15, s12, 31           ; ks
s_lshl_b32 s24, s12, 10
s_cmp_ge_u32 s2, 128
s_cbranch_scc1 {P}_ti
s_lshl_b32 s14, s14, 5
v_add_u32 v4, s14, v3
v_lshrrev_b32 v5, 1, v4
v_and_b32 v6, 1, v4
v_lshlrev_b32 v6, 7, v6
v_cmp_eq_u32 vcc, 1, v4
v_mov_b32 v7, 256
v_cndmask_b32 v5, v5, v7, vcc
v_cndmask_b32 v6, v6, 0, vcc
s_lshl_b32 s15, s15, 4
v_lshl_add_u32 v7, v2, 3, s15
v_mul_u32_u24 v8, v7, v5
v_add_u32 v8, v8, v6
s_add_u32 s24, s24, {WS_TF}""")
    for half in range(2):
        for j in range(8):
            A(f"""v_and_b32 v9, 511, v8
v_cvt_f32_u32 v9, v9
v_mul_f32 v9, {f32bits(1/512):#x}, v9
v_cos_f32 v{16+j}, v9
v_add_u32 v8, v8, v5""")
        for j in range(4): A(f"v_cvt_pk_bf16_f32 v{24+4*half+j}, v{16+2*j}, v{17+2*j}")
        A(f"v_lshl_add_u32 v8, v5, 3, v8")
        A(f"buffer_store_dwordx4 {v(24+4*half,4)}, v1, s[16:19], s24 offen offset:{1024*half}")
    A(f"s_branch {P}_done\n{P}_ti:")
    dperm_code(A, 4, 3, 5)
    A(f"""s_lshl_b32 s14, s14, 5
v_add_u32 v4, s14, v4
s_lshl_b32 s15, s15, 4
v_lshl_add_u32 v7, v2, 3, s15
s_add_u32 s24, s24, {WS_TI}""")
    for half in range(2):
        for j in range(8):
            A(f"""v_add_u32 v5, {16*half + j}, v7
v_lshrrev_b32 v6, 1, v5
v_cmp_eq_u32 vcc, 1, v5
v_mov_b32 v9, 256
v_cndmask_b32 v6, v6, v9, vcc
v_mov_b32 v9, {128*(j&1)}
v_cndmask_b32 v9, v9, 0, vcc
v_mad_u32_u24 v8, v6, v4, v9
v_and_b32 v8, 511, v8
v_cvt_f32_u32 v8, v8
v_mul_f32 v8, {f32bits(1/512):#x}, v8
v_cos_f32 v8, v8
v_cmp_gt_u32 vcc, 2, v5
v_add_f32 v9, v8, v8
v_cndmask_b32 v{16+j}, v9, v8, vcc""")
        for j in range(4): A(f"v_cvt_pk_bf16_f32 v{24+4*half+j}, v{16+2*j}, v{17+2*j}")
        A(f"buffer_store_dwordx4 {v(24+4*half,4)}, v1, s[16:19], s24 offen offset:{1024*half}")
    A(f"s_branch {P}_done")
    A(f"""{P}_wt:
s_sub_u32 s12, s2, 192
s_lshl_b32 s12, s12, 2
s_add_u32 s12, s12, s9           ; gw = 0..255""")
    set_srd(A, 20, 10, 2048 * 257 * 2); set_srd(A, 24, 14, 2048 * 257 * 2)
    A(f"""v_mov_b32 v16, 0
v_mov_b32 v17, 0
v_mov_b32 v18, 0
v_mov_b32 v19, 0
s_lshr_b32 s13, s12, 7
s_lshl_b32 s13, s13, 20
s_add_u32 s15, s13, {WS_SYNC}
s_and_b32 s14, s12, 127
s_lshl_b32 s13, s14, 12
s_add_u32 s13, s13, s15""")
    for k in range(4): A(f"buffer_store_dwordx4 v[16:19], v1, s[16:19], s13 offen offset:{1024*k}")
    A(f"""s_and_b32 s14, s14, 63
s_cmp_lt_u32 s14, 32
s_cselect_b32 s13, -1, 0
v_mov_b32 v20, s13
v_mov_b32 v21, s13
v_mov_b32 v22, s13
v_mov_b32 v23, s13
s_lshl_b32 s13, s14, 10
s_add_u32 s13, s13, s15
s_add_u32 s13, s13, {SY_MEM}
buffer_store_dwordx4 v[20:23], v1, s[16:19], s13 offen
v_lshl_add_u32 v4, v2, 8, v3
v_mul_u32_u24 v4, 514, v4
s_mov_b32 s28, s12
{P}_wtl:
s_lshl_b32 s13, s28, 1""")
    for tau in range(2):
        for r in range(16):
            k1 = 8 * (r >> 2) + (r & 3)
            A(f"s_add_u32 s14, s13, {(64 * k1 + 32 * tau) * 514}")
            A(f"buffer_load_ushort v{32 + 16*tau + r}, v4, s[20:23], s14 offen\nbuffer_load_ushort v{64 + 16*tau + r}, v4, s[24:27], s14 offen")
        if tau == 0: A("s_waitcnt vmcnt(16)")
    A("s_waitcnt vmcnt(0)")
    sc = f32bits(2.0 ** -20)
    for i in range(32):
        A(f"""v_lshlrev_b32 v{32+i}, 16, v{32+i}
v_lshlrev_b32 v{64+i}, 16, v{64+i}
v_mul_f32 v{32+i}, {sc:#x}, v{32+i}
v_mul_f32 v{64+i}, {sc:#x}, v{64+i}
v_cvt_pk_bf16_f32 v{96+i}, v{32+i}, v{64+i}""")
    A(f"s_lshl_b32 s13, s28, 13\ns_add_u32 s13, s13, {WS_WT}\ns_add_u32 s14, s13, 4096")
    for q in range(8): A(f"buffer_store_dwordx4 {v(96+4*q,4)}, v1, s[16:19], s{13 if q < 4 else 14} offen offset:{1024*(q&3)}")
    A(f"""s_cmp_lg_u32 s28, 255
s_cbranch_scc1 {P}_ct
s_mov_b32 s28, 256
s_waitcnt vmcnt(0)
s_branch {P}_wtl
{P}_ct:
s_cmp_ge_u32 s12, 60
s_cbranch_scc1 {P}_done""")
    dperm_code(A, 5, 3, 6)
    A("v_lshlrev_b32 v6, 2, v2")
    for q in range(60):
        A(f"s_cmp_lg_u32 s12, {q}\ns_cbranch_scc1 {P}_q{q}")
        pi = lambda r: 8 * (r >> 2) + (r & 3)
        def elem(dst, acst, bsrc, bcst, mul, off):
            A(f"""v_add_u32 v7, {acst}, v6
v_add_u32 v8, {bcst}, v{bsrc}
v_mul_u32_u24 v7, v7, v8
v_lshlrev_b32 v7, {mul}, v7
v_add_u32 v7, {off}, v7
v_and_b32 v7, 2047, v7
v_cvt_f32_u32 v7, v7
v_mul_f32 v7, {f32bits(1/2048):#x}, v7
v_cos_f32 v{dst}, v7""")
        SIN, NSIN = 1536, 512
        if q < 28:
            if q < 16:
                u, ks = (q & 7) >> 2, q & 3
                off = 0 if q < 8 else SIN
                for j in range(8): elem(32 + j, 32 * (ks >> 1) + pi(8 * (ks & 1) + j), 3, 32 * u, 5, off)
            else:
                z = q - 16; b = z >= 6; z %= 6
                off = [0, SIN, NSIN][z >> 1]
                for j in range(8): elem(32 + j, pi(8 * (z & 1) + j), 5 if b else 3, 0, 6, off)
            for j in range(4): A(f"v_cvt_pk_bf16_f32 v{44+j}, v{32+2*j}, v{33+2*j}")
        else:
            z = q - 28; second = z >= 16; z %= 16
            off = 0 if z < 8 else SIN
            tau, rq = (z & 7) >> 2, z & 3
            for i in range(4):
                if not second: elem(44 + i, pi(4 * rq + i), 3, 32 * tau, 0, off)
                else: elem(44 + i, 32 * tau + pi(4 * rq + i), 5, 0, 0, off)
        A(f"s_mov_b32 s13, {WS_CT + q*1024}\nbuffer_store_dwordx4 v[44:47], v1, s[16:19], s13 offen\ns_branch {P}_done\n{P}_q{q}:")
    A(f"{P}_done:\ns_waitcnt vmcnt(0)\n{P}_end:\ns_endpgm")
    A.fix_hazards(name=P)
    return A, dict(name="pre_kernel", grid=256, block=256, lds=4096, vgpr=192, accum=192)
```

```python
import sys, json
from kpre import *; from kkv import *; from katt import *; from kfft import *
from klayer import *
from build import *
def kernels(opt):
    K = {}
    K["pre"] = pre_kernel(opt);
    K["red"] = red_kernel(0, opt); K["col"] = col_kernel(opt); K["inv"] = inv_kernel(False, opt); K["invf"] = inv_kernel(True, opt)
    K["lay0"], K["lay1"] = layer_kernels(opt)
    return K
def make(path, opt, order=None):
    K = kernels(opt)
    order = order or ["pre", "lay0", "red", "col", "inv", "lay1", "red", "col", "invf"]
    build_file(path, K, order)
if __name__ == "__main__":
    make(sys.argv[1], json.loads(sys.argv[2]) if len(sys.argv) > 2 else {})
```

```python
import sys, json, re, collections
from common import *
def add_rt(A, endlabel):
    L = []
    done = False
    for x in A.L:
        if isinstance(x, str) and x == endlabel + ":":
            for t in f"""s_load_dwordx2 s[10:11], s[0:1], {KA_DBG}
s_load_dwordx2 s[12:13], s[0:1], {KA_WS}
s_mov_b32 s100, s98
s_memrealtime s[98:99]
s_waitcnt lgkmcnt(0)
s_lshr_b32 s10, s10, 9
s_and_b32 s10, s10, 15
s_lshl_b32 s10, s10, 13
s_lshl_b32 s11, s2, 4
s_add_u32 s10, s10, s11
s_add_u32 s10, s10, {WS_FLAG + 512*1024}
v_mov_b32 v2, s10
v_mov_b32 v4, s96
v_mov_b32 v5, s98
v_mov_b32 v6, s90
v_mov_b32 v7, s91
global_store_dwordx4 v2, v[4:7], s[12:13]
v_mov_b32 v8, s84
v_mov_b32 v9, s85
v_mov_b32 v10, s100
v_mov_b32 v11, s101
v_add_u32 v2, 4096, v2
global_store_dwordx4 v2, v[8:11], s[12:13]
s_waitcnt vmcnt(0)""".split("\n"): L.append(Ins(t))
        L.append(x)
    A.L = [Ins("s_memrealtime s[96:97]"), Ins("s_mov_b32 s90, 0"), Ins("s_mov_b32 s91, 0")] + L

def build_file(path, kernels, order, pre_comment=""):
    hdr = pre_comment
    if len(order) == 1 and kernels[order[0]][1].get("plain"):
        m = kernels[order[0]][1]
        hdr += f"; @launch grid=({m['grid']},1,1) block=({m['block']},1,1) lds={m['lds']}\n"
    else:
      for k in order:
        m = kernels[k][1]
        hdr += f"; @launch kernel={m['name']} grid=({m['grid']},1,1) block=({m['block']},1,1) lds={m['lds']}\n"
    used = [k for k in kernels if k in order or kernels[k][1].get("always")]
    cnt = collections.Counter()
    for k in used:
        for x in kernels[k][0].L:
            if isinstance(x, Ins): cnt[x.mn] += len(x.mn) - 2
    mac = {}
    al = "ABCDEFGHIJKLMNOPQRSTUVWXYZ"
    for i, (mn, c) in enumerate(cnt.most_common(60)):
        if mn.startswith(("s_cbranch", "s_branch", "s_endpgm", "s_barrier")) or len(mn) < 6: continue
        mac[mn] = "Q" + al[i // 26] + al[i % 26]
    body = '.amdgcn_target "amdgcn-amd-amdhsa--gfx950"\n'
    for mn, s_ in mac.items(): body += f".macro {s_} a:vararg\n{mn} \\a\n.endm\n"
    for k in used:
        A, m = kernels[k]
        body += kernel_begin(m["name"])
        o = []
        for x in A.L:
            if isinstance(x, Ins):
                t = x.text.split(";")[0].strip()
                p = t.split(None, 1)
                o.append(mac.get(p[0], p[0]) + (" " + p[1].replace(", ", ",") if len(p) > 1 else ""))
            elif x.startswith(";"): continue
            else: o.append(x)
        body += "\n".join(o) + "\n"
    for k in used:
        A, m = kernels[k]
        body += kernel_desc(m["name"], vgpr=m["vgpr"], accum=m["accum"])
    open(path, "w").write(hdr + body)
```

```python
from common import *

LDS_MEM, LDS_K, LDS_V, LDS_F, LDS_O, LDS_OD, LDS_WQ = 0, 8192, 24576, 0, 4096, 6144, 32768
vKr = 16; sKm = 47
FS = 1088
vL16, vG512, vFw, vFr, vOw, vOr, vPst, vMst, vSamp, vIK, vIN = 1, 2, 3, 4, 5, 6, 7, 8, 9, 10, 11
vGat = 0
vAS = 12; vM1 = 16; vWq0 = 17; vWq1 = 18; vSmp = 19
vKQ = 20; vVP = 24; vPm = 28; vT0 = 30; vT1 = 31
vMEM = 32
vSx0, vSx1, vSm, vE, vPx, vL = 32, 36, 40, 44, 54, 58
vAk0, vAq0, vAk1, vAq1 = 64, 68, 72, 76
vF = 64; vOUT = 64
vAv0, vAv1 = 80, 84
vO0, vO1 = 96, 100
vThr = 9
KVSEG = 8192
PUBSEG = 4096
vSTG = 88
vVx = 88; vKx = 96
vOF = 32; vPK = 48; vRL = 56; vRA = 48; vRT = 52
vWo = 128
sW, sH, sStep, sKV, sPub, sPart, sInb, sMemN, sMemP, sGat, sPh, sT, sC, sDead = 9, 12, 24, 25, 26, 27, 28, 29, 30, 31, 32, 33, 34, 3
sMask = 36; sSync, sPartB, sMemB, sKVF = 56, 57, 58, 59
vKF = 9
SRD = "s[16:19]"; SRDW = "s[20:23]"
TMO = 200000
CPS = 8192 + 0
MSL = 13

def smf(A, d, am, b, idx): A(f"v_smfmac_f32_16x16x64_bf16 {v(d,4)}, {v(am,4)}, {b}, {v(idx)}")

def lane_consts(A, layer, opt):
    L = 0
    t0, t1, t2 = 20, 21, 22
    vGT = 30
    A(f"""v_lshlrev_b32 v{vL16}, 4, v0
v_lshrrev_b32 v{t0}, 4, v0
v_and_b32 v{t1}, 15, v0
v_lshlrev_b32 v{vG512}, 9, v{t0}
v_lshl_add_u32 v{vG512}, v{t1}, 4, v{vG512}
v_bfe_u32 v{t2}, v0, 3, 1
v_lshlrev_b32 v{vFw}, 8, v{t2}
v_lshl_add_u32 v{vFw}, v{t0}, 6, v{vFw}
v_and_b32 v{t2}, 7, v0
v_lshl_add_u32 v{vFw}, v{t2}, 3, v{vFw}
s_lshl_b32 s14, s9, 10
s_add_u32 s14, s14, {LDS_F}
v_add_u32 v{vFw}, s14, v{vFw}
v_and_b32 v{t2}, 3, v0
v_lshlrev_b32 v{vFr}, 6, v{t2}
v_bfe_u32 v{t2}, v0, 5, 1
v_lshl_add_u32 v{vFr}, v{t2}, 9, v{vFr}
v_bfe_u32 v{t2}, v0, 2, 3
v_lshl_add_u32 v{vFr}, v{t2}, 3, v{vFr}
v_add_u32 v{vFr}, {LDS_F}, v{vFr}
v_lshlrev_b32 v{vOw}, 7, v{t0}
v_bfe_u32 v{t2}, v0, 2, 2
v_lshl_add_u32 v{vOw}, v{t2}, 5, v{vOw}
v_and_b32 v{t2}, 1, v0
v_lshl_add_u32 v{vOw}, v{t2}, 4, v{vOw}
s_lshl_b32 s14, s9, 9
s_add_u32 s14, s14, {LDS_O}
v_add_u32 v{vOw}, s14, v{vOw}
v_add_u32 v{t2}, {LDS_OD}, v{vL16}
v_and_b32 v23, 2, v0
v_cmp_ne_u32 vcc, 0, v23
v_cndmask_b32 v{vOw}, v{t2}, v{vOw}, vcc
v_mov_b32 v{t2}, 0x4444
v_mov_b32 v23, 0xeeee
v_cndmask_b32 v{vIK}, v{t2}, v23, vcc
v_and_b32 v24, 8, v0
v_cmp_ne_u32 vcc, 0, v24
v_cndmask_b32 v{vIN}, v{t2}, v23, vcc
v_lshlrev_b32 v{vOr}, 7, v{t0}
v_and_b32 v{t2}, 7, v0
v_lshl_add_u32 v{vOr}, v{t2}, 4, v{vOr}
v_add_u32 v{vOr}, {LDS_O}, v{vOr}
; vPst = (2w+sel)*8192 + (2*g1+(n>>3))*2048 + h*64 + (n&7)*8
v_lshrrev_b32 v{vPst}, 5, v0
s_lshl_b32 s13, s9, 1
v_add_u32 v{vPst}, s13, v{vPst}
v_lshlrev_b32 v{vPst}, 13, v{vPst}
v_bfe_u32 v{t2}, v0, 3, 2
v_lshl_add_u32 v{vPst}, v{t2}, 11, v{vPst}
v_and_b32 v{t2}, 7, v0
v_lshl_add_u32 v{vPst}, v{t2}, 3, v{vPst}
s_lshl_b32 s14, s12, 6
v_add_u32 v{vPst}, s14, v{vPst}
; vMst = h*256 + w*64 + gt*16 + cw*4 (lanes with n>=4 out of range)
v_lshlrev_b32 v{vMst}, 4, v{t0}
v_and_b32 v{t2}, 3, v0
v_lshl_add_u32 v{vMst}, v{t2}, 2, v{vMst}
s_lshl_b32 s14, s12, 6
s_lshl_b32 s15, s9, 11
s_add_u32 s14, s14, s15
v_add_u32 v{vMst}, s14, v{vMst}
v_and_b32 v24, 12, v0
v_cmp_ne_u32 vcc, 0, v24
v_mov_b32 v24, 0x80000000
v_cndmask_b32 v{vMst}, v{vMst}, v24, vcc
s_mov_b32 s{sMask}, 0xcccccccc
s_mov_b32 s{sMask+1}, 0xcccccccc
s_mov_b32 s{sT}, {f32bits(40.0):#x}
s_lshl_b32 s14, s9, 11
s_add_u32 s14, s14, {LDS_MEM}
v_add_u32 v19, s14, v{vL16}
v_lshlrev_b32 v{vGT}, 8, v{t0}
v_bfe_u32 v{t2}, v0, 3, 1
v_lshl_add_u32 v{vGT}, v{t2}, 7, v{vGT}
v_bfe_u32 v{t2}, v0, 1, 1
v_lshl_add_u32 v{vGT}, v{t2}, 6, v{vGT}
v_bfe_u32 v{t2}, v0, 2, 1
v_lshl_add_u32 v{vGT}, v{t2}, 5, v{vGT}
v_and_b32 v{t2}, 1, v0
v_lshl_add_u32 v{vGT}, v{t2}, 4, v{vGT}
v_lshrrev_b32 v{t2}, 2, v{t1}
v_and_b32 v23, 3, v{t1}
v_lshl_add_u32 v{t2}, v23, 2, v{t2}
v_mov_b32 v24, 0x3f80
v_mov_b32 v25, 0x3f800000
v_mov_b32 v26, 0x3f803f80""")
    for r in range(4):
        A(f"""v_mov_b32 v{vAS+r}, 0
v_cmp_eq_u32 vcc, {2*r}, v{t2}
v_cndmask_b32 v{vAS+r}, v{vAS+r}, v24, vcc
v_cmp_eq_u32 vcc, {2*r+1}, v{t2}
v_cndmask_b32 v{vAS+r}, v{vAS+r}, v25, vcc
v_cmp_le_u32 vcc, 8, v{t2}
v_cndmask_b32 v{vAS+r}, v{vAS+r}, v26, vcc""")
    A(f"""v_add_u32 v16, {LDS_K}, v{vG512}
s_lshl_b32 s13, s9, 14
s_add_u32 s13, s13, {LDS_WQ}
v_add_u32 v{vWq0}, s13, v{vL16}
v_add_u32 v{vWq1}, 0x10000, v{vWq0}
s_mov_b32 s{sC}, {f32bits(math.log2(math.e) / math.sqrt(128.0)):#x}""")

def weights_prologue(A, initfn=None):
    dA = [32, 33, 34, 35]; dO = [36, 37]; tA = [38, 39]; tO = 40; tc = [41, 42]
    x, y = 44, 45
    A(f"""; DMA source offsets for Wq/k/v : rr*8192 + ((cc ^ 2(rr&1) ^ 4j)*16)
v_lshrrev_b32 v{x}, 4, v0
v_and_b32 v{y}, 1, v{x}
v_lshlrev_b32 v{y}, 1, v{y}
v_and_b32 v46, 15, v0
v_xor_b32 v{y}, v{y}, v46
v_lshlrev_b32 v{x}, 13, v{x}""")
    for j in range(4):
        A(f"v_xor_b32 v46, {4*j}, v{y}\nv_lshl_add_u32 v{dA[j]}, v46, 4, v{x}")
    A(f"""; Wo DMA: (l ^ 4*((j&1) | ((w>>1)<<1)))*16
s_lshr_b32 s13, s9, 1
s_lshl_b32 s13, s13, 3
v_xor_b32 v{y}, s13, v0
v_lshlrev_b32 v{dO[0]}, 4, v{y}
v_xor_b32 v{y}, 4, v{y}
v_lshlrev_b32 v{dO[1]}, 4, v{y}
v_bfe_u32 v{x}, v0, 5, 1
v_lshlrev_b32 v{x}, 4, v{x}
v_bfe_u32 v46, v0, 4, 1
v_lshl_add_u32 v{x}, v46, 2, v{x}
v_lshlrev_b32 v{y}, 2, v46
v_bfe_u32 v46, v0, 2, 1
v_add_u32 v{x}, v{x}, v46
v_lshl_add_u32 v{y}, v46, 1, v{y}
v_bfe_u32 v46, v0, 3, 1
v_lshl_add_u32 v{x}, v46, 3, v{x}
v_lshl_add_u32 v{y}, v46, 3, v{y}
v_lshlrev_b32 v{x}, 8, v{x}
v_and_b32 v46, 1, v0
v_lshl_add_u32 v{x}, v46, 3, v{x}
v_bfe_u32 v46, v0, 1, 1
s_lshl_b32 s13, s9, 2
v_add_u32 v46, s13, v46
v_xor_b32 v46, v46, v{y}
v_lshl_add_u32 v{tA[0]}, v46, 4, v{x}
v_xor_b32 v46, 2, v46
v_lshl_add_u32 v{tA[1]}, v46, 4, v{x}
v_bfe_u32 v{x}, v0, 4, 1
v_lshlrev_b32 v{y}, 3, v{x}
v_lshlrev_b32 v{x}, 4, v{x}
v_bfe_u32 v46, v0, 5, 1
v_lshl_add_u32 v{x}, v46, 2, v{x}
v_bfe_u32 v46, v0, 2, 1
v_add_u32 v{x}, v{x}, v46
v_lshl_add_u32 v{y}, v46, 2, v{y}
v_lshlrev_b32 v{x}, 10, v{x}
v_and_b32 v46, 1, v0
v_lshl_add_u32 v{x}, v46, 3, v{x}
v_bfe_u32 v46, v0, 1, 1
v_bfe_u32 v47, v0, 3, 1
v_lshl_add_u32 v46, v47, 1, v46
v_add_u32 v46, s13, v46
v_xor_b32 v46, v46, v{y}
v_lshl_add_u32 v{tO}, v46, 4, v{x}
s_lshl_b32 s50, s12, 8
s_lshl_b32 s13, s9, 18
s_add_u32 s50, s50, s13        ; h*256 + w*32 rows*8192
s_lshl_b32 s51, s12, 17
s_lshl_b32 s13, s9, 13
s_add_u32 s51, s51, s13        ; h*131072 + w*8 rows*1024
s_lshl_b32 s52, s9, 13         ; w*8192 (lds)""")
    mats = [42] * 4 + [44] * 4 + [46] * 4 + [40] * 4
    slot = lambda i: ((i + 4) % 5) * 32768
    def issue(i):
        if i % 4 == 0: set_srd(A, 20, mats[i], 4 * MB)
        c = i % 4
        tok = None
        for j in range(8):
            A(f"s_add_u32 m0, s52, {slot(i) + j*1024}")
            if mats[i] == 46:
                A(f"s_add_u32 s13, s51, {c*32768 + j*1024}")
                tok = A(f"buffer_load_dwordx4 v{dO[j&1]}, {SRDW}, s13 offen lds")
            else:
                A(f"s_add_u32 s13, s50, {(128*c + 4*j)*8192}")
                tok = A(f"buffer_load_dwordx4 v{dA[j&3]}, {SRDW}, s13 offen lds")
        return tok
    toks = {}
    for i in range(4):
        toks[i] = issue(i)
        if i == 0 and initfn: initfn(A, 0)
    for i in range(16):
        A.wvm(toks[i])
        A("s_barrier")
        if i == 1 and initfn:
            sv_ = list(A.vm); initfn(A, 1); A.vm = sv_
        if i + 4 < 16: toks[i + 4] = issue(i + 4)
        c = i % 4
        if i == 14:
            for f in range(8):
                for part in range(2):
                    A(f"ds_write_b128 v{vWq0}, {v(64 + f*8 + part*4, 4)} offset:{f*2048 + part*1024}")
            A("s_waitcnt lgkmcnt(0)")
        if mats[i] == 46:
            A(f"v_add_u32 v{tc[0]}, {slot(i)}, v{tO}")
            for p in range(4):
                for xx in range(4):
                    A(f"ds_read_b64_tr_b16 {v(vWo + (p*4 + c)*8 + 2*xx, 2)}, v{tc[0]} offset:{(8*(xx>>1) + 2*(xx&1))*1024 + p*256}")
        else:
            A(f"v_add_u32 v{tc[0]}, {slot(i)}, v{tA[0]}\nv_add_u32 v{tc[1]}, {slot(i)}, v{tA[1]}")
            for tt in range(2):
                for te in range(2):
                    t = 2 * c + tt
                    for xx in range(4):
                        if mats[i] == 42: dst = a((t*2 + te)*8 + 2*xx, 2)
                        elif mats[i] == 44: dst = a(128 + (t*2 + te)*8 + 2*xx, 2)
                        else: dst = v(64 + (((t & 3)*2 + te)*8) + 2*xx, 2)
                        A(f"ds_read_b64_tr_b16 {dst}, v{tc[te]} offset:{(64*tt + 32*(xx>>1) + 2*(xx&1))*256}")
        A("s_waitcnt lgkmcnt(0)")
    A("s_barrier")
    for f in range(8):
        for part in range(2):
            A(f"ds_write_b128 v{vWq1}, {v(64 + f*8 + part*4, 4)} offset:{f*2048 + part*1024}")

NS = 6
SLQ = [5, 0, 1, 2, 3, 4]
def slot_reg(sl): return vAv0 if sl == 5 else vSTG + 8 * sl
def wq_read(A, i, sl):
    t, te = i >> 1, i & 1
    base = vWq0 if t < 4 else vWq1
    off = ((t & 3) * 2 + te) * 2048
    r = slot_reg(sl)
    return [f"ds_read_b128 {v(r,4)}, v{base} offset:{off}", f"ds_read_b128 {v(r+4,4)}, v{base} offset:{off+1024}"]

def step_scalars(A, layer, nxt):
    part = f"s{sPartB}"; mem = f"s{sMemB}"
    return f"""s_and_b32 s13, s{sStep}, 1
s_lshl_b32 s13, s13, 18
s_add_u32 s{sPart}, s13, {part}
s_add_u32 s{sInb}, s{sPart}, s43
s_add_u32 s13, s{sStep}, 1
s_and_b32 s13, s13, 3
s_lshl_b32 s13, s13, {MSL}
s_add_u32 s{sMemN}, s13, {mem}
s_and_b32 s13, s{sStep}, 3
s_lshl_b32 s13, s13, {MSL}
s_add_u32 s{sMemP}, s13, {mem}
s_lshr_b32 s13, s{sStep}, 1
s_and_b32 s13, s13, 1
s_xor_b32 s{sPh}, s13, 1""".split("\n")

def delay(A, c):
    c = max(0, c) // 4
    while c > 0:
        n = min(c, 16); A(f"s_nop {n-1}"); c -= n

def kv_dma(A):
    for (ldsb, so) in [(LDS_K, 0), (LDS_V, WS_V - WS_K)]:
        A(f"s_add_u32 m0, s54, {ldsb}\ns_add_u32 s13, s{sKV}, {so}")
        A(f"buffer_load_dwordx4 v{vL16}, {SRD}, s13 offen sc1 lds\nbuffer_load_dwordx4 v{vL16}, {SRD}, s13 offen offset:1024 sc1 lds")

gS = [48, 56]
rS = [56, 80, 32]
vFA = 16; sF1, sF2, sFv = 44, 45, 46; sF1w, sF2w = 50, 51
vLw = 19
sGat2 = 42
CHKFIRST = [True]

def gload(r): return [f"buffer_load_dwordx4 {v(r,4)}, v{vGat}, {SRD}, s{sGat} offen sc1", f"buffer_load_dwordx4 {v(r+4,4)}, v{vGat}, {SRD}, s{sGat} offen offset:1024 sc1"]
def gwrite(r): return f"ds_write_b128 v{vLw}, {v(r,4)}\nds_write_b128 v{vLw}, {v(r+4,4)} offset:1024"
def gproc(A, r, ny, spec=True):
    A(f"s_waitcnt vmcnt({ny+1})")
    if spec: A(f"ds_write_b128 v{vLw}, {v(r,4)}")
    A(f"v_max3_u32 v{vT0}, v{r}, v{r+1}, v{r+2}\ns_waitcnt vmcnt({ny})")
    if spec: A(f"ds_write_b128 v{vLw}, {v(r+4,4)} offset:1024")
    A(f"""v_max3_u32 v{vT0}, v{vT0}, v{r+3}, v{r+4}
v_max3_u32 v{vT0}, v{vT0}, v{r+5}, v{r+6}
v_max_u32 v{vT0}, v{vT0}, v{r+7}
v_cmp_eq_u32 vcc, -1, v{vT0}""")
def g2dma(): return f"buffer_load_dwordx4 v{vGat}, {SRD}, s{sGat2} offen sc1 lds"
def rload(r): return [f"buffer_load_dwordx4 {v(r,4)}, v{vL16}, {SRD}, s{sInb} offen sc1", f"buffer_load_dwordx4 {v(r+4,4)}, v{vL16}, {SRD}, s{sInb} offen offset:1024 sc1"]
def rproc(A, r, n_younger, st=None):
    A(f"""s_waitcnt vmcnt({n_younger+1})
v_mfma_f32_16x16x32_bf16 {v(vRA,4)}, {v(vAS,4)}, {v(r,4)}, 0
v_bitop3_b32 v{vT0}, v{r}, v{r+2}, s{sPh} bitop3:0x7e
s_waitcnt vmcnt({n_younger})""")
    if st: st(7)
    A(f"""v_mfma_f32_16x16x32_bf16 {v(vRA,4)}, {v(vAS,4)}, {v(r+4,4)}, {v(vRA,4)}
v_bitop3_b32 v{vT1}, v{r+4}, v{r+6}, s{sPh} bitop3:0x7e
v_bitop3_b32 v{vT0}, v{vT0}, v{vT1}, 1 bitop3:0xa8
v_cmp_ne_u32 vcc, 0, v{vT0}""")

def kvf_check(P):
    return f"""s_add_u32 s13, s{sStep}, 1
s_min_u32 s13, s13, 63
s_lshr_b32 s13, s13, 2
s_lshl_b32 s13, 2, s13
s_sub_u32 s13, s13, 1
{P}_kc:
v_cmp_ne_u32 vcc, 0, v{vKF}
s_and_b32 s38, vcc_lo, s13
s_cmp_lg_u32 s38, s13
s_cbranch_scc1 {P}_kw
{P}_kok:"""
def kvf_wait(A, P, tmo):
    A(f"{P}_kw:")
    tmo(15, f"{P}_kto")
    A(f"""s_sleep 8
v_lshrrev_b32 v{vKF}, 2, v{vL16}
buffer_load_dword v{vKF}, v{vKF}, {SRD}, s{sKVF} offen sc1
s_waitcnt vmcnt(0)
s_branch {P}_kc
{P}_kto:
s_mov_b32 s{sDead}, {TMO}
s_branch {P}_kok""")

def pf_setup(w, opt):
    return [f"s_add_u32 s{sKV}, s{sKV}, {KVSEG}", f"s_xor_b32 s{sKm}, s{sKm}, 0x6000", f"v_xor_b32 v{vKr}, 0x6000, v{vKr}", f"s_add_u32 m0, s39, {LDS_MEM + 4096}"]

def pubmix():
    q = "quad_perm:[0,1,0,1] row_mask:0xf bank_mask:0xf"
    return [f"s_mov_b64 vcc, s[{sMask}:{sMask+1}]", f"v_mov_b32_dpp v{vT0}, v{vVP} {q}", f"v_mov_b32_dpp v{vT1}, v{vVP+2} {q}",
            f"v_cndmask_b32 v{vKQ}, v{vKQ}, v{vVP}, vcc", f"v_cndmask_b32 v{vKQ+1}, v{vKQ+1}, v{vVP+2}, vcc",
            f"v_cndmask_b32 v{vKQ+2}, v{vKQ+2}, v{vT0}, vcc", f"v_cndmask_b32 v{vKQ+3}, v{vKQ+3}, v{vT1}, vcc"]

def gather_events(p, w, opt):
    n1 = opt.get("n1", 2) if w < 2 else 0
    dg = opt.get("dg", 128)
    t0 = opt.get("d2", [160, 100, 0, 0])[w]
    return [(t0 + k * dg, gS[k]) for k in range(n1)], n1

def body(A, P, layer, p, w, fast, last, opt):
    SC = "" if fast else " sc1"
    sfx = "_l" if last else ""
    stamp = opt.get("stamp")
    def st(k):
        if stamp and not last and k in opt.get("st", range(11)): A(f"s_memtime s[{60+2*k}:{61+2*k}]")
        if not last and opt.get("wv") == k: A("s_memtime s[62:63]\ns_waitcnt vmcnt(0)\ns_memtime s[64:65]\ns_waitcnt lgkmcnt(0)\ns_sub_u32 s13, s64, s62\ns_add_u32 s83, s83, s13\ns_max_u32 s84, s84, s13")
        if not last and opt.get("cut") == k: A(f"s_add_u32 s{sStep}, s{sStep}, 1\ns_branch {P}_cutend")
    A.reset_counts()
    ev, n1 = gather_events(p, w, opt)
    nxt = [0]
    tk = {}
    nab = 1 if opt.get("abs") else 0
    B1 = None
    if w < 2:
        spec = not opt.get("chk1", 1)
        gproc(A, gS[0], 2 * (n1 - 1) + nab, spec)
        A(f"s_cbranch_vccnz {P}_gr{sfx}")
        if not spec: A(gwrite(gS[0]))
        A(f"{P}_gok{sfx}:\ns_waitcnt lgkmcnt(0)")
        st(9)
    A("s_barrier")
    A(g2dma())
    A(f"{P}_entry{sfx}:")
    st(0)
    mrd = lambda t: f"ds_read_b128 {v(vMEM+4*t,4)}, v{vL16} offset:{LDS_MEM + t*1024}"
    mt = {}
    for t in range(3 if B1 is None else 2): mt[t] = A(mrd(t))
    A(f"s_mov_b32 m0, s{sKm}")
    seq = []
    for t in range(4): seq += [("k", 0, t), ("q", 0, t), ("k", 1, t), ("q", 1, t)]
    for te in range(2):
        for t in range(4, 8): seq += [("k", te, t), ("q", te, t)]
    N1 = 32
    V = [[] for _ in range(N1)]; S = [[] for _ in range(N1)]; X = [[] for _ in range(N1)]
    B2 = opt.get("b2", 13)
    quse = [(idx, 2 * t + te) for idx, (m, te, t) in enumerate(seq) if m == "q"]
    sl_seq = SLQ + [(n_ - 6) % 5 for n_ in range(6, 16)]
    slot = {f: sl_seq[n_] for n_, (idx, f) in enumerate(quse)}
    jobs = []
    lastuse = {}
    for n_, (idx, f) in enumerate(quse):
        if n_ >= NS:
            for x in wq_read(A, f, slot[f]): jobs.append((lastuse[slot[f]], idx, "wq", f, x))
        lastuse[slot[f]] = idx
    first = {}
    for idx, (m, te, t) in enumerate(seq): first.setdefault(t, idx)
    for t in range(3 if B1 is None else 2, 8): jobs.append(((0 if B1 is None else B1) if t < 4 else B2, first[t] - 3, "mem", t, mrd(t)))
    if not last:
        for n_, (c, u) in enumerate([(c, u) for c in range(2) for u in range(4)]):
            jobs.append((max(lastuse[1 + n_ // 2], opt.get("kx0", 24)), 100 + lastuse[1 + n_ // 2], "kx", n_, f"ds_read_b128 {v(vKx + (c*4+u)*4, 4)}, v{vKr} offset:{u*2048 + c*256}"))
        for n_ in range(2):
            jobs.append((max(lastuse[0], opt.get("kx0", 24)), 90, "kx", 8 + n_, f"ds_read_b128 {v(vVx+4*n_,4)}, v{vG512} offset:{LDS_V + w*2048 + 256*n_}"))
    D = [[] for _ in range(N1)]
    nod = set()
    for g_ in range(N1):
        cap = 2 if g_ in (B1, B2) else (0 if g_ in nod else 1)
        for _ in range(cap):
            av = [j for j in jobs if j[0] <= g_]
            if not av: break
            j = min(av, key=lambda j: j[1]); jobs.remove(j); D[g_].append(j[2:])
    assert all(j[2] == "kx" for j in jobs)
    X[B2].append(lambda: A(f"s_waitcnt vmcnt({nxt[0]})"))
    X[B2].append("s_barrier")
    for t in range(4, 8):
        r = vMEM + 4 * t
        V[first[t]].append(f"v_max_u32 v{vT0}, v{r}, v{r+1}" if t == 4 else f"v_max3_u32 v{vT0}, v{vT0}, v{r}, v{r+1}")
        V[first[t] + 1].append(f"v_max3_u32 v{vT0}, v{vT0}, v{r+2}, v{r+3}")
    V[24].append(f"v_cmp_eq_u32 vcc, -1, v{vT0}")
    f0 = [f"v_add_f32 v{vAk0}, v{vAk0}, v{vAk0+2}", f"v_add_f32 v{vAk0+1}, v{vAk0+1}, v{vAk0+3}",
          f"v_add_f32 v{vAq0}, v{vAq0}, v{vAq0+2}", f"v_add_f32 v{vAq0+1}, v{vAq0+1}, v{vAq0+3}",
          f"v_mul_f32 v{vAq0}, s{sC}, v{vAq0}", f"v_mul_f32 v{vAq0+1}, s{sC}, v{vAq0+1}",
          f"v_cvt_pk_bf16_f32 v{vKQ}, v{vAk0}, v{vAk0+1}"]
    for n_, x in enumerate(f0): V[25 + n_].append(x)
    for r in range(8): V[3 + r].append(f"v_mov_b32 v{vAv0+r}, 0")
    ext = []
    if not last and not opt.get("nokv"):
        ext.append(f"buffer_load_dwordx4 v{vL16}, {SRD}, s{sKV} offen sc1 lds")
        ext.append(f"buffer_load_dwordx4 v{vL16}, {SRD}, s{sKV} offen offset:1024 sc1 lds")
    if not opt.get("nopub"):
        ext.append(f"buffer_store_dwordx4 {v(vKQ,4)}, v{vL16}, {SRD}, s40 offen sc1")
        if w == 2: ext.append(f"v_mov_b32 v{vT1}, s41\ns_mov_b64 exec, 1\nbuffer_store_dword v{vT1}, off, {SRD}, s55 sc1\ns_mov_b64 exec, -1")
    if w == 3 and not last: ext.append(f"v_lshrrev_b32 v{vKF}, 2, v{vL16}\nbuffer_load_dword v{vKF}, v{vKF}, {SRD}, s{sKVF} offen sc1")
    pz = opt.get("pz", 2)
    pos_ = [pz + w + 4 * n_ for n_ in range(len(ext))]
    pos_ = [x if x < B2 - 1 else x + 4 for x in pos_]
    for n_, x in enumerate(ext): X[pos_[n_]].append(x)
    nxt[0] = sum(1 for x in pos_ if x < B2)
    S[26].append(f"s_add_u32 s{sGat}, s{sMemN}, s54"); S[28].append(f"s_add_u32 s{sGat2}, s{sMemN}, s52")
    wqtok = {}
    for idx, (m, te, t) in enumerate(seq):
        need = [mt[t]]
        if m == "q" and (2 * t + te) in wqtok: need.append(wqtok[2 * t + te])
        ns = [A.lgk_n(x) for x in need if A.lgk_n(x) is not None]
        if ns: A(f"s_waitcnt lgkmcnt({min(ns)})")
        if idx == 0 and not opt.get("abs"): st(1)
        if m == "k": smf(A, [vAk0, vAk1][te], vMEM + 4 * t, a((t * 2 + te) * 8, 8), vIK)
        else: smf(A, [vAq0, vAq1][te], vMEM + 4 * t, v(slot_reg(slot[2 * t + te]), 8), vIK)
        for x in X[idx]: (x() if callable(x) else A(x))
        for x in S[idx]: A(x)
        for (kind, key, txt) in D[idx]:
            tok = A(txt)
            {"wq": wqtok, "mem": mt, "kx": {}}[kind][key] = tok
        for x in V[idx]: A(x)
    st(2)
    def sv(j): smf(A, [vAv0, vAv1][j & 1], vMEM + 4 * (j >> 1), a(128 + j * 8, 8), vIK)
    kxr = [j[4] for j in jobs]
    if last: kxr = []
    def rdk(n_):
        for _ in range(n_):
            if kxr: A(kxr.pop(0))
    sv(0); rdk(1); A(f"v_cvt_pk_bf16_f32 v{vKQ+1}, v{vAq0}, v{vAq0+1}")
    sv(1); rdk(1); A(f"v_add_f32 v{vAk1}, v{vAk1}, v{vAk1+2}")
    A(f"""v_add_f32 v{vAk1+1}, v{vAk1+1}, v{vAk1+3}
v_add_f32 v{vAq1}, v{vAq1}, v{vAq1+2}
v_add_f32 v{vAq1+1}, v{vAq1+1}, v{vAq1+3}
v_cvt_pk_bf16_f32 v{vKQ+2}, v{vAk1}, v{vAk1+1}
v_mul_f32 v{vAq1}, s{sC}, v{vAq1}
v_mul_f32 v{vAq1+1}, s{sC}, v{vAq1+1}
v_cvt_pk_bf16_f32 v{vKQ+3}, v{vAq1}, v{vAq1+1}""")
    vfold = [f"v_add_f32 v{vAv0}, v{vAv0}, v{vAv0+2}", f"v_add_f32 v{vAv0+1}, v{vAv0+1}, v{vAv0+3}",
             f"v_cvt_pk_bf16_f32 v{vVP}, v{vAv0}, v{vAv0+1}", f"v_add_f32 v{vAv1}, v{vAv1}, v{vAv1+2}",
             f"v_add_f32 v{vAv1+1}, v{vAv1+1}, v{vAv1+3}", f"v_cvt_pk_bf16_f32 v{vVP+2}, v{vAv1}, v{vAv1+1}"]
    if last:
        A(f"s_cbranch_vccnz {P}_redo_l")
        A(f"ds_write2_b64 v{vFw}, {v(vKQ,2)}, {v(vKQ+2,2)} offset1:64")
        for j in range(2, 9): sv(j)
        A("s_waitcnt lgkmcnt(0)\ns_barrier")
        for jj in range(2): A(f"ds_read_b64_tr_b16 {v(vKQ + 2*jj, 2)}, v{vFr} offset:{1024*w + 256*jj}")
        for j in range(9, 16): sv(j)
        for x in vfold: A(x)
        A("s_waitcnt lgkmcnt(0)")
        for x in pubmix(): A(x)
        A(f"buffer_store_dwordx4 {v(vKQ,4)}, v{vL16}, {SRD}, s{sPub} offen sc1")
        return
    sv(2)
    fw = A(f"ds_write2_b64 v{vFw}, {v(vKQ,2)}, {v(vKQ+2,2)} offset1:64")
    NBF = opt.get("nbf", 7)
    for j in range(3, NBF):
        sv(j)
        if j == 3: A(f"s_cbranch_vccnz {P}_redo")
        else: rdk(1)
    rdk(10)
    A.wlg(fw); A("s_barrier")
    st(3)
    ft = []
    for tr in range(2): ft.append(A(f"ds_read_b64_tr_b16 {v(vF + 2*tr, 2)}, v{vFr} offset:{256*tr}"))
    dma = [f"buffer_load_dwordx4 v{vL16}, {SRD}, s13 offen sc1 lds",
           f"buffer_load_dwordx4 v{vL16}, {SRD}, s13 offen offset:1024 sc1 lds"]
    if opt.get("nokv"): dma = []
    NV1 = opt.get("nv1", 12)
    A(f"s_add_u32 m0, s54, {LDS_V}\ns_add_u32 s13, s{sKV}, {WS_V - WS_K}")
    dpos = {opt.get("dz", 0) + w + 4 * n_: x for n_, x in enumerate(dma)}
    gi = [0]
    def gap():
        if gi[0] in dpos: A(dpos.pop(gi[0]))
        gi[0] += 1
    for j in range(NBF, NV1):
        sv(j); gap()
        u = j - NBF + 1
        if u < 4:
            for jj in range(2):
                ft.append(A(f"ds_read_b64_tr_b16 {v(vF + 4*u + 2*jj, 2)}, v{vFr} offset:{1024*u + 256*jj}"))
    st(4)
    def mf(d, aa, bb, first_):
        A(f"v_mfma_f32_16x16x32_bf16 {v(d,4)}, {v(aa,4)}, {v(bb,4)}, " + ("0" if first_ else v(d, 4)))
    ex = lambda k_, src: f"v_exp_f32 v{vE+k_}, v{src}"
    cv = lambda d, x: f"v_cvt_pk_bf16_f32 v{d}, v{x}, v{x+1}"
    sq = [("x", 0, u) for u in range(4)] + [("x", 1, u) for u in range(4)]
    sq += [("v", j, 0) for j in range(NV1, 16)] + [("m", 0, u) for u in range(4)]
    G = {}
    fill = [ex(0, vSx0), ex(1, vSx0 + 1), ex(2, vSx0 + 2), ex(3, vSx0 + 3), ex(4, vSx1), ex(5, vSx1 + 1), ex(6, vSx1 + 2), ex(7, vSx1 + 3)]
    pos = 6
    while fill and pos < len(sq):
        G.setdefault(pos, []).append(fill.pop(0)); pos += 1
    tail = fill + [cv(vPx, vE), cv(vPx + 1, vE + 2), cv(vPx + 2, vE + 4), cv(vPx + 3, vE + 6)]
    while tail and pos < len(sq):
        G.setdefault(pos, []).extend(tail[:2]); tail = tail[2:]; pos += 1
    A.wlg(ft[-1])
    for r in range(4): G.setdefault(r, []).append(f"v_mov_b32 v{vKQ+r}, v{vF+4*w+r}")
    for n_, (kind, tile, u) in enumerate(sq):
        if kind == "x": mf([vSx0, vSx1][tile], vKx + (tile * 4 + u) * 4, vF + 4 * u, u == 0)
        elif kind == "m": mf(vSm, vF + 4 * u, vF + 4 * u, u == 0)
        else: sv(tile)
        gap()
        for x in G.get(n_, []): A(x)
    for k_ in sorted(dpos): A(dpos[k_])
    for x in tail: A(x)
    m16 = lambda d, aa, bb: A(f"v_mfma_f32_16x16x16_bf16 {v(d,4)}, {v(aa,2)}, {v(bb,2)}, {v(d,4)}")
    A(vfold[0]); A(vfold[1])
    mf(vL, vAS, vPx, True); A(vfold[2]); A(vfold[3])
    mf(vO0, vVx, vPx, True); A(ex(8, vSm))
    mf(vO1, vVx + 4, vPx, True); A(ex(9, vSm + 1))
    A(vfold[4]); A(cv(vPm, vE + 8)); A(vfold[5])
    A(f"v_max3_f32 v{vT1}, |v{vSx0}|, |v{vSx0+1}|, |v{vSx0+2}|")
    m16(vL, vAS, vPm)
    A(f"v_max3_f32 v{vT1}, v{vT1}, |v{vSx0+3}|, |v{vSx1}|\nv_max3_f32 v{vT1}, v{vT1}, |v{vSx1+1}|, |v{vSx1+2}|")
    m16(vO0, vVP, vPm)
    A(f"v_max3_f32 v{vT1}, v{vT1}, |v{vSx1+3}|, |v{vSm}|\nv_max_f32 v{vT1}, v{vT1}, |v{vSm+1}|")
    m16(vO1, vVP + 2, vPm)
    A(f"v_rcp_f32 v{vT0}, v{vL+2}")
    A(f"v_cmp_lt_f32 vcc, s{sT}, v{vT1}")
    if opt.get("force_slow"): A(f"v_cmp_lt_f32 vcc, -1.0, v{vT1}")
    for r in range(4): A(f"v_mul_f32 v{vO0+r}, v{vT0}, v{vO0+r}")
    A(cv(vE, vO0)); A(cv(vE + 1, vO0 + 2))
    if opt.get("ow2", 1): A(f"ds_write_b64 v{vOw}, {v(vE,2)}")
    for r in range(2): A(f"v_pk_mul_f32 {v(vO1+2*r,2)}, {v(vO1+2*r,2)}, {v(vT0,2)} op_sel_hi:[1,0]")
    A(cv(vE + 2, vO1)); A(cv(vE + 3, vO1 + 2))
    ow = A(f"ds_write_b64 v{vOw}, {v(vE+2,2)} offset:8") if opt.get("ow2", 1) else A(f"ds_write_b128 v{vOw}, {v(vE,4)}")
    A(f"s_and_b64 vcc, vcc, s[{sMask}:{sMask+1}]\ns_cbranch_vccnz {P}_slow")
    A(f"{P}_norm:")
    for r in range(0, 8, 2): A(f"v_mov_b64 {v(vOUT+r,2)}, 0")
    A.wlg(ow); A("s_barrier")
    st(5)
    ot = [A(f"ds_read_b128 {v(vOF+4*kk,4)}, v{vOr} offset:{kk*512}") for kk in range(4)]
    A(f"s_add_u32 s13, s{sPart}, 0")
    for r in range(8, 16, 2): A(f"v_mov_b64 {v(vOUT+r,2)}, 0")
    pre = []
    for n_ in range(1, 6): pre += wq_read(A, quse[n_][1], SLQ[n_])
    def epi(pp):
        return [f"v_cvt_pk_bf16_f32 v{vPK+2*pp}, v{vOUT+4*pp}, v{vOUT+4*pp+1}",
                f"v_cvt_pk_bf16_f32 v{vPK+2*pp+1}, v{vOUT+4*pp+2}, v{vOUT+4*pp+3}",
                f"v_bfi_b32 v{vPK+2*pp}, 1, s{sPh}, v{vPK+2*pp}",
                f"buffer_store_dwordx2 {v(vPK+2*pp,2)}, v{vPst}, {SRD}, s13 offen{SC}"]
    if opt.get("e1fast", 1):
        e1 = 6; E = {5: epi(0), 9: epi(1), 13: epi(2)[0:1], 14: epi(2)[1:2], 15: epi(2)[2:3]}
    else:
        e1 = 9; E = {5: epi(0), 9: epi(1)[0:1], 10: epi(1)[1:2], 11: epi(1)[2:3], 12: epi(1)[3:4], 13: epi(2)[0:1], 14: epi(2)[1:2], 15: epi(2)[2:3]}
    rsch = opt.get("rs", [[16, 200], [120, 250], [260, 390], [320, 450]])[w]
    rtk = []
    def rissue():
        if opt.get("abs") and not rtk: A("s_memtime s[68:69]")
        for x in rload(rS[len(rtk)]): t_ = A(x)
        rtk.append(t_)
    for n_ in range(16):
        pp, kk = n_ >> 2, n_ & 3
        A.wlg(ot[kk])
        smf(A, vOUT + 4 * pp, vOF + 4 * kk, v(vWo + n_ * 8, 8), vIN)
        if n_ == 8: A(f"s_add_u32 s13, s{sPart}, {65536}")
        if n_ == 13: A(f"s_add_u32 s13, s{sPart}, {2*65536}")
        if n_ in rsch: rissue()
        elif pre and n_ >= 3 and n_ not in (5, e1 + 3): A(pre.pop(0))
        for x in E.get(n_, []): A(x)
        if n_ == 5: st(10)
    A(epi(2)[3])
    A(f"s_add_u32 s13, s{sPart}, {3*65536}")
    while pre: A(pre.pop(0))
    A(f"s_mov_b32 s40, s{sPub}\ns_add_u32 s{sPub}, s{sPub}, {PUBSEG}\ns_mov_b32 s14, 0\ns_mov_b32 s15, 0")
    for x in epi(3)[:3]: A(x)
    if 16 in rsch: rissue()
    A(epi(3)[3])
    st(6)
    idle = [f"v_mov_b64 {v(vAk0+r,2)}, 0" for r in range(0, 16, 2)]
    idle2 = pubmix()
    def wait_fill(d):
        while idle and d >= 4: A(idle.pop(0)); d -= 4
        delay(A, d)
    cur = 0
    for tm in [x - 100 for x in rsch if x >= 100]:
        wait_fill(tm - cur); cur = max(cur, tm) + 12
        rissue()
    while idle: A(idle.pop(0))
    opt["_rfirst"] = [A.vm_n(rtk[k_]) + 2 * k_ for k_ in range(1, len(rtk))]
    rproc(A, rS[0], A.vm_n(rtk[0]), st)
    A(f"""s_cbranch_vccnz {P}_rr
{P}_rok:
{"s_memtime s[66:67]" if opt.get("abs") else "s_nop 0"}
v_add_f32_dpp v{vRT}, v{vRA}, v{vRA} row_ror:4 row_mask:0xf bank_mask:0xf ;NOHAZ
v_add_f32_dpp v{vRT+1}, v{vRA+1}, v{vRA+1} row_ror:4 row_mask:0xf bank_mask:0xf ;NOHAZ
v_add_f32_dpp v{vRT+2}, v{vRT}, v{vRT} row_ror:8 row_mask:0xf bank_mask:0xf
v_add_f32_dpp v{vRT+3}, v{vRT+1}, v{vRT+1} row_ror:8 row_mask:0xf bank_mask:0xf
v_cvt_pk_bf16_f32 v{vT0}, v{vRT+2}, v{vRT+3}
buffer_store_dword v{vT0}, v{vMst}, {SRD}, s{sMemN} offen{SC}""")
    st(8)
    A(f"v_mov_b32 v{vT1}, -1\nbuffer_store_dword v{vT1}, v{vMst}, {SRD}, s{sMemP} offen{SC}")
    if opt.get("dumpmem"):
        A(f"s_lshl_b32 s13, s{sStep}, 16\ns_add_u32 s13, s13, {WS_OP + 65536}\nbuffer_store_dword v{vT0}, v{vMst}, {SRD}, s13 offen")
    idle += [f"s_mov_b32 s41, s{sStep}", f"s_add_u32 s{sStep}, s{sStep}, 1"] + idle2
    post = step_scalars(A, layer, 0) + pf_setup(w, opt)
    if stamp:
        idle += ["s_waitcnt lgkmcnt(0)"]
        for k_ in list(range(1, 9)) + [10]:
            idle += [f"s_sub_u32 s13, s{60+2*k_}, s60", f"s_add_u32 s{82+k_}, s{82+k_}, s13"]
        idle += ["s_sub_u32 s13, s60, s78", "s_add_u32 s91, s91, s13"]
    absd = []
    if opt.get("abs"):
        absd = ["s_waitcnt lgkmcnt(0)", f"s_lshl_b32 s13, s41, 13", f"s_lshl_b32 s38, s12, 8", "s_add_u32 s13, s13, s38", f"s_add_u32 s13, s13, {WS_OP + 8*MB + w*64}"]
        for k_ in range(11):
            absd += [f"v_writelane_b32 v{vT1}, s{60+2*k_}, {k_}"]
        absd += [f"v_lshrrev_b32 v{vT0}, 2, v{vL16}", f"s_mov_b64 exec, 0xffff", f"buffer_store_dword v{vT1}, v{vT0}, {SRD}, s13 offen", "s_mov_b64 exec, -1"]
    cur = 0
    for (tm, r) in ev:
        wait_fill(tm - cur); cur = max(cur, tm) + 12
        if r == gS[0]: st(1) if opt.get("abs") else None
        for x in gload(r): A(x)
    while idle: A(idle.pop(0))
    for x in post: A(x)
    if w == 3:
        A(kvf_check(P))
    A(f"s_waitcnt vmcnt({2 + 2 * n1})")
    for x in wq_read(A, 0, 5): A(x)
    for x in absd: A(x)

def variant(A, P, layer, p, w, fast, opt):
    A(f".p2align 6\n{P}_top:")
    body(A, P, layer, p, w, fast, False, opt)
    A(f"""{P}_cutend:
s_waitcnt lgkmcnt(0)
s_cmp_lt_u32 s{sStep}, 63
s_cbranch_scc1 {P}_top""")
    body(A, P, layer, p, w, fast, True, opt)
    A(f"""s_waitcnt vmcnt(0)
s_barrier
v_mov_b32 v{vT1}, 64
s_branch {opt['_K']}_fin""")
    cn = lambda r: A(f"s_add_u32 s{r}, s{r}, 1") if opt.get("cnt") else None
    def tmo(cnt, ok):
        A(f"""s_add_u32 s{cnt}, s{cnt}, s{sDead}
s_cmp_ge_u32 s{cnt}, {TMO}
s_cbranch_scc1 {ok}""")
    def retry(lab, sets, load, proc, okl, cnt, cidx, first):
        n = len(sets)
        A(f"{lab}:")
        for k_ in range(n - 1):
            cn(cidx)
            for x in load(sets[k_]): A(x)
            proc(A, sets[k_ + 1], first[k_])
            A(f"s_cbranch_vccz {okl}")
        sets = sets[n - 1:] + sets[:n - 1]
        A(f"{lab}_lp:")
        for k_ in range(n):
            cn(cidx)
            for x in load(sets[k_]): A(x)
            proc(A, sets[(k_ + 1) % n], len(load(0)) * (n - 1))
            A(f"s_cbranch_vccz {okl}")
        tmo(cnt, f"{lab}_to"); A(f"s_branch {lab}_lp\n{lab}_to:\ns_mov_b32 s{sDead}, {TMO}\ns_branch {okl}")
    retry(f"{P}_rr", rS[:len(opt["_rfirst"]) + 1], rload, rproc, f"{P}_rok", 14, 94, opt["_rfirst"])
    for sfx in ["", "_l"]:
        ev, n1 = gather_events(p, w, opt)
        if w < 2: retry(f"{P}_gr{sfx}", gS[:n1], gload, gproc, f"{P}_gok{sfx}", 15, 95, [2 * (n1 - 1)] * (n1 - 1))
        A(f"{P}_redo{sfx}:")
        cn(89)
        A(f"""s_add_u32 s15, s15, s{sDead}
s_cmp_ge_u32 s15, {TMO}
s_cbranch_scc1 {opt['_K']}_end
s_waitcnt vmcnt(0) lgkmcnt(0)
s_barrier
s_add_u32 s40, s53, {WS_FLAG + 65536}
s_add_u32 s{sGat2}, s{sMemP}, s39
s_add_u32 s{sGat}, s{sMemP}, s39
s_add_u32 s{sGat2}, s{sGat2}, 4096
s_add_u32 m0, s39, {LDS_MEM}
s_nop 0
buffer_load_dwordx4 v{vGat}, {SRD}, s{sGat} offen sc1 lds
s_add_u32 m0, s39, {LDS_MEM + 4096}""")
        for r in range(0, 16, 2): A(f"v_mov_b64 {v(vAk0+r,2)}, 0")
        A(g2dma())
        for i in range(6):
            for x in wq_read(A, i, SLQ[i]): A(x)
        A(f"s_waitcnt vmcnt(0) lgkmcnt(0)\ns_barrier\ns_branch {P}_entry{sfx}")
    if w == 3: kvf_wait(A, P, tmo)
    A(f"{P}_slow:\ns_waitcnt lgkmcnt(0)\ns_nop 7")
    A(f"""v_max3_f32 v{vT0}, v{vSx0}, v{vSx0+1}, v{vSx0+2}
v_max3_f32 v{vT1}, v{vSx0+3}, v{vSx1}, v{vSx1+1}
v_max3_f32 v{vT0}, v{vT0}, v{vSx1+2}, v{vSx1+3}
v_max3_f32 v{vT1}, v{vT1}, v{vSm}, v{vSm+1}
v_max_f32 v{vT0}, v{vT0}, v{vT1}
v_mov_b32 v{vT1}, v{vT0}
v_permlane32_swap_b32 v{vT0}, v{vT1}
v_max_f32 v{vT0}, v{vT0}, v{vT1}
v_mov_b32 v{vT1}, v{vT0}
v_permlane16_swap_b32 v{vT0}, v{vT1}
v_max_f32 v{vT0}, v{vT0}, v{vT1}""")
    srcs = [vSx0 + i for i in range(4)] + [vSx1 + i for i in range(4)] + [vSm, vSm + 1]
    for k_, x in enumerate(srcs): A(f"v_sub_f32 v{vE+k_}, v{x}, v{vT0}")
    for k_ in range(10): A(f"v_exp_f32 v{vE+k_}, v{vE+k_}")
    for k_ in range(4): A(f"v_cvt_pk_bf16_f32 v{vPx+k_}, v{vE+2*k_}, v{vE+2*k_+1}")
    A(f"v_cvt_pk_bf16_f32 v{vPm}, v{vE+8}, v{vE+9}")
    for (d, aa) in [(vO0, vVx), (vO1, vVx + 4), (vL, vAS)]:
        A(f"v_mfma_f32_16x16x32_bf16 {v(d,4)}, {v(aa,4)}, {v(vPx,4)}, 0")
    for (d, aa) in [(vL, vAS), (vO0, vVP), (vO1, vVP + 2)]:
        A(f"v_mfma_f32_16x16x16_bf16 {v(d,4)}, {v(aa,2)}, {v(vPm,2)}, {v(d,4)}")
    A("s_nop 7")
    A(f"v_rcp_f32 v{vT0}, v{vL+2}")
    for r in range(8): A(f"v_mul_f32 v{vO0+r}, v{vT0}, v{vO0+r}")
    for r in range(4): A(f"v_cvt_pk_bf16_f32 v{vE+r}, v{vO0+2*r}, v{vO0+2*r+1}")
    A(f"ds_write_b128 v{vOw}, {v(vE,4)}\ns_waitcnt lgkmcnt(0)\ns_branch {P}_norm")

def chain_member(A, P, opt, modefn, initfn=None):
    layer = 0
    opt = dict(opt); opt["_K"] = P
    A(f"s_mov_b32 s{sDead}, 1")
    lane_consts(A, layer, opt)
    weights_prologue(A, initfn)
    if opt.get("rt"): A("s_memrealtime s[98:99]")
    modefn(A)
    A(f"s_mov_b32 s44, s13\nv_mov_b32 v0, v30\n{P}_restart:")
    A(f"""v_add_u32 v{vKr}, {LDS_K}, v{vG512}
s_lshl_b32 s54, s9, 11
s_lshl_b32 s53, s12, 13
s_add_u32 s53, s53, s54
s_lshl_b32 s39, s9, 10
s_lshl_b32 s{sKV}, s12, 19
s_add_u32 s{sKV}, s{sKV}, s54
s_add_u32 s{sKV}, s{sKV}, {WS_K}
s_lshl_b32 s{sPub}, s12, 18
s_add_u32 s{sPub}, s{sPub}, s39
s_add_u32 s{sPub}, s{sPub}, {WS_KVM}
s_add_u32 s40, s53, {WS_FLAG + 65536}
v_mov_b32 v32, 0
v_readfirstlane_b32 s{sStep}, v32
s_mov_b32 s41, 0
s_lshl_b32 s43, s9, 16
s_lshl_b32 s13, s12, 11
s_add_u32 s43, s43, s13
s_add_u32 s{sPartB}, s{sSync}, {SY_PART}
s_add_u32 s{sMemB}, s{sSync}, {SY_MEM}
s_lshl_b32 s13, s12, 8
s_add_u32 s13, s13, s{sSync}
s_add_u32 s55, s13, {SY_PROG}
s_add_u32 s{sKVF}, s13, {SY_KVF}""")
    for x in step_scalars(A, layer, 0): A(x)
    set_srd(A, 20, 48, 8192)
    A(f"""v_lshrrev_b32 v34, 4, v{vL16}
v_lshrrev_b32 v32, 2, v34
v_and_b32 v32, 3, v32
v_lshlrev_b32 v32, 1, v32
v_and_b32 v33, 1, v34
v_add_u32 v32, v32, v33
v_lshlrev_b32 v32, 10, v32
v_lshrrev_b32 v33, 4, v34
v_lshl_add_u32 v32, v33, 5, v32
v_bfe_u32 v33, v34, 1, 1
v_lshl_add_u32 v32, v33, 4, v32
s_lshl_b32 s13, s9, 7
s_add_u32 m0, s39, {LDS_MEM}
s_nop 0
buffer_load_dwordx4 v32, {SRDW}, s13 offen lds
s_add_u32 m0, s39, {LDS_MEM + 4096}
s_add_u32 s13, s13, 512
buffer_load_dwordx4 v32, {SRDW}, s13 offen lds
s_waitcnt lgkmcnt(0)""")
    for r in range(0, 16, 2): A(f"v_mov_b64 {v(vAk0+r,2)}, 0")
    A(f"v_mov_b32 v{vVP}, 0\nv_mov_b32 v{vVP+2}, 0\nv_mov_b32 v{vVP+1}, 0\nv_mov_b32 v{vVP+3}, 0\nv_mov_b32 v{vPm+1}, 0")
    for i in range(6):
        for x in wq_read(A, i, SLQ[i]): A(x)
    A(f"""s_mov_b32 s15, 0
s_cmp_lg_u32 s9, 0
s_cbranch_scc1 {P}_k1
{P}_k0:
buffer_load_dword v33, off, {SRD}, s{sKVF} sc1
s_waitcnt vmcnt(0)
v_readfirstlane_b32 s13, v33
s_cmp_lg_u32 s13, 0
s_cbranch_scc1 {P}_k1
s_sleep 2
s_add_u32 s15, s15, 1
s_cmp_lt_u32 s15, {4*TMO}
s_cbranch_scc1 {P}_k0
{P}_k1:
s_barrier""")
    kv_dma(A)
    A(f"s_add_u32 s{sKV}, s{sKV}, {KVSEG}\ns_mov_b32 s14, 0\ns_mov_b32 s15, 0")
    if opt.get("cnt"):
        for r in list(range(60, 90)) + [94, 95]: A(f"s_mov_b32 s{r}, 0")
        A("s_memtime s[78:79]")
    if opt.get("rt"): A(f"s_memrealtime s[86:87]")
    A("s_waitcnt vmcnt(0) lgkmcnt(0)")
    A(f"s_add_u32 s{sKm}, s54, {LDS_K + 8192}\ns_add_u32 s52, s39, 4096\ns_barrier")
    A(f"s_cmp_eq_u32 s44, 0\ns_cbranch_scc1 {P}_fb")
    for (tg, c) in [("", "f"), (f"{P}_fb:", "s")]:
        if tg: A(tg)
        for q in range(3): A(f"s_cmp_eq_u32 s9, {q}\ns_cbranch_scc1 {P}_{c}{q}_entry")
        A(f"s_branch {P}_{c}3_entry")
    for q in range(4): variant(A, f"{P}_f{q}", layer, 0, q, True, opt)
    o2 = dict(opt); o2.update(d2=[0,0,0,0])
    for q in range(4): variant(A, f"{P}_s{q}", layer, 0, q, False, o2)
    A(f"""{P}_fin:
s_cmp_lg_u32 s9, 2
s_cbranch_scc1 {P}_fin2
s_mov_b64 exec, 1
buffer_store_dword v{vT1}, off, {SRD}, s55 sc1
s_mov_b64 exec, -1
{P}_fin2:""")
    if opt.get("cnt"):
        A(f"""s_memtime s[60:61]
s_waitcnt lgkmcnt(0)
s_sub_u32 s82, s60, s78
s_sub_u32 s83, s78, s100
s_lshl_b32 s13, s12, 2
s_add_u32 s13, s13, s9
s_lshl_b32 s13, s13, 6
s_add_u32 s13, s13, {WS_FLAG}""")
        for k_ in range(16):
            A(f"v_mov_b32 v32, s{82+k_}\nbuffer_store_dword v32, off, {SRD}, s13 offset:{4*k_}\ns_nop 1")
    if opt.get("rt"):
        A(f"s_memrealtime s[88:89]\ns_waitcnt lgkmcnt(0)\ns_cmp_lg_u32 s{sSync}, {WS_SYNC}\ns_cbranch_scc1 {P}_rt2\ns_mov_b32 s90, s86\ns_mov_b32 s91, s88\n{P}_rt2:\ns_mov_b32 s84, s86\ns_mov_b32 s85, s88")
    if opt.get("mega"):
        A(f"s_cmp_lg_u32 s{sSync}, {WS_SYNC}\ns_cbranch_scc1 {P}_done\ns_add_u32 s{sSync}, s{sSync}, {MB}\ns_waitcnt vmcnt(0)\ns_barrier\ns_branch {P}_restart")
```

```python
from asmlib import *
from layout import *
import math, struct
def f32bits(x): return struct.unpack("<I", struct.pack("<f", x))[0]
def set_srd(A, base, lo, size):
    A(f"s_mov_b32 s{base}, s{lo}\ns_mov_b32 s{base+1}, s{lo+1}\ns_mov_b32 s{base+2}, {size}\ns_mov_b32 s{base+3}, 0x20000")
def mf32(A, d, aa, bb, first=False, c=None):
    A(f"v_mfma_f32_32x32x16_bf16 {d}, {aa}, {bb}, " + ("0" if first else (c or d)))
def dperm_code(A, dst, src, t):
    A(f"""v_and_b32 v{dst}, 19, v{src}
v_bfe_u32 v{t}, v{src}, 2, 1
v_lshl_or_b32 v{dst}, v{t}, 3, v{dst}
v_bfe_u32 v{t}, v{src}, 3, 1
v_lshl_or_b32 v{dst}, v{t}, 2, v{dst}""")

def layernorm(A, X, N, tmp, ldsaddr, lds_off, nw, out, sW=9):
    t = list(range(tmp, tmp + 10))
    S, Q = v(t[0], 2), v(t[2], 2)
    A(f"v_pk_add_f32 {S}, {v(X,2)}, {v(X+2,2)}\nv_pk_mul_f32 {Q}, {v(X,2)}, {v(X,2)}\nv_pk_fma_f32 {Q}, {v(X+2,2)}, {v(X+2,2)}, {Q}")
    for i in range(4, N, 2): A(f"v_pk_add_f32 {S}, {S}, {v(X+i,2)}\nv_pk_fma_f32 {Q}, {v(X+i,2)}, {v(X+i,2)}, {Q}")
    A(f"""v_add_f32 v{t[0]}, v{t[0]}, v{t[1]}
v_add_f32 v{t[1]}, v{t[2]}, v{t[3]}
v_mov_b32 v{t[2]}, v{t[0]}
v_mov_b32 v{t[3]}, v{t[1]}
s_lshl_b32 s13, s{sW}, 8
v_add_u32 v{t[4]}, s13, v{ldsaddr}
v_permlane32_swap_b32 v{t[0]}, v{t[2]}
v_permlane32_swap_b32 v{t[1]}, v{t[3]}
v_pk_add_f32 {S}, {S}, {Q}
ds_write_b64 v{t[4]}, {S} offset:{lds_off}
s_waitcnt lgkmcnt(0)
s_barrier""")
    for k in range(nw): A(f"ds_read_b64 {v(t[2*k], 2)}, v{ldsaddr} offset:{lds_off + 256*k}")
    A("s_waitcnt lgkmcnt(0)")
    for k in range(1, nw): A(f"v_pk_add_f32 {S}, {S}, {v(t[2*k], 2)}")
    A(f"""v_mul_f32 v{t[0]}, {f32bits(1/512):#x}, v{t[0]}
v_mul_f32 v{t[1]}, {f32bits(1/512):#x}, v{t[1]}
v_fma_f32 v{t[1]}, -v{t[0]}, v{t[0]}, v{t[1]}
v_max_f32 v{t[1]}, 0, v{t[1]}
v_cvt_pk_bf16_f32 v{t[2]}, v{t[1]}, v{t[0]}
v_and_b32 v{t[0]}, 0xffff0000, v{t[2]}
v_lshlrev_b32 v{t[1]}, 16, v{t[2]}
v_add_f32 v{t[1]}, {f32bits(1e-5):#x}, v{t[1]}
v_cvt_pk_bf16_f32 v{t[1]}, v{t[1]}, v{t[1]}
v_and_b32 v{t[1]}, 0xffff0000, v{t[1]}
v_sqrt_f32 v{t[1]}, v{t[1]}
v_cvt_pk_bf16_f32 v{t[1]}, v{t[1]}, v{t[1]}
v_and_b32 v{t[1]}, 0xffff0000, v{t[1]}
v_rcp_f32 v{t[2]}, v{t[1]}
v_mul_f32 v{t[4]}, -v{t[0]}, v{t[2]}""")
    for i in range(0, N, 2):
        d = t[6 + 2 * ((i >> 1) & 1)]
        A(f"v_pk_fma_f32 {v(d,2)}, {v(X+i,2)}, {v(t[2],2)}, {v(t[4],2)} op_sel_hi:[1,0,0]\nv_cvt_pk_bf16_f32 v{out + i//2}, v{d}, v{d+1}")

def resid_add(A, dst, acc, res, n, T):
    for i in range(n):
        A(f"""v_cvt_pk_bf16_f32 v{T}, v{acc+2*i}, v{acc+2*i+1}
v_lshlrev_b32 v{T+4}, 16, v{res+i}
v_and_b32 v{T+5}, 0xffff0000, v{res+i}
v_lshlrev_b32 v{T+2}, 16, v{T}
v_and_b32 v{T+3}, 0xffff0000, v{T}
v_pk_add_f32 {v(T+2,2)}, {v(T+2,2)}, {v(T+4,2)}
v_cvt_pk_bf16_f32 v{dst+i}, v{T+2}, v{T+3}""")

def unpack(A, dst, src, n):
    for i in range(n):
        A(f"v_lshlrev_b32 v{dst+2*i}, 16, v{src+i}\nv_and_b32 v{dst+2*i+1}, 0xffff0000, v{src+i}")

def std_prologue(A, P, nwg, ptrs):
    A(f"s_cmp_ge_u32 s2, {nwg}\ns_cbranch_scc1 {P}_end")
    for (r, off) in ptrs: A(f"s_load_dwordx2 s[{r}:{r+1}], s[0:1], {off}")
    A("v_lshrrev_b32 v1, 6, v0\nv_and_b32 v0, 63, v0\nv_readfirstlane_b32 s9, v1\ns_waitcnt lgkmcnt(0)")
```

```python
from common import *

def kv_setup(A):
    set_srd(A, 20, 42, 4 * MB); set_srd(A, 24, 44, 4 * MB)

def kv_task(A, P, sTB, sH, sc1=False, xwait=None):
    SC = " sc1" if sc1 else ""
    kv_setup(A)
    vD, vT, vX = 2, 4, 8
    A(f"""s_lshl_b32 s28, s{sTB}, 17
s_lshl_b32 s13, s9, 15
s_add_u32 s28, s28, s13
s_add_u32 s28, s28, {WS_XN}
s_lshl_b32 s29, s{sH}, 8
s_lshl_b32 s13, s9, 17
s_add_u32 s29, s29, s13
s_lshl_b32 s30, s9, 12
v_lshrrev_b32 v9, 4, v0
v_and_b32 v10, 15, v0
v_lshlrev_b32 v11, 2, v9
v_xor_b32 v10, v10, v11
v_lshlrev_b32 v10, 4, v10
v_lshl_add_u32 v{vD}, v9, 13, v10""")
    def dma():
        L = []
        for j in range(4):
            L.append(f"s_add_u32 m0, s30, {j*1024}\ns_add_u32 s13, s28, {j*1024}\nbuffer_load_dwordx4 v1, s[16:19], s13 offen{SC} lds")
        for mtx in range(2):
            for j in range(4):
                L.append(f"s_add_u32 m0, s30, {16384*(1+mtx) + j*1024}\ns_add_u32 s13, s29, {4*j*8192}\nbuffer_load_dwordx4 v{vD}, s[{20+4*mtx}:{23+4*mtx}], s13 offen lds")
        return L
    adv = f"s_add_u32 s28, s28, 4096\ns_add_u32 s29, s29, {64*8192}"
    if xwait: xwait[0](A)
    for part in range(2):
        A(f"s_mov_b32 s31, 0\n{P}_pl{part}:")
        for x in (dma()[4:] if part == 0 else dma()[:4]): A(x)
        A(adv.split("\n")[1 - part])
        A(f"s_add_u32 s30, s30, 49152\ns_add_u32 s31, s31, 1\ns_cmp_lt_u32 s31, 3\ns_cbranch_scc1 {P}_pl{part}\ns_lshl_b32 s30, s9, 12")
        if part == 0 and xwait: xwait[1](A)
    A(f"""v_bfe_u32 v9, v0, 2, 2
v_lshrrev_b32 v10, 5, v0
v_lshl_add_u32 v10, v10, 3, v9
v_lshlrev_b32 v10, 8, v10
v_bfe_u32 v11, v0, 4, 1
v_lshl_add_u32 v10, v11, 5, v10
v_and_b32 v11, 3, v0
v_lshl_add_u32 v10, v11, 3, v10
s_lshr_b32 s13, s9, 1
s_lshl_b32 s13, s13, 14
s_add_u32 s13, s13, 16384
v_add_u32 v10, s13, v10""")
    for te in range(4): A(f"v_xor_b32 v11, {te}, v9\nv_lshl_add_u32 v{vT+te}, v11, 6, v10")
    A(f"""s_and_b32 s13, s9, 1
s_lshl_b32 s13, s13, 13
v_add_u32 v{vX}, s13, v1
s_mov_b32 s31, 0                 ; chunk
s_mov_b32 s32, 0
s_mov_b32 s34, 49152
s_waitcnt vmcnt(8)
s_barrier""")
    FR = [32, 56]
    def reads(k):
        b = FR[k & 1]
        L = [f"ds_read_b128 {v(b + 4*s_, 4)}, v{vX} offset:{s_*4096 + k*1024}" for s_ in range(2)]
        for te in range(4):
            for jj in range(2):
                L.append(f"ds_read_b64_tr_b16 {v(b + 8 + 4*te + 2*jj, 2)}, v{vT+te} offset:{(16*k + 4*jj)*256}")
        return L
    for x in reads(0): A(x)
    A(f"s_cmp_ge_u32 s9, 2\ns_cbranch_scc1 {P}_vw")
    for isv in range(2):
        Q = f"{P}_{isv}"
        if isv: A(f"{P}_vw:")
        def step(k, first, pend):
            fill = reads((k + 1) & 3)
            b = FR[k & 1]; n = 0
            for s_ in range(2):
                for te in range(4):
                    d = v(128 + (s_ * 4 + te) * 16, 16); xa = v(b + 4 * s_, 4); wa = v(b + 8 + 4 * te, 4)
                    if isv: mf32(A, d, xa, wa, first)
                    else: mf32(A, d, wa, xa, first)
                    for _ in range([3, 3, 2, 2, 0, 0, 0, 0][n]):
                        if fill: A(fill.pop(0))
                    if n in (4, 5, 6) and pend: A(pend.pop(0))
                    n += 1
        A("s_waitcnt lgkmcnt(0)")
        step(0, True, [])
        A("s_waitcnt lgkmcnt(0)"); step(1, False, [])
        A("s_waitcnt lgkmcnt(0)"); step(2, False, [])
        A(f"s_waitcnt vmcnt(4)\n{Q}_lp:")
        A(f"""s_waitcnt vmcnt(12) lgkmcnt(0)
s_barrier
s_add_u32 s32, s32, 1
s_cmp_eq_u32 s32, 3
s_cselect_b32 s33, {(-98304) & 0xffffffff:#x}, s34
s_cselect_b32 s32, 0, s32
s_cmp_ge_u32 s31, 5
s_cselect_b32 s28, 0x7ff00000, s28
s_cselect_b32 s29, 0x7ff00000, s29""")
        for r in [vT, vT+1, vT+2, vT+3, vX]: A(f"v_add_u32 v{r}, s33, v{r}")
        pend = dma()
        step(3, False, pend)
        A(f"s_cmp_eq_u32 s31, 7\ns_cbranch_scc1 {Q}_ex")
        for k in range(3):
            A("s_waitcnt lgkmcnt(0)"); step(k, False, pend)
        A(adv)
        A(f"s_add_u32 s30, s30, s33\ns_add_u32 s31, s31, 1\ns_branch {Q}_lp\n{Q}_ex:")
        A(f"""s_lshl_b32 s31, s{sH}, 6
s_lshl_b32 s13, s{sTB}, 2
s_add_u32 s31, s31, s13
s_and_b32 s13, s9, 1
s_lshl_b32 s13, s13, 1
s_add_u32 s31, s31, s13
s_lshl_b32 s31, s31, 13
s_add_u32 s31, s31, {WS_V if isv else WS_K}
s_waitcnt lgkmcnt(0)""")
        for s_ in range(2):
            for te in range(4):
                d = 128 + (s_ * 4 + te) * 16
                o = 32 + ((s_ * 4 + te) & 3) * 8
                for q in range(2):
                    src = [d + 4*q, d + 4*q + 2, d + 4*q + 8, d + 4*q + 10] if isv else [d + 8*q + 2*i for i in range(4)]
                    for i in range(4): A(f"v_cvt_pk_bf16_f32 v{o + 4*q + i}, v{src[i]}, v{src[i]+1}")
                A(f"s_add_u32 s13, s31, {s_*8192 + te*2048}")
                for q in range(2): A(f"buffer_store_dwordx4 {v(o + 4*q, 4)}, v1, s[16:19], s13 offen offset:{q*1024}{SC}")
        if not isv: A(f"s_branch {P}_kvdone")
    A(f"{P}_kvdone:")

def kv_kernel(opt):
    A = Asm(strict=opt.get("strict", False)); P = "kv"
    std_prologue(A, P, 512, [(4, KA_WS), (42, KA_WK), (44, KA_WV)])
    set_srd(A, 16, 4, WS_SIZE)
    A("""v_lshlrev_b32 v1, 4, v0
s_and_b32 s36, s2, 7
s_lshl_b32 s36, s36, 2
s_lshr_b32 s13, s2, 3
s_and_b32 s13, s13, 3
s_add_u32 s36, s36, s13
s_lshr_b32 s37, s2, 5""")
    kv_task(A, P, 37, 36)
    A(f"s_waitcnt vmcnt(0)\n{P}_end:\ns_endpgm")
    A.fix_hazards(name=P, verbose=opt.get("verbose"))
    return A, dict(name="kv_kernel", grid=512, block=256, lds=147456, vgpr=256, accum=256)
```

```python
from common import *
import chain
from kkv import kv_task
from katt import att_task
TMO = 400000

def poll_until(A, lab, load, cond, sleep=4):
    A(f"s_mov_b32 s15, 0\n{lab}:\n{load}\ns_waitcnt vmcnt(0)\n{cond}\ns_cbranch_scc1 {lab}_ok\ns_sleep {sleep}\ns_add_u32 s15, s15, 1\ns_cmp_lt_u32 s15, {TMO}\ns_cbranch_scc1 {lab}\n{lab}_ok:")

def wg_atomic(A, lab, soff_reg, dst, srd="s[16:19]"):
    A(f"""v_mov_b32 v2, 0
v_mov_b32 v3, 1
s_cmp_lg_u32 s9, 0
s_cbranch_scc1 {lab}_a
s_mov_b64 exec, 1
buffer_atomic_add v3, off, {srd}, s{soff_reg} sc0
s_waitcnt vmcnt(0)
ds_write_b32 v2, v3
s_waitcnt lgkmcnt(0)
s_mov_b64 exec, -1
{lab}_a:
s_barrier
ds_read_b32 v3, v2
s_waitcnt lgkmcnt(0)
v_readfirstlane_b32 s{dst}, v3
s_barrier""")

DBG = "s[92:95]"
def role_poll(A, lab, r0, init=False):
    cond = "\n".join([f"v_readlane_b32 s14, v{r0+1}, 0"] + [f"v_readlane_b32 s13, v{r0+1}, {32+i}\ns_add_u32 s14, s14, s13" for i in range(1, 16)]) + "\ns_cmp_ge_u32 s14, 256"
    poll_until(A, lab, f"v_lshrrev_b32 v{r0}, 2, v1\nbuffer_load_dword v{r0+1}, v{r0}, {DBG}, 0 offen sc1", cond, sleep=2)
    A(f"v_cmp_eq_u32 vcc, 32, v{r0+1}\ns_and_b32 s13, vcc_hi, 0xfe\ns_and_b32 s14, vcc_lo, 1\ns_or_b32 s13, s13, s14\ns_cmp_eq_u32 s13, 0xff\ns_cselect_b32 s13, 1, 0\nv_readlane_b32 s14, v{r0+1}, 0")
def init_wait(A, lab):
    poll_until(A, lab, f"buffer_load_dword v2, off, {DBG}, 0 offset:4 sc1", "v_readfirstlane_b32 s13, v2\ns_cmp_ge_u32 s13, 32", sleep=2)

def r1_task(A, P, sTB, sPart, sLg, sc1=False):
    X = 160; T = 168; R = 176
    A(f"""s_add_u32 s13, s{sLg}, 3
s_lshl_b32 s14, s9, s13
s_add_u32 s14, s14, s{sPart}
s_lshl_b32 s14, s14, 10
s_lshl_b32 s28, s{sTB}, 17
s_add_u32 s28, s28, s14
s_lshl_b32 s29, 4096, s13
s_lshl_b32 s30, 1, s{sLg}
s_sub_u32 s30, s30, 1
s_add_u32 s31, s28, {WS_OP}
s_mov_b32 s32, s31
s_add_u32 s33, s28, {WS_XA}""")
    for g in range(4):
        for p in range(8):
            A(f"buffer_load_dwordx4 {v(32 + 32*g + 4*p, 4)}, v1, s[16:19], s32 offen sc1\ns_add_u32 s32, s32, {2*MB}")
        A(f"buffer_load_dwordx4 {v(R + 4*g, 4)}, v1, s[16:19], s33 offen{' sc1' if sc1 else ''}")
        if g < 3:
            A(f"""s_and_b32 s13, s30, {g+1}
s_cmp_eq_u32 s13, 0
s_cselect_b32 s13, s29, 0
s_add_u32 s31, s31, s13
s_add_u32 s33, s33, s13
s_cmp_lg_u32 s13, 0
s_cselect_b32 s32, s31, s32""")
    A(f"s_add_u32 s33, s28, {WS_XB}")
    for r in range(0, 8, 2): A(f"v_mov_b64 {v(X + r, 2)}, 0")
    for g in range(4):
        A(f"s_waitcnt vmcnt({9*(3-g)})") if g == 0 else A(f"s_waitcnt vmcnt({9*(3-g)})")
        for p in range(8):
            for i in range(4):
                s_ = 32 + 32*g + 4*p + i
                A(f"v_lshlrev_b32 v{T}, 16, v{s_}\nv_and_b32 v{T+1}, 0xffff0000, v{s_}\nv_pk_add_f32 {v(X + 2*i, 2)}, {v(X + 2*i, 2)}, {v(T, 2)}")
        A(f"s_and_b32 s13, s30, {g+1}\ns_cmp_lg_u32 s13, 0\ns_cbranch_scc1 {P}_r{g}")
        for i in range(4):
            A(f"""v_cvt_pk_bf16_f32 v{T}, v{X+2*i}, v{X+2*i+1}
v_lshlrev_b32 v{T+2}, 16, v{T}
v_and_b32 v{T+3}, 0xffff0000, v{T}
v_lshlrev_b32 v{T+4}, 16, v{R+4*g+i}
v_and_b32 v{T+5}, 0xffff0000, v{R+4*g+i}
v_pk_add_f32 {v(T+2,2)}, {v(T+2,2)}, {v(T+4,2)}
v_cvt_pk_bf16_f32 v{R+4*g+i}, v{T+2}, v{T+3}
v_mov_b64 {v(X + 2*i, 2)}, 0""")
        A(f"buffer_store_dwordx4 {v(R + 4*g, 4)}, v1, s[16:19], s33 offen{' sc1' if sc1 else ''}\ns_add_u32 s33, s33, s29\n{P}_r{g}:")
```

```python
from common import *
SC = " sc1"

def ln1_task(A, sSeg, sX):
    set_srd(A, 20, sX, 2 * MB)
    A(f"""v_lshrrev_b32 v2, 5, v0
v_and_b32 v3, 31, v0
v_lshlrev_b32 v4, 10, v3
v_lshl_add_u32 v4, v2, 4, v4
s_lshl_b32 s12, s{sSeg}, 15
s_lshl_b32 s13, s9, 8
s_add_u32 s13, s13, s12
s_lshl_b32 s14, s9, 13
s_add_u32 s14, s14, s12
s_add_u32 s26, s14, {WS_XA}
s_add_u32 s24, s26, 4096
s_add_u32 s25, s14, 4096
v_lshlrev_b32 v5, 3, v3""")
    for k in range(8): A(f"buffer_load_dwordx4 {v(16+4*k,4)}, v4, s[20:23], s13 offen offset:{32*k}")
    A("s_waitcnt vmcnt(0)")
    unpack(A, 64, 16, 32)
    layernorm(A, 64, 64, 6, 5, 0, 4, 128)
    for k in range(8): A(f"buffer_store_dwordx4 {v(128+4*k,4)}, v1, s[16:19], s{14 if k < 4 else 25} offen offset:{1024*(k&3)}{SC}")
    for k in range(8): A(f"buffer_store_dwordx4 {v(16+4*k,4)}, v1, s[16:19], s{26 if k < 4 else 24} offen offset:{1024*(k&3)}{SC}")

def table_task(A, P, sIdx, sWR, sWI):
    A(f"""v_lshrrev_b32 v2, 5, v0
v_and_b32 v3, 31, v0
s_cmp_ge_u32 s{sIdx}, 128
s_cbranch_scc1 {P}_wt
s_and_b32 s12, s{sIdx}, 63
s_lshl_b32 s12, s12, 3
s_lshl_b32 s13, s9, 1
s_add_u32 s12, s12, s13
s_lshr_b32 s14, s12, 5
s_and_b32 s15, s12, 31
s_lshl_b32 s24, s12, 10
s_lshl_b32 s14, s14, 5
s_lshl_b32 s15, s15, 4
v_lshl_add_u32 v7, v2, 3, s15
s_mov_b32 s25, 0
s_cmp_ge_u32 s{sIdx}, 64
s_cbranch_scc1 {P}_ti
v_add_u32 v4, s14, v3
v_lshrrev_b32 v5, 1, v4
v_and_b32 v6, 1, v4
v_lshlrev_b32 v6, 7, v6
v_cmp_eq_u32 vcc, 1, v4
v_mov_b32 v9, 256
v_cndmask_b32 v5, v5, v9, vcc
v_cndmask_b32 v6, v6, 0, vcc
v_mul_u32_u24 v8, v7, v5
v_add_u32 v8, v8, v6
s_add_u32 s24, s24, {WS_TF}
{P}_tfl:""")
    for j in range(8):
        A(f"v_and_b32 v9, 511, v8\nv_cvt_f32_u32 v9, v9\nv_mul_f32 v9, {f32bits(1/512):#x}, v9\nv_cos_f32 v{16+j}, v9\nv_add_u32 v8, v8, v5")
    for j in range(4): A(f"v_cvt_pk_bf16_f32 v{24+j}, v{16+2*j}, v{17+2*j}")
    A(f"""v_lshl_add_u32 v8, v5, 3, v8
buffer_store_dwordx4 v[24:27], v1, s[16:19], s24 offen{SC}
s_add_u32 s24, s24, 1024
s_add_u32 s25, s25, 1
s_cmp_lt_u32 s25, 2
s_cbranch_scc1 {P}_tfl
s_branch {P}_tdone
{P}_ti:""")
    dperm_code(A, 4, 3, 5)
    A(f"v_add_u32 v4, s14, v4\ns_add_u32 s24, s24, {WS_TI}\n{P}_til:")
    for j in range(8):
        A(f"""v_add_u32 v5, {j}, v7
v_lshrrev_b32 v6, 1, v5
v_cmp_eq_u32 vcc, 1, v5
v_mov_b32 v9, 256
v_cndmask_b32 v6, v6, v9, vcc
v_mov_b32 v9, {128*(j&1)}
v_cndmask_b32 v9, v9, 0, vcc
v_mad_u32_u24 v8, v6, v4, v9
v_and_b32 v8, 511, v8
v_cvt_f32_u32 v8, v8
v_mul_f32 v8, {f32bits(1/512):#x}, v8
v_cos_f32 v8, v8
v_cmp_gt_u32 vcc, 2, v5
v_add_f32 v9, v8, v8
v_cndmask_b32 v{16+j}, v9, v8, vcc""")
    for j in range(4): A(f"v_cvt_pk_bf16_f32 v{24+j}, v{16+2*j}, v{17+2*j}")
    A(f"""v_add_u32 v7, 16, v7
buffer_store_dwordx4 v[24:27], v1, s[16:19], s24 offen{SC}
s_add_u32 s24, s24, 1024
s_add_u32 s25, s25, 1
s_cmp_lt_u32 s25, 2
s_cbranch_scc1 {P}_til
s_branch {P}_tdone
{P}_wt:
s_sub_u32 s12, s{sIdx}, 128
s_lshl_b32 s12, s12, 2
s_add_u32 s12, s12, s9
s_cmp_ge_u32 s12, 257
s_cbranch_scc1 {P}_ct""")
    set_srd(A, 20, sWR, 2048 * 257 * 2); set_srd(A, 24, sWI, 2048 * 257 * 2)
    A(f"""v_lshl_add_u32 v4, v2, 8, v3
v_mul_u32_u24 v4, 514, v4
s_lshl_b32 s13, s12, 1
s_lshl_b32 s28, s12, 13
s_add_u32 s28, s28, {WS_WT}
s_mov_b32 s29, 0
s_mov_b32 s30, {f32bits(2.0 ** -20):#x}
{P}_wtl:""")
    for r in range(16):
        k1 = 8 * (r >> 2) + (r & 3)
        A(f"s_add_u32 s14, s13, {64 * k1 * 514}")
        A(f"buffer_load_ushort v{32 + r}, v4, s[20:23], s14 offen\nbuffer_load_ushort v{48 + r}, v4, s[24:27], s14 offen")
    A("s_waitcnt vmcnt(0)")
    for i in range(16):
        A(f"v_lshlrev_b32 v{32+i}, 16, v{32+i}\nv_lshlrev_b32 v{48+i}, 16, v{48+i}\nv_mul_f32 v{32+i}, s30, v{32+i}\nv_mul_f32 v{48+i}, s30, v{48+i}\nv_cvt_pk_bf16_f32 v{64+i}, v{32+i}, v{48+i}")
    for q in range(4): A(f"buffer_store_dwordx4 {v(64+4*q,4)}, v1, s[16:19], s28 offen offset:{1024*q}{SC}")
    A(f"""s_add_u32 s28, s28, 4096
s_add_u32 s13, s13, {32 * 514}
s_add_u32 s29, s29, 1
s_cmp_lt_u32 s29, 2
s_cbranch_scc1 {P}_wtl
s_branch {P}_tdone
{P}_ct:
s_sub_u32 s12, s12, 257
s_cmp_ge_u32 s12, 60
s_cbranch_scc1 {P}_tdone""")
    dperm_code(A, 5, 3, 6)
    A(f"""s_mov_b32 s25, 0
s_mov_b32 s28, 0
s_mov_b32 s29, 0
s_cmp_ge_u32 s12, 28
s_cbranch_scc1 {P}_c2
s_cmp_ge_u32 s12, 16
s_cbranch_scc1 {P}_c1
s_and_b32 s24, s12, 3
s_lshl_b32 s24, s24, 4
s_and_b32 s25, s12, 4
s_lshl_b32 s25, s25, 3
s_mov_b32 s26, 5
s_cmp_ge_u32 s12, 8
s_cselect_b32 s27, 1536, 0
s_branch {P}_cg
{P}_c1:
s_sub_u32 s13, s12, 16
s_cmp_ge_u32 s13, 6
s_cselect_b32 s28, 1, 0
s_cselect_b32 s14, 6, 0
s_sub_u32 s13, s13, s14
s_and_b32 s24, s13, 1
s_lshl_b32 s24, s24, 4
s_mov_b32 s26, 6
s_lshr_b32 s13, s13, 1
s_cmp_eq_u32 s13, 1
s_cselect_b32 s27, 1536, 0
s_cmp_eq_u32 s13, 2
s_cselect_b32 s27, 512, s27
s_branch {P}_cg
{P}_c2:
s_sub_u32 s13, s12, 28
s_lshr_b32 s28, s13, 4
s_mov_b32 s29, 1
s_mov_b32 s26, 0
s_and_b32 s14, s13, 8
s_cmp_lg_u32 s14, 0
s_cselect_b32 s27, 1536, 0
s_and_b32 s24, s13, 3
s_lshl_b32 s24, s24, 3
s_and_b32 s14, s13, 4
s_lshl_b32 s14, s14, 3
s_cmp_lg_u32 s28, 0
s_cselect_b32 s15, s14, 0
s_cselect_b32 s25, 0, s14
s_add_u32 s24, s24, s15
{P}_cg:
s_cmp_lg_u32 s28, 0
s_cselect_b64 vcc, -1, 0
v_cndmask_b32 v8, v3, v5, vcc
v_add_u32 v8, s25, v8
v_lshl_add_u32 v6, v2, 2, s24""")
    for j in range(8):
        A(f"""v_add_u32 v7, {8*(j>>2) + (j&3)}, v6
v_mul_u32_u24 v7, v7, v8
v_lshlrev_b32 v7, s26, v7
v_add_u32 v7, s27, v7
v_and_b32 v7, 2047, v7
v_cvt_f32_u32 v7, v7
v_mul_f32 v7, {f32bits(1/2048):#x}, v7
v_cos_f32 v{32+j}, v7""")
    A(f"s_cmp_lg_u32 s29, 0\ns_cbranch_scc1 {P}_cs")
    for j in range(4): A(f"v_cvt_pk_bf16_f32 v{32+j}, v{32+2*j}, v{33+2*j}")
    A(f"{P}_cs:\ns_lshl_b32 s13, s12, 10\ns_add_u32 s13, s13, {WS_CT}\nbuffer_store_dwordx4 v[32:35], v1, s[16:19], s13 offen{SC}\n{P}_tdone:")

def r2_prefetch(A, sQ):
    A(f"s_lshl_b32 s29, s{sQ}, 2\ns_add_u32 s29, s29, s9\ns_lshl_b32 s29, s29, 15\ns_add_u32 s29, s29, {WS_TF}")
    for k in range(32):
        A((f"s_add_u32 s29, s29, 4096\n" if (k % 4 == 0 and k) else "") + f"buffer_load_dwordx4 {a(4*k, 4)}, v1, s[16:19], s29 offen offset:{(k&3)*1024}{SC}")

def r2_task(A, sSeg, sQ):
    S0, S1, X = 48, 80, 112
    A(f"""s_lshl_b32 s24, s{sSeg}, 15
s_lshl_b32 s14, s9, 13
s_add_u32 s24, s24, s14
s_add_u32 s25, s24, {WS_XB}
s_add_u32 s26, s25, 4096""")
    for k in range(8): A(f"buffer_load_dwordx4 {v(S0 + 4*k, 4)}, v1, s[16:19], s{25 if k < 4 else 26} offen offset:{1024*(k&3)}{SC}")
    A("v_and_b32 v3, 31, v0\nv_lshlrev_b32 v5, 3, v3\nv_add_u32 v2, s14, v1")
    dperm_code(A, 4, 3, 6)
    A(f"""v_lshrrev_b32 v6, 5, v0
v_lshl_add_u32 v4, v6, 5, v4
v_lshlrev_b32 v4, 4, v4
s_lshl_b32 s15, s{sQ}, 2
s_add_u32 s15, s15, s9
s_lshl_b32 s15, s15, 6
s_add_u32 s15, s15, s{sSeg}
s_lshl_b32 s15, s15, 11
s_add_u32 s15, s15, {WS_FT}
s_waitcnt vmcnt(0)""")
    unpack(A, X, S0, 32)
    layernorm(A, X, 64, 16, 5, 32768, 4, S1)
    for k in range(8): A(f"ds_write_b128 v2, {v(S1 + 4*k, 4)} offset:{1024*k}")
    A("s_waitcnt lgkmcnt(0)\ns_barrier")
    A.reset_counts()
    xt = [A(f"ds_read_b128 {v(X + 4*(k % 16), 4)}, v4 offset:{1024*k}") for k in range(12)]
    for k in range(32):
        A.wlg(xt[k])
        mf32(A, v(16, 16), v(X + 4*(k % 16), 4), a(4*k, 4), k == 0)
        if k + 12 < 32: xt.append(A(f"ds_read_b128 {v(X + 4*((k+12) % 16), 4)}, v4 offset:{1024*(k+12)}"))
    A("v_lshlrev_b32 v4, 6, v3\nv_lshl_add_u32 v4, v6, 4, v4")
    for i in range(8): A(f"v_cvt_pk_bf16_f32 v{32+i}, v{16+2*i}, v{17+2*i}")
    for q in range(2): A(f"buffer_store_dwordx4 {v(32 + 4*q, 4)}, v4, s[16:19], s15 offen offset:{32*q}{SC}")

XR, XI, NG, D, TC, TS, W, T, TC2, TS2 = 16, 32, 48, 64, 128, 160, 192, 224, 112, 144
def col_prefetch(A, sCol):
    def ldq(dst, q): A(f"s_mov_b32 s13, {WS_CT + q*1024}\nbuffer_load_dwordx4 {dst}, v1, s[16:19], s13 offen{SC}")
    for q in range(16): ldq(a(4*q, 4), q)
    for q in range(12): ldq(a(64 + 4*q, 4), 16 + q)
    for q in range(8): ldq(v(TC + 4*q, 4), 28 + q)
    for q in range(8): ldq(v(TS + 4*q, 4), 36 + q)
    A("s_waitcnt vmcnt(40)")
    for q in range(16): ldq(a(TC2 + 4*q, 4), 44 + q)
    A(f"s_lshl_b32 s26, s{sCol}, 13\ns_add_u32 s26, s26, {WS_WT}\ns_add_u32 s27, s26, 4096")
    for q in range(8): A(f"buffer_load_dwordx4 {v(W + 4*q, 4)}, v1, s[16:19], s{26 if q < 4 else 27} offen offset:{(q&3)*1024}{SC}")
    A(f"""s_and_b32 s12, s{sCol}, 255
s_lshr_b32 s13, s12, 4
s_lshl_b32 s13, s13, 17
s_and_b32 s14, s12, 15
s_lshl_b32 s14, s14, 7
s_add_u32 s24, s13, s14
s_add_u32 s25, s24, {WS_FT}
s_lshl_b32 s28, s9, 13
v_lshrrev_b32 v2, 3, v0
v_and_b32 v3, 7, v0
v_bfe_u32 v4, v0, 4, 1
v_lshlrev_b32 v4, 2, v4
v_xor_b32 v3, v3, v4
v_lshlrev_b32 v3, 4, v3
v_lshl_add_u32 v2, v2, 11, v3
v_bfe_u32 v5, v0, 2, 2
v_lshrrev_b32 v6, 5, v0
v_lshl_add_u32 v7, v6, 2, v5
v_lshlrev_b32 v7, 7, v7
v_bfe_u32 v8, v0, 4, 1
v_lshl_add_u32 v7, v8, 5, v7
v_and_b32 v8, 3, v0
v_lshl_add_u32 v7, v8, 3, v7
v_add_u32 v7, s28, v7
v_lshrrev_b32 v8, 1, v5
v_lshl_add_u32 v9, v8, 6, v7
v_xor_b32 v8, 1, v8
v_lshl_add_u32 v10, v8, 6, v7
s_cmp_eq_u32 s{sCol}, 256
s_cselect_b64 vcc, -1, 0
v_cndmask_b32 v9, v9, v10, vcc""")

def col_task(A, P, sCol):
    for j in range(8): A(f"s_add_u32 m0, s28, {j*1024}\ns_add_u32 s13, s25, {j*16384}\nbuffer_load_dwordx4 v2, s[16:19], s13 offen{SC} lds")
    A("s_waitcnt vmcnt(0)")
    for ks in range(4):
        for jj in range(2):
            A(f"ds_read_b64_tr_b16 {v(XR + 4*ks + 2*jj, 2)}, v9 offset:{(16*ks + 8*jj)*128}")
            A(f"ds_read_b64_tr_b16 {v(XI + 4*ks + 2*jj, 2)}, v10 offset:{(16*ks + 8*jj)*128}")
    A(f"s_waitcnt lgkmcnt(0)\ns_cmp_lg_u32 s12, 0\ns_cbranch_scc1 {P}_cplx")
    for i in range(0, 16, 2): A(f"v_mov_b64 {v(XI+i,2)}, 0")
    A(f"{P}_cplx:")
    for i in range(16): A(f"v_xor_b32 v{NG+i}, 0x80008000, v{XR+i}")
    C64 = lambda u, ks: a(16*u + 4*ks, 4); S64 = lambda u, ks: a(32 + 16*u + 4*ks, 4)
    T32 = lambda which, kt: a(64 + 8*which + 4*kt, 4)
    Dr = lambda t: v(D + 32*t, 16); Di = lambda t: v(D + 32*t + 16, 16)
    def cmul(t, sign, cs, neg_im=False):
        for r in range(0, 16, 2):
            dr, di = v(D + 32*t + r, 2), v(D + 32*t + 16 + r, 2)
            c, s_ = cs(t, r)
            n1 = " neg_lo:[1,0,0] neg_hi:[1,0,0]"
            A(f"v_pk_mul_f32 {v(T,2)}, {dr}, {c}\nv_pk_mul_f32 {v(T+2,2)}, {di}, {c}")
            A(f"v_pk_fma_f32 {v(T,2)}, {di}, {s_}, {v(T,2)}{n1 if sign > 0 else ''}\nv_pk_fma_f32 {v(T+2,2)}, {dr}, {s_}, {v(T+2,2)}{'' if sign > 0 else n1}")
            A(f"v_cvt_pk_bf16_f32 v{XR + 8*t + r//2}, v{T}, v{T+1}\nv_cvt_pk_bf16_f32 v{XI + 8*t + r//2}, v{T+2}, v{T+3}")
            if neg_im: A(f"v_xor_b32 v{NG + 8*t + r//2}, 0x80008000, v{XI + 8*t + r//2}")
    for u in range(2):
        for ks in range(4):
            mf32(A, Dr(u), v(XR + 4*ks, 4), C64(u, ks), ks == 0); mf32(A, Di(u), v(XI + 4*ks, 4), C64(u, ks), ks == 0)
        for ks in range(4):
            mf32(A, Dr(u), v(XI + 4*ks, 4), S64(u, ks)); mf32(A, Di(u), v(NG + 4*ks, 4), S64(u, ks))
    tw = lambda t, r: (v(TC + 16*t + r, 2), v(TS + 16*t + r, 2))
    for t in range(2): cmul(t, -1, tw)
    for t in range(2):
        for kt in range(2):
            mf32(A, Dr(t), T32(0, kt), v(XR + 8*t + 4*kt, 4), kt == 0); mf32(A, Di(t), T32(0, kt), v(XI + 8*t + 4*kt, 4), kt == 0)
        for kt in range(2):
            mf32(A, Dr(t), T32(1, kt), v(XI + 8*t + 4*kt, 4)); mf32(A, Di(t), T32(2, kt), v(XR + 8*t + 4*kt, 4))
        for i in range(32): A(f"v_accvgpr_read_b32 v{TC + 32*t + i}, a{TC2 + 32*t + i}")
    def wcs(t, r):
        A(f"""v_lshlrev_b32 v{T+4}, 16, v{W + 16*t + r}
v_lshlrev_b32 v{T+5}, 16, v{W + 16*t + r + 1}
v_and_b32 v{T+6}, 0xffff0000, v{W + 16*t + r}
v_and_b32 v{T+7}, 0xffff0000, v{W + 16*t + r + 1}""")
        return (v(T + 4, 2), v(T + 6, 2))
    for t in range(2): cmul(t, +1, wcs)
    for t in range(2):
        for kt in range(2):
            mf32(A, Dr(t), v(XR + 8*t + 4*kt, 4), T32(3, kt), kt == 0); mf32(A, Di(t), v(XI + 8*t + 4*kt, 4), T32(3, kt), kt == 0)
        for kt in range(2):
            mf32(A, Dr(t), v(XI + 8*t + 4*kt, 4), T32(5, kt)); mf32(A, Di(t), v(XR + 8*t + 4*kt, 4), T32(4, kt))
    for t in range(2): cmul(t, +1, tw, neg_im=True)
    for u in range(2):
        for ks in range(4):
            mf32(A, Dr(u), v(XR + 4*ks, 4), C64(u, ks), ks == 0); mf32(A, Di(u), v(XI + 4*ks, 4), C64(u, ks), ks == 0)
        for ks in range(4):
            mf32(A, Dr(u), v(NG + 4*ks, 4), S64(u, ks)); mf32(A, Di(u), v(XR + 4*ks, 4), S64(u, ks))
    A(f"""v_and_b32 v2, 31, v0
v_lshlrev_b32 v2, 11, v2
v_lshl_add_u32 v2, v6, 4, v2
s_add_u32 s25, s24, {WS_GT}
s_lshr_b32 s13, s{sCol}, 8
s_lshl_b32 s13, s13, 6
s_add_u32 s25, s25, s13
s_add_u32 s26, s25, 65536""")
    for u in range(2):
        for i in range(8): A(f"v_cvt_pk_bf16_f32 v{TC + 8*u + i}, v{D + 32*u + 2*i}, v{D + 32*u + 2*i + 1}")
        for q in range(2): A(f"buffer_store_dwordx4 {v(TC + 8*u + 4*q, 4)}, v2, s[16:19], s{25+u} offen offset:{32*q}{SC}")
    A(f"s_cmp_eq_u32 s12, 0\ns_cbranch_scc1 {P}_fin")
    for u in range(2):
        for i in range(8): A(f"v_cvt_pk_bf16_f32 v{TS + 8*u + i}, v{D + 32*u + 16 + 2*i}, v{D + 32*u + 16 + 2*i + 1}")
        for q in range(2): A(f"buffer_store_dwordx4 {v(TS + 8*u + 4*q, 4)}, v2, s[16:19], s{25+u} offen offset:{64 + 32*q}{SC}")
    A(f"{P}_fin:")

IR, IB, ID = 16, 48, 64
def inv_freg(n): return a(4 * n, 4) if n < 64 else (v(128 + 4 * (n - 64), 4) if n < 96 else a(4 * (n - 96), 4))
def inv_tload(A, n):
    A(f"s_add_u32 s13, s24, {(n & 3)*32768 + (n >> 2)*1024}")
    return A(f"buffer_load_dwordx4 {inv_freg(n)}, v1, s[16:19], s13 offen{SC}")
def inv_prefetch(A, sSeg):
    A(f"s_lshl_b32 s24, s9, 17\ns_add_u32 s24, s24, {WS_TI}")
    for n in range(96):
        if n == 48: A("s_waitcnt vmcnt(32)")
        inv_tload(A, n)
    A(f"""s_lshl_b32 s12, s{sSeg}, 11
s_lshl_b32 s13, s9, 19
s_add_u32 s12, s12, s13
s_add_u32 s12, s12, {WS_GT}
s_lshl_b32 s14, s9, 13
s_lshl_b32 s25, s{sSeg}, 15
s_add_u32 s25, s25, s14
s_add_u32 s26, s25, {WS_XB}
s_add_u32 s27, s26, 4096
v_bfe_u32 v5, v0, 2, 2
v_lshrrev_b32 v6, 5, v0
v_lshl_add_u32 v7, v6, 3, v5
v_lshlrev_b32 v7, 6, v7
v_bfe_u32 v8, v0, 4, 1
v_lshl_add_u32 v7, v8, 5, v7
v_and_b32 v8, 3, v0
v_lshl_add_u32 v7, v8, 3, v7
v_and_b32 v3, 31, v0
v_lshlrev_b32 v5, 3, v3""")

def inv_task(A, P, sSeg, sLayer, sOut):
    A.reset_counts()
    for j in range(8):
        A(f"s_add_u32 m0, s14, {j*1024}\ns_add_u32 s13, s12, {(j>>1)*131072 + (j&1)*1024}")
        gt = A(f"buffer_load_dwordx4 v1, s[16:19], s13 offen{SC} lds")
    for k in range(8): rt = A(f"buffer_load_dwordx4 {v(IR + 4*k, 4)}, v1, s[16:19], s{26 if k < 4 else 27} offen offset:{1024*(k&3)}{SC}")
    A.wvm(gt); A("s_barrier")
    def bread(ks):
        t = None
        for jj in range(2): t = A(f"ds_read_b64_tr_b16 {v(IB + 4*(ks & 3) + 2*jj, 2)}, v7 offset:{(16*ks + 4*jj)*64}")
        return t
    bt = [bread(k) for k in range(3)]
    tt = {}
    for ks in range(32):
        A.wlg(bt[ks])
        for t in range(4):
            n = ks * 4 + t
            if n in tt: A.wvm(tt[n])
            mf32(A, v(ID + 16*t, 16), inv_freg(n), v(IB + 4*(ks & 3), 4), ks == 0)
            if t == 0 and ks + 3 < 32: bt.append(bread(ks + 3))
            if n < 32: tt[96 + n] = inv_tload(A, 96 + n)
    resid_add(A, 128, ID, IR, 32, 8)
    A(f"s_cmp_eq_u32 s{sLayer}, 0\ns_cbranch_scc1 {P}_mid")
    set_srd(A, 20, sOut, 2 * MB)
    A(f"v_lshlrev_b32 v4, 10, v3\nv_lshl_add_u32 v4, v6, 4, v4\ns_lshl_b32 s13, s{sSeg}, 15\ns_lshl_b32 s15, s9, 8\ns_add_u32 s13, s13, s15")
    for k in range(8): A(f"buffer_store_dwordx4 {v(128 + 4*k, 4)}, v4, s[20:23], s13 offen offset:{32*k}")
    A(f"s_branch {P}_iend\n{P}_mid:")
    A(f"s_add_u32 s26, s25, {WS_XA}\ns_add_u32 s27, s26, 4096\ns_add_u32 s28, s25, 4096")
    unpack(A, ID, 128, 32)
    layernorm(A, ID, 64, 48, 5, 32768, 4, IR)
    for k in range(8): A(f"buffer_store_dwordx4 {v(IR + 4*k, 4)}, v1, s[16:19], s{25 if k < 4 else 28} offen offset:{1024*(k&3)}{SC}")
    for k in range(8): A(f"buffer_store_dwordx4 {v(128 + 4*k, 4)}, v1, s[16:19], s{26 if k < 4 else 27} offen offset:{1024*(k&3)}{SC}")
    A(f"{P}_iend:")
```

```python
from common import *
import chain
from kkv import kv_task
from katt import att_task
from kmisc import *
from klayer import poll_until, wg_atomic, role_poll, init_wait, r1_task, TMO, DBG

def arrive(A, lab, addr_code, atomic=True, wave0=True):
    A(addr_code)
    A("v_mov_b32 v2, 1")
    if wave0: A(f"s_cmp_lg_u32 s9, 0\ns_cbranch_scc1 {lab}")
    A("s_mov_b64 exec, 1\n" + ("buffer_atomic_add v2, off, s[16:19], s13" if atomic else "buffer_store_dword v2, off, s[16:19], s13 sc1") + "\ns_mov_b64 exec, -1")
    if wave0: A(f"{lab}:")

def wait16(A, lab, off, expect, base=56, wave0=True, first_extra=0, sleep=4, r=2):
    if wave0: A(f"s_cmp_lg_u32 s9, 0\ns_cbranch_scc1 {lab}_ok")
    A(f"v_lshlrev_b32 v{r}, 4, v1\nv_mov_b32 v{r+2}, {expect}")
    if first_extra: A(f"v_writelane_b32 v{r+2}, {expect + first_extra}, 0")
    poll_until(A, lab, f"s_add_u32 s13, s{base}, {off}\ns_mov_b64 exec, 0xffff\nbuffer_load_dword v{r+1}, v{r}, s[16:19], s13 offen sc1\ns_mov_b64 exec, -1",
               f"v_cmp_ge_u32 vcc, v{r+1}, v{r+2}\ns_and_b32 s13, vcc_lo, 0xffff\ns_cmp_eq_u32 s13, 0xffff", sleep=sleep)
    if wave0: A("s_barrier")

def init_kernel(opt):
    A = Asm(); P = "ini"
    std_prologue(A, P, 80, [(4, KA_WS)])
    set_srd(A, 16, 4, WS_SIZE)
    A(f"""v_lshlrev_b32 v1, 4, v0
s_lshl_b32 s12, s2, 2
s_add_u32 s12, s12, s9
s_cmp_ge_u32 s12, 160
s_cselect_b32 s13, {MB - 160*4096}, 0
s_cselect_b32 s15, 160, 0
s_lshl_b32 s14, s12, 12
s_add_u32 s13, s13, s14
s_add_u32 s13, s13, {WS_SYNC}
s_sub_u32 s12, s12, s15
s_lshr_b32 s12, s12, 3
s_cmp_eq_u32 s12, 16
s_cselect_b32 s14, -1, 0
v_mov_b32 v4, s14
v_mov_b32 v5, s14
v_mov_b32 v6, s14
v_mov_b32 v7, s14""")
    for k in range(4): A(f"buffer_store_dwordx4 v[4:7], v1, s[16:19], s13 offen offset:{1024*k}")
    A(f"s_waitcnt vmcnt(0)\n{P}_end:\ns_endpgm")
    A.fix_hazards()
    return A, dict(name="init_kernel", grid=80, block=256, lds=0, vgpr=8, accum=8)

def mega_kernel(opt):
    A = Asm(strict=opt.get("strict", False)); P = "lay"
    rt = opt.get("rt")
    def stamp(k):
        if rt: A(f"""s_memrealtime s[86:87]
s_lshl_b32 s88, s75, 4
s_add_u32 s88, s88, {k}
s_lshl_b32 s88, s88, 10
s_lshl_b32 s89, s60, 2
s_add_u32 s88, s88, s89
s_add_u32 s88, s88, {WS_FLAG + 640*1024}
s_waitcnt lgkmcnt(0)
v_mov_b32 v2, s86
buffer_store_dword v2, off, s[16:19], s88""")
    A(f"""s_cmp_ge_u32 s2, 256
s_cbranch_scc1 {P}_end
s_load_dwordx2 s[4:5], s[0:1], {KA_WS}
s_load_dwordx4 s[40:43], s[0:1], {KA_WQ}
s_load_dwordx4 s[44:47], s[0:1], {KA_WV}
s_load_dwordx2 s[48:49], s[0:1], {KA_MEM0}
s_load_dwordx2 s[76:77], s[0:1], {KA_X}
s_load_dwordx2 s[78:79], s[0:1], {KA_WR}
s_load_dwordx4 s[80:83], s[0:1], {KA_WI}
s_load_dwordx2 s[6:7], s[0:1], {KA_DBG}
s_getreg_b32 s8, hwreg(HW_REG_XCC_ID)
v_lshrrev_b32 v1, 6, v0
v_and_b32 v0, 63, v0
v_readfirstlane_b32 s9, v1
s_and_b32 s8, s8, 15
v_lshlrev_b32 v1, 4, v0
s_mov_b32 s56, {WS_SYNC}""")
    if opt.get("force_fb"): A("s_and_b32 s8, s2, 15")
    A("s_waitcnt lgkmcnt(0)")
    set_srd(A, 16, 4, WS_SIZE)
    set_srd(A, 92, 6, 256)
    A("s_lshl_b32 s10, s8, 2\ns_add_u32 s10, s10, 128\ns_cmp_eq_u32 s8, 0\ns_cselect_b32 s10, 0, s10")
    wg_atomic(A, f"{P}_t", 10, 12, DBG)
    A(f"""s_cmp_ge_u32 s12, 32
s_cbranch_scc1 {P}_slowrole
s_cmp_eq_u32 s8, 0
s_cbranch_scc1 {P}_member
s_cmp_ge_u32 s8, 8
s_cbranch_scc1 {P}_slowrole
s_sub_u32 s60, s8, 1
s_lshl_b32 s60, s60, 5
s_add_u32 s60, s60, s12
s_mov_b32 s61, 0
{P}_bulk:
v_mov_b32 v2, 0
v_readfirstlane_b32 s75, v2
s_lshr_b32 s62, s60, 5
s_and_b32 s63, s60, 31
s_mul_i32 s66, s63, 7
s_add_u32 s66, s66, s62
s_cmp_ge_u32 s66, 64
s_cbranch_scc1 {P}_noln""")
    ln1_task(A, 66, 76)
    A(f"""{P}_noln:
s_cmp_lg_u32 s61, 0
s_cbranch_scc1 {P}_ver""")
    role_poll(A, f"{P}_rp1", 2)
    A(f"""s_cmp_eq_u32 s13, 0
s_cbranch_scc1 {P}_irr
{P}_ver:""")
    init_wait(A, f"{P}_iw")
    A(f"s_barrier\ns_cmp_ge_u32 s66, 64\ns_cbranch_scc1 {P}_layer")
    xnf = lambda sreg, extra: f"s_lshr_b32 s13, s{sreg}, 2\ns_lshl_b32 s13, s13, 8\ns_and_b32 s14, s{sreg}, 3\ns_lshl_b32 s14, s14, 2\ns_add_u32 s13, s13, s14\ns_add_u32 s13, s13, s56\ns_add_u32 s13, s13, {SY_XNF + extra}"
    stamp(9)
    arrive(A, f"{P}_a0", xnf(66, 0), atomic=False)
    A(f"""{P}_layer:
s_lshr_b32 s62, s60, 5
s_and_b32 s63, s60, 31
s_cmp_lt_u32 s62, 4
s_cselect_b32 s64, 5, 4
s_movk_i32 s65, 16384
s_cselect_b32 s65, 13108, s65
{P}_kvl:
s_mul_i32 s66, s63, s65
s_lshr_b32 s66, s66, 16
s_mul_i32 s13, s66, s64
s_sub_u32 s13, s63, s13
s_mul_i32 s13, s13, 7
s_add_u32 s67, s13, s62""")
    xld = f"s_lshl_b32 s35, s66, 8\ns_add_u32 s35, s35, s56\ns_add_u32 s35, s35, {SY_XNF}\nbuffer_load_dwordx4 v[32:35], off, s[16:19], s35 sc1"
    xck = "v_and_b32 v32, v32, v33\nv_and_b32 v34, v34, v35\nv_and_b32 v32, v32, v34\nv_readfirstlane_b32 s13, v32\ns_cmp_lg_u32 s13, 0"
    def xw0(B): B(xld)
    def xw1(B):
        B(f"s_waitcnt vmcnt(24)\n{xck}\ns_cbranch_scc1 {P}_xw_ok")
        poll_until(B, f"{P}_xw", "buffer_load_dwordx4 v[32:35], off, s[16:19], s35 sc1", xck, sleep=2)
    kv_task(A, "lkv", 66, 67, sc1=True, xwait=(xw0, xw1))
    A("s_waitcnt vmcnt(0)\ns_barrier")
    if rt: A(f"s_cmp_ge_u32 s63, 32\ns_cbranch_scc1 {P}_ns8"); stamp(8); A(f"{P}_ns8:")
    arrive(A, f"{P}_a1", f"s_lshl_b32 s13, s67, 8\ns_lshl_b32 s14, s66, 2\ns_add_u32 s13, s13, s14\ns_add_u32 s13, s13, s56\ns_add_u32 s13, s13, {SY_KVF}", atomic=False)
    A(f"""s_add_u32 s63, s63, 32
s_lshl_b32 s13, s64, 4
s_cmp_lt_u32 s63, s13
s_cbranch_scc1 {P}_kvl""")
    stamp(0)
    A(f"s_cmp_lg_u32 s75, 0\ns_cbranch_scc1 {P}_notab")
    table_task(A, "tab", 60, 78, 80)
    A("s_waitcnt vmcnt(0)\ns_barrier")
    arrive(A, f"{P}_a2", f"s_and_b32 s13, s60, 15\ns_lshl_b32 s13, s13, 8\ns_add_u32 s13, s13, {WS_SYNC + SY_TBL}")
    A(f"""{P}_notab:
s_lshr_b32 s68, s60, 6
s_min_u32 s68, s68, 2
s_lshl_b32 s13, s68, 6
s_sub_u32 s13, s60, s13
s_add_u32 s14, s68, 3
s_lshr_b32 s66, s13, s14
s_lshl_b32 s15, s66, s14
s_sub_u32 s67, s13, s15
s_cmp_eq_u32 s68, 0
s_cselect_b32 s13, 0, 4
s_lshl_b32 s14, s68, 2
s_add_u32 s13, s13, s14
s_add_u32 s66, s66, s13
{P}_att:
s_lshr_b32 s69, 4, s68
s_mul_i32 s70, s67, s69
s_lshl_b32 s71, 1, s69
s_sub_u32 s71, s71, 1
s_lshl_b32 s72, s70, 8
s_add_u32 s72, s72, s56""")
    def kvwait(B):
        poll_until(B, f"{P}_kw", f"v_lshlrev_b32 v14, 4, v1\ns_lshl_b32 s13, s66, 2\ns_add_u32 s13, s13, s72\ns_add_u32 s13, s13, {SY_KVF}\ns_mov_b64 exec, 15\nbuffer_load_dword v15, v14, s[16:19], s13 offen sc1\ns_mov_b64 exec, -1",
                   "v_cmp_ne_u32 vcc, 0, v15\ns_and_b32 s13, vcc_lo, s71\ns_cmp_eq_u32 s13, s71", sleep=8)
    def pwait(B):
        B(f"s_cmp_lg_u32 s9, 0\ns_cbranch_scc1 {P}_pw_ok")
        poll_until(B, f"{P}_pw", f"v_lshlrev_b32 v14, 4, v1\ns_add_u32 s13, s72, {SY_PROG}\ns_mov_b64 exec, 15\nbuffer_load_dword v15, v14, s[16:19], s13 offen sc1\ns_mov_b64 exec, -1",
                   "s_lshl_b32 s14, s66, 2\ns_add_u32 s14, s14, 4\nv_cmp_le_u32 vcc, s14, v15\ns_and_b32 s13, vcc_lo, s71\ns_cmp_eq_u32 s13, s71", sleep=opt.get("psleep", 6))
        B("s_barrier")
    att_task(A, "lat", 66, 70, 67, 69, sc1=True, waitfn=pwait, kvwait=kvwait)
    A("v_lshrrev_b32 v0, 4, v1\ns_waitcnt vmcnt(0)\ns_barrier")
    stamp(1)
    A(f"s_lshl_b32 s73, s66, 8\ns_add_u32 s73, s73, s56")
    arrive(A, f"{P}_a3", f"s_add_u32 s13, s73, {SY_CNT}")
    A(f"s_mov_b32 s74, {WS_SYNC}")
    wait16(A, f"{P}_tw", SY_TBL, 14, base=74)
    A("s_and_b32 s74, s67, 3")
    r2_prefetch(A, 74)
    def cwait(lab, off):
        A(f"s_cmp_lg_u32 s9, 0\ns_cbranch_scc1 {lab}_ok")
        poll_until(A, lab, f"s_add_u32 s13, s73, {off}\nbuffer_load_dword v2, off, s[16:19], s13 sc1", "v_readfirstlane_b32 s13, v2\ns_lshl_b32 s14, 8, s68\ns_cmp_ge_u32 s13, s14", sleep=2)
        A("s_barrier")
    cwait(f"{P}_cw", SY_CNT)
    stamp(2)
    r1_task(A, P, 66, 67, 68, sc1=True)
    A("s_waitcnt vmcnt(0)\ns_barrier")
    arrive(A, f"{P}_a4", f"s_add_u32 s13, s73, {SY_X1C}")
    A(f"s_cmp_ge_u32 s67, 16\ns_cbranch_scc1 {P}_nor2")
    cwait(f"{P}_x1", SY_X1C)
    stamp(3)
    A(f"{P}_r2l:\ns_lshr_b32 s84, s67, 2\ns_lshl_b32 s13, s66, 2\ns_add_u32 s84, s84, s13")
    r2_task(A, 84, 74)
    A("s_waitcnt vmcnt(0)\ns_barrier")
    arrive(A, f"{P}_a5", f"s_add_u32 s13, s73, {SY_FTC}")
    A(f"""s_lshl_b32 s13, 8, s68
s_add_u32 s67, s67, s13
s_cmp_lt_u32 s67, 16
s_cbranch_scc1 {P}_r2l
{P}_nor2:""")
    stamp(4)
    A(f"""s_cmp_ge_u32 s60, 32
s_cbranch_scc1 {P}_fft
s_cmp_eq_u32 s66, 15
s_cbranch_scc1 {P}_next
s_mov_b32 s66, 15
s_mov_b32 s67, s60
s_mov_b32 s68, 2
s_branch {P}_att
{P}_fft:
s_cmp_ge_u32 s60, 96
s_cbranch_scc1 {P}_col
s_sub_u32 s84, s60, 32""")
    inv_prefetch(A, 84)
    wait16(A, f"{P}_gw", SY_GTC, 16, first_extra=1, sleep=2, r=8)
    stamp(6)
    inv_task(A, "inv", 84, 75, 82)
    A("s_waitcnt vmcnt(0)\ns_barrier")
    stamp(7)
    arrive(A, f"{P}_a6", xnf(84, MB), atomic=False) if True else None
    A(f"""s_branch {P}_next
{P}_col:
s_sub_u32 s84, s60, 96
s_lshl_b32 s84, s84, 1
s_add_u32 s84, s84, s9
s_cmp_lt_u32 s9, 2
s_cbranch_scc1 {P}_cgo
s_cmp_lg_u32 s84, 2
s_cbranch_scc1 {P}_cend
s_movk_i32 s84, 256
{P}_cgo:""")
    col_prefetch(A, 84)
    wait16(A, f"{P}_fw", SY_FTC, 16, wave0=False, sleep=3, r=11)
    if rt: A(f"s_cmp_lg_u32 s9, 0\ns_cbranch_scc1 {P}_ns5"); stamp(5); A(f"{P}_ns5:\nv_lshrrev_b32 v2, 3, v0\nv_lshl_add_u32 v2, v2, 11, v3")
    col_task(A, "col", 84)
    A("s_waitcnt vmcnt(0)")
    arrive(A, f"{P}_a7", f"s_and_b32 s13, s84, 15\ns_lshl_b32 s13, s13, 8\ns_add_u32 s13, s13, s56\ns_add_u32 s13, s13, {SY_GTC}", wave0=False)
    A(f"""{P}_cend:
s_barrier
{P}_next:
s_cmp_lg_u32 s75, 0
s_cbranch_scc1 {P}_done
s_mov_b32 s75, 1
s_add_u32 s56, s56, {MB}
s_branch {P}_layer
{P}_slowrole:""")
    role_poll(A, f"{P}_rp2", 2)
    A(f"""{P}_irr:
s_min_u32 s74, s14, 32
s_sub_u32 s74, 32, s74
s_movk_i32 s10, 192
s_barrier""")
    wg_atomic(A, f"{P}_g", 10, 60, DBG)
    A(f"""s_mov_b32 s61, 1
s_cmp_ge_u32 s60, s74
s_cbranch_scc0 {P}_adopt
s_sub_u32 s60, s60, s74
s_cmp_ge_u32 s60, 224
s_cbranch_scc1 {P}_done
s_branch {P}_bulk
{P}_adopt:
s_sub_u32 s12, 31, s60
{P}_member:""")
    def modefn(B):
        role_poll(B, f"{P}_rp3", 32)
        B("s_cmp_ge_u32 s14, 32\ns_cselect_b32 s44, 1, 0")
        init_wait_c(B)
        B("s_mov_b32 s13, s44")
    def init_wait_c(B):
        poll_until(B, f"{P}_iw2", f"buffer_load_dword v32, off, {DBG}, 0 offset:4 sc1", "v_readfirstlane_b32 s13, v32\ns_cmp_ge_u32 s13, 32", sleep=2)
    def initfn(B, stage):
        if stage == 0:
            B(f"""s_and_b32 s13, s12, 15
s_lshl_b32 s13, s13, 2
s_add_u32 s13, s13, s9
s_mul_i32 s14, s13, 10240
s_lshr_b32 s13, s12, 4
s_lshl_b32 s13, s13, 20
s_add_u32 s15, s13, {WS_SYNC}""")
            for k in range(10):
                B(f"""s_sub_u32 s13, s14, {SY_MEM}
s_cmp_lt_u32 s13, 32768
s_cselect_b32 s13, -1, 0
v_mov_b32 v{48+4*(k&1)}, s13
v_mov_b32 v{49+4*(k&1)}, s13
v_mov_b32 v{50+4*(k&1)}, s13
v_mov_b32 v{51+4*(k&1)}, s13
s_add_u32 s13, s14, s15
buffer_store_dwordx4 {v(48+4*(k&1),4)}, v1, s[16:19], s13 offen sc1
s_add_u32 s14, s14, 1024""")
        else:
            B(f"v_mov_b32 v48, 1\ns_cmp_lg_u32 s9, 0\ns_cbranch_scc1 {P}_in1\ns_mov_b64 exec, 1\nbuffer_atomic_add v48, off, {DBG}, 0 offset:4\ns_mov_b64 exec, -1\n{P}_in1:")
    chain.chain_member(A, P, dict(opt.get("chain", {}), rt=rt, mega=1), modefn, initfn)
    A(f"{P}_done:\ns_waitcnt vmcnt(0)\n{P}_end:\ns_endpgm")
    A.fix_hazards(name=P, verbose=opt.get("verbose"))
    return A, dict(name="main_kernel" if opt.get("list") else "interleave_layers__memory_aug_recurrent_mem_tr__spectral_gfnet__prompt_kernel", plain=not opt.get("list"), grid=256, block=256, lds=163840, vgpr=512, accum=256)
```

```python
import sys, json
from mega import *
from build import *
def kernels(opt):
    K = {"main": mega_kernel(opt)}
    if opt.get("rt"):
        for k, e in [("main", "lay_end")]: add_rt(K[k][0], e)
    return K
def make(path, opt):
    build_file(path, kernels(opt), ["main"])
if __name__ == "__main__":
    make(sys.argv[1], json.loads(sys.argv[2]) if len(sys.argv) > 2 else {})
```

```python
from common import *

LDS_MEM, LDS_K, LDS_V, LDS_F, LDS_O, LDS_OD, LDS_WQ = 0, 8192, 24576, 0, 4096, 6144, 32768
vKr = 16; sKm = 47
FS = 1088
vL16, vG512, vFw, vFr, vOw, vOr, vPst, vMst, vSamp, vIK, vIN = 1, 2, 3, 4, 5, 6, 7, 8, 9, 10, 11
vGat = 0
vAS = 12; vM1 = 16; vWq0 = 17; vWq1 = 18; vSmp = 19
vKQ = 20; vVP = 24; vPm = 28; vT0 = 30; vT1 = 31
vMEM = 32
vSx0, vSx1, vSm, vE, vPx, vL = 32, 36, 40, 44, 54, 58
vAk0, vAq0, vAk1, vAq1 = 64, 68, 72, 76
vF = 64; vOUT = 64
vAv0, vAv1 = 80, 84
vO0, vO1 = 96, 100
vThr = 9
KVSEG = 8192
PUBSEG = 4096
vSTG = 88
vVx = 88; vKx = 96
vOF = 32; vPK = 48; vRL = 56; vRA = 48; vRT = 52
vWo = 128
sW, sH, sStep, sKV, sPub, sPart, sInb, sMemN, sMemP, sGat, sPh, sT, sC, sDead = 9, 12, 24, 25, 26, 27, 28, 29, 30, 31, 32, 33, 34, 3
sMask = 36; sSync, sPartB, sMemB, sKVF = 56, 57, 58, 59
vKF = 9
SRD = "s[16:19]"; SRDW = "s[20:23]"
TMO = 200000
CPS = 8192 + 0
MSL = 13

def smf(A, d, am, b, idx): A(f"v_smfmac_f32_16x16x64_bf16 {v(d,4)}, {v(am,4)}, {b}, {v(idx)}")

def lane_consts(A, layer, opt):
    L = 0
    t0, t1, t2 = 20, 21, 22
    vGT = 30
    A(f"""v_lshlrev_b32 v{vL16}, 4, v0
v_lshrrev_b32 v{t0}, 4, v0
v_and_b32 v{t1}, 15, v0
v_lshlrev_b32 v{vG512}, 9, v{t0}
v_lshl_add_u32 v{vG512}, v{t1}, 4, v{vG512}
v_bfe_u32 v{t2}, v0, 3, 1
v_lshlrev_b32 v{vFw}, 8, v{t2}
v_lshl_add_u32 v{vFw}, v{t0}, 6, v{vFw}
v_and_b32 v{t2}, 7, v0
v_lshl_add_u32 v{vFw}, v{t2}, 3, v{vFw}
s_lshl_b32 s14, s9, 10
s_add_u32 s14, s14, {LDS_F}
v_add_u32 v{vFw}, s14, v{vFw}
v_and_b32 v{t2}, 3, v0
v_lshlrev_b32 v{vFr}, 6, v{t2}
v_bfe_u32 v{t2}, v0, 5, 1
v_lshl_add_u32 v{vFr}, v{t2}, 9, v{vFr}
v_bfe_u32 v{t2}, v0, 2, 3
v_lshl_add_u32 v{vFr}, v{t2}, 3, v{vFr}
v_add_u32 v{vFr}, {LDS_F}, v{vFr}
v_lshlrev_b32 v{vOw}, 7, v{t0}
v_bfe_u32 v{t2}, v0, 2, 2
v_lshl_add_u32 v{vOw}, v{t2}, 5, v{vOw}
v_and_b32 v{t2}, 1, v0
v_lshl_add_u32 v{vOw}, v{t2}, 4, v{vOw}
s_lshl_b32 s14, s9, 9
s_add_u32 s14, s14, {LDS_O}
v_add_u32 v{vOw}, s14, v{vOw}
v_add_u32 v{t2}, {LDS_OD}, v{vL16}
v_and_b32 v23, 2, v0
v_cmp_ne_u32 vcc, 0, v23
v_cndmask_b32 v{vOw}, v{t2}, v{vOw}, vcc
v_mov_b32 v{t2}, 0x4444
v_mov_b32 v23, 0xeeee
v_cndmask_b32 v{vIK}, v{t2}, v23, vcc
v_and_b32 v24, 8, v0
v_cmp_ne_u32 vcc, 0, v24
v_cndmask_b32 v{vIN}, v{t2}, v23, vcc
v_lshlrev_b32 v{vOr}, 7, v{t0}
v_and_b32 v{t2}, 7, v0
v_lshl_add_u32 v{vOr}, v{t2}, 4, v{vOr}
v_add_u32 v{vOr}, {LDS_O}, v{vOr}
; vPst = (2w+sel)*8192 + (2*g1+(n>>3))*2048 + h*64 + (n&7)*8
v_lshrrev_b32 v{vPst}, 5, v0
s_lshl_b32 s13, s9, 1
v_add_u32 v{vPst}, s13, v{vPst}
v_lshlrev_b32 v{vPst}, 13, v{vPst}
v_bfe_u32 v{t2}, v0, 3, 2
v_lshl_add_u32 v{vPst}, v{t2}, 11, v{vPst}
v_and_b32 v{t2}, 7, v0
v_lshl_add_u32 v{vPst}, v{t2}, 3, v{vPst}
s_lshl_b32 s14, s12, 6
v_add_u32 v{vPst}, s14, v{vPst}
; vMst = h*256 + w*64 + gt*16 + cw*4 (lanes with n>=4 out of range)
v_lshlrev_b32 v{vMst}, 4, v{t0}
v_and_b32 v{t2}, 3, v0
v_lshl_add_u32 v{vMst}, v{t2}, 2, v{vMst}
s_lshl_b32 s14, s12, 6
s_lshl_b32 s15, s9, 11
s_add_u32 s14, s14, s15
v_add_u32 v{vMst}, s14, v{vMst}
v_and_b32 v24, 12, v0
v_cmp_ne_u32 vcc, 0, v24
v_mov_b32 v24, 0x80000000
v_cndmask_b32 v{vMst}, v{vMst}, v24, vcc
s_mov_b32 s{sMask}, 0xcccccccc
s_mov_b32 s{sMask+1}, 0xcccccccc
s_mov_b32 s{sT}, {f32bits(40.0):#x}
s_lshl_b32 s14, s9, 11
s_add_u32 s14, s14, {LDS_MEM}
v_add_u32 v19, s14, v{vL16}
v_lshlrev_b32 v{vGT}, 8, v{t0}
v_bfe_u32 v{t2}, v0, 3, 1
v_lshl_add_u32 v{vGT}, v{t2}, 7, v{vGT}
v_bfe_u32 v{t2}, v0, 1, 1
v_lshl_add_u32 v{vGT}, v{t2}, 6, v{vGT}
v_bfe_u32 v{t2}, v0, 2, 1
v_lshl_add_u32 v{vGT}, v{t2}, 5, v{vGT}
v_and_b32 v{t2}, 1, v0
v_lshl_add_u32 v{vGT}, v{t2}, 4, v{vGT}
v_lshrrev_b32 v{t2}, 2, v{t1}
v_and_b32 v23, 3, v{t1}
v_lshl_add_u32 v{t2}, v23, 2, v{t2}
v_mov_b32 v24, 0x3f80
v_mov_b32 v25, 0x3f800000
v_mov_b32 v26, 0x3f803f80""")
    for r in range(4):
        A(f"""v_mov_b32 v{vAS+r}, 0
v_cmp_eq_u32 vcc, {2*r}, v{t2}
v_cndmask_b32 v{vAS+r}, v{vAS+r}, v24, vcc
v_cmp_eq_u32 vcc, {2*r+1}, v{t2}
v_cndmask_b32 v{vAS+r}, v{vAS+r}, v25, vcc
v_cmp_le_u32 vcc, 8, v{t2}
v_cndmask_b32 v{vAS+r}, v{vAS+r}, v26, vcc""")
    A(f"""v_add_u32 v16, {LDS_K}, v{vG512}
s_lshl_b32 s13, s9, 14
s_add_u32 s13, s13, {LDS_WQ}
v_add_u32 v{vWq0}, s13, v{vL16}
v_add_u32 v{vWq1}, 0x10000, v{vWq0}
s_mov_b32 s{sC}, {f32bits(math.log2(math.e) / math.sqrt(128.0)):#x}""")

def weights_prologue(A, initfn=None):
    dA = [32, 33, 34, 35]; dO = [36, 37]; tA = [38, 39]; tO = 40; tc = [41, 42]
    x, y = 44, 45
    A(f"""; DMA source offsets for Wq/k/v : rr*8192 + ((cc ^ 2(rr&1) ^ 4j)*16)
v_lshrrev_b32 v{x}, 4, v0
v_and_b32 v{y}, 1, v{x}
v_lshlrev_b32 v{y}, 1, v{y}
v_and_b32 v46, 15, v0
v_xor_b32 v{y}, v{y}, v46
v_lshlrev_b32 v{x}, 13, v{x}""")
    for j in range(4):
        A(f"v_xor_b32 v46, {4*j}, v{y}\nv_lshl_add_u32 v{dA[j]}, v46, 4, v{x}")
    A(f"""; Wo DMA: (l ^ 4*((j&1) | ((w>>1)<<1)))*16
s_lshr_b32 s13, s9, 1
s_lshl_b32 s13, s13, 3
v_xor_b32 v{y}, s13, v0
v_lshlrev_b32 v{dO[0]}, 4, v{y}
v_xor_b32 v{y}, 4, v{y}
v_lshlrev_b32 v{dO[1]}, 4, v{y}
v_bfe_u32 v{x}, v0, 5, 1
v_lshlrev_b32 v{x}, 4, v{x}
v_bfe_u32 v46, v0, 4, 1
v_lshl_add_u32 v{x}, v46, 2, v{x}
v_lshlrev_b32 v{y}, 2, v46
v_bfe_u32 v46, v0, 2, 1
v_add_u32 v{x}, v{x}, v46
v_lshl_add_u32 v{y}, v46, 1, v{y}
v_bfe_u32 v46, v0, 3, 1
v_lshl_add_u32 v{x}, v46, 3, v{x}
v_lshl_add_u32 v{y}, v46, 3, v{y}
v_lshlrev_b32 v{x}, 8, v{x}
v_and_b32 v46, 1, v0
v_lshl_add_u32 v{x}, v46, 3, v{x}
v_bfe_u32 v46, v0, 1, 1
s_lshl_b32 s13, s9, 2
v_add_u32 v46, s13, v46
v_xor_b32 v46, v46, v{y}
v_lshl_add_u32 v{tA[0]}, v46, 4, v{x}
v_xor_b32 v46, 2, v46
v_lshl_add_u32 v{tA[1]}, v46, 4, v{x}
v_bfe_u32 v{x}, v0, 4, 1
v_lshlrev_b32 v{y}, 3, v{x}
v_lshlrev_b32 v{x}, 4, v{x}
v_bfe_u32 v46, v0, 5, 1
v_lshl_add_u32 v{x}, v46, 2, v{x}
v_bfe_u32 v46, v0, 2, 1
v_add_u32 v{x}, v{x}, v46
v_lshl_add_u32 v{y}, v46, 2, v{y}
v_lshlrev_b32 v{x}, 10, v{x}
v_and_b32 v46, 1, v0
v_lshl_add_u32 v{x}, v46, 3, v{x}
v_bfe_u32 v46, v0, 1, 1
v_bfe_u32 v47, v0, 3, 1
v_lshl_add_u32 v46, v47, 1, v46
v_add_u32 v46, s13, v46
v_xor_b32 v46, v46, v{y}
v_lshl_add_u32 v{tO}, v46, 4, v{x}
s_lshl_b32 s50, s12, 8
s_lshl_b32 s13, s9, 18
s_add_u32 s50, s50, s13        ; h*256 + w*32 rows*8192
s_lshl_b32 s51, s12, 17
s_lshl_b32 s13, s9, 13
s_add_u32 s51, s51, s13        ; h*131072 + w*8 rows*1024
s_lshl_b32 s52, s9, 13         ; w*8192 (lds)""")
    mats = [42] * 4 + [44] * 4 + [46] * 4 + [40] * 4
    slot = lambda i: ((i + 4) % 5) * 32768
    def issue(i):
        if i % 4 == 0: set_srd(A, 20, mats[i], 4 * MB)
        c = i % 4
        tok = None
        for j in range(8):
            A(f"s_add_u32 m0, s52, {slot(i) + j*1024}")
            if mats[i] == 46:
                A(f"s_add_u32 s13, s51, {c*32768 + j*1024}")
                tok = A(f"buffer_load_dwordx4 v{dO[j&1]}, {SRDW}, s13 offen lds")
            else:
                A(f"s_add_u32 s13, s50, {(128*c + 4*j)*8192}")
                tok = A(f"buffer_load_dwordx4 v{dA[j&3]}, {SRDW}, s13 offen lds")
        return tok
    toks = {}
    for i in range(4):
        toks[i] = issue(i)
        if i == 0 and initfn: initfn(A, 0)
    for i in range(16):
        A.wvm(toks[i])
        A("s_barrier")
        if i == 1 and initfn:
            sv_ = list(A.vm); initfn(A, 1); A.vm = sv_
        if i + 4 < 16: toks[i + 4] = issue(i + 4)
        c = i % 4
        if i == 14:
            for f in range(8):
                for part in range(2):
                    A(f"ds_write_b128 v{vWq0}, {v(64 + f*8 + part*4, 4)} offset:{f*2048 + part*1024}")
            A("s_waitcnt lgkmcnt(0)")
        if mats[i] == 46:
            A(f"v_add_u32 v{tc[0]}, {slot(i)}, v{tO}")
            for p in range(4):
                for xx in range(4):
                    A(f"ds_read_b64_tr_b16 {v(vWo + (p*4 + c)*8 + 2*xx, 2)}, v{tc[0]} offset:{(8*(xx>>1) + 2*(xx&1))*1024 + p*256}")
        else:
            A(f"v_add_u32 v{tc[0]}, {slot(i)}, v{tA[0]}\nv_add_u32 v{tc[1]}, {slot(i)}, v{tA[1]}")
            for tt in range(2):
                for te in range(2):
                    t = 2 * c + tt
                    for xx in range(4):
                        if mats[i] == 42: dst = a((t*2 + te)*8 + 2*xx, 2)
                        elif mats[i] == 44: dst = a(128 + (t*2 + te)*8 + 2*xx, 2)
                        else: dst = v(64 + (((t & 3)*2 + te)*8) + 2*xx, 2)
                        A(f"ds_read_b64_tr_b16 {dst}, v{tc[te]} offset:{(64*tt + 32*(xx>>1) + 2*(xx&1))*256}")
        A("s_waitcnt lgkmcnt(0)")
    A("s_barrier")
    for f in range(8):
        for part in range(2):
            A(f"ds_write_b128 v{vWq1}, {v(64 + f*8 + part*4, 4)} offset:{f*2048 + part*1024}")

NS = 6
SLQ = [5, 0, 1, 2, 3, 4]
def slot_reg(sl): return vAv0 if sl == 5 else vSTG + 8 * sl
def wq_read(A, i, sl):
    t, te = i >> 1, i & 1
    base = vWq0 if t < 4 else vWq1
    off = ((t & 3) * 2 + te) * 2048
    r = slot_reg(sl)
    return [f"ds_read_b128 {v(r,4)}, v{base} offset:{off}", f"ds_read_b128 {v(r+4,4)}, v{base} offset:{off+1024}"]

def step_scalars(A, layer, nxt):
    part = f"s{sPartB}"; mem = f"s{sMemB}"
    return f"""s_and_b32 s13, s{sStep}, 1
s_lshl_b32 s13, s13, 18
s_add_u32 s{sPart}, s13, {part}
s_add_u32 s{sInb}, s{sPart}, s43
s_add_u32 s13, s{sStep}, 1
s_and_b32 s13, s13, 3
s_lshl_b32 s13, s13, {MSL}
s_add_u32 s{sMemN}, s13, {mem}
s_and_b32 s13, s{sStep}, 3
s_lshl_b32 s13, s13, {MSL}
s_add_u32 s{sMemP}, s13, {mem}
s_lshr_b32 s13, s{sStep}, 1
s_and_b32 s13, s13, 1
s_xor_b32 s{sPh}, s13, 1""".split("\n")

def delay(A, c):
    c = max(0, c) // 4
    while c > 0:
        n = min(c, 16); A(f"s_nop {n-1}"); c -= n

def kv_dma(A):
    for (ldsb, so) in [(LDS_K, 0), (LDS_V, WS_V - WS_K)]:
        A(f"s_add_u32 m0, s54, {ldsb}\ns_add_u32 s13, s{sKV}, {so}")
        A(f"buffer_load_dwordx4 v{vL16}, {SRD}, s13 offen sc1 lds\nbuffer_load_dwordx4 v{vL16}, {SRD}, s13 offen offset:1024 sc1 lds")

gS = [48, 56]
rS = [56, 80, 32]
vFA = 16; sF1, sF2, sFv = 44, 45, 46; sF1w, sF2w = 50, 51
vLw = 19
sGat2 = 42
CHKFIRST = [True]

def gload(r): return [f"buffer_load_dwordx4 {v(r,4)}, v{vGat}, {SRD}, s{sGat} offen sc1", f"buffer_load_dwordx4 {v(r+4,4)}, v{vGat}, {SRD}, s{sGat} offen offset:1024 sc1"]
def gwrite(r): return f"ds_write_b128 v{vLw}, {v(r,4)}\nds_write_b128 v{vLw}, {v(r+4,4)} offset:1024"
def gproc(A, r, ny, spec=True):
    A(f"s_waitcnt vmcnt({ny+1})")
    if spec: A(f"ds_write_b128 v{vLw}, {v(r,4)}")
    A(f"v_max3_u32 v{vT0}, v{r}, v{r+1}, v{r+2}\ns_waitcnt vmcnt({ny})")
    if spec: A(f"ds_write_b128 v{vLw}, {v(r+4,4)} offset:1024")
    A(f"""v_max3_u32 v{vT0}, v{vT0}, v{r+3}, v{r+4}
v_max3_u32 v{vT0}, v{vT0}, v{r+5}, v{r+6}
v_max_u32 v{vT0}, v{vT0}, v{r+7}
v_cmp_eq_u32 vcc, -1, v{vT0}""")
def g2dma(): return f"buffer_load_dwordx4 v{vGat}, {SRD}, s{sGat2} offen sc1 lds"
def rload(r): return [f"buffer_load_dwordx4 {v(r,4)}, v{vL16}, {SRD}, s{sInb} offen sc1", f"buffer_load_dwordx4 {v(r+4,4)}, v{vL16}, {SRD}, s{sInb} offen offset:1024 sc1"]
def rproc(A, r, n_younger, st=None):
    A(f"""s_waitcnt vmcnt({n_younger+1})
v_mfma_f32_16x16x32_bf16 {v(vRA,4)}, {v(vAS,4)}, {v(r,4)}, 0
v_bitop3_b32 v{vT0}, v{r}, v{r+2}, s{sPh} bitop3:0x7e
s_waitcnt vmcnt({n_younger})""")
    if st: st(7)
    A(f"""v_mfma_f32_16x16x32_bf16 {v(vRA,4)}, {v(vAS,4)}, {v(r+4,4)}, {v(vRA,4)}
v_bitop3_b32 v{vT1}, v{r+4}, v{r+6}, s{sPh} bitop3:0x7e
v_bitop3_b32 v{vT0}, v{vT0}, v{vT1}, 1 bitop3:0xa8
v_cmp_ne_u32 vcc, 0, v{vT0}""")

def kvf_check(P):
    return f"""s_add_u32 s13, s{sStep}, 1
s_min_u32 s13, s13, 63
s_lshr_b32 s13, s13, 2
s_lshl_b32 s13, 2, s13
s_sub_u32 s13, s13, 1
{P}_kc:
v_cmp_le_u32 vcc, 2, v{vKF}
s_and_b32 s38, vcc_lo, s13
s_cmp_lg_u32 s38, s13
s_cbranch_scc1 {P}_kw
{P}_kok:"""
def kvf_wait(A, P, tmo):
    A(f"{P}_kw:")
    tmo(15, f"{P}_kto")
    A(f"""s_sleep 8
v_lshrrev_b32 v{vKF}, 2, v{vL16}
buffer_load_dword v{vKF}, v{vKF}, {SRD}, s{sKVF} offen sc1
s_waitcnt vmcnt(0)
s_branch {P}_kc
{P}_kto:
s_mov_b32 s{sDead}, {TMO}
s_branch {P}_kok""")

def pf_setup(w, opt):
    return [f"s_add_u32 s{sKV}, s{sKV}, {KVSEG}", f"s_xor_b32 s{sKm}, s{sKm}, 0x6000", f"v_xor_b32 v{vKr}, 0x6000, v{vKr}", f"s_add_u32 m0, s39, {LDS_MEM + 4096}"]

def pubmix():
    q = "quad_perm:[0,1,0,1] row_mask:0xf bank_mask:0xf"
    return [f"s_mov_b64 vcc, s[{sMask}:{sMask+1}]", f"v_mov_b32_dpp v{vT0}, v{vVP} {q}", f"v_mov_b32_dpp v{vT1}, v{vVP+2} {q}",
            f"v_cndmask_b32 v{vKQ}, v{vKQ}, v{vVP}, vcc", f"v_cndmask_b32 v{vKQ+1}, v{vKQ+1}, v{vVP+2}, vcc",
            f"v_cndmask_b32 v{vKQ+2}, v{vKQ+2}, v{vT0}, vcc", f"v_cndmask_b32 v{vKQ+3}, v{vKQ+3}, v{vT1}, vcc"]

def gather_events(p, w, opt):
    n1 = opt.get("n1", 2) if w < 2 else 0
    dg = opt.get("dg", 128)
    t0 = opt.get("d2", [160, 100, 0, 0])[w]
    return [(t0 + k * dg, gS[k]) for k in range(n1)], n1

def body(A, P, layer, p, w, fast, last, opt):
    SC = "" if fast else " sc1"
    sfx = "_l" if last else ""
    stamp = opt.get("stamp")
    def st(k):
        if stamp and not last and k in opt.get("st", range(11)): A(f"s_memtime s[{60+2*k}:{61+2*k}]")
        if not last and opt.get("wv") == k: A("s_memtime s[62:63]\ns_waitcnt vmcnt(0)\ns_memtime s[64:65]\ns_waitcnt lgkmcnt(0)\ns_sub_u32 s13, s64, s62\ns_add_u32 s83, s83, s13\ns_max_u32 s84, s84, s13")
        if not last and opt.get("cut") == k: A(f"s_add_u32 s{sStep}, s{sStep}, 1\ns_branch {P}_cutend")
    A.reset_counts()
    ev, n1 = gather_events(p, w, opt)
    nxt = [0]
    tk = {}
    nab = 1 if opt.get("abs") else 0
    B1 = None
    if w < 2:
        spec = not opt.get("chk1", 1)
        gproc(A, gS[0], 2 * (n1 - 1) + nab, spec)
        A(f"s_cbranch_vccnz {P}_gr{sfx}")
        if not spec: A(gwrite(gS[0]))
        A(f"{P}_gok{sfx}:\ns_waitcnt lgkmcnt(0)")
        st(9)
    A("s_barrier")
    A(g2dma())
    A(f"{P}_entry{sfx}:")
    st(0)
    mrd = lambda t: f"ds_read_b128 {v(vMEM+4*t,4)}, v{vL16} offset:{LDS_MEM + t*1024}"
    mt = {}
    for t in range(3 if B1 is None else 2): mt[t] = A(mrd(t))
    A(f"s_mov_b32 m0, s{sKm}")
    seq = []
    for t in range(4): seq += [("k", 0, t), ("q", 0, t), ("k", 1, t), ("q", 1, t)]
    for te in range(2):
        for t in range(4, 8): seq += [("k", te, t), ("q", te, t)]
    N1 = 32
    V = [[] for _ in range(N1)]; S = [[] for _ in range(N1)]; X = [[] for _ in range(N1)]
    B2 = opt.get("b2", 13)
    quse = [(idx, 2 * t + te) for idx, (m, te, t) in enumerate(seq) if m == "q"]
    sl_seq = SLQ + [(n_ - 6) % 5 for n_ in range(6, 16)]
    slot = {f: sl_seq[n_] for n_, (idx, f) in enumerate(quse)}
    jobs = []
    lastuse = {}
    for n_, (idx, f) in enumerate(quse):
        if n_ >= NS:
            for x in wq_read(A, f, slot[f]): jobs.append((lastuse[slot[f]], idx, "wq", f, x))
        lastuse[slot[f]] = idx
    first = {}
    for idx, (m, te, t) in enumerate(seq): first.setdefault(t, idx)
    for t in range(3 if B1 is None else 2, 8): jobs.append(((0 if B1 is None else B1) if t < 4 else B2, first[t] - 3, "mem", t, mrd(t)))
    if not last:
        for n_, (c, u) in enumerate([(c, u) for c in range(2) for u in range(4)]):
            jobs.append((max(lastuse[1 + n_ // 2], opt.get("kx0", 24)), 100 + lastuse[1 + n_ // 2], "kx", n_, f"ds_read_b128 {v(vKx + (c*4+u)*4, 4)}, v{vKr} offset:{u*2048 + c*256}"))
        for n_ in range(2):
            jobs.append((max(lastuse[0], opt.get("kx0", 24)), 90, "kx", 8 + n_, f"ds_read_b128 {v(vVx+4*n_,4)}, v{vG512} offset:{LDS_V + w*2048 + 256*n_}"))
    D = [[] for _ in range(N1)]
    nod = set()
    for g_ in range(N1):
        cap = 2 if g_ in (B1, B2) else (0 if g_ in nod else 1)
        for _ in range(cap):
            av = [j for j in jobs if j[0] <= g_]
            if not av: break
            j = min(av, key=lambda j: j[1]); jobs.remove(j); D[g_].append(j[2:])
    assert all(j[2] == "kx" for j in jobs)
    X[B2].append(lambda: A(f"s_waitcnt vmcnt({nxt[0]})"))
    X[B2].append("s_barrier")
    for t in range(4, 8):
        r = vMEM + 4 * t
        V[first[t]].append(f"v_max_u32 v{vT0}, v{r}, v{r+1}" if t == 4 else f"v_max3_u32 v{vT0}, v{vT0}, v{r}, v{r+1}")
        V[first[t] + 1].append(f"v_max3_u32 v{vT0}, v{vT0}, v{r+2}, v{r+3}")
    V[24].append(f"v_cmp_eq_u32 vcc, -1, v{vT0}")
    f0 = [f"v_add_f32 v{vAk0}, v{vAk0}, v{vAk0+2}", f"v_add_f32 v{vAk0+1}, v{vAk0+1}, v{vAk0+3}",
          f"v_add_f32 v{vAq0}, v{vAq0}, v{vAq0+2}", f"v_add_f32 v{vAq0+1}, v{vAq0+1}, v{vAq0+3}",
          f"v_mul_f32 v{vAq0}, s{sC}, v{vAq0}", f"v_mul_f32 v{vAq0+1}, s{sC}, v{vAq0+1}",
          f"v_cvt_pk_bf16_f32 v{vKQ}, v{vAk0}, v{vAk0+1}"]
    for n_, x in enumerate(f0): V[25 + n_].append(x)
    for r in range(8): V[3 + r].append(f"v_mov_b32 v{vAv0+r}, 0")
    ext = []
    if not last and not opt.get("nokv"):
        ext.append(f"buffer_load_dwordx4 v{vL16}, {SRD}, s{sKV} offen sc1 lds")
        ext.append(f"buffer_load_dwordx4 v{vL16}, {SRD}, s{sKV} offen offset:1024 sc1 lds")
    if not opt.get("nopub"):
        ext.append(f"buffer_store_dwordx4 {v(vKQ,4)}, v{vL16}, {SRD}, s40 offen sc1")
        if w == 2: ext.append(f"v_mov_b32 v{vT1}, s41\ns_mov_b64 exec, 1\nbuffer_store_dword v{vT1}, off, {SRD}, s55 sc1\ns_mov_b64 exec, -1")
    if w == 3 and not last: ext.append(f"v_lshrrev_b32 v{vKF}, 2, v{vL16}\nbuffer_load_dword v{vKF}, v{vKF}, {SRD}, s{sKVF} offen sc1")
    pz = opt.get("pz", 2)
    pos_ = [pz + w + 4 * n_ for n_ in range(len(ext))]
    pos_ = [x if x < B2 - 1 else x + 4 for x in pos_]
    for n_, x in enumerate(ext): X[pos_[n_]].append(x)
    nxt[0] = sum(1 for x in pos_ if x < B2)
    S[26].append(f"s_add_u32 s{sGat}, s{sMemN}, s54"); S[28].append(f"s_add_u32 s{sGat2}, s{sMemN}, s52")
    wqtok = {}
    for idx, (m, te, t) in enumerate(seq):
        need = [mt[t]]
        if m == "q" and (2 * t + te) in wqtok: need.append(wqtok[2 * t + te])
        ns = [A.lgk_n(x) for x in need if A.lgk_n(x) is not None]
        if ns: A(f"s_waitcnt lgkmcnt({min(ns)})")
        if idx == 0 and not opt.get("abs"): st(1)
        if m == "k": smf(A, [vAk0, vAk1][te], vMEM + 4 * t, a((t * 2 + te) * 8, 8), vIK)
        else: smf(A, [vAq0, vAq1][te], vMEM + 4 * t, v(slot_reg(slot[2 * t + te]), 8), vIK)
        for x in X[idx]: (x() if callable(x) else A(x))
        for x in S[idx]: A(x)
        for (kind, key, txt) in D[idx]:
            tok = A(txt)
            {"wq": wqtok, "mem": mt, "kx": {}}[kind][key] = tok
        for x in V[idx]: A(x)
    st(2)
    def sv(j): smf(A, [vAv0, vAv1][j & 1], vMEM + 4 * (j >> 1), a(128 + j * 8, 8), vIK)
    kxr = [j[4] for j in jobs]
    if last: kxr = []
    def rdk(n_):
        for _ in range(n_):
            if kxr: A(kxr.pop(0))
    sv(0); rdk(1); A(f"v_cvt_pk_bf16_f32 v{vKQ+1}, v{vAq0}, v{vAq0+1}")
    sv(1); rdk(1); A(f"v_add_f32 v{vAk1}, v{vAk1}, v{vAk1+2}")
    A(f"""v_add_f32 v{vAk1+1}, v{vAk1+1}, v{vAk1+3}
v_add_f32 v{vAq1}, v{vAq1}, v{vAq1+2}
v_add_f32 v{vAq1+1}, v{vAq1+1}, v{vAq1+3}
v_cvt_pk_bf16_f32 v{vKQ+2}, v{vAk1}, v{vAk1+1}
v_mul_f32 v{vAq1}, s{sC}, v{vAq1}
v_mul_f32 v{vAq1+1}, s{sC}, v{vAq1+1}
v_cvt_pk_bf16_f32 v{vKQ+3}, v{vAq1}, v{vAq1+1}""")
    vfold = [f"v_add_f32 v{vAv0}, v{vAv0}, v{vAv0+2}", f"v_add_f32 v{vAv0+1}, v{vAv0+1}, v{vAv0+3}",
             f"v_cvt_pk_bf16_f32 v{vVP}, v{vAv0}, v{vAv0+1}", f"v_add_f32 v{vAv1}, v{vAv1}, v{vAv1+2}",
             f"v_add_f32 v{vAv1+1}, v{vAv1+1}, v{vAv1+3}", f"v_cvt_pk_bf16_f32 v{vVP+2}, v{vAv1}, v{vAv1+1}"]
    if last:
        A(f"s_cbranch_vccnz {P}_redo_l")
        A(f"ds_write2_b64 v{vFw}, {v(vKQ,2)}, {v(vKQ+2,2)} offset1:64")
        for j in range(2, 9): sv(j)
        A("s_waitcnt lgkmcnt(0)\ns_barrier")
        for jj in range(2): A(f"ds_read_b64_tr_b16 {v(vKQ + 2*jj, 2)}, v{vFr} offset:{1024*w + 256*jj}")
        for j in range(9, 16): sv(j)
        for x in vfold: A(x)
        A("s_waitcnt lgkmcnt(0)")
        for x in pubmix(): A(x)
        A(f"buffer_store_dwordx4 {v(vKQ,4)}, v{vL16}, {SRD}, s{sPub} offen sc1")
        return
    sv(2)
    fw = A(f"ds_write2_b64 v{vFw}, {v(vKQ,2)}, {v(vKQ+2,2)} offset1:64")
    NBF = opt.get("nbf", 7)
    for j in range(3, NBF):
        sv(j)
        if j == 3: A(f"s_cbranch_vccnz {P}_redo")
        else: rdk(1)
    rdk(10)
    A.wlg(fw); A("s_barrier")
    st(3)
    ft = []
    for tr in range(2): ft.append(A(f"ds_read_b64_tr_b16 {v(vF + 2*tr, 2)}, v{vFr} offset:{256*tr}"))
    dma = [f"buffer_load_dwordx4 v{vL16}, {SRD}, s13 offen sc1 lds",
           f"buffer_load_dwordx4 v{vL16}, {SRD}, s13 offen offset:1024 sc1 lds"]
    if opt.get("nokv"): dma = []
    NV1 = opt.get("nv1", 12)
    A(f"s_add_u32 m0, s54, {LDS_V}\ns_add_u32 s13, s{sKV}, {WS_V - WS_K}")
    dpos = {opt.get("dz", 0) + w + 4 * n_: x for n_, x in enumerate(dma)}
    gi = [0]
    def gap():
        if gi[0] in dpos: A(dpos.pop(gi[0]))
        gi[0] += 1
    for j in range(NBF, NV1):
        sv(j); gap()
        u = j - NBF + 1
        if u < 4:
            for jj in range(2):
                ft.append(A(f"ds_read_b64_tr_b16 {v(vF + 4*u + 2*jj, 2)}, v{vFr} offset:{1024*u + 256*jj}"))
    st(4)
    def mf(d, aa, bb, first_):
        A(f"v_mfma_f32_16x16x32_bf16 {v(d,4)}, {v(aa,4)}, {v(bb,4)}, " + ("0" if first_ else v(d, 4)))
    ex = lambda k_, src: f"v_exp_f32 v{vE+k_}, v{src}"
    cv = lambda d, x: f"v_cvt_pk_bf16_f32 v{d}, v{x}, v{x+1}"
    sq = [("x", 0, u) for u in range(4)] + [("x", 1, u) for u in range(4)]
    sq += [("v", j, 0) for j in range(NV1, 16)] + [("m", 0, u) for u in range(4)]
    G = {}
    fill = [ex(0, vSx0), ex(1, vSx0 + 1), ex(2, vSx0 + 2), ex(3, vSx0 + 3), ex(4, vSx1), ex(5, vSx1 + 1), ex(6, vSx1 + 2), ex(7, vSx1 + 3)]
    pos = 6
    while fill and pos < len(sq):
        G.setdefault(pos, []).append(fill.pop(0)); pos += 1
    tail = fill + [cv(vPx, vE), cv(vPx + 1, vE + 2), cv(vPx + 2, vE + 4), cv(vPx + 3, vE + 6)]
    while tail and pos < len(sq):
        G.setdefault(pos, []).extend(tail[:2]); tail = tail[2:]; pos += 1
    A.wlg(ft[-1])
    for r in range(4): G.setdefault(r, []).append(f"v_mov_b32 v{vKQ+r}, v{vF+4*w+r}")
    for n_, (kind, tile, u) in enumerate(sq):
        if kind == "x": mf([vSx0, vSx1][tile], vKx + (tile * 4 + u) * 4, vF + 4 * u, u == 0)
        elif kind == "m": mf(vSm, vF + 4 * u, vF + 4 * u, u == 0)
        else: sv(tile)
        gap()
        for x in G.get(n_, []): A(x)
    for k_ in sorted(dpos): A(dpos[k_])
    for x in tail: A(x)
    m16 = lambda d, aa, bb: A(f"v_mfma_f32_16x16x16_bf16 {v(d,4)}, {v(aa,2)}, {v(bb,2)}, {v(d,4)}")
    A(vfold[0]); A(vfold[1])
    mf(vL, vAS, vPx, True); A(vfold[2]); A(vfold[3])
    mf(vO0, vVx, vPx, True); A(ex(8, vSm))
    mf(vO1, vVx + 4, vPx, True); A(ex(9, vSm + 1))
    A(vfold[4]); A(cv(vPm, vE + 8)); A(vfold[5])
    A(f"v_max3_f32 v{vT1}, |v{vSx0}|, |v{vSx0+1}|, |v{vSx0+2}|")
    m16(vL, vAS, vPm)
    A(f"v_max3_f32 v{vT1}, v{vT1}, |v{vSx0+3}|, |v{vSx1}|\nv_max3_f32 v{vT1}, v{vT1}, |v{vSx1+1}|, |v{vSx1+2}|")
    m16(vO0, vVP, vPm)
    A(f"v_max3_f32 v{vT1}, v{vT1}, |v{vSx1+3}|, |v{vSm}|\nv_max_f32 v{vT1}, v{vT1}, |v{vSm+1}|")
    m16(vO1, vVP + 2, vPm)
    A(f"v_rcp_f32 v{vT0}, v{vL+2}")
    A(f"v_cmp_lt_f32 vcc, s{sT}, v{vT1}")
    if opt.get("force_slow"): A(f"v_cmp_lt_f32 vcc, -1.0, v{vT1}")
    for r in range(4): A(f"v_mul_f32 v{vO0+r}, v{vT0}, v{vO0+r}")
    A(cv(vE, vO0)); A(cv(vE + 1, vO0 + 2))
    if opt.get("ow2", 1): A(f"ds_write_b64 v{vOw}, {v(vE,2)}")
    for r in range(2): A(f"v_pk_mul_f32 {v(vO1+2*r,2)}, {v(vO1+2*r,2)}, {v(vT0,2)} op_sel_hi:[1,0]")
    A(cv(vE + 2, vO1)); A(cv(vE + 3, vO1 + 2))
    ow = A(f"ds_write_b64 v{vOw}, {v(vE+2,2)} offset:8") if opt.get("ow2", 1) else A(f"ds_write_b128 v{vOw}, {v(vE,4)}")
    A(f"s_and_b64 vcc, vcc, s[{sMask}:{sMask+1}]\ns_cbranch_vccnz {P}_slow")
    A(f"{P}_norm:")
    for r in range(0, 8, 2): A(f"v_mov_b64 {v(vOUT+r,2)}, 0")
    A.wlg(ow); A("s_barrier")
    st(5)
    ot = [A(f"ds_read_b128 {v(vOF+4*kk,4)}, v{vOr} offset:{kk*512}") for kk in range(4)]
    A(f"s_add_u32 s13, s{sPart}, 0")
    for r in range(8, 16, 2): A(f"v_mov_b64 {v(vOUT+r,2)}, 0")
    pre = []
    for n_ in range(1, 6): pre += wq_read(A, quse[n_][1], SLQ[n_])
    def epi(pp):
        return [f"v_cvt_pk_bf16_f32 v{vPK+2*pp}, v{vOUT+4*pp}, v{vOUT+4*pp+1}",
                f"v_cvt_pk_bf16_f32 v{vPK+2*pp+1}, v{vOUT+4*pp+2}, v{vOUT+4*pp+3}",
                f"v_bfi_b32 v{vPK+2*pp}, 1, s{sPh}, v{vPK+2*pp}",
                f"buffer_store_dwordx2 {v(vPK+2*pp,2)}, v{vPst}, {SRD}, s13 offen{SC}"]
    if opt.get("e1fast", 1):
        e1 = 6; E = {5: epi(0), 9: epi(1), 13: epi(2)[0:1], 14: epi(2)[1:2], 15: epi(2)[2:3]}
    else:
        e1 = 9; E = {5: epi(0), 9: epi(1)[0:1], 10: epi(1)[1:2], 11: epi(1)[2:3], 12: epi(1)[3:4], 13: epi(2)[0:1], 14: epi(2)[1:2], 15: epi(2)[2:3]}
    rsch = opt.get("rs", [[16, 200], [120, 250], [260, 390], [320, 450]])[w]
    rtk = []
    def rissue():
        if opt.get("abs") and not rtk: A("s_memtime s[68:69]")
        for x in rload(rS[len(rtk)]): t_ = A(x)
        rtk.append(t_)
    for n_ in range(16):
        pp, kk = n_ >> 2, n_ & 3
        A.wlg(ot[kk])
        smf(A, vOUT + 4 * pp, vOF + 4 * kk, v(vWo + n_ * 8, 8), vIN)
        if n_ == 8: A(f"s_add_u32 s13, s{sPart}, {65536}")
        if n_ == 13: A(f"s_add_u32 s13, s{sPart}, {2*65536}")
        if n_ in rsch: rissue()
        elif pre and n_ >= 3 and n_ not in (5, e1 + 3): A(pre.pop(0))
        for x in E.get(n_, []): A(x)
        if n_ == 5: st(10)
    A(epi(2)[3])
    A(f"s_add_u32 s13, s{sPart}, {3*65536}")
    while pre: A(pre.pop(0))
    A(f"s_mov_b32 s40, s{sPub}\ns_add_u32 s{sPub}, s{sPub}, {PUBSEG}\ns_mov_b32 s14, 0\ns_mov_b32 s15, 0")
    for x in epi(3)[:3]: A(x)
    if 16 in rsch: rissue()
    A(epi(3)[3])
    st(6)
    idle = [f"v_mov_b64 {v(vAk0+r,2)}, 0" for r in range(0, 16, 2)]
    idle2 = pubmix()
    def wait_fill(d):
        while idle and d >= 4: A(idle.pop(0)); d -= 4
        delay(A, d)
    cur = 0
    for tm in [x - 100 for x in rsch if x >= 100]:
        wait_fill(tm - cur); cur = max(cur, tm) + 12
        rissue()
    while idle: A(idle.pop(0))
    opt["_rfirst"] = [A.vm_n(rtk[k_]) + 2 * k_ for k_ in range(1, len(rtk))]
    rproc(A, rS[0], A.vm_n(rtk[0]), st)
    A(f"""s_cbranch_vccnz {P}_rr
{P}_rok:
{"s_memtime s[66:67]" if opt.get("abs") else "s_nop 0"}
v_add_f32_dpp v{vRT}, v{vRA}, v{vRA} row_ror:4 row_mask:0xf bank_mask:0xf ;NOHAZ
v_add_f32_dpp v{vRT+1}, v{vRA+1}, v{vRA+1} row_ror:4 row_mask:0xf bank_mask:0xf ;NOHAZ
v_add_f32_dpp v{vRT+2}, v{vRT}, v{vRT} row_ror:8 row_mask:0xf bank_mask:0xf
v_add_f32_dpp v{vRT+3}, v{vRT+1}, v{vRT+1} row_ror:8 row_mask:0xf bank_mask:0xf
v_cvt_pk_bf16_f32 v{vT0}, v{vRT+2}, v{vRT+3}
buffer_store_dword v{vT0}, v{vMst}, {SRD}, s{sMemN} offen{SC}""")
    st(8)
    A(f"v_mov_b32 v{vT1}, -1\nbuffer_store_dword v{vT1}, v{vMst}, {SRD}, s{sMemP} offen{SC}")
    if opt.get("dumpmem"):
        A(f"s_lshl_b32 s13, s{sStep}, 16\ns_add_u32 s13, s13, {WS_OP + 65536}\nbuffer_store_dword v{vT0}, v{vMst}, {SRD}, s13 offen")
    idle += [f"s_mov_b32 s41, s{sStep}", f"s_add_u32 s{sStep}, s{sStep}, 1"] + idle2
    post = step_scalars(A, layer, 0) + pf_setup(w, opt)
    if stamp:
        idle += ["s_waitcnt lgkmcnt(0)"]
        for k_ in list(range(1, 9)) + [10]:
            idle += [f"s_sub_u32 s13, s{60+2*k_}, s60", f"s_add_u32 s{82+k_}, s{82+k_}, s13"]
        idle += ["s_sub_u32 s13, s60, s78", "s_add_u32 s91, s91, s13"]
    absd = []
    if opt.get("abs"):
        absd = ["s_waitcnt lgkmcnt(0)", f"s_lshl_b32 s13, s41, 13", f"s_lshl_b32 s38, s12, 8", "s_add_u32 s13, s13, s38", f"s_add_u32 s13, s13, {WS_OP + 8*MB + w*64}"]
        for k_ in range(11):
            absd += [f"v_writelane_b32 v{vT1}, s{60+2*k_}, {k_}"]
        absd += [f"v_lshrrev_b32 v{vT0}, 2, v{vL16}", f"s_mov_b64 exec, 0xffff", f"buffer_store_dword v{vT1}, v{vT0}, {SRD}, s13 offen", "s_mov_b64 exec, -1"]
    cur = 0
    for (tm, r) in ev:
        wait_fill(tm - cur); cur = max(cur, tm) + 12
        if r == gS[0]: st(1) if opt.get("abs") else None
        for x in gload(r): A(x)
    while idle: A(idle.pop(0))
    for x in post: A(x)
    if w == 3:
        A(kvf_check(P))
    A(f"s_waitcnt vmcnt({2 + 2 * n1})")
    for x in wq_read(A, 0, 5): A(x)
    for x in absd: A(x)

def variant(A, P, layer, p, w, fast, opt):
    A(f".p2align 6\n{P}_top:")
    body(A, P, layer, p, w, fast, False, opt)
    A(f"""{P}_cutend:
s_waitcnt lgkmcnt(0)
s_cmp_lt_u32 s{sStep}, 63
s_cbranch_scc1 {P}_top""")
    body(A, P, layer, p, w, fast, True, opt)
    A(f"""s_waitcnt vmcnt(0)
s_barrier
v_mov_b32 v{vT1}, 64
s_branch {opt['_K']}_fin""")
    cn = lambda r: A(f"s_add_u32 s{r}, s{r}, 1") if opt.get("cnt") else None
    def tmo(cnt, ok):
        A(f"""s_add_u32 s{cnt}, s{cnt}, s{sDead}
s_cmp_ge_u32 s{cnt}, {TMO}
s_cbranch_scc1 {ok}""")
    def retry(lab, sets, load, proc, okl, cnt, cidx, first):
        n = len(sets)
        A(f"{lab}:")
        for k_ in range(n - 1):
            cn(cidx)
            for x in load(sets[k_]): A(x)
            proc(A, sets[k_ + 1], first[k_])
            A(f"s_cbranch_vccz {okl}")
        sets = sets[n - 1:] + sets[:n - 1]
        A(f"{lab}_lp:")
        for k_ in range(n):
            cn(cidx)
            for x in load(sets[k_]): A(x)
            proc(A, sets[(k_ + 1) % n], len(load(0)) * (n - 1))
            A(f"s_cbranch_vccz {okl}")
        tmo(cnt, f"{lab}_to"); A(f"s_branch {lab}_lp\n{lab}_to:\ns_mov_b32 s{sDead}, {TMO}\ns_branch {okl}")
    retry(f"{P}_rr", rS[:len(opt["_rfirst"]) + 1], rload, rproc, f"{P}_rok", 14, 94, opt["_rfirst"])
    for sfx in ["", "_l"]:
        ev, n1 = gather_events(p, w, opt)
        if w < 2: retry(f"{P}_gr{sfx}", gS[:n1], gload, gproc, f"{P}_gok{sfx}", 15, 95, [2 * (n1 - 1)] * (n1 - 1))
        A(f"{P}_redo{sfx}:")
        cn(89)
        A(f"""s_add_u32 s15, s15, s{sDead}
s_cmp_ge_u32 s15, {TMO}
s_cbranch_scc1 {opt['_K']}_end
s_waitcnt vmcnt(0) lgkmcnt(0)
s_barrier
s_add_u32 s40, s53, {WS_FLAG + 65536}
s_add_u32 s{sGat2}, s{sMemP}, s39
s_add_u32 s{sGat}, s{sMemP}, s39
s_add_u32 s{sGat2}, s{sGat2}, 4096
s_add_u32 m0, s39, {LDS_MEM}
s_nop 0
buffer_load_dwordx4 v{vGat}, {SRD}, s{sGat} offen sc1 lds
s_add_u32 m0, s39, {LDS_MEM + 4096}""")
        for r in range(0, 16, 2): A(f"v_mov_b64 {v(vAk0+r,2)}, 0")
        A(g2dma())
        for i in range(6):
            for x in wq_read(A, i, SLQ[i]): A(x)
        A(f"s_waitcnt vmcnt(0) lgkmcnt(0)\ns_barrier\ns_branch {P}_entry{sfx}")
    if w == 3: kvf_wait(A, P, tmo)
    A(f"{P}_slow:\ns_waitcnt lgkmcnt(0)\ns_nop 7")
    A(f"""v_max3_f32 v{vT0}, v{vSx0}, v{vSx0+1}, v{vSx0+2}
v_max3_f32 v{vT1}, v{vSx0+3}, v{vSx1}, v{vSx1+1}
v_max3_f32 v{vT0}, v{vT0}, v{vSx1+2}, v{vSx1+3}
v_max3_f32 v{vT1}, v{vT1}, v{vSm}, v{vSm+1}
v_max_f32 v{vT0}, v{vT0}, v{vT1}
v_mov_b32 v{vT1}, v{vT0}
v_permlane32_swap_b32 v{vT0}, v{vT1}
v_max_f32 v{vT0}, v{vT0}, v{vT1}
v_mov_b32 v{vT1}, v{vT0}
v_permlane16_swap_b32 v{vT0}, v{vT1}
v_max_f32 v{vT0}, v{vT0}, v{vT1}""")
    srcs = [vSx0 + i for i in range(4)] + [vSx1 + i for i in range(4)] + [vSm, vSm + 1]
    for k_, x in enumerate(srcs): A(f"v_sub_f32 v{vE+k_}, v{x}, v{vT0}")
    for k_ in range(10): A(f"v_exp_f32 v{vE+k_}, v{vE+k_}")
    for k_ in range(4): A(f"v_cvt_pk_bf16_f32 v{vPx+k_}, v{vE+2*k_}, v{vE+2*k_+1}")
    A(f"v_cvt_pk_bf16_f32 v{vPm}, v{vE+8}, v{vE+9}")
    for (d, aa) in [(vO0, vVx), (vO1, vVx + 4), (vL, vAS)]:
        A(f"v_mfma_f32_16x16x32_bf16 {v(d,4)}, {v(aa,4)}, {v(vPx,4)}, 0")
    for (d, aa) in [(vL, vAS), (vO0, vVP), (vO1, vVP + 2)]:
        A(f"v_mfma_f32_16x16x16_bf16 {v(d,4)}, {v(aa,2)}, {v(vPm,2)}, {v(d,4)}")
    A("s_nop 7")
    A(f"v_rcp_f32 v{vT0}, v{vL+2}")
    for r in range(8): A(f"v_mul_f32 v{vO0+r}, v{vT0}, v{vO0+r}")
    for r in range(4): A(f"v_cvt_pk_bf16_f32 v{vE+r}, v{vO0+2*r}, v{vO0+2*r+1}")
    A(f"ds_write_b128 v{vOw}, {v(vE,4)}\ns_waitcnt lgkmcnt(0)\ns_branch {P}_norm")

def chain_member(A, P, opt, modefn, initfn=None):
    layer = 0
    opt = dict(opt); opt["_K"] = P
    A(f"s_mov_b32 s{sDead}, 1")
    lane_consts(A, layer, opt)
    weights_prologue(A, initfn)
    if opt.get("rt"): A("s_memrealtime s[98:99]")
    modefn(A)
    A(f"s_mov_b32 s44, s13\nv_mov_b32 v0, v30\n{P}_restart:")
    A(f"""v_add_u32 v{vKr}, {LDS_K}, v{vG512}
s_lshl_b32 s54, s9, 11
s_lshl_b32 s53, s12, 13
s_add_u32 s53, s53, s54
s_lshl_b32 s39, s9, 10
s_lshl_b32 s{sKV}, s12, 19
s_add_u32 s{sKV}, s{sKV}, s54
s_add_u32 s{sKV}, s{sKV}, {WS_K}
s_lshl_b32 s{sPub}, s12, 18
s_add_u32 s{sPub}, s{sPub}, s39
s_add_u32 s{sPub}, s{sPub}, {WS_KVM}
s_add_u32 s40, s53, {WS_FLAG + 65536}
v_mov_b32 v32, 0
v_readfirstlane_b32 s{sStep}, v32
s_mov_b32 s41, 0
s_lshl_b32 s43, s9, 16
s_lshl_b32 s13, s12, 11
s_add_u32 s43, s43, s13
s_add_u32 s{sPartB}, s{sSync}, {SY_PART}
s_add_u32 s{sMemB}, s{sSync}, {SY_MEM}
s_lshl_b32 s13, s12, 8
s_add_u32 s13, s13, s{sSync}
s_add_u32 s55, s13, {SY_PROG}
s_add_u32 s{sKVF}, s13, {SY_KVF}""")
    for x in step_scalars(A, layer, 0): A(x)
    set_srd(A, 20, 48, 8192)
    A(f"""v_lshrrev_b32 v34, 4, v{vL16}
v_lshrrev_b32 v32, 2, v34
v_and_b32 v32, 3, v32
v_lshlrev_b32 v32, 1, v32
v_and_b32 v33, 1, v34
v_add_u32 v32, v32, v33
v_lshlrev_b32 v32, 10, v32
v_lshrrev_b32 v33, 4, v34
v_lshl_add_u32 v32, v33, 5, v32
v_bfe_u32 v33, v34, 1, 1
v_lshl_add_u32 v32, v33, 4, v32
s_lshl_b32 s13, s9, 7
s_add_u32 m0, s39, {LDS_MEM}
s_nop 0
buffer_load_dwordx4 v32, {SRDW}, s13 offen lds
s_add_u32 m0, s39, {LDS_MEM + 4096}
s_add_u32 s13, s13, 512
buffer_load_dwordx4 v32, {SRDW}, s13 offen lds
s_waitcnt lgkmcnt(0)""")
    for r in range(0, 16, 2): A(f"v_mov_b64 {v(vAk0+r,2)}, 0")
    A(f"v_mov_b32 v{vVP}, 0\nv_mov_b32 v{vVP+2}, 0\nv_mov_b32 v{vVP+1}, 0\nv_mov_b32 v{vVP+3}, 0\nv_mov_b32 v{vPm+1}, 0")
    for i in range(6):
        for x in wq_read(A, i, SLQ[i]): A(x)
    A(f"""s_mov_b32 s15, 0
s_cmp_lg_u32 s9, 0
s_cbranch_scc1 {P}_k1
{P}_k0:
buffer_load_dword v33, off, {SRD}, s{sKVF} sc1
s_waitcnt vmcnt(0)
v_readfirstlane_b32 s13, v33
s_cmp_ge_u32 s13, 2
s_cbranch_scc1 {P}_k1
s_sleep 1
s_add_u32 s15, s15, 1
s_cmp_lt_u32 s15, {4*TMO}
s_cbranch_scc1 {P}_k0
{P}_k1:
s_barrier""")
    kv_dma(A)
    A(f"s_add_u32 s{sKV}, s{sKV}, {KVSEG}\ns_mov_b32 s14, 0\ns_mov_b32 s15, 0")
    if opt.get("cnt"):
        for r in list(range(60, 90)) + [94, 95]: A(f"s_mov_b32 s{r}, 0")
        A("s_memtime s[78:79]")
    if opt.get("rt"): A(f"s_memrealtime s[86:87]")
    A("s_waitcnt vmcnt(0) lgkmcnt(0)")
    A(f"s_add_u32 s{sKm}, s54, {LDS_K + 8192}\ns_add_u32 s52, s39, 4096\ns_barrier")
    A(f"s_cmp_eq_u32 s44, 0\ns_cbranch_scc1 {P}_fb")
    for (tg, c) in [("", "f"), (f"{P}_fb:", "s")]:
        if tg: A(tg)
        for q in range(3): A(f"s_cmp_eq_u32 s9, {q}\ns_cbranch_scc1 {P}_{c}{q}_entry")
        A(f"s_branch {P}_{c}3_entry")
    for q in range(4): variant(A, f"{P}_f{q}", layer, 0, q, True, opt)
    o2 = dict(opt); o2.update(d2=[0,0,0,0])
    for q in range(4): variant(A, f"{P}_s{q}", layer, 0, q, False, o2)
    A(f"""{P}_fin:
s_cmp_lg_u32 s9, 2
s_cbranch_scc1 {P}_fin2
s_mov_b64 exec, 1
buffer_store_dword v{vT1}, off, {SRD}, s55 sc1
s_mov_b64 exec, -1
{P}_fin2:""")
    if opt.get("cnt"):
        A(f"""s_memtime s[60:61]
s_waitcnt lgkmcnt(0)
s_sub_u32 s82, s60, s78
s_sub_u32 s83, s78, s100
s_lshl_b32 s13, s12, 2
s_add_u32 s13, s13, s9
s_lshl_b32 s13, s13, 6
s_add_u32 s13, s13, {WS_FLAG}""")
        for k_ in range(16):
            A(f"v_mov_b32 v32, s{82+k_}\nbuffer_store_dword v32, off, {SRD}, s13 offset:{4*k_}\ns_nop 1")
    if opt.get("rt"):
        A(f"s_memrealtime s[88:89]\ns_waitcnt lgkmcnt(0)\ns_cmp_lg_u32 s{sSync}, {WS_SYNC}\ns_cbranch_scc1 {P}_rt2\ns_mov_b32 s90, s86\ns_mov_b32 s91, s88\n{P}_rt2:\ns_mov_b32 s84, s86\ns_mov_b32 s85, s88")
    if opt.get("mega"):
        A(f"s_cmp_lg_u32 s{sSync}, {WS_SYNC}\ns_cbranch_scc1 {P}_done\ns_add_u32 s{sSync}, s{sSync}, {MB}\ns_waitcnt vmcnt(0)\ns_barrier\ns_branch {P}_restart")
```

```python
from common import *

def softmax(A, t0, t1):
    vals = list(range(96, 116))
    A(f"v_max3_f32 v{t0}, v96, v97, v98")
    for i in range(99, 113, 2): A(f"v_max3_f32 v{t0}, v{t0}, v{i}, v{i+1}")
    A(f"v_max3_f32 v{t0}, v{t0}, v113, v114\nv_max_f32 v{t0}, v{t0}, v115")
    A(f"v_mov_b32 v{t1}, v{t0}\nv_permlane32_swap_b32 v{t0}, v{t1}\nv_max_f32 v{t0}, v{t0}, v{t1}\nv_mul_f32 v{t0}, s35, v{t0}")
    for r in vals: A(f"v_fma_f32 v{r}, v{r}, s35, -v{t0}")
    for r in vals: A(f"v_exp_f32 v{r}, v{r}")
    A(f"v_add_f32 v{t0}, v96, v97\nv_add_f32 v{t1}, v98, v99")
    for i in range(100, 116, 2): A(f"v_add_f32 v{t0}, v{t0}, v{i}\nv_add_f32 v{t1}, v{t1}, v{i+1}")
    A(f"v_add_f32 v{t0}, v{t0}, v{t1}\nv_mov_b32 v{t1}, v{t0}\nv_permlane32_swap_b32 v{t0}, v{t1}\nv_add_f32 v{t0}, v{t0}, v{t1}\nv_rcp_f32 v{t0}, v{t0}")
    for r in range(96, 116, 2): A(f"v_pk_mul_f32 {v(r,2)}, {v(r,2)}, {v(t0,2)} op_sel_hi:[1,0]")
    A("v_cvt_pk_bf16_f32 v116, v112, v113\nv_cvt_pk_bf16_f32 v117, v114, v115\nv_mov_b32 v118, 0\nv_mov_b32 v119, 0")
    for q in range(2):
        for i, s_ in enumerate([4*q, 4*q + 2, 4*q + 8, 4*q + 10]): A(f"v_cvt_pk_bf16_f32 v{120 + 4*q + i}, v{96 + s_}, v{97 + s_}")

def bias(A, vB, t1):
    A(f"v_mov_b32 v{t1}, {f32bits(-1e30):#x}")
    for r in range(0, 16, 2):
        A(f"v_cmp_le_i32 vcc, {8*(r>>2) + (r&3)}, v0\nv_cmp_le_i32 s[10:11], {8*(r>>2) + (r&3) + 1}, v0\ns_nop 0\nv_cndmask_b32 v{vB+r}, v{t1}, 0, vcc\nv_cndmask_b32 v{vB+r+1}, v{t1}, 0, s[10:11]")

def kvm_addrs(A, sArea, vKV, vKm, vVm, vB, t1):
    A(f"""v_add_u32 v{vKV}, s{sArea}, v1
v_bfe_u32 v{vB}, v0, 1, 2
v_lshlrev_b32 v{vB}, 2, v{vB}
v_and_b32 v{vB+1}, 1, v0
v_add_u32 v{vB}, v{vB}, v{vB+1}
v_lshl_add_u32 v{vB}, v{t1}, 4, v{vB}
v_lshlrev_b32 v{vB}, 4, v{vB}
s_add_u32 s13, s{sArea}, 16384
v_add_u32 v{vKm}, s13, v{vB}
v_and_b32 v{vB}, 15, v0
v_or_b32 v{vB}, 2, v{vB}
v_lshl_add_u32 v{vB}, v{t1}, 5, v{vB}
v_lshlrev_b32 v{vB}, 4, v{vB}
v_bfe_u32 v{vB+1}, v0, 1, 1
v_xor_b32 v{vB+1}, 1, v{vB+1}
v_lshl_add_u32 v{vB}, v{vB+1}, 3, v{vB}
v_bfe_u32 v{vB+1}, v0, 4, 1
v_lshl_add_u32 v{vB}, v{vB+1}, 2, v{vB}
v_add_u32 v{vVm}, s13, v{vB}
v_and_b32 v{vB}, 31, v0
v_lshlrev_b32 v{t1}, 2, v{t1}
v_sub_u32 v0, v{vB}, v{t1}""")

STAMP = [False]
def att_task(A, P, sTB, sH0, sPart, sNH, sc1=False, waitfn=None, kvwait=None):
    SC = " sc1" if sc1 else ""
    def stp(A, k):
        if STAMP[0]: A(f"s_memtime s[{60+2*k}:{61+2*k}]")
    stp(A, 0)
    set_srd(A, 20, 40, 4 * MB); set_srd(A, 24, 46, 4 * MB)
    vD, vTq, vTo, vKm, vVm, vKV, t0, t1, t2 = 2, 3, 7, 11, 12, 13, 14, 15, 0
    vB = 16; vS = 32; vA = 64; vX = 128
    LKV = 65536
    if kvwait: kvwait(A)
    A(f"""s_lshl_b32 s28, s{sTB}, 2
s_add_u32 s28, s28, s9              ; seg
s_lshl_b32 s13, s28, 15
s_add_u32 s13, s13, {WS_XN}""")
    for k in range(32):
        if k % 4 == 0 and k: A("s_add_u32 s13, s13, 4096")
        A(f"buffer_load_dwordx4 {v(vX + 4*k, 4)}, v1, s[16:19], s13 offen offset:{(k&3)*1024}{SC}")
    A(f"""v_lshrrev_b32 v{t0}, 4, v0
v_and_b32 v{t1}, 15, v0
v_lshlrev_b32 v{vB}, 2, v{t0}
v_xor_b32 v{t1}, v{t1}, v{vB}
v_lshlrev_b32 v{t1}, 4, v{t1}
v_lshl_add_u32 v{vD}, v{t0}, 13, v{t1}
v_bfe_u32 v{t0}, v0, 2, 2
v_lshrrev_b32 v{t1}, 5, v0
v_lshl_add_u32 v{vB}, v{t1}, 3, v{t0}
v_lshlrev_b32 v{vB}, 8, v{vB}
v_bfe_u32 v{vB+1}, v0, 4, 1
v_lshl_add_u32 v{vB}, v{vB+1}, 5, v{vB}
v_and_b32 v{vB+2}, 3, v0
v_lshl_add_u32 v{vB}, v{vB+2}, 3, v{vB}
v_lshl_add_u32 v{vB+3}, v{t1}, 2, v{t0}
v_lshlrev_b32 v{vB+3}, 10, v{vB+3}
v_lshl_add_u32 v{vB+3}, v{vB+1}, 5, v{vB+3}
v_and_b32 v{vB+2}, 1, v0
v_lshl_add_u32 v{vB+3}, v{vB+2}, 4, v{vB+3}
v_bfe_u32 v{vB+2}, v0, 1, 1
v_lshl_add_u32 v{vB+3}, v{vB+2}, 3, v{vB+3}""")
    for te in range(4):
        A(f"v_xor_b32 v{vB+2}, {te}, v{t0}\nv_lshl_add_u32 v{vTq+te}, v{vB+2}, 6, v{vB}\nv_lshl_add_u32 v{vTo+te}, v{vB+2}, 6, v{vB+3}")
    A(f"""s_mul_i32 s29, s9, 20480
s_add_u32 s29, s29, {LKV}
""")
    kvm_addrs(A, 29, vKV, vKm, vVm, vB, t1)
    A(f"""s_lshl_b32 s30, s9, 12              ; lds w*4096
s_lshl_b32 s31, s{sH0}, 8
s_lshl_b32 s13, s9, 17
s_add_u32 s31, s31, s13
s_lshl_b32 s32, s{sH0}, 17
s_add_u32 s32, s32, s30
s_lshl_b32 s33, s{sH0}, 6
s_add_u32 s33, s33, s28             ; h*64+seg
s_lshl_b32 s34, s33, 12
s_add_u32 s34, s34, {WS_KVM}
s_lshl_b32 s33, s33, 13
s_add_u32 s33, s33, {WS_K}
s_mov_b32 s39, 0x7ff00000
s_mov_b32 s35, {f32bits(math.log2(math.e) / math.sqrt(128.0)):#x}""")
    def dma(c, nxt):
        sl = (c % 4) * 16384
        L = []
        for j in range(4):
            if c < 8:
                L.append(f"s_add_u32 m0, s30, {sl + j*1024}\ns_add_u32 s13, s{38 if nxt else 31}, {(64*c + 4*j)*8192}\nbuffer_load_dwordx4 v{vD}, s[20:23], s13 offen lds")
            else:
                L.append(f"s_add_u32 m0, s30, {sl + j*1024}\ns_add_u32 s13, s32, {(c-8)*16384 + j*1024}\nv_xor_b32 v{t0}, {64*j}, v1\nbuffer_load_dwordx4 v{t0}, s[24:27], s13 offen lds")
        return L
    def kvdma(part):
        L = []
        if part == 0:
            for mtx in range(2):
                for j in range(8):
                    L.append(f"s_add_u32 m0, s29, {mtx*8192 + j*1024}\ns_add_u32 s13, s33, {mtx*(WS_V - WS_K) + j*1024}\nbuffer_load_dwordx4 v1, s[16:19], s13 offen{SC} lds")
        else:
            for j in range(4):
                L.append(f"s_add_u32 m0, s29, {16384 + j*1024}\ns_add_u32 s13, s34, {j*1024}\nbuffer_load_dwordx4 v1, s[16:19], s13 offen{SC} lds")
        return L
    def reads(st_):
        g, k = (st_ >> 2) & 15, st_ & 3
        sl = (g % 4) * 16384; b = vS + 16 * (st_ & 1)
        L = []
        for te in range(4):
            for jj in range(2):
                if g < 8: L.append(f"ds_read_b64_tr_b16 {v(b + 4*te + 2*jj, 2)}, v{vTq+te} offset:{sl + (16*k + 4*jj)*256}")
                else: L.append(f"ds_read_b64_tr_b16 {v(b + 4*te + 2*jj, 2)}, v{vTo+te} offset:{sl + jj*8192 + k*256}")
        return L
    def emit(A, waits, npass):
        rec = []
        ctok = {}; kvtok = {}
        def wv(tok):
            n = A.vm_n(tok)
            if waits is None:
                rec.append(63 if n is None else n)
                if n is not None: A(f"s_waitcnt vmcnt({n})")
            else:
                A(f"s_waitcnt vmcnt({waits.pop(0)})")
        for x in dma(0, 0): ctok[0] = A(x)
        for x in kvdma(0): kvtok[0] = A(x)
        if not waitfn:
            for x in kvdma(1): kvtok[0] = A(x)
        for c in (1, 2):
            for x in dma(c, 0): ctok[c] = A(x)
        stp(A, 1)
        A.wvm(ctok[0]); A("s_barrier")
        stp(A, 2)
        for x in reads(0): A(x)
        A(f"s_mov_b32 s36, 0\n{P}_hl:")
        pend = []
        for hh in range(npass):
            A(f"""s_add_u32 s13, s36, 1
s_cmp_lt_u32 s13, s{sNH}
s_cselect_b32 s38, 256, s39
s_add_u32 s38, s38, s31""")
            def steps(ph, rng, first):
                for i in rng:
                    st_ = ph * 32 + i
                    g, k = st_ >> 2, st_ & 3
                    G_ = hh * 16 + g
                    A("s_waitcnt lgkmcnt(0)")
                    if k == 3:
                        while pend and any(p[1] is ctok and p[2] <= G_ + 1 for p in pend):
                            x, st, key = pend.pop(0); st[key] = A(x)
                        wv(ctok[G_ + 1]); A("s_barrier")
                    if k == 0: pend[0:0] = [(x, ctok, G_ + 3) for x in dma((g + 3) & 15, g + 3 >= 16)]
                    fill = reads(st_ + 1) if st_ != 31 else []
                    b = vS + 16 * (st_ & 1)
                    for te in range(4):
                        wa = v(b + 4 * te, 4)
                        if ph == 0: mf32(A, v(vA + 16 * te, 16), wa, v(vX + 4 * i, 4), i == 0)
                        else: mf32(A, a(16 * (4 * k + te), 16), wa, v(vA + 4 * (i >> 2), 4), first)
                        for _ in range([3, 3, 2, 0][te]):
                            if fill: A(fill.pop(0))
                        if pend and te in (2, 3):
                            x, st, key = pend.pop(0); st[key] = A(x)
            steps(0, range(32), False)
            stp(A, 3)
            if waitfn and waits is not None:
                A(f"s_cmp_lg_u32 s36, 0\ns_cbranch_scc1 {P}_nw")
                waitfn(A)
                for x in kvdma(1): A(x)
                A(f"s_waitcnt vmcnt(0)\n{P}_nw:")
            bias(A, vB, t1)
            while any(p[1] is kvtok for p in pend):
                x, st, key = pend.pop(0); st[key] = A(x)
            wv(kvtok[hh])
            kt = [A(f"ds_read_b128 {v(vS + 4*n, 4)}, v{vKV} offset:{n*1024}") for n in range(8)]
            for te in range(4):
                for i in range(8): A(f"v_cvt_pk_bf16_f32 v{vA + 8*te + i}, v{vA + 16*te + 2*i}, v{vA + 16*te + 2*i + 1}")
            mt = []
            for n in range(8):
                A.wlg(kt[n])
                mf32(A, v(96, 16), v(vS + 4*n, 4), v(vA + 4*n, 4), c=v(vB, 16) if n == 0 else None)
                mt.append(A(f"ds_read_b128 {v(vS + 4*n, 4)}, v{vKm} offset:{(n>>1)*1024 + (n&1)*512}"))
            for n in range(8):
                A.wlg(mt[n])
                mf32(A, v(112, 16), v(vS + 4*n, 4), v(vA + 4*n, 4), n == 0)
                A(f"ds_read_b128 {v(vS + 4*n, 4)}, v{vKV} offset:{8192 + n*1024}")
            for et in range(4): vmt = A(f"ds_read2_b32 {v(vB + 2*et, 2)}, v{vVm} offset0:0 offset1:64") if et == 0 else A(f"v_add_u32 v{t0}, {1024*et}, v{vVm}\nds_read2_b32 {v(vB + 2*et, 2)}, v{t0} offset0:0 offset1:64")
            A(f"v_mov_b32 v{vB+8}, 0\nv_mov_b32 v{vB+9}, 0")
            A(f"""s_add_u32 s13, s36, 1
s_cmp_lt_u32 s13, s{sNH}
s_cselect_b32 s13, {64*8192}, s39
s_add_u32 s33, s33, s13
s_lshr_b32 s13, s13, 1
s_add_u32 s34, s34, s13""")
            softmax(A, t0, t1)
            A.wlg(vmt)
            oacc = [64, 80, 96, 32]
            for et in range(4):
                d = v(oacc[et], 16)
                mf32(A, d, v(vS + 8*et, 4), v(120, 4), True)
                mf32(A, d, v(vS + 8*et + 4, 4), v(124, 4))
                mf32(A, d, v(vB + 2*et, 4), v(116, 4))
            for et in range(4):
                for i in range(8): A(f"v_cvt_pk_bf16_f32 v{vA + 8*et + i}, v{oacc[et] + 2*i}, v{oacc[et] + 2*i + 1}")
            stp(A, 4)
            for x in reads(32): A(x)
            if waits is not None:
                sv_pend = list(pend); sv_w = list(waits); sv_vm = list(A.vm); sv_c = dict(ctok)
                A(f"s_cmp_lg_u32 s36, 0\ns_cbranch_scc1 {P}_w1")
                steps(1, range(4), True)
                A(f"s_branch {P}_w2\n{P}_w1:")
                pend[:] = sv_pend; waits[:] = sv_w; A.vm = sv_vm
                steps(1, range(4), False)
                A(f"{P}_w2:")
            else:
                steps(1, range(4), False)
            pend.extend([(x, kvtok, hh + 1) for x in kvdma(0) + kvdma(1)])
            steps(1, range(4, 32), False)
            assert not pend, len(pend)
            if STAMP[0]: A("s_cmp_lg_u32 s36, 0\ns_cbranch_scc1 att_nst\ns_waitcnt lgkmcnt(0)\ns_mov_b32 s80, s66\ns_mov_b32 s81, s68\ns_memtime s[82:83]\natt_nst:")
            A(f"""s_add_u32 s31, s31, 256
s_add_u32 s32, s32, 131072
s_add_u32 s36, s36, 1
s_cmp_lt_u32 s36, s{sNH}
s_cbranch_scc1 {P}_hl""")
        return rec
    rec = emit(Asm(), None, 2)
    n = len(rec) // 2
    waits = [min(rec[i], rec[n + i]) for i in range(n)]
    emit(A, waits, 1)
    stp(A, 5)
    A("s_waitcnt lgkmcnt(0)")
    A(f"s_lshl_b32 s13, s{sPart}, 21\ns_lshl_b32 s14, s28, 15\ns_add_u32 s13, s13, s14\ns_add_u32 s13, s13, {WS_OP}\ns_nop 7")
    for dt in range(16):
        b = 32 + 16 * (dt & 1); o = 64 + 8 * (dt & 3)
        for i in range(16): A(f"v_accvgpr_read_b32 v{b+i}, a{16*dt+i}")
        for i in range(8): A(f"v_cvt_pk_bf16_f32 v{o+i}, v{b+2*i}, v{b+2*i+1}")
        if dt and dt % 2 == 0: A("s_add_u32 s13, s13, 4096")
        for q in range(2): A(f"buffer_store_dwordx4 {v(o + 4*q, 4)}, v1, s[16:19], s13 offen offset:{(dt&1)*2048 + q*1024}{SC}")

def att_kernel(opt):
    NH = opt.get("nh", 2)
    A = Asm(strict=opt.get("strict", False)); P = "att"
    NG = 32 // NH
    STAMP[0] = bool(opt.get("stamp"))
    std_prologue(A, P, 16 * NG, [(4, KA_WS), (40, KA_WQ), (46, KA_WO)])
    set_srd(A, 16, 4, WS_SIZE)
    k = NG // 8
    A(f"""v_lshlrev_b32 v1, 4, v0
s_and_b32 s50, s2, 7
s_mul_i32 s50, s50, {k}
s_lshr_b32 s13, s2, 3
s_and_b32 s13, s13, {k-1}
s_add_u32 s50, s50, s13
s_lshr_b32 s51, s2, {int(math.log2(NG))}
s_mul_i32 s52, s50, {NH}
s_mov_b32 s53, {NH}""")
    att_task(A, P, 51, 52, 50, 53)
    if opt.get("stamp"):
        A("s_memtime s[72:73]\ns_waitcnt vmcnt(0)\ns_memtime s[74:75]\ns_waitcnt lgkmcnt(0)")
        A(f"s_lshl_b32 s13, s2, 2\ns_add_u32 s13, s13, s9\ns_lshl_b32 s13, s13, 6\ns_add_u32 s13, s13, {WS_FLAG}")
        for k_, r in enumerate([62, 64, 80, 81, 82, 66, 68, 70, 72, 74]):
            A(f"s_sub_u32 s14, s{r}, s60\nv_mov_b32 v2, s14\nbuffer_store_dword v2, off, s[16:19], s13 offset:{4*k_}")
    A(f"s_waitcnt vmcnt(0)\n{P}_end:\ns_endpgm")
    A.fix_hazards(name=P, verbose=opt.get("verbose"))
    return A, dict(name="att_kernel", grid=16 * NG, block=256, lds=65536 + 4 * 20480, vgpr=512, accum=256)

def tail_task(A, P, sSeg, sG, sNH, kvwait, pwait):
    vD, vT0, vT1, vKm, vVm, vKV, t0, t1 = 2, 3, 4, 11, 12, 13, 14, 15
    vB = 16; vS = 32; vA = 64; vV = 128; ACC = 160
    set_srd(A, 24, 46, 4 * MB)
    A(f"""s_lshl_b32 s29, s9, 15
s_add_u32 s29, s29, 32768
s_lshl_b32 s32, s{sG}, 19
s_lshl_b32 s13, s{sNH}, 9
s_add_u32 s32, s32, s13
s_lshl_b32 s13, s9, 7
s_add_u32 s32, s32, s13
v_lshrrev_b32 v5, 3, v0
v_and_b32 v6, 7, v0
v_bfe_u32 v7, v0, 4, 1
v_lshlrev_b32 v7, 2, v7
v_xor_b32 v6, v6, v7
v_lshlrev_b32 v6, 4, v6
v_lshl_add_u32 v{vD}, v5, 10, v6
v_bfe_u32 v5, v0, 2, 2
v_lshrrev_b32 v{t1}, 5, v0
v_lshl_add_u32 v6, v{t1}, 2, v5
v_lshlrev_b32 v6, 7, v6
v_bfe_u32 v7, v0, 4, 1
v_lshl_add_u32 v6, v7, 5, v6
v_and_b32 v7, 1, v0
v_lshl_add_u32 v6, v7, 4, v6
v_bfe_u32 v7, v0, 1, 1
v_lshl_add_u32 v6, v7, 3, v6
v_add_u32 v6, s29, v6
v_lshrrev_b32 v5, 1, v5
v_lshl_add_u32 v{vT0}, v5, 6, v6
v_xor_b32 v5, 1, v5
v_lshl_add_u32 v{vT1}, v5, 6, v6""")
    for rnd in range(2):
        A(f"s_mov_b32 s31, 0\ns_mov_b32 s30, s29\n{P}_wl{rnd}:")
        for j in range(4): A(f"s_add_u32 m0, s30, {j*1024}\ns_add_u32 s13, s32, {j*8192}\nbuffer_load_dwordx4 v{vD}, s[24:27], s13 offen lds")
        A(f"s_add_u32 s30, s30, 4096\ns_add_u32 s32, s32, 32768\ns_add_u32 s31, s31, 1\ns_cmp_lt_u32 s31, 8\ns_cbranch_scc1 {P}_wl{rnd}\ns_waitcnt vmcnt(0)")
        for k in range(16):
            for dt in range(2):
                for jj in range(2):
                    A(f"ds_read_b64_tr_b16 {a(((16*rnd + k)*2 + dt)*4 + 2*jj, 2)}, v{[vT0, vT1][dt]} offset:{(16*k + 8*jj)*128}")
        A("s_waitcnt lgkmcnt(0)")
    kvm_addrs(A, 29, vKV, vKm, vVm, vB, t1)
    A(f"""s_lshl_b32 s36, s{sG}, 2
s_add_u32 s36, s36, s9
s_lshl_b32 s36, s36, 6
s_add_u32 s33, s36, s{sSeg}
s_lshl_b32 s33, s33, 13
s_add_u32 s33, s33, {WS_K}
s_sub_u32 s37, 119, s{sSeg}
s_add_u32 s37, s37, s36
s_lshl_b32 s37, s37, 13
s_add_u32 s37, s37, {WS_K}
s_mov_b32 s35, {f32bits(math.log2(math.e) / math.sqrt(128.0)):#x}""")
    kvwait(A)
    trip = [(vS, 0, 0), (vA, WS_Q - WS_K, 8192), (vV, WS_V - WS_K, 20480)]
    for (dst, off, lo) in trip:
        for n in range(8):
            if n % 4 == 0: A(f"s_add_u32 s13, s33, {off + n*1024}")
            A(f"buffer_load_dwordx4 {v(dst + 4*n, 4)}, v1, s[16:19], s13 offen offset:{(n&3)*1024} sc1")
    for (dst, off, lo) in trip:
        for n in range(0, 8, 4):
            A(f"s_add_u32 m0, s29, {lo + n*1024}\ns_add_u32 s13, s37, {off + n*1024}")
            for j in range(4): A(f"buffer_load_dwordx4 v1, s[16:19], s13 offen offset:{j*1024} sc1 lds")
    A(f"s_branch {P}_go\n{P}_again:")
    for (dst, off, lo) in trip:
        for n in range(8): A(f"ds_read_b128 {v(dst + 4*n, 4)}, v{vKV} offset:{lo + n*1024}")
    A(f"""{P}_go:
s_add_u32 s34, s36, s{sSeg}
s_lshl_b32 s34, s34, 12
s_add_u32 s34, s34, {WS_KVM}""")
    bias(A, vB, t1)
    A("s_waitcnt vmcnt(0) lgkmcnt(0)")
    for n in range(8): mf32(A, v(96, 16), v(vS + 4*n, 4), v(vA + 4*n, 4), c=v(vB, 16) if n == 0 else None)
    A(f"""s_lshl_b32 s28, s{sG}, 21
s_lshl_b32 s13, s{sSeg}, 15
s_add_u32 s28, s28, s13
s_lshl_b32 s13, s{sNH}, 14
s_add_u32 s28, s28, s13
s_lshl_b32 s13, s9, 12
s_add_u32 s28, s28, s13
s_add_u32 s28, s28, {WS_OP}
s_lshl_b32 s13, s9, 13
v_add_u32 v5, s13, v1
v_add_u32 v6, 1024, v{vVm}
v_add_u32 v7, 2048, v{vVm}
v_add_u32 v8, 3072, v{vVm}""")
    pwait(A)
    for j in range(4): A(f"s_add_u32 m0, s29, {16384 + j*1024}\ns_add_u32 s13, s34, {j*1024}\nbuffer_load_dwordx4 v1, s[16:19], s13 offen sc1 lds")
    A(f"v_mov_b32 v{vB+8}, 0\nv_mov_b32 v{vB+9}, 0\ns_waitcnt vmcnt(0)")
    A.reset_counts()
    mt = [A(f"ds_read_b128 {v(vS + 4*n, 4)}, v{vKm} offset:{(n>>1)*1024 + (n&1)*512}") for n in range(8)]
    for et in range(4): vmt = A(f"ds_read2_b32 {v(vB + 2*et, 2)}, v{[vVm, 6, 7, 8][et]} offset0:0 offset1:64")
    for n in range(8):
        A.wlg(mt[n]); mf32(A, v(112, 16), v(vS + 4*n, 4), v(vA + 4*n, 4), n == 0)
    softmax(A, t0, t1)
    A.wlg(vmt)
    oacc = [64, 80, 96, 32]
    for et in range(4):
        d = v(oacc[et], 16)
        mf32(A, d, v(vV + 8*et, 4), v(120, 4), True)
        mf32(A, d, v(vV + 8*et + 4, 4), v(124, 4))
        mf32(A, d, v(vB + 2*et, 4), v(116, 4))
    for et in range(4):
        for i in range(8): A(f"v_cvt_pk_bf16_f32 v{vV + 8*et + i}, v{oacc[et] + 2*i}, v{oacc[et] + 2*i + 1}")
        for q in range(2): A(f"ds_write_b128 v5, {v(vV + 8*et + 4*q, 4)} offset:{(2*et + q)*1024}")
    A("s_waitcnt lgkmcnt(0)\ns_barrier")
    A.reset_counts()
    ot = [A(f"ds_read_b128 {v(32 + 4*k, 4)}, v1 offset:{1024*k}") for k in range(12)]
    for k in range(32):
        A.wlg(ot[k])
        for dt in range(2): mf32(A, v(ACC + 16*dt, 16), a((2*k + dt)*4, 4), v(32 + 4*(k % 16), 4), k == 0)
        if k + 12 < 32: ot.append(A(f"ds_read_b128 {v(32 + 4*((k+12) % 16), 4)}, v1 offset:{1024*(k+12)}"))
    for dt in range(2):
        for i in range(8): A(f"v_cvt_pk_bf16_f32 v{vV + 8*dt + i}, v{ACC + 16*dt + 2*i}, v{ACC + 16*dt + 2*i + 1}")
        for q in range(2): A(f"buffer_store_dwordx4 {v(vV + 8*dt + 4*q, 4)}, v1, s[16:19], s28 offen offset:{(2*dt + q)*1024} sc1")

def mini_r1(A, P, sSeg, sQ):
    X = 144; T = 152; R = 96
    A(f"""s_lshl_b32 s28, s{sQ}, 2
s_add_u32 s28, s28, s9
s_lshl_b32 s28, s28, 11
s_lshl_b32 s13, s{sSeg}, 15
s_add_u32 s28, s28, s13
s_add_u32 s32, s28, {WS_OP}
s_add_u32 s33, s28, {WS_XB}""")
    for p in range(8):
        for c in range(2): A(f"buffer_load_dwordx4 {v(32 + 32*c + 4*p, 4)}, v1, s[16:19], s32 offen offset:{c*1024} sc1")
        A(f"s_add_u32 s32, s32, {2*MB}")
    for c in range(2):
        for p in range(8):
            if c == 0: A(f"s_waitcnt vmcnt({14 - 2*p})")
            for i in range(4):
                s_ = 32 + 32*c + 4*p + i
                if p == 0: A(f"v_lshlrev_b32 v{X+2*i}, 16, v{s_}\nv_and_b32 v{X+2*i+1}, 0xffff0000, v{s_}")
                else: A(f"v_lshlrev_b32 v{T}, 16, v{s_}\nv_and_b32 v{T+1}, 0xffff0000, v{s_}\nv_pk_add_f32 {v(X + 2*i, 2)}, {v(X + 2*i, 2)}, {v(T, 2)}")
        resid_add(A, R + 4*c, X, R + 4*c, 4, T)
        A(f"buffer_store_dwordx4 {v(R + 4*c, 4)}, v1, s[16:19], s33 offen offset:{c*1024} sc1")
def mini_r1_pre(A, sSeg, sQ):
    A(f"s_lshl_b32 s28, s{sQ}, 2\ns_add_u32 s28, s28, s9\ns_lshl_b32 s28, s28, 11\ns_lshl_b32 s13, s{sSeg}, 15\ns_add_u32 s28, s28, s13\ns_add_u32 s28, s28, {WS_XA}")
    for c in range(2): A(f"buffer_load_dwordx4 {v(96 + 4*c, 4)}, v1, s[16:19], s28 offen offset:{c*1024} sc1")
```

```python
from common import *

def kv_setup(A):
    set_srd(A, 20, 42, 4 * MB); set_srd(A, 24, 44, 4 * MB)

def kv_task(A, P, sTB, sH, sc1=False, xwait=None):
    SC = " sc1" if sc1 else ""
    kv_setup(A)
    vD, vT, vX = 2, 4, 8
    A(f"""s_lshl_b32 s28, s{sTB}, 17
s_lshl_b32 s13, s9, 15
s_add_u32 s28, s28, s13
s_add_u32 s28, s28, {WS_XN}
s_lshl_b32 s29, s{sH}, 8
s_lshl_b32 s13, s9, 17
s_add_u32 s29, s29, s13
s_lshl_b32 s30, s9, 12
v_lshrrev_b32 v9, 4, v0
v_and_b32 v10, 15, v0
v_lshlrev_b32 v11, 2, v9
v_xor_b32 v10, v10, v11
v_lshlrev_b32 v10, 4, v10
v_lshl_add_u32 v{vD}, v9, 13, v10""")
    def dma():
        L = []
        for j in range(4):
            L.append(f"s_add_u32 m0, s30, {j*1024}\ns_add_u32 s13, s28, {j*1024}\nbuffer_load_dwordx4 v1, s[16:19], s13 offen{SC} lds")
        for mtx in range(2):
            for j in range(4):
                L.append(f"s_add_u32 m0, s30, {16384*(1+mtx) + j*1024}\ns_add_u32 s13, s29, {4*j*8192}\nbuffer_load_dwordx4 v{vD}, s[{20+4*mtx}:{23+4*mtx}], s13 offen lds")
        return L
    adv = f"s_add_u32 s28, s28, 4096\ns_add_u32 s29, s29, {64*8192}"
    if xwait: xwait[0](A)
    for part in range(2):
        A(f"s_mov_b32 s31, 0\n{P}_pl{part}:")
        for x in (dma()[4:] if part == 0 else dma()[:4]): A(x)
        A(adv.split("\n")[1 - part])
        A(f"s_add_u32 s30, s30, 49152\ns_add_u32 s31, s31, 1\ns_cmp_lt_u32 s31, 3\ns_cbranch_scc1 {P}_pl{part}\ns_lshl_b32 s30, s9, 12")
        if part == 0 and xwait: xwait[1](A)
    A(f"""v_bfe_u32 v9, v0, 2, 2
v_lshrrev_b32 v10, 5, v0
v_lshl_add_u32 v10, v10, 3, v9
v_lshlrev_b32 v10, 8, v10
v_bfe_u32 v11, v0, 4, 1
v_lshl_add_u32 v10, v11, 5, v10
v_and_b32 v11, 3, v0
v_lshl_add_u32 v10, v11, 3, v10
s_lshr_b32 s13, s9, 1
s_lshl_b32 s13, s13, 14
s_add_u32 s13, s13, 16384
v_add_u32 v10, s13, v10""")
    for te in range(4): A(f"v_xor_b32 v11, {te}, v9\nv_lshl_add_u32 v{vT+te}, v11, 6, v10")
    A(f"""s_and_b32 s13, s9, 1
s_lshl_b32 s13, s13, 13
v_add_u32 v{vX}, s13, v1
s_mov_b32 s31, 0                 ; chunk
s_mov_b32 s32, 0
s_mov_b32 s34, 49152
s_waitcnt vmcnt(8)
s_barrier""")
    FR = [32, 56]
    def reads(k):
        b = FR[k & 1]
        L = [f"ds_read_b128 {v(b + 4*s_, 4)}, v{vX} offset:{s_*4096 + k*1024}" for s_ in range(2)]
        for te in range(4):
            for jj in range(2):
                L.append(f"ds_read_b64_tr_b16 {v(b + 8 + 4*te + 2*jj, 2)}, v{vT+te} offset:{(16*k + 4*jj)*256}")
        return L
    for x in reads(0): A(x)
    A(f"s_cmp_ge_u32 s9, 2\ns_cbranch_scc1 {P}_vw")
    for isv in range(2):
        Q = f"{P}_{isv}"
        if isv: A(f"{P}_vw:")
        def step(k, first, pend):
            fill = reads((k + 1) & 3)
            b = FR[k & 1]; n = 0
            for s_ in range(2):
                for te in range(4):
                    d = v(128 + (s_ * 4 + te) * 16, 16); xa = v(b + 4 * s_, 4); wa = v(b + 8 + 4 * te, 4)
                    if isv: mf32(A, d, xa, wa, first)
                    else: mf32(A, d, wa, xa, first)
                    for _ in range([3, 3, 2, 2, 0, 0, 0, 0][n]):
                        if fill: A(fill.pop(0))
                    if n in (4, 5, 6) and pend: A(pend.pop(0))
                    n += 1
        A("s_waitcnt lgkmcnt(0)")
        step(0, True, [])
        A("s_waitcnt lgkmcnt(0)"); step(1, False, [])
        A("s_waitcnt lgkmcnt(0)"); step(2, False, [])
        A(f"s_waitcnt vmcnt(4)\n{Q}_lp:")
        A(f"""s_waitcnt vmcnt(12) lgkmcnt(0)
s_barrier
s_add_u32 s32, s32, 1
s_cmp_eq_u32 s32, 3
s_cselect_b32 s33, {(-98304) & 0xffffffff:#x}, s34
s_cselect_b32 s32, 0, s32
s_cmp_ge_u32 s31, 5
s_cselect_b32 s28, 0x7ff00000, s28
s_cselect_b32 s29, 0x7ff00000, s29""")
        for r in [vT, vT+1, vT+2, vT+3, vX]: A(f"v_add_u32 v{r}, s33, v{r}")
        pend = dma()
        step(3, False, pend)
        A(f"s_cmp_eq_u32 s31, 7\ns_cbranch_scc1 {Q}_ex")
        for k in range(3):
            A("s_waitcnt lgkmcnt(0)"); step(k, False, pend)
        A(adv)
        A(f"s_add_u32 s30, s30, s33\ns_add_u32 s31, s31, 1\ns_branch {Q}_lp\n{Q}_ex:")
        A(f"""s_lshl_b32 s31, s{sH}, 6
s_lshl_b32 s13, s{sTB}, 2
s_add_u32 s31, s31, s13
s_and_b32 s13, s9, 1
s_lshl_b32 s13, s13, 1
s_add_u32 s31, s31, s13
s_lshl_b32 s31, s31, 13
s_add_u32 s31, s31, {WS_V if isv else WS_K}
s_waitcnt lgkmcnt(0)""")
        for s_ in range(2):
            for te in range(4):
                d = 128 + (s_ * 4 + te) * 16
                o = 32 + ((s_ * 4 + te) & 3) * 8
                for q in range(2):
                    src = [d + 4*q, d + 4*q + 2, d + 4*q + 8, d + 4*q + 10] if isv else [d + 8*q + 2*i for i in range(4)]
                    for i in range(4): A(f"v_cvt_pk_bf16_f32 v{o + 4*q + i}, v{src[i]}, v{src[i]+1}")
                A(f"s_add_u32 s13, s31, {s_*8192 + te*2048}")
                for q in range(2): A(f"buffer_store_dwordx4 {v(o + 4*q, 4)}, v1, s[16:19], s13 offen offset:{q*1024}{SC}")
        if not isv: A(f"s_branch {P}_kvdone")
    A(f"{P}_kvdone:")

def kv_kernel(opt):
    A = Asm(strict=opt.get("strict", False)); P = "kv"
    std_prologue(A, P, 512, [(4, KA_WS), (42, KA_WK), (44, KA_WV)])
    set_srd(A, 16, 4, WS_SIZE)
    A("""v_lshlrev_b32 v1, 4, v0
s_and_b32 s36, s2, 7
s_lshl_b32 s36, s36, 2
s_lshr_b32 s13, s2, 3
s_and_b32 s13, s13, 3
s_add_u32 s36, s36, s13
s_lshr_b32 s37, s2, 5""")
    kv_task(A, P, 37, 36)
    A(f"s_waitcnt vmcnt(0)\n{P}_end:\ns_endpgm")
    A.fix_hazards(name=P, verbose=opt.get("verbose"))
    return A, dict(name="kv_kernel", grid=512, block=256, lds=147456, vgpr=256, accum=256)

def kvf_task(A, P, sTB, sH, sKV, xwait):
    vD, vT = 2, 4
    A(f"""s_cmp_eq_u32 s{sKV}, 0
s_cselect_b32 s20, s42, s44
s_cselect_b32 s21, s43, s45
s_cmp_eq_u32 s{sKV}, 2
s_cselect_b32 s20, s40, s20
s_cselect_b32 s21, s41, s21
s_cselect_b32 s33, {WS_Q - WS_K - 2*(WS_V - WS_K)}, 0
s_mov_b32 s22, {4*MB}
s_mov_b32 s23, 0x20000
s_lshl_b32 s29, s{sH}, 8
s_lshl_b32 s13, s9, 20
s_add_u32 s29, s29, s13          ; h*256 + w*128 rows*8192
s_lshl_b32 s30, s9, 15
s_add_u32 s30, s30, 32768
v_lshrrev_b32 v9, 4, v0
v_and_b32 v10, 15, v0
v_lshlrev_b32 v11, 2, v9
v_xor_b32 v10, v10, v11
v_lshlrev_b32 v10, 4, v10
v_lshl_add_u32 v{vD}, v9, 13, v10
s_mov_b32 s31, 0
{P}_wl:""")
    for j in range(4): A(f"s_add_u32 m0, s30, {j*1024}\ns_add_u32 s13, s29, {4*j*8192}\nbuffer_load_dwordx4 v{vD}, s[20:23], s13 offen lds")
    A(f"""s_add_u32 s30, s30, 4096
s_add_u32 s29, s29, {16*8192}
s_add_u32 s31, s31, 1
s_cmp_lt_u32 s31, 8
s_cbranch_scc1 {P}_wl
v_bfe_u32 v9, v0, 2, 2
v_lshrrev_b32 v10, 5, v0
v_lshl_add_u32 v10, v10, 3, v9
v_lshlrev_b32 v10, 8, v10
v_bfe_u32 v11, v0, 4, 1
v_lshl_add_u32 v10, v11, 5, v10
v_and_b32 v11, 3, v0
v_lshl_add_u32 v10, v11, 3, v10
v_add_u32 v10, 32768, v10""")
    for te in range(4): A(f"v_xor_b32 v11, {te}, v9\nv_lshl_add_u32 v{vT+te}, v11, 6, v10")
    A(f"""s_lshl_b32 s28, s{sTB}, 2
s_add_u32 s28, s28, s9
s_lshl_b32 s31, s{sH}, 6
s_add_u32 s31, s31, s28
s_lshl_b32 s31, s31, 13
s_mul_i32 s13, s{sKV}, {WS_V - WS_K}
s_add_u32 s31, s31, s13
s_add_u32 s31, s31, s33
s_add_u32 s31, s31, {WS_K}
s_lshl_b32 s28, s28, 15
s_add_u32 s28, s28, {WS_XN}
s_waitcnt vmcnt(0)
s_barrier""")
    FR = [32, 48]
    def reads(k):
        return [f"ds_read_b64_tr_b16 {v(FR[k & 1] + 4*te + 2*jj, 2)}, v{vT+te} offset:{(16*(k & 15) + 4*jj)*256}" for te in range(4) for jj in range(2)]
    for x in reads(0): A(x)
    xwait(A)
    A.reset_counts()
    xt = []
    for k in range(32):
        if k % 4 == 0 and k: A("s_add_u32 s28, s28, 4096")
        xt.append(A(f"buffer_load_dwordx4 {v(128 + 4*k, 4)}, v1, s[16:19], s28 offen offset:{(k&3)*1024} sc1"))
    vm0 = list(A.vm)
    A(f"s_cmp_eq_u32 s{sKV}, 1\ns_cbranch_scc1 {P}_v")
    for isv in range(2):
        if isv: A(f"{P}_v:")
        A.vm = list(vm0)
        for k in range(32):
            n = A.vm_n(xt[k])
            A(f"s_waitcnt vmcnt({n}) lgkmcnt(0)")
            if k == 15:
                for te in range(4): A(f"v_add_u32 v{vT+te}, 0x10000, v{vT+te}")
            fill = reads(k + 1) if k < 31 else []
            for te in range(4):
                d = v(64 + 16 * te, 16); xa = v(128 + 4 * k, 4); wa = v(FR[k & 1] + 4 * te, 4)
                if isv: mf32(A, d, xa, wa, k == 0)
                else: mf32(A, d, wa, xa, k == 0)
                for _ in range([3, 3, 2, 0][te]):
                    if fill: A(fill.pop(0))
        for te in range(4):
            d = 64 + 16 * te; o = 32 + te * 8
            for q in range(2):
                src = [d + 4*q, d + 4*q + 2, d + 4*q + 8, d + 4*q + 10] if isv else [d + 8*q + 2*i for i in range(4)]
                for i in range(4): A(f"v_cvt_pk_bf16_f32 v{o + 4*q + i}, v{src[i]}, v{src[i]+1}")
            if te == 2: A("s_add_u32 s31, s31, 4096")
            for q in range(2): A(f"buffer_store_dwordx4 {v(o + 4*q, 4)}, v1, s[16:19], s31 offen offset:{(te&1)*2048 + q*1024} sc1")
        if not isv: A(f"s_branch {P}_fd")
    A(f"{P}_fd:")
```

```python
from common import *
SC = " sc1"

def ln1_task(A, sSeg, sX):
    set_srd(A, 20, sX, 2 * MB)
    A(f"""v_lshrrev_b32 v2, 5, v0
v_and_b32 v3, 31, v0
v_lshlrev_b32 v4, 10, v3
v_lshl_add_u32 v4, v2, 4, v4
s_lshl_b32 s12, s{sSeg}, 15
s_lshl_b32 s13, s9, 8
s_add_u32 s13, s13, s12
s_lshl_b32 s14, s9, 13
s_add_u32 s14, s14, s12
s_add_u32 s26, s14, {WS_XA}
s_add_u32 s24, s26, 4096
s_add_u32 s25, s14, 4096
v_lshlrev_b32 v5, 3, v3""")
    for k in range(8): A(f"buffer_load_dwordx4 {v(16+4*k,4)}, v4, s[20:23], s13 offen offset:{32*k}")
    A("s_waitcnt vmcnt(0)")
    unpack(A, 64, 16, 32)
    layernorm(A, 64, 64, 6, 5, 0, 4, 128)
    for k in range(8): A(f"buffer_store_dwordx4 {v(128+4*k,4)}, v1, s[16:19], s{14 if k < 4 else 25} offen offset:{1024*(k&3)}{SC}")
    for k in range(8): A(f"buffer_store_dwordx4 {v(16+4*k,4)}, v1, s[16:19], s{26 if k < 4 else 24} offen offset:{1024*(k&3)}{SC}")

def table_task(A, P, sIdx, sWR, sWI):
    A(f"""v_lshrrev_b32 v2, 5, v0
v_and_b32 v3, 31, v0
s_cmp_ge_u32 s{sIdx}, 128
s_cbranch_scc1 {P}_wt
s_and_b32 s12, s{sIdx}, 63
s_lshl_b32 s12, s12, 3
s_lshl_b32 s13, s9, 1
s_add_u32 s12, s12, s13
s_lshr_b32 s14, s12, 5
s_and_b32 s15, s12, 31
s_lshl_b32 s24, s12, 10
s_lshl_b32 s14, s14, 5
s_lshl_b32 s15, s15, 4
v_lshl_add_u32 v7, v2, 3, s15
s_mov_b32 s25, 0
s_cmp_ge_u32 s{sIdx}, 64
s_cbranch_scc1 {P}_ti
v_add_u32 v4, s14, v3
v_lshrrev_b32 v5, 1, v4
v_and_b32 v6, 1, v4
v_lshlrev_b32 v6, 7, v6
v_cmp_eq_u32 vcc, 1, v4
v_mov_b32 v9, 256
v_cndmask_b32 v5, v5, v9, vcc
v_cndmask_b32 v6, v6, 0, vcc
v_mul_u32_u24 v8, v7, v5
v_add_u32 v8, v8, v6
s_add_u32 s24, s24, {WS_TF}
{P}_tfl:""")
    for j in range(8):
        A(f"v_and_b32 v9, 511, v8\nv_cvt_f32_u32 v9, v9\nv_mul_f32 v9, {f32bits(1/512):#x}, v9\nv_cos_f32 v{16+j}, v9\nv_add_u32 v8, v8, v5")
    for j in range(4): A(f"v_cvt_pk_bf16_f32 v{24+j}, v{16+2*j}, v{17+2*j}")
    A(f"""v_lshl_add_u32 v8, v5, 3, v8
buffer_store_dwordx4 v[24:27], v1, s[16:19], s24 offen{SC}
s_add_u32 s24, s24, 1024
s_add_u32 s25, s25, 1
s_cmp_lt_u32 s25, 2
s_cbranch_scc1 {P}_tfl
s_branch {P}_tdone
{P}_ti:""")
    dperm_code(A, 4, 3, 5)
    A(f"v_add_u32 v4, s14, v4\ns_add_u32 s24, s24, {WS_TI}\n{P}_til:")
    for j in range(8):
        A(f"""v_add_u32 v5, {j}, v7
v_lshrrev_b32 v6, 1, v5
v_cmp_eq_u32 vcc, 1, v5
v_mov_b32 v9, 256
v_cndmask_b32 v6, v6, v9, vcc
v_mov_b32 v9, {128*(j&1)}
v_cndmask_b32 v9, v9, 0, vcc
v_mad_u32_u24 v8, v6, v4, v9
v_and_b32 v8, 511, v8
v_cvt_f32_u32 v8, v8
v_mul_f32 v8, {f32bits(1/512):#x}, v8
v_cos_f32 v8, v8
v_cmp_gt_u32 vcc, 2, v5
v_add_f32 v9, v8, v8
v_cndmask_b32 v{16+j}, v9, v8, vcc""")
    for j in range(4): A(f"v_cvt_pk_bf16_f32 v{24+j}, v{16+2*j}, v{17+2*j}")
    A(f"""v_add_u32 v7, 16, v7
buffer_store_dwordx4 v[24:27], v1, s[16:19], s24 offen{SC}
s_add_u32 s24, s24, 1024
s_add_u32 s25, s25, 1
s_cmp_lt_u32 s25, 2
s_cbranch_scc1 {P}_til
s_branch {P}_tdone
{P}_wt:
s_sub_u32 s12, s{sIdx}, 128
s_lshl_b32 s12, s12, 2
s_add_u32 s12, s12, s9
s_cmp_ge_u32 s12, 257
s_cbranch_scc1 {P}_ct""")
    set_srd(A, 20, sWR, 2048 * 257 * 2); set_srd(A, 24, sWI, 2048 * 257 * 2)
    A(f"""v_lshl_add_u32 v4, v2, 8, v3
v_mul_u32_u24 v4, 514, v4
s_lshl_b32 s13, s12, 1
s_lshl_b32 s28, s12, 13
s_add_u32 s28, s28, {WS_WT}
s_mov_b32 s29, 0
s_mov_b32 s30, {f32bits(2.0 ** -20):#x}
{P}_wtl:""")
    for r in range(16):
        k1 = 8 * (r >> 2) + (r & 3)
        A(f"s_add_u32 s14, s13, {64 * k1 * 514}")
        A(f"buffer_load_ushort v{32 + r}, v4, s[20:23], s14 offen\nbuffer_load_ushort v{48 + r}, v4, s[24:27], s14 offen")
    A("s_waitcnt vmcnt(0)")
    for i in range(16):
        A(f"v_lshlrev_b32 v{32+i}, 16, v{32+i}\nv_lshlrev_b32 v{48+i}, 16, v{48+i}\nv_mul_f32 v{32+i}, s30, v{32+i}\nv_mul_f32 v{48+i}, s30, v{48+i}\nv_cvt_pk_bf16_f32 v{64+i}, v{32+i}, v{48+i}")
    for q in range(4): A(f"buffer_store_dwordx4 {v(64+4*q,4)}, v1, s[16:19], s28 offen offset:{1024*q}{SC}")
    A(f"""s_add_u32 s28, s28, 4096
s_add_u32 s13, s13, {32 * 514}
s_add_u32 s29, s29, 1
s_cmp_lt_u32 s29, 2
s_cbranch_scc1 {P}_wtl
s_branch {P}_tdone
{P}_ct:
s_sub_u32 s12, s12, 257
s_cmp_ge_u32 s12, 60
s_cbranch_scc1 {P}_tdone""")
    dperm_code(A, 5, 3, 6)
    A(f"""s_mov_b32 s25, 0
s_mov_b32 s28, 0
s_mov_b32 s29, 0
s_cmp_ge_u32 s12, 28
s_cbranch_scc1 {P}_c2
s_cmp_ge_u32 s12, 16
s_cbranch_scc1 {P}_c1
s_and_b32 s24, s12, 3
s_lshl_b32 s24, s24, 4
s_and_b32 s25, s12, 4
s_lshl_b32 s25, s25, 3
s_mov_b32 s26, 5
s_cmp_ge_u32 s12, 8
s_cselect_b32 s27, 1536, 0
s_branch {P}_cg
{P}_c1:
s_sub_u32 s13, s12, 16
s_cmp_ge_u32 s13, 6
s_cselect_b32 s28, 1, 0
s_cselect_b32 s14, 6, 0
s_sub_u32 s13, s13, s14
s_and_b32 s24, s13, 1
s_lshl_b32 s24, s24, 4
s_mov_b32 s26, 6
s_lshr_b32 s13, s13, 1
s_cmp_eq_u32 s13, 1
s_cselect_b32 s27, 1536, 0
s_cmp_eq_u32 s13, 2
s_cselect_b32 s27, 512, s27
s_branch {P}_cg
{P}_c2:
s_sub_u32 s13, s12, 28
s_lshr_b32 s28, s13, 4
s_mov_b32 s29, 1
s_mov_b32 s26, 0
s_and_b32 s14, s13, 8
s_cmp_lg_u32 s14, 0
s_cselect_b32 s27, 1536, 0
s_and_b32 s24, s13, 3
s_lshl_b32 s24, s24, 3
s_and_b32 s14, s13, 4
s_lshl_b32 s14, s14, 3
s_cmp_lg_u32 s28, 0
s_cselect_b32 s15, s14, 0
s_cselect_b32 s25, 0, s14
s_add_u32 s24, s24, s15
{P}_cg:
s_cmp_lg_u32 s28, 0
s_cselect_b64 vcc, -1, 0
v_cndmask_b32 v8, v3, v5, vcc
v_add_u32 v8, s25, v8
v_lshl_add_u32 v6, v2, 2, s24""")
    for j in range(8):
        A(f"""v_add_u32 v7, {8*(j>>2) + (j&3)}, v6
v_mul_u32_u24 v7, v7, v8
v_lshlrev_b32 v7, s26, v7
v_add_u32 v7, s27, v7
v_and_b32 v7, 2047, v7
v_cvt_f32_u32 v7, v7
v_mul_f32 v7, {f32bits(1/2048):#x}, v7
v_cos_f32 v{32+j}, v7""")
    A(f"s_cmp_lg_u32 s29, 0\ns_cbranch_scc1 {P}_cs")
    for j in range(4): A(f"v_cvt_pk_bf16_f32 v{32+j}, v{32+2*j}, v{33+2*j}")
    A(f"{P}_cs:\ns_lshl_b32 s13, s12, 10\ns_add_u32 s13, s13, {WS_CT}\nbuffer_store_dwordx4 v[32:35], v1, s[16:19], s13 offen{SC}\n{P}_tdone:")

def r2_prefetch(A, sQ):
    A(f"s_lshl_b32 s29, s{sQ}, 2\ns_add_u32 s29, s29, s9\ns_lshl_b32 s29, s29, 15\ns_add_u32 s29, s29, {WS_TF}")
    for k in range(32):
        A((f"s_add_u32 s29, s29, 4096\n" if (k % 4 == 0 and k) else "") + f"buffer_load_dwordx4 {a(4*k, 4)}, v1, s[16:19], s29 offen offset:{(k&3)*1024}{SC}")

def r2_task(A, sSeg, sQ):
    S0, S1, X = 48, 80, 112
    A(f"""s_lshl_b32 s24, s{sSeg}, 15
s_lshl_b32 s14, s9, 13
s_add_u32 s24, s24, s14
s_add_u32 s25, s24, {WS_XB}
s_add_u32 s26, s25, 4096""")
    for k in range(8): A(f"buffer_load_dwordx4 {v(S0 + 4*k, 4)}, v1, s[16:19], s{25 if k < 4 else 26} offen offset:{1024*(k&3)}{SC}")
    A("v_and_b32 v3, 31, v0\nv_lshlrev_b32 v5, 3, v3\nv_add_u32 v2, s14, v1")
    dperm_code(A, 4, 3, 6)
    A(f"""v_lshrrev_b32 v6, 5, v0
v_lshl_add_u32 v4, v6, 5, v4
v_lshlrev_b32 v4, 4, v4
s_lshl_b32 s15, s{sQ}, 2
s_add_u32 s15, s15, s9
s_lshl_b32 s15, s15, 6
s_add_u32 s15, s15, s{sSeg}
s_lshl_b32 s15, s15, 11
s_add_u32 s15, s15, {WS_FT}
s_waitcnt vmcnt(0)""")
    unpack(A, X, S0, 32)
    layernorm(A, X, 64, 16, 5, 32768, 4, S1)
    for k in range(8): A(f"ds_write_b128 v2, {v(S1 + 4*k, 4)} offset:{1024*k}")
    A("s_waitcnt lgkmcnt(0)\ns_barrier")
    A.reset_counts()
    xt = [A(f"ds_read_b128 {v(X + 4*(k % 16), 4)}, v4 offset:{1024*k}") for k in range(12)]
    for k in range(32):
        A.wlg(xt[k])
        mf32(A, v(16, 16), v(X + 4*(k % 16), 4), a(4*k, 4), k == 0)
        if k + 12 < 32: xt.append(A(f"ds_read_b128 {v(X + 4*((k+12) % 16), 4)}, v4 offset:{1024*(k+12)}"))
    A("""s_lshl_b32 s13, s9, 11
s_add_u32 s13, s13, 36864
v_bfe_u32 v7, v3, 1, 2
v_xor_b32 v7, v7, v6
v_lshlrev_b32 v7, 4, v7
v_lshl_add_u32 v7, v3, 6, v7
v_add_u32 v7, s13, v7
v_xor_b32 v8, 32, v7
v_bfe_u32 v9, v0, 3, 2
v_lshlrev_b32 v9, 4, v9
v_xor_b32 v9, v9, v1
v_add_u32 v9, s13, v9""")
    for i in range(8): A(f"v_cvt_pk_bf16_f32 v{32+i}, v{16+2*i}, v{17+2*i}")
    A("ds_write_b128 v7, v[32:35]\nds_write_b128 v8, v[36:39]\ns_waitcnt lgkmcnt(0)\nds_read_b128 v[40:43], v9\nds_read_b128 v[44:47], v9 offset:1024")
    for q in range(2): A(f"s_waitcnt lgkmcnt({1-q})\nbuffer_store_dwordx4 {v(40 + 4*q, 4)}, v1, s[16:19], s15 offen offset:{1024*q}{SC}")

XR, XI, NG, D, TW, W, T, CA = 16, 32, 48, 64, 176, 240, 96, 128
def col_prefetch(A, sCol):
    A(f"s_and_b32 s29, s9, 1\ns_lshl_b32 s30, s29, 12\ns_add_u32 s30, s30, {WS_CT}\ns_lshl_b32 s31, s29, 11")
    for tb_ in range(2):
        for j in range(4):
            A(f"s_xor_b32 s13, s31, {j*1024}\ns_add_u32 s13, s13, s30\ns_add_u32 s13, s13, {tb_*8192}\nbuffer_load_dwordx4 {a(CA + 16*tb_ + 4*j, 4)}, v1, s[16:19], s13 offen{SC}")
    for q in range(12): A(f"s_mov_b32 s13, {WS_CT + (16+q)*1024}\nbuffer_load_dwordx4 {a(CA + 32 + 4*q, 4)}, v1, s[16:19], s13 offen{SC}")
    for tb_ in range(4):
        A(f"s_add_u32 s13, s30, {(28 + 8*tb_)*1024}")
        for q in range(4): A(f"buffer_load_dwordx4 {v(TW + 16*tb_ + 4*q, 4)}, v1, s[16:19], s13 offen offset:{q*1024}{SC}")
    A(f"s_min_u32 s13, s{sCol}, 256\ns_lshl_b32 s13, s13, 13\ns_lshl_b32 s14, s29, 12\ns_add_u32 s13, s13, s14\ns_add_u32 s13, s13, {WS_WT}")
    for q in range(4): A(f"buffer_load_dwordx4 {v(W + 4*q, 4)}, v1, s[16:19], s13 offen offset:{q*1024}{SC}")
def col_setup(A, sCol):
    A(f"""s_and_b32 s29, s9, 1
s_and_b32 s12, s{sCol}, 255
s_lshr_b32 s13, s12, 4
s_lshl_b32 s13, s13, 17
s_and_b32 s14, s12, 15
s_lshl_b32 s14, s14, 7
s_add_u32 s24, s13, s14
s_lshl_b32 s13, s29, 16
s_add_u32 s24, s24, s13
s_add_u32 s25, s24, {WS_FT}
s_add_u32 s26, s24, {WS_GT}
s_lshr_b32 s28, s9, 1
s_lshl_b32 s28, s28, 13
s_lshl_b32 s27, s9, 12
v_lshrrev_b32 v2, 3, v0
v_and_b32 v3, 7, v0
v_bfe_u32 v4, v0, 4, 1
v_lshlrev_b32 v4, 2, v4
v_xor_b32 v4, v3, v4
v_lshlrev_b32 v4, 4, v4
v_lshl_add_u32 v4, v2, 11, v4
v_bfe_u32 v5, v0, 2, 2
v_lshrrev_b32 v6, 5, v0
v_lshl_add_u32 v7, v6, 2, v5
v_lshlrev_b32 v7, 7, v7
v_bfe_u32 v8, v0, 4, 1
v_lshl_add_u32 v7, v8, 5, v7
v_and_b32 v8, 3, v0
v_lshl_add_u32 v7, v8, 3, v7
v_add_u32 v7, s28, v7
v_lshrrev_b32 v8, 1, v5
v_lshl_add_u32 v9, v8, 6, v7
v_xor_b32 v8, 1, v8
v_lshl_add_u32 v10, v8, 6, v7
s_cmp_eq_u32 s{sCol}, 256
s_cselect_b64 vcc, -1, 0
s_cselect_b32 s15, 64, 0
v_cndmask_b32 v9, v9, v10, vcc
s_lshl_b32 s13, s29, 12
v_subrev_u32 v11, s13, v9
v_subrev_u32 v12, s13, v10
v_add_u32 v9, s13, v9
v_add_u32 v10, s13, v10
s_add_u32 s13, s27, 16384
v_add_u32 v13, s13, v1
v_xor_b32 v14, 4096, v13
v_and_b32 v15, 31, v0
v_and_b32 v8, 7, v0
v_xor_b32 v8, v8, v6
v_lshlrev_b32 v8, 4, v8
v_lshl_add_u32 v15, v15, 7, v8
s_add_u32 s13, s27, 32768
v_add_u32 v15, s13, v15
v_xor_b32 v8, v3, v2
v_lshlrev_b32 v8, 4, v8
v_lshl_add_u32 v8, v2, 7, v8
v_add_u32 v5, s13, v8
v_lshlrev_b32 v7, 4, v3
v_lshl_add_u32 v7, v2, 11, v7
v_add_u32 v7, s15, v7
s_cmp_eq_u32 s12, 0
s_cselect_b32 s13, 4, 8
v_mov_b32 v8, 0x80000000
v_cmp_gt_u32 vcc, s13, v3
v_cndmask_b32 v7, v8, v7, vcc""")

def col_task(A, P, sCol):
    A(f"s_cmp_ge_u32 s{sCol}, 257\ns_cbranch_scc1 {P}_idle")
    for j in range(4): A(f"s_add_u32 m0, s27, {j*1024}\ns_add_u32 s13, s25, {j*16384}\nbuffer_load_dwordx4 v4, s[16:19], s13 offen{SC} lds")
    A("s_waitcnt vmcnt(0)\ns_barrier")
    for ks in range(4):
        for jj in range(2):
            A(f"ds_read_b64_tr_b16 {v(XR + 4*ks + 2*jj, 2)}, v{9 if ks < 2 else 11} offset:{(16*ks + 8*jj)*128}")
            A(f"ds_read_b64_tr_b16 {v(XI + 4*ks + 2*jj, 2)}, v{10 if ks < 2 else 12} offset:{(16*ks + 8*jj)*128}")
    A(f"s_waitcnt lgkmcnt(0)\ns_cmp_lg_u32 s12, 0\ns_cbranch_scc1 {P}_cplx")
    for i in range(0, 16, 2): A(f"v_mov_b64 {v(XI+i,2)}, 0")
    A(f"{P}_cplx:")
    C64 = lambda ks: a(CA + 4*ks, 4); S64 = lambda ks: a(CA + 16 + 4*ks, 4)
    T32 = lambda which, kt: a(CA + 32 + 8*which + 4*kt, 4)
    Dr, Di = v(D, 16), v(D + 16, 16)
    def cmul(sign, cs):
        for r in range(0, 16, 2):
            dr, di = v(D + r, 2), v(D + 16 + r, 2)
            c, s_ = cs(r)
            n1 = " neg_lo:[1,0,0] neg_hi:[1,0,0]"
            t = T + 4 * ((r >> 1) & 1)
            A(f"v_pk_mul_f32 {v(t,2)}, {dr}, {c}\nv_pk_mul_f32 {v(t+2,2)}, {di}, {c}")
            A(f"v_pk_fma_f32 {v(t,2)}, {di}, {s_}, {v(t,2)}{n1 if sign > 0 else ''}\nv_pk_fma_f32 {v(t+2,2)}, {dr}, {s_}, {v(t+2,2)}{'' if sign > 0 else n1}")
            A(f"v_cvt_pk_bf16_f32 v{XR + r//2}, v{t}, v{t+1}\nv_cvt_pk_bf16_f32 v{XI + r//2}, v{t+2}, v{t+3}")
    for ks in range(4):
        mf32(A, Dr, v(XR + 4*ks, 4), C64(ks), ks == 0)
        for i in range(2): A(f"v_xor_b32 v{NG+4*ks+i}, 0x80008000, v{XR+4*ks+i}")
        mf32(A, Di, v(XI + 4*ks, 4), C64(ks), ks == 0)
        for i in range(2, 4): A(f"v_xor_b32 v{NG+4*ks+i}, 0x80008000, v{XR+4*ks+i}")
    for ks in range(4):
        mf32(A, Dr, v(XI + 4*ks, 4), S64(ks)); mf32(A, Di, v(NG + 4*ks, 4), S64(ks))
    for r in range(16): A(f"v_and_b32 v{T+24+r}, 0xffff0000, v{W+r}\nv_lshlrev_b32 v{T+8+r}, 16, v{W+r}")
    cmul(-1, lambda r: (v(TW + r, 2), v(TW + 16 + r, 2)))
    for kt in range(2):
        mf32(A, Dr, T32(0, kt), v(XR + 4*kt, 4), kt == 0); mf32(A, Di, T32(0, kt), v(XI + 4*kt, 4), kt == 0)
    for kt in range(2):
        mf32(A, Dr, T32(1, kt), v(XI + 4*kt, 4)); mf32(A, Di, T32(2, kt), v(XR + 4*kt, 4))
    cmul(+1, lambda r: (v(T + 8 + r, 2), v(T + 24 + r, 2)))
    for kt in range(2):
        mf32(A, Dr, v(XR + 4*kt, 4), T32(3, kt), kt == 0); mf32(A, Di, v(XI + 4*kt, 4), T32(3, kt), kt == 0)
    for kt in range(2):
        mf32(A, Dr, v(XI + 4*kt, 4), T32(5, kt)); mf32(A, Di, v(XR + 4*kt, 4), T32(4, kt))
    cmul(+1, lambda r: (v(TW + 32 + r, 2), v(TW + 48 + r, 2)))
    for q in range(2): A(f"ds_write_b128 v13, {v(XR + 4*q, 4)} offset:{q*1024}\nds_write_b128 v13, {v(XI + 4*q, 4)} offset:{2048 + q*1024}")
    for i in range(8): A(f"v_xor_b32 v{NG+i}, 0x80008000, v{XI+i}")
    A("s_waitcnt lgkmcnt(0)\ns_barrier")
    for q in range(2): A(f"ds_read_b128 {v(XR + 8 + 4*q, 4)}, v14 offset:{q*1024}\nds_read_b128 {v(XI + 8 + 4*q, 4)}, v14 offset:{2048 + q*1024}")
    for ks in range(2):
        mf32(A, Dr, v(XR + 4*ks, 4), C64(ks), ks == 0); mf32(A, Di, v(XI + 4*ks, 4), C64(ks), ks == 0)
        mf32(A, Dr, v(NG + 4*ks, 4), S64(ks)); mf32(A, Di, v(XR + 4*ks, 4), S64(ks))
    A("s_waitcnt lgkmcnt(0)")
    for ks in range(2, 4):
        mf32(A, Dr, v(XR + 4*ks, 4), C64(ks))
        for i in range(4): A(f"v_xor_b32 v{NG+4*ks+i}, 0x80008000, v{XI+4*ks+i}")
        mf32(A, Di, v(XI + 4*ks, 4), C64(ks))
        mf32(A, Di, v(XR + 4*ks, 4), S64(ks)); mf32(A, Dr, v(NG + 4*ks, 4), S64(ks))
    for part in range(2):
        for q in range(2):
            for i in range(4): A(f"v_cvt_pk_bf16_f32 v{TW + 8*part + 4*q + i}, v{D + 16*part + 8*q + 2*i}, v{D + 16*part + 8*q + 2*i + 1}")
            if part or q: A(f"v_xor_b32 v8, {(2*q + 4*part)*16}, v15")
            A(f"ds_write_b128 v{8 if (part or q) else 15}, {v(TW + 8*part + 4*q, 4)}")
    A("s_waitcnt lgkmcnt(0)")
    for i in range(4): A(f"ds_read_b128 {v(XR + 4*i, 4)}, v5 offset:{i*1024}")
    for i in range(4):
        A(f"s_add_u32 s13, s26, {i*16384}\ns_waitcnt lgkmcnt({3-i})\nbuffer_store_dwordx4 {v(XR + 4*i, 4)}, v7, s[16:19], s13 offen{SC}")
    A(f"s_branch {P}_fin\n{P}_idle:\ns_barrier\ns_barrier\n{P}_fin:")

IR, IB, ID, IS = 16, 48, 64, 8
def inv_prefetch(A, sSeg):
    A(f"s_lshl_b32 s24, s9, 17\ns_add_u32 s24, s24, {WS_TI}\ns_lshl_b32 s14, s9, 15\ns_add_u32 s14, s14, 32768\nv_add_u32 v4, s14, v1")
    for n in range(128):
        if n in (48, 96): A("s_waitcnt vmcnt(14)")
        A(f"s_add_u32 s13, s24, {(n & 3)*32768 + (n >> 2)*1024}")
        if n < 96: A(f"buffer_load_dwordx4 {a(4*n, 4) if n < 64 else v(128 + 4*(n-64), 4)}, v1, s[16:19], s13 offen{SC}")
        else: A(f"s_add_u32 m0, s14, {(n-96)*1024}\ns_nop 0\nbuffer_load_dwordx4 v1, s[16:19], s13 offen{SC} lds")
    A(f"""s_lshl_b32 s12, s{sSeg}, 11
s_lshl_b32 s13, s9, 19
s_add_u32 s12, s12, s13
s_add_u32 s12, s12, {WS_GT}
s_lshl_b32 s14, s9, 13
s_lshl_b32 s25, s{sSeg}, 15
s_add_u32 s25, s25, s14
s_add_u32 s26, s25, {WS_XB}
s_add_u32 s27, s26, 4096
v_bfe_u32 v5, v0, 2, 2
v_lshrrev_b32 v6, 5, v0
v_lshl_add_u32 v7, v6, 3, v5
v_lshlrev_b32 v7, 6, v7
v_bfe_u32 v8, v0, 4, 1
v_lshl_add_u32 v7, v8, 5, v7
v_and_b32 v8, 3, v0
v_lshl_add_u32 v7, v8, 3, v7
v_and_b32 v3, 31, v0
v_lshlrev_b32 v5, 3, v3""")
def inv_resid(A):
    for k in range(8): A(f"buffer_load_dwordx4 {v(IR + 4*k, 4)}, v1, s[16:19], s{26 if k < 4 else 27} offen offset:{1024*(k&3)}{SC}")

def inv_task(A, P, sSeg, sLayer, sOut):
    A.reset_counts()
    for j in range(8):
        A(f"s_add_u32 m0, s14, {j*1024}\ns_add_u32 s13, s12, {(j>>1)*131072 + (j&1)*1024}")
        A(f"buffer_load_dwordx4 v1, s[16:19], s13 offen{SC} lds")
    A("s_waitcnt vmcnt(0)\ns_barrier")
    def bread(ks):
        t = None
        for jj in range(2): t = A(f"ds_read_b64_tr_b16 {v(IB + 4*(ks & 3) + 2*jj, 2)}, v7 offset:{(16*ks + 4*jj)*64}")
        return t
    bt = [bread(k) for k in range(3)]
    lt = {}
    freg = lambda n: a(4 * n, 4) if n < 64 else (v(128 + 4 * (n - 64), 4) if n < 96 else a(4 * (n - 96), 4))
    for ks in range(32):
        for t in range(4):
            n = ks * 4 + t
            need = [bt[ks]] + ([lt[n]] if n in lt else [])
            ns = [A.lgk_n(x) for x in need if A.lgk_n(x) is not None]
            if ns: A(f"s_waitcnt lgkmcnt({min(ns)})")
            mf32(A, v(ID + 16*t, 16), freg(n), v(IB + 4*(ks & 3), 4), ks == 0)
            if t == 0 and ks + 3 < 32: bt.append(bread(ks + 3))
            if 4 <= n < 36: lt[92 + n] = A(f"ds_read_b128 {a(4*(n-4), 4)}, v4 offset:{(n-4)*1024}")
    resid_add(A, 128, ID, IR, 32, 8)
    A(f"s_cmp_eq_u32 s{sLayer}, 0\ns_cbranch_scc1 {P}_mid")
    set_srd(A, 20, sOut, 2 * MB)
    A(f"v_lshlrev_b32 v4, 10, v3\nv_lshl_add_u32 v4, v6, 4, v4\ns_lshl_b32 s13, s{sSeg}, 15\ns_lshl_b32 s15, s9, 8\ns_add_u32 s13, s13, s15")
    for k in range(8): A(f"buffer_store_dwordx4 {v(128 + 4*k, 4)}, v4, s[20:23], s13 offen offset:{32*k}")
    A(f"s_branch {P}_iend\n{P}_mid:")
    A(f"s_add_u32 s26, s25, {WS_XA}\ns_add_u32 s27, s26, 4096\ns_add_u32 s28, s25, 4096")
    for k in range(8): A(f"buffer_store_dwordx4 {v(128 + 4*k, 4)}, v1, s[16:19], s{26 if k < 4 else 27} offen offset:{1024*(k&3)}{SC}")
    unpack(A, ID, 128, 32)
    A("s_barrier")
    layernorm(A, ID, 64, 48, 5, 32768, 4, IR)
    for k in range(8): A(f"buffer_store_dwordx4 {v(IR + 4*k, 4)}, v1, s[16:19], s{25 if k < 4 else 28} offen offset:{1024*(k&3)}{SC}")
    A(f"{P}_iend:")
```

```python
from common import *
import chain
from kkv import kv_task, kvf_task
from katt import att_task, tail_task, mini_r1, mini_r1_pre
from kmisc import *
from klayer import poll_until, wg_atomic, role_poll, init_wait, r1_task, TMO, DBG

def arrive(A, lab, addr_code, atomic=True, wave0=True, val=1):
    A(addr_code)
    A(f"v_mov_b32 v2, {val}")
    if wave0: A(f"s_cmp_lg_u32 s9, 0\ns_cbranch_scc1 {lab}")
    A("s_mov_b64 exec, 1\n" + ("buffer_atomic_add v2, off, s[16:19], s13" if atomic else "buffer_store_dword v2, off, s[16:19], s13 sc1") + "\ns_mov_b64 exec, -1")
    if wave0: A(f"{lab}:")

def wait16(A, lab, off, expect, base=56, wave0=True, first_extra=0, sleep=4, r=2, n=16, sh=4):
    if wave0: A(f"s_cmp_lg_u32 s9, 0\ns_cbranch_scc1 {lab}_ok")
    mk = hex((1 << n) - 1)
    A(f"v_lshlrev_b32 v{r}, {sh}, v1\nv_mov_b32 v{r+2}, {expect}")
    if first_extra: A(f"v_writelane_b32 v{r+2}, {expect + first_extra}, 0")
    poll_until(A, lab, f"s_add_u32 s13, s{base}, {off}\ns_mov_b32 exec_hi, 0\ns_mov_b32 exec_lo, {mk}\nbuffer_load_dword v{r+1}, v{r}, s[16:19], s13 offen sc1\ns_mov_b64 exec, -1",
               f"v_cmp_ge_u32 vcc, v{r+1}, v{r+2}\ns_and_b32 s13, vcc_lo, {mk}\ns_cmp_eq_u32 s13, {mk}", sleep=sleep)
    if wave0: A("s_barrier")

def init_kernel(opt):
    A = Asm(); P = "ini"
    std_prologue(A, P, 80, [(4, KA_WS)])
    set_srd(A, 16, 4, WS_SIZE)
    A(f"""v_lshlrev_b32 v1, 4, v0
s_lshl_b32 s12, s2, 2
s_add_u32 s12, s12, s9
s_cmp_ge_u32 s12, 160
s_cselect_b32 s13, {MB - 160*4096}, 0
s_cselect_b32 s15, 160, 0
s_lshl_b32 s14, s12, 12
s_add_u32 s13, s13, s14
s_add_u32 s13, s13, {WS_SYNC}
s_sub_u32 s12, s12, s15
s_lshr_b32 s12, s12, 3
s_cmp_eq_u32 s12, 16
s_cselect_b32 s14, -1, 0
v_mov_b32 v4, s14
v_mov_b32 v5, s14
v_mov_b32 v6, s14
v_mov_b32 v7, s14""")
    for k in range(4): A(f"buffer_store_dwordx4 v[4:7], v1, s[16:19], s13 offen offset:{1024*k}")
    A(f"s_waitcnt vmcnt(0)\n{P}_end:\ns_endpgm")
    A.fix_hazards()
    return A, dict(name="init_kernel", grid=80, block=256, lds=0, vgpr=8, accum=8)

def mega_kernel(opt):
    A = Asm(strict=opt.get("strict", False)); P = "lay"
    rt = opt.get("rt")
    def stamp(k):
        if rt: A(f"""s_memrealtime s[86:87]
s_lshl_b32 s88, s75, 4
s_add_u32 s88, s88, {k}
s_lshl_b32 s88, s88, 10
s_lshl_b32 s89, s60, 2
s_add_u32 s88, s88, s89
s_add_u32 s88, s88, {WS_FLAG + 640*1024}
s_waitcnt lgkmcnt(0)
v_mov_b32 v2, s86
buffer_store_dword v2, off, s[16:19], s88""")
    A(f"""s_cmp_ge_u32 s2, 256
s_cbranch_scc1 {P}_end
s_load_dwordx2 s[4:5], s[0:1], {KA_WS}
s_load_dwordx4 s[40:43], s[0:1], {KA_WQ}
s_load_dwordx4 s[44:47], s[0:1], {KA_WV}
s_load_dwordx2 s[48:49], s[0:1], {KA_MEM0}
s_load_dwordx2 s[76:77], s[0:1], {KA_X}
s_load_dwordx2 s[78:79], s[0:1], {KA_WR}
s_load_dwordx4 s[80:83], s[0:1], {KA_WI}
s_load_dwordx2 s[6:7], s[0:1], {KA_DBG}
s_getreg_b32 s8, hwreg(HW_REG_XCC_ID)
v_lshrrev_b32 v1, 6, v0
v_and_b32 v0, 63, v0
v_readfirstlane_b32 s9, v1
s_and_b32 s8, s8, 15
v_lshlrev_b32 v1, 4, v0
s_mov_b32 s56, {WS_SYNC}""")
    if opt.get("force_fb"): A("s_and_b32 s8, s2, 15")
    A("s_waitcnt lgkmcnt(0)")
    set_srd(A, 16, 4, WS_SIZE)
    set_srd(A, 92, 6, 256)
    A("s_lshl_b32 s10, s8, 2\ns_add_u32 s10, s10, 128\ns_cmp_eq_u32 s8, 0\ns_cselect_b32 s10, 0, s10")
    wg_atomic(A, f"{P}_t", 10, 12, DBG)
    A(f"""s_cmp_ge_u32 s12, 32
s_cbranch_scc1 {P}_slowrole
s_cmp_eq_u32 s8, 0
s_cbranch_scc1 {P}_member
s_cmp_ge_u32 s8, 8
s_cbranch_scc1 {P}_slowrole
s_sub_u32 s60, s8, 1
s_lshl_b32 s60, s60, 5
s_add_u32 s60, s60, s12
s_mov_b32 s61, 0
{P}_bulk:
v_mov_b32 v2, 0
v_readfirstlane_b32 s75, v2
; logical rank from (g,i) = (rank/28, rank%28)
s_mov_b32 s57, s60
s_mul_i32 s13, s57, 2341
s_lshr_b32 s13, s13, 16
s_mul_i32 s14, s13, 28
s_sub_u32 s14, s57, s14
s_lshl_b32 s60, s14, 3
s_add_u32 s60, s60, s13
s_cmp_lt_u32 s14, 8
s_cbranch_scc1 {P}_lr
s_sub_u32 s15, s14, 8
s_lshr_b32 s60, s15, 1
s_lshl_b32 s60, s60, 4
s_and_b32 s15, s15, 1
s_add_u32 s60, s60, s15
s_lshl_b32 s15, s13, 1
s_add_u32 s60, s60, s15
s_add_u32 s60, s60, 64
s_cmp_lt_u32 s14, 16
s_cbranch_scc1 {P}_lr
s_sub_u32 s15, s14, 16
s_lshr_b32 s60, s15, 2
s_lshl_b32 s60, s60, 5
s_and_b32 s15, s15, 3
s_add_u32 s60, s60, s15
s_lshl_b32 s15, s13, 2
s_add_u32 s60, s60, s15
s_add_u32 s60, s60, 128
{P}_lr:
s_movk_i32 s85, 200
s_cmp_lt_u32 s60, 64
s_cselect_b32 s85, s60, s85
s_sub_u32 s13, s60, 64
s_sub_u32 s14, s60, 128
s_cmp_lt_u32 s14, 32
s_cselect_b32 s85, s13, s85
s_sub_u32 s13, s60, 96
s_cmp_ge_u32 s60, 192
s_cselect_b32 s85, s13, s85
s_cmp_eq_u32 s60, 191
s_cselect_b32 s85, 128, s85
s_sub_u32 s66, s60, 64
s_cmp_ge_u32 s66, 64
s_cbranch_scc1 {P}_noln""")
    ln1_task(A, 66, 76)
    A(f"""{P}_noln:
s_cmp_lg_u32 s61, 0
s_cbranch_scc1 {P}_ver""")
    role_poll(A, f"{P}_rp1", 2)
    A(f"""s_cmp_eq_u32 s13, 0
s_cbranch_scc1 {P}_irr
{P}_ver:""")
    init_wait(A, f"{P}_iw")
    A(f"s_barrier\ns_cmp_ge_u32 s66, 64\ns_cbranch_scc1 {P}_layer")
    xnf = lambda sreg, extra: f"s_lshr_b32 s13, s{sreg}, 2\ns_lshl_b32 s13, s13, 8\ns_and_b32 s14, s{sreg}, 3\ns_lshl_b32 s14, s14, 2\ns_add_u32 s13, s13, s14\ns_add_u32 s13, s13, s56\ns_add_u32 s13, s13, {SY_XNF + extra}"
    stamp(9)
    arrive(A, f"{P}_a0", xnf(66, 0), atomic=False)
    xck = "v_and_b32 v16, v16, v17\nv_and_b32 v18, v18, v19\nv_and_b32 v16, v16, v18\nv_readfirstlane_b32 s13, v16\ns_cmp_lg_u32 s13, 0"
    xad = f"s_lshl_b32 s35, s66, 8\ns_add_u32 s35, s35, s56\ns_add_u32 s35, s35, {SY_XNF}"
    xld = "buffer_load_dwordx4 v[16:19], off, s[16:19], s35 sc1"
    kvf_addr = f"s_lshl_b32 s13, s67, 8\ns_lshl_b32 s14, s66, 2\ns_add_u32 s13, s13, s14\ns_add_u32 s13, s13, s56\ns_add_u32 s13, s13, {SY_KVF}"
    A(f"""{P}_layer:
s_cmp_ge_u32 s85, 128
s_cbranch_scc1 {P}_nofast
s_mov_b32 s13, s85
s_lshr_b32 s67, s13, 5
s_lshl_b32 s67, s67, 3
s_and_b32 s14, s13, 7
s_add_u32 s67, s67, s14
s_bfe_u32 s68, s13, 0x10003
s_bfe_u32 s66, s13, 0x10004
{P}_kvf:""")
    def xwf(B):
        B(f"{xad}\ns_cmp_lg_u32 s9, 0\ns_cbranch_scc1 {P}_xf_ok")
        poll_until(B, f"{P}_xf", xld, xck, sleep=1)
        B("s_barrier")
    kvf_task(A, "kvf", 66, 67, 68, xwf)
    A("s_waitcnt vmcnt(0)\ns_barrier")
    stamp(8)
    arrive(A, f"{P}_af", kvf_addr)
    A(f"""s_cmp_eq_u32 s68, 2
s_cbranch_scc1 {P}_qret
{P}_nofast:
s_lshr_b32 s62, s57, 5
s_and_b32 s63, s57, 31
s_cmp_lt_u32 s62, 4
s_cselect_b32 s64, 5, 4
s_movk_i32 s65, 16384
s_cselect_b32 s65, 13108, s65
{P}_kvl:
s_mul_i32 s66, s63, s65
s_lshr_b32 s66, s66, 16
s_mul_i32 s13, s66, s64
s_sub_u32 s13, s63, s13
s_mul_i32 s13, s13, 7
s_add_u32 s67, s13, s62
s_add_u32 s66, s66, 2""")
    def xw0(B): B(xad + "\n" + xld)
    def xw1(B):
        B(f"s_waitcnt vmcnt(24)\n{xck}\ns_cbranch_scc1 {P}_xw_ok")
        poll_until(B, f"{P}_xw", xld, xck, sleep=2)
    kv_task(A, "lkv", 66, 67, sc1=True, xwait=(xw0, xw1))
    A("s_waitcnt vmcnt(0)\ns_barrier")
    arrive(A, f"{P}_a1", kvf_addr, val=2)
    A(f"""s_add_u32 s63, s63, 32
s_mul_i32 s13, s64, 14
s_cmp_lt_u32 s63, s13
s_cbranch_scc1 {P}_kvl""")
    stamp(0)
    A(f"s_cmp_lg_u32 s75, 0\ns_cbranch_scc1 {P}_notab")
    table_task(A, "tab", 60, 78, 80)
    A("s_waitcnt vmcnt(0)\ns_barrier")
    arrive(A, f"{P}_a2", f"s_and_b32 s13, s60, 15\ns_lshl_b32 s13, s13, 8\ns_add_u32 s13, s13, {WS_SYNC + SY_TBL}")
    A(f"""{P}_notab:
s_cmp_lt_u32 s60, 192
s_cbranch_scc1 {P}_noq
s_sub_u32 s67, s60, 192
s_mov_b32 s66, 14
s_mov_b32 s68, 2
s_branch {P}_kvf
{P}_qret:
s_add_u32 s66, s66, 1
s_cmp_eq_u32 s66, 15
s_cbranch_scc1 {P}_kvf
s_branch {P}_srv
{P}_noq:
s_lshr_b32 s68, s60, 6
s_min_u32 s68, s68, 2
s_lshl_b32 s13, s68, 6
s_sub_u32 s13, s60, s13
s_add_u32 s14, s68, 3
s_lshr_b32 s66, s13, s14
s_lshl_b32 s15, s66, s14
s_sub_u32 s67, s13, s15
s_cmp_eq_u32 s68, 0
s_cselect_b32 s13, 0, 4
s_lshl_b32 s14, s68, 2
s_add_u32 s13, s13, s14
s_add_u32 s66, s66, s13
{P}_att:
s_lshr_b32 s69, 4, s68
s_mul_i32 s70, s67, s69
s_lshl_b32 s71, 1, s69
s_sub_u32 s71, s71, 1
s_lshl_b32 s72, s70, 8
s_add_u32 s72, s72, s56""")
    def kvwait(B):
        poll_until(B, f"{P}_kw", f"v_lshlrev_b32 v14, 4, v1\ns_lshl_b32 s13, s66, 2\ns_add_u32 s13, s13, s72\ns_add_u32 s13, s13, {SY_KVF}\ns_mov_b64 exec, 15\nbuffer_load_dword v15, v14, s[16:19], s13 offen sc1\ns_mov_b64 exec, -1",
                   "v_cmp_le_u32 vcc, 2, v15\ns_and_b32 s13, vcc_lo, s71\ns_cmp_eq_u32 s13, s71", sleep=8)
    def pwait(B):
        B(f"s_cmp_lg_u32 s9, 0\ns_cbranch_scc1 {P}_pw_ok")
        poll_until(B, f"{P}_pw", f"v_lshlrev_b32 v14, 4, v1\ns_add_u32 s13, s72, {SY_PROG}\ns_mov_b64 exec, 15\nbuffer_load_dword v15, v14, s[16:19], s13 offen sc1\ns_mov_b64 exec, -1",
                   "s_lshl_b32 s14, s66, 2\ns_add_u32 s14, s14, 4\nv_cmp_le_u32 vcc, s14, v15\ns_and_b32 s13, vcc_lo, s71\ns_cmp_eq_u32 s13, s71", sleep=opt.get("psleep", 6))
        B("s_barrier")
    att_task(A, "lat", 66, 70, 67, 69, sc1=True, waitfn=pwait, kvwait=kvwait)
    A("v_lshrrev_b32 v0, 4, v1\ns_waitcnt vmcnt(0)\ns_barrier")
    stamp(1)
    A(f"s_lshl_b32 s73, s66, 8\ns_add_u32 s73, s73, s56")
    arrive(A, f"{P}_a3", f"s_add_u32 s13, s73, {SY_CNT}")
    A(f"s_mov_b32 s74, {WS_SYNC}")
    wait16(A, f"{P}_tw", SY_TBL, 14, base=74)
    A("s_and_b32 s74, s67, 3")
    r2_prefetch(A, 74)
    def cwait(lab, off):
        A(f"s_cmp_lg_u32 s9, 0\ns_cbranch_scc1 {lab}_ok")
        poll_until(A, lab, f"s_add_u32 s13, s73, {off}\nbuffer_load_dword v2, off, s[16:19], s13 sc1", "v_readfirstlane_b32 s13, v2\ns_lshl_b32 s14, 8, s68\ns_cmp_ge_u32 s13, s14", sleep=2)
        A("s_barrier")
    cwait(f"{P}_cw", SY_CNT)
    stamp(2)
    r1_task(A, P, 66, 67, 68, sc1=True)
    A("s_waitcnt vmcnt(0)\ns_barrier")
    arrive(A, f"{P}_a4", f"s_add_u32 s13, s73, {SY_X1C}")
    A(f"s_cmp_ge_u32 s67, 16\ns_cbranch_scc1 {P}_nor2")
    cwait(f"{P}_x1", SY_X1C)
    stamp(3)
    A(f"{P}_r2l:\ns_lshr_b32 s84, s67, 2\ns_lshl_b32 s13, s66, 2\ns_add_u32 s84, s84, s13\n{P}_r2go:")
    r2_task(A, 84, 74)
    A("s_waitcnt vmcnt(0)\ns_barrier")
    arrive(A, f"{P}_a5", f"s_add_u32 s13, s73, {SY_FTC}")
    A(f"""s_lshl_b32 s13, 8, s68
s_add_u32 s67, s67, s13
s_cmp_lt_u32 s67, 16
s_cbranch_scc1 {P}_r2l
{P}_nor2:""")
    stamp(4)
    A(f"""s_cmp_ge_u32 s60, 192
s_cbranch_scc1 {P}_colp
s_cmp_ge_u32 s60, 128
s_cbranch_scc1 {P}_col
s_cmp_ge_u32 s60, 64
s_cbranch_scc1 {P}_inv
s_lshr_b32 s84, s60, 4
s_lshl_b32 s73, s84, 8
s_add_u32 s73, s73, s56
s_add_u32 s84, s84, 56
s_and_b32 s69, s60, 7
s_bfe_u32 s70, s60, 0x10003
s_lshl_b32 s72, s69, 10
s_add_u32 s72, s72, s56""")
    def tkw(B):
        B(f"s_cmp_lg_u32 s9, 0\ns_cbranch_scc1 {P}_tk_ok")
        poll_until(B, f"{P}_tk", f"v_lshlrev_b32 v14, 4, v1\ns_add_u32 s13, s72, {SY_KVF + 56}\ns_mov_b64 exec, 15\nbuffer_load_dwordx2 v[16:17], v14, s[16:19], s13 offen sc1\ns_mov_b64 exec, -1",
                   "v_min_u32 v15, v16, v17\nv_cmp_le_u32 vcc, 3, v15\ns_and_b32 s13, vcc_lo, 15\ns_cmp_eq_u32 s13, 15", sleep=8)
        B("s_barrier")
    def tpw(B):
        B(f"s_cmp_lg_u32 s9, 0\ns_cbranch_scc1 {P}_tp_ok")
        poll_until(B, f"{P}_tp", f"v_lshlrev_b32 v14, 4, v1\ns_add_u32 s13, s72, {SY_PROG}\ns_mov_b64 exec, 15\nbuffer_load_dword v15, v14, s[16:19], s13 offen sc1\ns_mov_b64 exec, -1",
                   "v_cmp_lt_u32 vcc, s84, v15\ns_and_b32 s13, vcc_lo, 15\ns_cmp_eq_u32 s13, 15", sleep=opt.get("tsleep", 2))
        B("s_barrier")
    tail_task(A, "tl", 84, 69, 70, tkw, tpw)
    A("s_waitcnt vmcnt(0)\ns_barrier")
    stamp(10)
    arrive(A, f"{P}_a8", f"s_add_u32 s13, s73, {SY_ROLE}")
    def twait(lab, off, n):
        A(f"s_cmp_lg_u32 s9, 0\ns_cbranch_scc1 {lab}_ok")
        poll_until(A, lab, f"s_add_u32 s13, s73, {off}\nbuffer_load_dword v2, off, s[16:19], s13 sc1", f"v_readfirstlane_b32 s13, v2\ns_cmp_ge_u32 s13, {n}", sleep=1)
        A("s_barrier")
    A(f"""s_cmp_ge_u32 s84, 60
s_cbranch_scc1 {P}_tend
s_sub_u32 s84, 119, s84
s_sub_u32 s73, s84, 56
s_lshl_b32 s73, s73, 8
s_add_u32 s73, s73, s56
s_branch tl_again
{P}_tend:
v_lshrrev_b32 v0, 4, v1
s_branch {P}_col
{P}_srv:
s_mov_b32 s74, {WS_SYNC}""")
    wait16(A, f"{P}_tw2", SY_TBL, 14, base=74)
    A(f"""s_lshl_b32 s84, s85, 1
s_lshr_b32 s13, s9, 1
s_add_u32 s84, s84, s13""")
    col_prefetch(A, 84)
    A(f"""s_and_b32 s74, s60, 3
s_sub_u32 s84, s60, 192
s_lshr_b32 s84, s84, 2
s_lshl_b32 s73, s84, 8
s_add_u32 s73, s73, s56
s_add_u32 s84, s84, 56
s_waitcnt vmcnt(20)""")
    r2_prefetch(A, 74)
    mini_r1_pre(A, 84, 74)
    twait(f"{P}_t1", SY_ROLE, 16)
    stamp(11)
    mini_r1(A, "tl", 84, 74)
    A("s_waitcnt vmcnt(0)\ns_barrier")
    arrive(A, f"{P}_a9", f"s_add_u32 s13, s73, {SY_ROLE + 2048}")
    twait(f"{P}_t2", SY_ROLE + 2048, 4)
    stamp(12)
    A(f"""s_movk_i32 s67, 100
s_mov_b32 s68, 2
s_lshr_b32 s73, s84, 2
s_lshl_b32 s73, s73, 8
s_add_u32 s73, s73, s56
s_branch {P}_r2go
{P}_inv:
s_sub_u32 s84, s60, 64""")
    inv_prefetch(A, 84)
    wait16(A, f"{P}_fw2", SY_FTC, 16, sleep=8, r=8)
    inv_resid(A)
    wait16(A, f"{P}_gw", SY_GTC, 4, first_extra=1, sleep=opt.get("gsleep", 2), r=8, n=32, sh=3)
    stamp(6)
    inv_task(A, "inv", 84, 75, 82)
    A("s_waitcnt vmcnt(0)\ns_barrier")
    stamp(7)
    arrive(A, f"{P}_a6", xnf(84, MB), atomic=False)
    A(f"""s_branch {P}_next
{P}_col:
s_cmp_ge_u32 s85, 129
s_cbranch_scc1 {P}_next
s_lshl_b32 s84, s85, 1
s_lshr_b32 s13, s9, 1
s_add_u32 s84, s84, s13""")
    col_prefetch(A, 84)
    A(f"{P}_colp:\ns_lshl_b32 s84, s85, 1\ns_lshr_b32 s13, s9, 1\ns_add_u32 s84, s84, s13")
    col_setup(A, 84)
    wait16(A, f"{P}_fw", SY_FTC, 16, sleep=1, r=16)
    stamp(5)
    col_task(A, "col", 84)
    stamp(14)
    A(f"s_waitcnt vmcnt(0)")
    stamp(13)
    A("s_barrier")
    arrive(A, f"{P}_a7", f"s_and_b32 s13, s85, 31\ns_lshl_b32 s13, s13, 7\ns_add_u32 s13, s13, s56\ns_add_u32 s13, s13, {SY_GTC}")
    A(f"""{P}_next:
s_cmp_lg_u32 s75, 0
s_cbranch_scc1 {P}_done
s_mov_b32 s75, 1
s_add_u32 s56, s56, {MB}
s_branch {P}_layer
{P}_slowrole:""")
    role_poll(A, f"{P}_rp2", 2)
    A(f"""{P}_irr:
s_min_u32 s74, s14, 32
s_sub_u32 s74, 32, s74
s_movk_i32 s10, 192
s_barrier""")
    wg_atomic(A, f"{P}_g", 10, 60, DBG)
    A(f"""s_mov_b32 s61, 1
s_cmp_ge_u32 s60, s74
s_cbranch_scc0 {P}_adopt
s_sub_u32 s60, s60, s74
s_cmp_ge_u32 s60, 224
s_cbranch_scc1 {P}_done
s_branch {P}_bulk
{P}_adopt:
s_sub_u32 s12, 31, s60
{P}_member:""")
    def modefn(B):
        role_poll(B, f"{P}_rp3", 32)
        B("s_cmp_ge_u32 s14, 32\ns_cselect_b32 s44, 1, 0")
        init_wait_c(B)
        B("s_mov_b32 s13, s44")
    def init_wait_c(B):
        poll_until(B, f"{P}_iw2", f"buffer_load_dword v32, off, {DBG}, 0 offset:4 sc1", "v_readfirstlane_b32 s13, v32\ns_cmp_ge_u32 s13, 32", sleep=2)
    def initfn(B, stage):
        if stage == 0:
            B(f"""s_and_b32 s13, s12, 15
s_lshl_b32 s13, s13, 2
s_add_u32 s13, s13, s9
s_mul_i32 s14, s13, 10240
s_lshr_b32 s13, s12, 4
s_lshl_b32 s13, s13, 20
s_add_u32 s15, s13, {WS_SYNC}""")
            for k in range(10):
                B(f"""s_sub_u32 s13, s14, {SY_MEM}
s_cmp_lt_u32 s13, 32768
s_cselect_b32 s13, -1, 0
v_mov_b32 v{48+4*(k&1)}, s13
v_mov_b32 v{49+4*(k&1)}, s13
v_mov_b32 v{50+4*(k&1)}, s13
v_mov_b32 v{51+4*(k&1)}, s13
s_add_u32 s13, s14, s15
buffer_store_dwordx4 {v(48+4*(k&1),4)}, v1, s[16:19], s13 offen sc1
s_add_u32 s14, s14, 1024""")
        else:
            B(f"v_mov_b32 v48, 1\ns_cmp_lg_u32 s9, 0\ns_cbranch_scc1 {P}_in1\ns_mov_b64 exec, 1\nbuffer_atomic_add v48, off, {DBG}, 0 offset:4\ns_mov_b64 exec, -1\n{P}_in1:")
    chain.chain_member(A, P, dict(opt.get("chain", {}), rt=rt, mega=1), modefn, initfn)
    A(f"{P}_done:\ns_waitcnt vmcnt(0)\n{P}_end:\ns_endpgm")
    A.fix_hazards(name=P, verbose=opt.get("verbose"))
    return A, dict(name="main_kernel" if opt.get("list") else "interleave_layers__memory_aug_recurrent_mem_tr__spectral_gfnet__prompt_kernel", plain=not opt.get("list"), grid=256, block=256, lds=163840, vgpr=512, accum=256)
```

```python
from common import *

LDS_MEM, LDS_K, LDS_V, LDS_F, LDS_O, LDS_OD, LDS_WQ = 0, 8192, 24576, 0, 4096, 6144, 32768
vKr = 16; sKm = 47
FS = 1088
vL16, vG512, vFw, vFr, vOw, vOr, vPst, vMst, vSamp, vIK, vIN = 1, 2, 3, 4, 5, 6, 7, 8, 9, 10, 11
vGat = 0
vAS = 12; vM1 = 16; vWq0 = 17; vWq1 = 18; vSmp = 19
vKQ = 20; vVP = 24; vPm = 28; vT0 = 30; vT1 = 31
vMEM = 32
vSx0, vSx1, vSm, vE, vPx, vL = 32, 36, 40, 44, 54, 58
vAk0, vAq0, vAk1, vAq1 = 64, 68, 72, 76
vF = 64; vOUT = 64
vAv0, vAv1 = 80, 84
vO0, vO1 = 96, 100
vThr = 9
KVSEG = 8192
PUBSEG = 4096
vSTG = 88
vVx = 88; vKx = 96
vOF = 32; vPK = 48; vRL = 56; vRA = 48; vRT = 52
vWo = 128
sW, sH, sStep, sKV, sPub, sPart, sInb, sMemN, sMemP, sGat, sPh, sT, sC, sDead = 9, 12, 24, 25, 26, 27, 28, 29, 30, 31, 32, 33, 34, 3
sMask = 36; sSync, sPartB, sMemB, sKVF = 56, 57, 58, 59
vKF = 9
SRD = "s[16:19]"; SRDW = "s[20:23]"
TMO = 200000
CPS = 8192 + 0
MSL = 13

def smf(A, d, am, b, idx): A(f"v_smfmac_f32_16x16x64_bf16 {v(d,4)}, {v(am,4)}, {b}, {v(idx)}")

def lane_consts(A, layer, opt):
    L = 0
    t0, t1, t2 = 20, 21, 22
    vGT = 30
    A(f"""v_lshlrev_b32 v{vL16}, 4, v0
v_lshrrev_b32 v{t0}, 4, v0
v_and_b32 v{t1}, 15, v0
v_lshlrev_b32 v{vG512}, 9, v{t0}
v_lshl_add_u32 v{vG512}, v{t1}, 4, v{vG512}
v_bfe_u32 v{t2}, v0, 3, 1
v_lshlrev_b32 v{vFw}, 8, v{t2}
v_lshl_add_u32 v{vFw}, v{t0}, 6, v{vFw}
v_and_b32 v{t2}, 7, v0
v_lshl_add_u32 v{vFw}, v{t2}, 3, v{vFw}
s_lshl_b32 s14, s9, 10
s_add_u32 s14, s14, {LDS_F}
v_add_u32 v{vFw}, s14, v{vFw}
v_and_b32 v{t2}, 3, v0
v_lshlrev_b32 v{vFr}, 6, v{t2}
v_bfe_u32 v{t2}, v0, 5, 1
v_lshl_add_u32 v{vFr}, v{t2}, 9, v{vFr}
v_bfe_u32 v{t2}, v0, 2, 3
v_lshl_add_u32 v{vFr}, v{t2}, 3, v{vFr}
v_add_u32 v{vFr}, {LDS_F}, v{vFr}
v_lshlrev_b32 v{vOw}, 7, v{t0}
v_bfe_u32 v{t2}, v0, 2, 2
v_lshl_add_u32 v{vOw}, v{t2}, 5, v{vOw}
v_and_b32 v{t2}, 1, v0
v_lshl_add_u32 v{vOw}, v{t2}, 4, v{vOw}
s_lshl_b32 s14, s9, 9
s_add_u32 s14, s14, {LDS_O}
v_add_u32 v{vOw}, s14, v{vOw}
v_add_u32 v{t2}, {LDS_OD - LDS_O + 8}, v{vOw}
s_lshl_b32 s15, s9, 9
v_subrev_u32 v{t2}, s15, v{t2}
v_and_b32 v23, 2, v0
v_cmp_ne_u32 vcc, 0, v23
v_cndmask_b32 v{vOw}, v{t2}, v{vOw}, vcc
v_mov_b32 v{t2}, 0x4444
v_mov_b32 v23, 0xeeee
v_cndmask_b32 v{vIK}, v{t2}, v23, vcc
v_and_b32 v24, 8, v0
v_cmp_ne_u32 vcc, 0, v24
v_cndmask_b32 v{vIN}, v{t2}, v23, vcc
v_lshlrev_b32 v{vOr}, 7, v{t0}
v_and_b32 v{t2}, 7, v0
v_lshl_add_u32 v{vOr}, v{t2}, 4, v{vOr}
v_add_u32 v{vOr}, {LDS_O}, v{vOr}
; vPst = (2w+sel)*8192 + (2*g1+(n>>3))*2048 + h*64 + (n&7)*8
v_lshrrev_b32 v{vPst}, 5, v0
s_lshl_b32 s13, s9, 1
v_add_u32 v{vPst}, s13, v{vPst}
v_lshlrev_b32 v{vPst}, 13, v{vPst}
v_bfe_u32 v{t2}, v0, 3, 2
v_lshl_add_u32 v{vPst}, v{t2}, 11, v{vPst}
v_and_b32 v{t2}, 7, v0
v_lshl_add_u32 v{vPst}, v{t2}, 3, v{vPst}
s_lshl_b32 s14, s12, 6
v_add_u32 v{vPst}, s14, v{vPst}
; vMst = h*256 + w*64 + gt*16 + cw*4 (lanes with n>=4 out of range)
v_lshlrev_b32 v{vMst}, 4, v{t0}
v_and_b32 v{t2}, 3, v0
v_lshl_add_u32 v{vMst}, v{t2}, 2, v{vMst}
s_lshl_b32 s14, s12, 6
s_lshl_b32 s15, s9, 11
s_add_u32 s14, s14, s15
v_add_u32 v{vMst}, s14, v{vMst}
v_and_b32 v24, 12, v0
v_cmp_ne_u32 vcc, 0, v24
v_mov_b32 v24, 0x80000000
v_cndmask_b32 v{vMst}, v{vMst}, v24, vcc
s_mov_b32 s{sMask}, 0xcccccccc
s_mov_b32 s{sMask+1}, 0xcccccccc
s_mov_b32 s{sT}, {f32bits(40.0):#x}
s_lshl_b32 s14, s9, 11
s_add_u32 s14, s14, {LDS_MEM}
v_add_u32 v19, s14, v{vL16}
v_lshlrev_b32 v{vGT}, 8, v{t0}
v_bfe_u32 v{t2}, v0, 3, 1
v_lshl_add_u32 v{vGT}, v{t2}, 7, v{vGT}
v_bfe_u32 v{t2}, v0, 1, 1
v_lshl_add_u32 v{vGT}, v{t2}, 6, v{vGT}
v_bfe_u32 v{t2}, v0, 2, 1
v_lshl_add_u32 v{vGT}, v{t2}, 5, v{vGT}
v_and_b32 v{t2}, 1, v0
v_lshl_add_u32 v{vGT}, v{t2}, 4, v{vGT}
v_lshrrev_b32 v{t2}, 2, v{t1}
v_and_b32 v23, 3, v{t1}
v_lshl_add_u32 v{t2}, v23, 2, v{t2}
v_mov_b32 v24, 0x3f80
v_mov_b32 v25, 0x3f800000
v_mov_b32 v26, 0x3f803f80""")
    for r in range(4):
        A(f"""v_mov_b32 v{vAS+r}, 0
v_cmp_eq_u32 vcc, {2*r}, v{t2}
v_cndmask_b32 v{vAS+r}, v{vAS+r}, v24, vcc
v_cmp_eq_u32 vcc, {2*r+1}, v{t2}
v_cndmask_b32 v{vAS+r}, v{vAS+r}, v25, vcc
v_cmp_le_u32 vcc, 8, v{t2}
v_cndmask_b32 v{vAS+r}, v{vAS+r}, v26, vcc""")
    A(f"""v_add_u32 v16, {LDS_K}, v{vG512}
s_lshl_b32 s13, s9, 14
s_add_u32 s13, s13, {LDS_WQ}
v_add_u32 v{vWq0}, s13, v{vL16}
v_add_u32 v{vWq1}, 0x10000, v{vWq0}
s_mov_b32 s{sC}, {f32bits(math.log2(math.e) / math.sqrt(128.0)):#x}""")

def weights_prologue(A, mid=None, opt={}, late=None):
    dA = [32, 33, 34, 35]; dO = [36, 37]; tA = [38, 39]; tO = 40; tc = [41, 42]
    x, y = 44, 45
    A(f"""; DMA source offsets for Wq/k/v : rr*8192 + ((cc ^ 2(rr&1) ^ 4j)*16)
v_lshrrev_b32 v{x}, 4, v0
v_and_b32 v{y}, 1, v{x}
v_lshlrev_b32 v{y}, 1, v{y}
v_and_b32 v46, 15, v0
v_xor_b32 v{y}, v{y}, v46
v_lshlrev_b32 v{x}, 13, v{x}""")
    for j in range(4):
        A(f"v_xor_b32 v46, {4*j}, v{y}\nv_lshl_add_u32 v{dA[j]}, v46, 4, v{x}")
    A(f"""; scalar bases
s_lshl_b32 s50, s12, 8
s_lshl_b32 s13, s9, 18
s_add_u32 s50, s50, s13        ; h*256 + w*32 rows*8192
s_lshl_b32 s51, s12, 17
s_lshl_b32 s13, s9, 13
s_add_u32 s51, s51, s13        ; h*131072 + w*8 rows*1024
s_lshl_b32 s52, s9, 13         ; w*8192 (lds)""")
    A(f"""; Wo DMA: (l ^ 4*((j&1) | ((w>>1)<<1)))*16
s_lshr_b32 s13, s9, 1
s_lshl_b32 s13, s13, 3
v_xor_b32 v{y}, s13, v0
v_lshlrev_b32 v{dO[0]}, 4, v{y}
v_xor_b32 v{y}, 4, v{y}
v_lshlrev_b32 v{dO[1]}, 4, v{y}""")
    mats = sum([[m_] * 4 for m_ in opt.get('word', [42, 44, 46])], []) + [40] * 4
    NT = ' nt' if opt.get('wnt', 1) else ''
    slot = lambda i: ((i + 4) % 5) * 32768
    def issue(i):
        if i % 4 == 0: set_srd(A, 20, mats[i], 4 * MB)
        c = i % 4
        tok = None
        for j in range(8):
            A(f"s_add_u32 m0, s52, {slot(i) + j*1024}")
            if mats[i] == 46:
                A(f"s_add_u32 s13, s51, {c*32768 + j*1024}")
                tok = A(f"buffer_load_dwordx4 v{dO[j&1]}, {SRDW}, s13 offen{NT} lds")
            else:
                A(f"s_add_u32 s13, s50, {(128*c + 4*j)*8192}")
                tok = A(f"buffer_load_dwordx4 v{dA[j&3]}, {SRDW}, s13 offen{NT} lds")
        return tok
    toks = {}
    for i in range(4): toks[i] = issue(i)
    mid(A)
    A(f"""; tr addr for Wq/k/v: row0=16(gb>>1)+4(gb&1)+(r&1)+8(r>>1); f=2(r&1)+4((gb&1)+2(r>>1)); chunk=4w+2te+(c>>1)
v_bfe_u32 v{x}, v0, 5, 1
v_lshlrev_b32 v{x}, 4, v{x}
v_bfe_u32 v46, v0, 4, 1
v_lshl_add_u32 v{x}, v46, 2, v{x}
v_lshlrev_b32 v{y}, 2, v46
v_bfe_u32 v46, v0, 2, 1
v_add_u32 v{x}, v{x}, v46
v_lshl_add_u32 v{y}, v46, 1, v{y}
v_bfe_u32 v46, v0, 3, 1
v_lshl_add_u32 v{x}, v46, 3, v{x}
v_lshl_add_u32 v{y}, v46, 3, v{y}
v_lshlrev_b32 v{x}, 8, v{x}
v_and_b32 v46, 1, v0
v_lshl_add_u32 v{x}, v46, 3, v{x}
v_bfe_u32 v46, v0, 1, 1
s_lshl_b32 s13, s9, 2
v_add_u32 v46, s13, v46
v_xor_b32 v46, v46, v{y}
v_lshl_add_u32 v{tA[0]}, v46, 4, v{x}
v_xor_b32 v46, 2, v46
v_lshl_add_u32 v{tA[1]}, v46, 4, v{x}
v_bfe_u32 v{x}, v0, 4, 1
v_lshlrev_b32 v{y}, 3, v{x}
v_lshlrev_b32 v{x}, 4, v{x}
v_bfe_u32 v46, v0, 5, 1
v_lshl_add_u32 v{x}, v46, 2, v{x}
v_bfe_u32 v46, v0, 2, 1
v_add_u32 v{x}, v{x}, v46
v_lshl_add_u32 v{y}, v46, 2, v{y}
v_lshlrev_b32 v{x}, 10, v{x}
v_and_b32 v46, 1, v0
v_lshl_add_u32 v{x}, v46, 3, v{x}
v_bfe_u32 v46, v0, 1, 1
v_bfe_u32 v47, v0, 3, 1
v_lshl_add_u32 v46, v47, 1, v46
v_add_u32 v46, s13, v46
v_xor_b32 v46, v46, v{y}
v_lshl_add_u32 v{tO}, v46, 4, v{x}""")
    for i in range(16):
        A.wvm(toks[i])
        A("s_barrier")
        if i == 11 and late: late(A)
        if i + 4 < 16: toks[i + 4] = issue(i + 4)
        c = i % 4
        if i == 14:
            for f in range(8):
                for part in range(2):
                    A(f"ds_write_b128 v{vWq0}, {v(64 + f*8 + part*4, 4)} offset:{f*2048 + part*1024}")
            A("s_waitcnt lgkmcnt(0)")
        if mats[i] == 46:
            A(f"v_add_u32 v{tc[0]}, {slot(i)}, v{tO}")
            for p in range(4):
                for xx in range(4):
                    A(f"ds_read_b64_tr_b16 {v(vWo + (p*4 + c)*8 + 2*xx, 2)}, v{tc[0]} offset:{(8*(xx>>1) + 2*(xx&1))*1024 + p*256}")
        else:
            A(f"v_add_u32 v{tc[0]}, {slot(i)}, v{tA[0]}\nv_add_u32 v{tc[1]}, {slot(i)}, v{tA[1]}")
            for tt in range(2):
                for te in range(2):
                    t = 2 * c + tt
                    for xx in range(4):
                        if mats[i] == 42: dst = a((t*2 + te)*8 + 2*xx, 2)
                        elif mats[i] == 44: dst = a(128 + (t*2 + te)*8 + 2*xx, 2)
                        else: dst = v(64 + (((t & 3)*2 + te)*8) + 2*xx, 2)
                        A(f"ds_read_b64_tr_b16 {dst}, v{tc[te]} offset:{(64*tt + 32*(xx>>1) + 2*(xx&1))*256}")
        A("s_waitcnt lgkmcnt(0)")
    A("s_barrier")
    for f in range(8):
        for part in range(2):
            A(f"ds_write_b128 v{vWq1}, {v(64 + f*8 + part*4, 4)} offset:{f*2048 + part*1024}")

NS = 6
SLQ = [5, 0, 1, 2, 3, 4]
def slot_reg(sl): return vAv0 if sl == 5 else vSTG + 8 * sl
def wq_read(A, i, sl):
    t, te = i >> 1, i & 1
    base = vWq0 if t < 4 else vWq1
    off = ((t & 3) * 2 + te) * 2048
    r = slot_reg(sl)
    return [f"ds_read_b128 {v(r,4)}, v{base} offset:{off}", f"ds_read_b128 {v(r+4,4)}, v{base} offset:{off+1024}"]

def step_scalars(A, layer, nxt):
    part = f"s{sPartB}"; mem = f"s{sMemB}"
    return f"""s_and_b32 s13, s{sStep}, 1
s_lshl_b32 s13, s13, 18
s_add_u32 s{sPart}, s13, {part}
s_add_u32 s{sInb}, s{sPart}, s43
s_add_u32 s13, s{sStep}, 1
s_and_b32 s13, s13, 3
s_lshl_b32 s13, s13, {MSL}
s_add_u32 s{sMemN}, s13, {mem}
s_and_b32 s13, s{sStep}, 3
s_lshl_b32 s13, s13, {MSL}
s_add_u32 s{sMemP}, s13, {mem}
s_lshr_b32 s13, s{sStep}, 1
s_and_b32 s13, s13, 1
s_xor_b32 s{sPh}, s13, 1""".split("\n")

def delay(A, c):
    c = max(0, c) // 4
    while c > 0:
        n = min(c, 16); A(f"s_nop {n-1}"); c -= n

def kv_dma(A):
    for (ldsb, so) in [(LDS_K, 0), (LDS_V, WS_V - WS_K)]:
        A(f"s_add_u32 m0, s54, {ldsb}\ns_add_u32 s13, s{sKV}, {so}")
        A(f"buffer_load_dwordx4 v{vL16}, {SRD}, s13 offen sc1 lds\nbuffer_load_dwordx4 v{vL16}, {SRD}, s13 offen offset:1024 sc1 lds")

gS = [48, 56]
rS = [56, 80, 32]
vFA = 16; sF1, sF2, sFv = 44, 45, 46; sF1w, sF2w = 50, 51
vLw = 19
sGat2 = 42
CHKFIRST = [True]

def gload(r): return [f"buffer_load_dwordx4 {v(r,4)}, v{vGat}, {SRD}, s{sGat} offen sc1", f"buffer_load_dwordx4 {v(r+4,4)}, v{vGat}, {SRD}, s{sGat} offen offset:1024 sc1"]
def gwrite(r): return f"ds_write_b128 v{vLw}, {v(r,4)}\nds_write_b128 v{vLw}, {v(r+4,4)} offset:1024"
def gproc(A, r, ny, spec=2):
    A(f"s_waitcnt vmcnt({ny+1})")
    if spec >= 1: A(f"ds_write_b128 v{vLw}, {v(r,4)}")
    A(f"v_max3_u32 v{vT0}, v{r}, v{r+1}, v{r+2}\ns_waitcnt vmcnt({ny})")
    if spec >= 2: A(f"ds_write_b128 v{vLw}, {v(r+4,4)} offset:1024")
    A(f"""v_max3_u32 v{vT0}, v{vT0}, v{r+3}, v{r+4}
v_max3_u32 v{vT0}, v{vT0}, v{r+5}, v{r+6}
v_max_u32 v{vT0}, v{vT0}, v{r+7}
v_cmp_eq_u32 vcc, -1, v{vT0}""")
def g2dma(): return f"buffer_load_dwordx4 v{vGat}, {SRD}, s{sGat2} offen sc1 lds"
def rload(r): return [f"buffer_load_dwordx4 {v(r,4)}, v{vL16}, {SRD}, s{sInb} offen sc1", f"buffer_load_dwordx4 {v(r+4,4)}, v{vL16}, {SRD}, s{sInb} offen offset:1024 sc1"]
def rproc(A, r, n_younger, st=None):
    A(f"""s_waitcnt vmcnt({n_younger+1})
v_mfma_f32_16x16x32_bf16 {v(vRA,4)}, {v(vAS,4)}, {v(r,4)}, 0
v_bitop3_b32 v{vT0}, v{r}, v{r+2}, s{sPh} bitop3:0x7e
s_waitcnt vmcnt({n_younger})""")
    if st: st(7)
    A(f"""v_mfma_f32_16x16x32_bf16 {v(vRA,4)}, {v(vAS,4)}, {v(r+4,4)}, {v(vRA,4)}
v_bitop3_b32 v{vT1}, v{r+4}, v{r+6}, s{sPh} bitop3:0x7e
v_bitop3_b32 v{vT0}, v{vT0}, v{vT1}, 1 bitop3:0xa8
v_cmp_ne_u32 vcc, 0, v{vT0}""")

def kvf_check(P):
    return f"""s_add_u32 s13, s{sStep}, 1
s_min_u32 s13, s13, 63
s_lshr_b32 s13, s13, 2
s_lshl_b32 s13, 2, s13
s_sub_u32 s13, s13, 1
{P}_kc:
v_cmp_le_u32 vcc, 2, v{vKF}
s_and_b32 s38, vcc_lo, s13
s_cmp_lg_u32 s38, s13
s_cbranch_scc1 {P}_kw
{P}_kok:"""
def kvf_wait(A, P, tmo):
    A(f"{P}_kw:")
    tmo(15, f"{P}_kto")
    A(f"""s_sleep 8
v_lshrrev_b32 v{vKF}, 2, v{vL16}
buffer_load_dword v{vKF}, v{vKF}, {SRD}, s{sKVF} offen sc1
s_waitcnt vmcnt(0)
s_branch {P}_kc
{P}_kto:
s_mov_b32 s{sDead}, {TMO}
s_branch {P}_kok""")

def pf_setup(w, opt):
    return [f"s_add_u32 s{sKV}, s{sKV}, {KVSEG}", f"s_xor_b32 s{sKm}, s{sKm}, 0x6000", f"v_xor_b32 v{vKr}, 0x6000, v{vKr}", f"s_add_u32 m0, s39, {LDS_MEM + 4096}"]

def pubmix():
    q = "quad_perm:[0,1,0,1] row_mask:0xf bank_mask:0xf"
    return [f"s_mov_b64 vcc, s[{sMask}:{sMask+1}]", f"v_mov_b32_dpp v{vT0}, v{vVP} {q}", f"v_mov_b32_dpp v{vT1}, v{vVP+2} {q}",
            f"v_cndmask_b32 v{vKQ}, v{vKQ}, v{vVP}, vcc", f"v_cndmask_b32 v{vKQ+1}, v{vKQ+1}, v{vVP+2}, vcc",
            f"v_cndmask_b32 v{vKQ+2}, v{vKQ+2}, v{vT0}, vcc", f"v_cndmask_b32 v{vKQ+3}, v{vKQ+3}, v{vT1}, vcc"]

def gather_events(p, w, opt):
    n1 = opt.get("n1", 2) if w < 2 else 0
    dg = opt.get("dg", 128)
    t0 = opt.get("d2", [120, 60, 0, 0])[w]
    return [(t0 + k * dg, gS[k]) for k in range(n1)], n1

def body(A, P, layer, p, w, fast, last, opt):
    SC = "" if fast else " sc1"
    sfx = "_l" if last else ""
    stamp = opt.get("stamp")
    def st(k):
        if stamp and not last and k in opt.get("st", range(11)): A(f"s_memtime s[{60+2*k}:{61+2*k}]")
        if not last and opt.get("wv") == k: A("s_memtime s[62:63]\ns_waitcnt vmcnt(0)\ns_memtime s[64:65]\ns_waitcnt lgkmcnt(0)\ns_sub_u32 s13, s64, s62\ns_add_u32 s83, s83, s13\ns_max_u32 s84, s84, s13")
        if not last and opt.get("cut") == k: A(f"s_add_u32 s{sStep}, s{sStep}, 1\ns_branch {P}_cutend")
    A.reset_counts()
    ev, n1 = gather_events(p, w, opt)
    nxt = [0]
    tk = {}
    nab = 1 if opt.get("abs") else 0
    B1 = None
    if w < 2:
        spec = opt.get("spec", 0)
        gproc(A, gS[0], 2 * (n1 - 1) + nab, spec)
        A(f"s_cbranch_vccnz {P}_gr{sfx}")
        for x in gwrite(gS[0]).split("\n")[spec:]: A(x)
        A(f"{P}_gok{sfx}:\ns_waitcnt lgkmcnt(0)")
        st(9)
    A("s_barrier")
    A(g2dma())
    A(f"{P}_entry{sfx}:")
    st(0)
    mrd = lambda t: f"ds_read_b128 {v(vMEM+4*t,4)}, v{vL16} offset:{LDS_MEM + t*1024}"
    mt = {}
    for t in range(3 if B1 is None else 2): mt[t] = A(mrd(t))
    A(f"s_mov_b32 m0, s{sKm}")
    seq = []
    for t in range(4): seq += [("k", 0, t), ("q", 0, t), ("k", 1, t), ("q", 1, t)]
    for te in range(2):
        for t in range(4, 8): seq += [("k", te, t), ("q", te, t)]
    N1 = 32
    V = [[] for _ in range(N1)]; S = [[] for _ in range(N1)]; X = [[] for _ in range(N1)]
    B2 = opt.get("b2", 12)
    quse = [(idx, 2 * t + te) for idx, (m, te, t) in enumerate(seq) if m == "q"]
    sl_seq = SLQ + [(n_ - 6) % 5 for n_ in range(6, 16)]
    slot = {f: sl_seq[n_] for n_, (idx, f) in enumerate(quse)}
    jobs = []
    lastuse = {}
    for n_, (idx, f) in enumerate(quse):
        if n_ >= NS:
            for x in wq_read(A, f, slot[f]): jobs.append((lastuse[slot[f]], idx, "wq", f, x))
        lastuse[slot[f]] = idx
    first = {}
    for idx, (m, te, t) in enumerate(seq): first.setdefault(t, idx)
    for t in range(3 if B1 is None else 2, 8): jobs.append(((0 if B1 is None else B1) if t < 4 else B2, first[t] - 3, "mem", t, mrd(t)))
    if not last:
        for n_, (c, u) in enumerate([(c, u) for c in range(2) for u in range(4)]):
            jobs.append((max(lastuse[1 + n_ // 2], opt.get("kx0", 24)), 100 + lastuse[1 + n_ // 2], "kx", n_, f"ds_read_b128 {v(vKx + (c*4+u)*4, 4)}, v{vKr} offset:{u*2048 + c*256}"))
        for n_ in range(2):
            jobs.append((max(lastuse[0], opt.get("kx0", 24)), 90, "kx", 8 + n_, f"ds_read_b128 {v(vVx+4*n_,4)}, v{vG512} offset:{LDS_V + w*2048 + 256*n_}"))
    D = [[] for _ in range(N1)]
    nod = set()
    for g_ in range(N1):
        cap = 2 if g_ in (B1, B2) else (0 if g_ in nod else 1)
        for _ in range(cap):
            av = [j for j in jobs if j[0] <= g_]
            if not av: break
            j = min(av, key=lambda j: j[1]); jobs.remove(j); D[g_].append(j[2:])
    assert all(j[2] == "kx" for j in jobs)
    X[B2].append(lambda: A(f"s_waitcnt vmcnt({nxt[0]})"))
    X[B2].append("s_barrier")
    for t in range(4, 8):
        r = vMEM + 4 * t
        V[first[t]].append(f"v_max_u32 v{vT0}, v{r}, v{r+1}" if t == 4 else f"v_max3_u32 v{vT0}, v{vT0}, v{r}, v{r+1}")
        V[first[t] + 1].append(f"v_max3_u32 v{vT0}, v{vT0}, v{r+2}, v{r+3}")
    V[24].append(f"v_cmp_eq_u32 vcc, -1, v{vT0}")
    f0 = [f"v_add_f32 v{vAk0}, v{vAk0}, v{vAk0+2}", f"v_add_f32 v{vAk0+1}, v{vAk0+1}, v{vAk0+3}",
          f"v_add_f32 v{vAq0}, v{vAq0}, v{vAq0+2}", f"v_add_f32 v{vAq0+1}, v{vAq0+1}, v{vAq0+3}",
          f"v_mul_f32 v{vAq0}, s{sC}, v{vAq0}", f"v_mul_f32 v{vAq0+1}, s{sC}, v{vAq0+1}",
          f"v_cvt_pk_bf16_f32 v{vKQ}, v{vAk0}, v{vAk0+1}"]
    for n_, x in enumerate(f0): V[25 + n_].append(x)
    for r in range(8): V[3 + r].append(f"v_mov_b32 v{vAv0+r}, 0")
    ext = []
    if not last and not opt.get("nokv"):
        ext.append(f"buffer_load_dwordx4 v{vL16}, {SRD}, s{sKV} offen sc1 lds")
        ext.append(f"buffer_load_dwordx4 v{vL16}, {SRD}, s{sKV} offen offset:1024 sc1 lds")
    if not opt.get("nopub"):
        ext.append(f"buffer_store_dwordx4 {v(vKQ,4)}, v{vL16}, {SRD}, s40 offen sc1")
        if w == 2: ext.append(f"v_mov_b32 v{vT1}, s41\ns_mov_b64 exec, 1\nbuffer_store_dword v{vT1}, off, {SRD}, s55 sc1\ns_mov_b64 exec, -1")
    if w == 3 and not last: ext.append(f"v_lshrrev_b32 v{vKF}, 2, v{vL16}\nbuffer_load_dword v{vKF}, v{vKF}, {SRD}, s{sKVF} offen sc1")
    pz = opt.get("pz", 2)
    pos_ = [pz + w + 4 * n_ for n_ in range(len(ext))]
    pos_ = [x if x < B2 - 1 else x + 4 for x in pos_]
    for n_, x in enumerate(ext): X[pos_[n_]].append(x)
    nxt[0] = sum(1 for x in pos_ if x < B2)
    S[26].append(f"s_add_u32 s{sGat}, s{sMemN}, s54"); S[28].append(f"s_add_u32 s{sGat2}, s{sMemN}, s52")
    wqtok = {}
    for idx, (m, te, t) in enumerate(seq):
        need = [mt[t]]
        if m == "q" and (2 * t + te) in wqtok: need.append(wqtok[2 * t + te])
        ns = [A.lgk_n(x) for x in need if A.lgk_n(x) is not None]
        if ns: A(f"s_waitcnt lgkmcnt({min(ns)})")
        if idx == 0 and not opt.get("abs"): st(1)
        if m == "k": smf(A, [vAk0, vAk1][te], vMEM + 4 * t, a((t * 2 + te) * 8, 8), vIK)
        else: smf(A, [vAq0, vAq1][te], vMEM + 4 * t, v(slot_reg(slot[2 * t + te]), 8), vIK)
        for x in X[idx]: (x() if callable(x) else A(x))
        for x in S[idx]: A(x)
        for (kind, key, txt) in D[idx]:
            tok = A(txt)
            {"wq": wqtok, "mem": mt, "kx": {}}[kind][key] = tok
        for x in V[idx]: A(x)
    st(2)
    def sv(j): smf(A, [vAv0, vAv1][j & 1], vMEM + 4 * (j >> 1), a(128 + j * 8, 8), vIK)
    kxr = [j[4] for j in jobs]
    if last: kxr = []
    def rdk(n_):
        for _ in range(n_):
            if kxr: A(kxr.pop(0))
    fsplit = opt.get("fsplit", 1) and not last
    sv(0); rdk(1); A(f"v_cvt_pk_bf16_f32 v{vKQ+1}, v{vAq0}, v{vAq0+1}")
    sv(1)
    if fsplit: A(f"ds_write_b64 v{vFw}, {v(vKQ,2)}")
    else: rdk(1)
    A(f"v_add_f32 v{vAk1}, v{vAk1}, v{vAk1+2}")
    A(f"""v_add_f32 v{vAk1+1}, v{vAk1+1}, v{vAk1+3}
v_add_f32 v{vAq1}, v{vAq1}, v{vAq1+2}
v_add_f32 v{vAq1+1}, v{vAq1+1}, v{vAq1+3}
v_cvt_pk_bf16_f32 v{vKQ+2}, v{vAk1}, v{vAk1+1}
v_mul_f32 v{vAq1}, s{sC}, v{vAq1}
v_mul_f32 v{vAq1+1}, s{sC}, v{vAq1+1}
v_cvt_pk_bf16_f32 v{vKQ+3}, v{vAq1}, v{vAq1+1}""")
    vfold = [f"v_add_f32 v{vAv0}, v{vAv0}, v{vAv0+2}", f"v_add_f32 v{vAv0+1}, v{vAv0+1}, v{vAv0+3}",
             f"v_cvt_pk_bf16_f32 v{vVP}, v{vAv0}, v{vAv0+1}", f"v_add_f32 v{vAv1}, v{vAv1}, v{vAv1+2}",
             f"v_add_f32 v{vAv1+1}, v{vAv1+1}, v{vAv1+3}", f"v_cvt_pk_bf16_f32 v{vVP+2}, v{vAv1}, v{vAv1+1}"]
    if last:
        A(f"s_cbranch_vccnz {P}_redo_l")
        A(f"ds_write2_b64 v{vFw}, {v(vKQ,2)}, {v(vKQ+2,2)} offset1:64")
        for j in range(2, 9): sv(j)
        A("s_waitcnt lgkmcnt(0)\ns_barrier")
        for jj in range(2): A(f"ds_read_b64_tr_b16 {v(vKQ + 2*jj, 2)}, v{vFr} offset:{1024*w + 256*jj}")
        for j in range(9, 16): sv(j)
        for x in vfold: A(x)
        A("s_waitcnt lgkmcnt(0)")
        for x in pubmix(): A(x)
        A(f"buffer_store_dwordx4 {v(vKQ,4)}, v{vL16}, {SRD}, s{sPub} offen sc1")
        return
    if fsplit:
        fw = A(f"ds_write_b64 v{vFw}, {v(vKQ+2,2)} offset:512")
        sv(2)
    else:
        sv(2)
        fw = A(f"ds_write2_b64 v{vFw}, {v(vKQ,2)}, {v(vKQ+2,2)} offset1:64")
    NBF = opt.get("nbf", 7)
    for j in range(3, NBF):
        sv(j)
        rdk(1)
    rdk(10)
    A(f"s_cbranch_vccnz {P}_redo")
    A.wlg(fw); A("s_barrier")
    st(3)
    ft = []
    for tr in range(2): ft.append(A(f"ds_read_b64_tr_b16 {v(vF + 2*tr, 2)}, v{vFr} offset:{256*tr}"))
    dma = [f"buffer_load_dwordx4 v{vL16}, {SRD}, s13 offen sc1 lds",
           f"buffer_load_dwordx4 v{vL16}, {SRD}, s13 offen offset:1024 sc1 lds"]
    if opt.get("nokv"): dma = []
    NV1 = opt.get("nv1", 12)
    A(f"s_add_u32 m0, s54, {LDS_V}\ns_add_u32 s13, s{sKV}, {WS_V - WS_K}")
    dpos = {opt.get("dz", 0) + w + 4 * n_: x for n_, x in enumerate(dma)}
    gi = [0]
    def gap():
        if gi[0] in dpos: A(dpos.pop(gi[0]))
        gi[0] += 1
    for j in range(NBF, NV1):
        sv(j); gap()
        u = j - NBF + 1
        if u < 4:
            for jj in range(2):
                ft.append(A(f"ds_read_b64_tr_b16 {v(vF + 4*u + 2*jj, 2)}, v{vFr} offset:{1024*u + 256*jj}"))
    st(4)
    def mf(d, aa, bb, first_):
        A(f"v_mfma_f32_16x16x32_bf16 {v(d,4)}, {v(aa,4)}, {v(bb,4)}, " + ("0" if first_ else v(d, 4)))
    ex = lambda k_, src: f"v_exp_f32 v{vE+k_}, v{src}"
    cv = lambda d, x: f"v_cvt_pk_bf16_f32 v{d}, v{x}, v{x+1}"
    sq = [("x", 0, u) for u in range(4)] + [("x", 1, u) for u in range(4)]
    sq += [("v", j, 0) for j in range(NV1, 16)] + [("m", 0, u) for u in range(4)]
    G = {}
    fill = [ex(0, vSx0), ex(1, vSx0 + 1), ex(2, vSx0 + 2), ex(3, vSx0 + 3), ex(4, vSx1), ex(5, vSx1 + 1), ex(6, vSx1 + 2), ex(7, vSx1 + 3)]
    pos = 6
    while fill and pos < len(sq):
        G.setdefault(pos, []).append(fill.pop(0)); pos += 1
    tail = fill + [cv(vPx, vE), cv(vPx + 1, vE + 2), cv(vPx + 2, vE + 4), cv(vPx + 3, vE + 6)]
    while tail and pos < len(sq):
        G.setdefault(pos, []).extend(tail[:2]); tail = tail[2:]; pos += 1
    A.wlg(ft[-1])
    for r in range(4): G.setdefault(r, []).append(f"v_mov_b32 v{vKQ+r}, v{vF+4*w+r}")
    for n_, (kind, tile, u) in enumerate(sq):
        if kind == "x": mf([vSx0, vSx1][tile], vKx + (tile * 4 + u) * 4, vF + 4 * u, u == 0)
        elif kind == "m": mf(vSm, vF + 4 * u, vF + 4 * u, u == 0)
        else: sv(tile)
        gap()
        for x in G.get(n_, []): A(x)
    for k_ in sorted(dpos): A(dpos[k_])
    for x in tail: A(x)
    m16 = lambda d, aa, bb: A(f"v_mfma_f32_16x16x16_bf16 {v(d,4)}, {v(aa,2)}, {v(bb,2)}, {v(d,4)}")
    A(vfold[0]); A(vfold[1])
    mf(vL, vAS, vPx, True); A(vfold[2]); A(vfold[3])
    mf(vO0, vVx, vPx, True); A(ex(8, vSm))
    mf(vO1, vVx + 4, vPx, True); A(ex(9, vSm + 1))
    A(vfold[4]); A(cv(vPm, vE + 8)); A(vfold[5])
    A(f"v_max3_f32 v{vT1}, |v{vSx0}|, |v{vSx0+1}|, |v{vSx0+2}|")
    m16(vL, vAS, vPm)
    A(f"v_max3_f32 v{vT1}, v{vT1}, |v{vSx0+3}|, |v{vSx1}|\nv_max3_f32 v{vT1}, v{vT1}, |v{vSx1+1}|, |v{vSx1+2}|")
    m16(vO0, vVP, vPm)
    A(f"v_max3_f32 v{vT1}, v{vT1}, |v{vSx1+3}|, |v{vSm}|\nv_max_f32 v{vT1}, v{vT1}, |v{vSm+1}|")
    m16(vO1, vVP + 2, vPm)
    A(f"v_rcp_f32 v{vT0}, v{vL+2}")
    A(f"v_cmp_lt_f32 vcc, s{sT}, v{vT1}")
    if opt.get("force_slow"): A(f"v_cmp_lt_f32 vcc, -1.0, v{vT1}")
    for r in range(4): A(f"v_mul_f32 v{vO0+r}, v{vT0}, v{vO0+r}")
    A(cv(vE, vO0)); A(cv(vE + 1, vO0 + 2))
    if opt.get("ow2", 1): A(f"ds_write_b64 v{vOw}, {v(vE,2)}")
    for r in range(2): A(f"v_pk_mul_f32 {v(vO1+2*r,2)}, {v(vO1+2*r,2)}, {v(vT0,2)} op_sel_hi:[1,0]")
    A(cv(vE + 2, vO1)); A(cv(vE + 3, vO1 + 2))
    ow = A(f"ds_write_b64 v{vOw}, {v(vE+2,2)} offset:8") if opt.get("ow2", 1) else A(f"ds_write_b128 v{vOw}, {v(vE,4)}")
    A(f"s_and_b64 vcc, vcc, s[{sMask}:{sMask+1}]\ns_cbranch_vccnz {P}_slow")
    A(f"{P}_norm:")
    for r in range(0, 8, 2): A(f"v_mov_b64 {v(vOUT+r,2)}, 0")
    A.wlg(ow); A("s_barrier")
    st(5)
    ot = [A(f"ds_read_b128 {v(vOF+4*kk,4)}, v{vOr} offset:{kk*512}") for kk in range(4)]
    A(f"s_add_u32 s13, s{sPart}, 0")
    for r in range(8, 16, 2): A(f"v_mov_b64 {v(vOUT+r,2)}, 0")
    pre = []
    for n_ in range(1, 6): pre += wq_read(A, quse[n_][1], SLQ[n_])
    def epi(pp):
        return [f"v_cvt_pk_bf16_f32 v{vPK+2*pp}, v{vOUT+4*pp}, v{vOUT+4*pp+1}",
                f"v_cvt_pk_bf16_f32 v{vPK+2*pp+1}, v{vOUT+4*pp+2}, v{vOUT+4*pp+3}",
                f"v_bfi_b32 v{vPK+2*pp}, 1, s{sPh}, v{vPK+2*pp}",
                f"buffer_store_dwordx2 {v(vPK+2*pp,2)}, v{vPst}, {SRD}, s13 offen{SC}"]
    if opt.get("e1fast", 1):
        e1 = 6; E = {5: epi(0), 9: epi(1), 13: epi(2)[0:1], 14: epi(2)[1:2], 15: epi(2)[2:3]}
    else:
        e1 = 9; E = {5: epi(0), 9: epi(1)[0:1], 10: epi(1)[1:2], 11: epi(1)[2:3], 12: epi(1)[3:4], 13: epi(2)[0:1], 14: epi(2)[1:2], 15: epi(2)[2:3]}
    rsch = opt.get("rs", [[16, 200], [120, 250], [260, 390], [320, 450]])[w]
    rtk = []
    def rissue():
        if opt.get("abs") and not rtk: A("s_memtime s[68:69]")
        for x in rload(rS[len(rtk)]): t_ = A(x)
        rtk.append(t_)
    for n_ in range(16):
        pp, kk = n_ >> 2, n_ & 3
        A.wlg(ot[kk])
        smf(A, vOUT + 4 * pp, vOF + 4 * kk, v(vWo + n_ * 8, 8), vIN)
        if n_ == 8: A(f"s_add_u32 s13, s{sPart}, {65536}")
        if n_ == 13: A(f"s_add_u32 s13, s{sPart}, {2*65536}")
        if n_ in rsch: rissue()
        elif pre and n_ >= 3 and n_ not in (5, e1 + 3): A(pre.pop(0))
        for x in E.get(n_, []): A(x)
        if n_ == 5: st(10)
    A(epi(2)[3])
    A(f"s_add_u32 s13, s{sPart}, {3*65536}")
    while pre: A(pre.pop(0))
    A(f"s_mov_b32 s40, s{sPub}\ns_add_u32 s{sPub}, s{sPub}, {PUBSEG}\ns_mov_b32 s14, 0\ns_mov_b32 s15, 0")
    for x in epi(3)[:3]: A(x)
    if 16 in rsch: rissue()
    A(epi(3)[3])
    st(6)
    idle = [f"v_mov_b64 {v(vAk0+r,2)}, 0" for r in range(0, 16, 2)]
    idle2 = pubmix()
    def wait_fill(d):
        while idle and d >= 4: A(idle.pop(0)); d -= 4
        delay(A, d)
    cur = 0
    for tm in [x - 100 for x in rsch if x >= 100]:
        wait_fill(tm - cur); cur = max(cur, tm) + 12
        rissue()
    while idle: A(idle.pop(0))
    opt["_rfirst"] = [A.vm_n(rtk[k_]) + 2 * k_ for k_ in range(1, len(rtk))]
    rproc(A, rS[0], A.vm_n(rtk[0]), st)
    A(f"""s_cbranch_vccnz {P}_rr
{P}_rok:
{"s_memtime s[66:67]" if opt.get("abs") else "s_nop 0"}
v_add_f32_dpp v{vRT}, v{vRA}, v{vRA} row_ror:4 row_mask:0xf bank_mask:0xf ;NOHAZ
v_add_f32_dpp v{vRT+1}, v{vRA+1}, v{vRA+1} row_ror:4 row_mask:0xf bank_mask:0xf ;NOHAZ
v_add_f32_dpp v{vRT+2}, v{vRT}, v{vRT} row_ror:8 row_mask:0xf bank_mask:0xf
v_add_f32_dpp v{vRT+3}, v{vRT+1}, v{vRT+1} row_ror:8 row_mask:0xf bank_mask:0xf
v_cvt_pk_bf16_f32 v{vT0}, v{vRT+2}, v{vRT+3}
buffer_store_dword v{vT0}, v{vMst}, {SRD}, s{sMemN} offen{SC}""")
    st(8)
    A(f"v_mov_b32 v{vT1}, -1\nbuffer_store_dword v{vT1}, v{vMst}, {SRD}, s{sMemP} offen{SC}")
    if opt.get("dumpmem"):
        A(f"s_lshl_b32 s13, s{sStep}, 16\ns_add_u32 s13, s13, {WS_OP + 65536}\nbuffer_store_dword v{vT0}, v{vMst}, {SRD}, s13 offen")
    idle += [f"s_mov_b32 s41, s{sStep}", f"s_add_u32 s{sStep}, s{sStep}, 1"] + idle2
    post = step_scalars(A, layer, 0) + pf_setup(w, opt)
    if stamp:
        idle += ["s_waitcnt lgkmcnt(0)"]
        for k_ in list(range(1, 9)) + [10]:
            idle += [f"s_sub_u32 s13, s{60+2*k_}, s60", f"s_add_u32 s{82+k_}, s{82+k_}, s13"]
        idle += ["s_sub_u32 s13, s60, s78", "s_add_u32 s91, s91, s13"]
    absd = []
    if opt.get("abs"):
        absd = ["s_waitcnt lgkmcnt(0)", f"s_lshl_b32 s13, s41, 13", f"s_lshl_b32 s38, s12, 8", "s_add_u32 s13, s13, s38", f"s_add_u32 s13, s13, {WS_OP + 8*MB + w*64}"]
        for k_ in range(11):
            absd += [f"v_writelane_b32 v{vT1}, s{60+2*k_}, {k_}"]
        absd += [f"v_lshrrev_b32 v{vT0}, 2, v{vL16}", f"s_mov_b64 exec, 0xffff", f"buffer_store_dword v{vT1}, v{vT0}, {SRD}, s13 offen", "s_mov_b64 exec, -1"]
    idle += post
    cur = 0
    done5 = False
    for n_, (tm, r) in enumerate(ev):
        if n_ == 1:
            A("s_waitcnt vmcnt(4)")
            for x in wq_read(A, 0, 5): A(x)
            cur += 12; done5 = True
        wait_fill(tm - cur); cur = max(cur, tm) + 12
        if r == gS[0]: st(1) if opt.get("abs") else None
        for x in gload(r): A(x)
    while idle: A(idle.pop(0))
    if w == 3: A(kvf_check(P))
    if not done5:
        A(f"s_waitcnt vmcnt({2 + 2 * n1})")
        for x in wq_read(A, 0, 5): A(x)
    for x in absd: A(x)

def variant(A, P, layer, p, w, fast, opt):
    A(f".p2align 6\n{P}_top:")
    body(A, P, layer, p, w, fast, False, opt)
    A(f"""{P}_cutend:
{"s_waitcnt lgkmcnt(0)" if "cut" in opt else ""}
s_cmp_lt_u32 s{sStep}, 63
s_cbranch_scc1 {P}_top""")
    body(A, P, layer, p, w, fast, True, opt)
    A(f"""s_waitcnt vmcnt(0)
s_barrier
v_mov_b32 v{vT1}, 64
s_branch {opt['_K']}_fin""")
    cn = lambda r: A(f"s_add_u32 s{r}, s{r}, 1") if opt.get("cnt") else None
    def tmo(cnt, ok):
        A(f"""s_add_u32 s{cnt}, s{cnt}, s{sDead}
s_cmp_ge_u32 s{cnt}, {TMO}
s_cbranch_scc1 {ok}""")
    def retry(lab, sets, load, proc, okl, cnt, cidx, first):
        n = len(sets)
        A(f"{lab}:")
        for k_ in range(n - 1):
            cn(cidx)
            for x in load(sets[k_]): A(x)
            proc(A, sets[k_ + 1], first[k_])
            A(f"s_cbranch_vccz {okl}")
        sets = sets[n - 1:] + sets[:n - 1]
        A(f"{lab}_lp:")
        for k_ in range(n):
            cn(cidx)
            for x in load(sets[k_]): A(x)
            proc(A, sets[(k_ + 1) % n], len(load(0)) * (n - 1))
            A(f"s_cbranch_vccz {okl}")
        tmo(cnt, f"{lab}_to"); A(f"s_branch {lab}_lp\n{lab}_to:\ns_mov_b32 s{sDead}, {TMO}\ns_branch {okl}")
    retry(f"{P}_rr", rS[:len(opt["_rfirst"]) + 1], rload, rproc, f"{P}_rok", 14, 94, opt["_rfirst"])
    for sfx in ["", "_l"]:
        ev, n1 = gather_events(p, w, opt)
        if w < 2: retry(f"{P}_gr{sfx}", gS[:n1], gload, gproc, f"{P}_gok{sfx}", 15, 95, [2 * (n1 - 1)] * (n1 - 1))
        A(f"{P}_redo{sfx}:")
        cn(89)
        A(f"""s_add_u32 s15, s15, s{sDead}
s_cmp_ge_u32 s15, {TMO}
s_cbranch_scc1 {opt['_K']}_end
s_waitcnt vmcnt(0) lgkmcnt(0)
s_barrier
s_add_u32 s40, s53, {WS_FLAG + 65536}
s_add_u32 s{sGat2}, s{sMemP}, s39
s_add_u32 s{sGat}, s{sMemP}, s39
s_add_u32 s{sGat2}, s{sGat2}, 4096
s_add_u32 m0, s39, {LDS_MEM}
s_nop 0
buffer_load_dwordx4 v{vGat}, {SRD}, s{sGat} offen sc1 lds
s_add_u32 m0, s39, {LDS_MEM + 4096}""")
        for r in range(0, 16, 2): A(f"v_mov_b64 {v(vAk0+r,2)}, 0")
        A(g2dma())
        for i in range(6):
            for x in wq_read(A, i, SLQ[i]): A(x)
        A(f"s_waitcnt vmcnt(0) lgkmcnt(0)\ns_barrier\ns_branch {P}_entry{sfx}")
    if w == 3: kvf_wait(A, P, tmo)
    A(f"{P}_slow:\ns_waitcnt lgkmcnt(0)\ns_nop 7")
    A(f"""v_max3_f32 v{vT0}, v{vSx0}, v{vSx0+1}, v{vSx0+2}
v_max3_f32 v{vT1}, v{vSx0+3}, v{vSx1}, v{vSx1+1}
v_max3_f32 v{vT0}, v{vT0}, v{vSx1+2}, v{vSx1+3}
v_max3_f32 v{vT1}, v{vT1}, v{vSm}, v{vSm+1}
v_max_f32 v{vT0}, v{vT0}, v{vT1}
v_mov_b32 v{vT1}, v{vT0}
v_permlane32_swap_b32 v{vT0}, v{vT1}
v_max_f32 v{vT0}, v{vT0}, v{vT1}
v_mov_b32 v{vT1}, v{vT0}
v_permlane16_swap_b32 v{vT0}, v{vT1}
v_max_f32 v{vT0}, v{vT0}, v{vT1}""")
    srcs = [vSx0 + i for i in range(4)] + [vSx1 + i for i in range(4)] + [vSm, vSm + 1]
    for k_, x in enumerate(srcs): A(f"v_sub_f32 v{vE+k_}, v{x}, v{vT0}")
    for k_ in range(10): A(f"v_exp_f32 v{vE+k_}, v{vE+k_}")
    for k_ in range(4): A(f"v_cvt_pk_bf16_f32 v{vPx+k_}, v{vE+2*k_}, v{vE+2*k_+1}")
    A(f"v_cvt_pk_bf16_f32 v{vPm}, v{vE+8}, v{vE+9}")
    for (d, aa) in [(vO0, vVx), (vO1, vVx + 4), (vL, vAS)]:
        A(f"v_mfma_f32_16x16x32_bf16 {v(d,4)}, {v(aa,4)}, {v(vPx,4)}, 0")
    for (d, aa) in [(vL, vAS), (vO0, vVP), (vO1, vVP + 2)]:
        A(f"v_mfma_f32_16x16x16_bf16 {v(d,4)}, {v(aa,2)}, {v(vPm,2)}, {v(d,4)}")
    A("s_nop 7")
    A(f"v_rcp_f32 v{vT0}, v{vL+2}")
    for r in range(8): A(f"v_mul_f32 v{vO0+r}, v{vT0}, v{vO0+r}")
    for r in range(4): A(f"v_cvt_pk_bf16_f32 v{vE+r}, v{vO0+2*r}, v{vO0+2*r+1}")
    A(f"ds_write_b128 v{vOw}, {v(vE,4)}\ns_waitcnt lgkmcnt(0)\ns_branch {P}_norm")

def chain_member(A, P, opt, modefn, initfn=None):
    layer = 0
    opt = dict(opt); opt["_K"] = P
    A(f"s_mov_b32 s{sDead}, 1")
    weights_prologue(A, lambda B: lane_consts(B, layer, opt), opt, lambda B: modefn(B, 0))
    if opt.get("rt"): A("s_memrealtime s[98:99]")
    modefn(A, 1)
    A(f"s_mov_b32 s44, s13\nv_mov_b32 v0, v30\n{P}_restart:")
    A(f"""v_add_u32 v{vKr}, {LDS_K}, v{vG512}
s_lshl_b32 s54, s9, 11
s_lshl_b32 s53, s12, 13
s_add_u32 s53, s53, s54
s_lshl_b32 s39, s9, 10
s_lshl_b32 s{sKV}, s12, 19
s_add_u32 s{sKV}, s{sKV}, s54
s_add_u32 s{sKV}, s{sKV}, {WS_K}
s_lshl_b32 s{sPub}, s12, 18
s_add_u32 s{sPub}, s{sPub}, s39
s_add_u32 s{sPub}, s{sPub}, {WS_KVM}
s_add_u32 s40, s53, {WS_FLAG + 65536}
v_mov_b32 v32, 0
v_readfirstlane_b32 s{sStep}, v32
s_mov_b32 s41, 0
s_lshl_b32 s43, s9, 16
s_lshl_b32 s13, s12, 11
s_add_u32 s43, s43, s13
s_add_u32 s{sPartB}, s{sSync}, {SY_PART}
s_add_u32 s{sMemB}, s{sSync}, {SY_MEM}
s_lshl_b32 s13, s12, 8
s_add_u32 s13, s13, s{sSync}
s_add_u32 s55, s13, {SY_PROG}
s_add_u32 s{sKVF}, s13, {SY_KVF}""")
    for x in step_scalars(A, layer, 0): A(x)
    set_srd(A, 20, 48, 8192)
    A(f"""v_lshrrev_b32 v34, 4, v{vL16}
v_lshrrev_b32 v32, 2, v34
v_and_b32 v32, 3, v32
v_lshlrev_b32 v32, 1, v32
v_and_b32 v33, 1, v34
v_add_u32 v32, v32, v33
v_lshlrev_b32 v32, 10, v32
v_lshrrev_b32 v33, 4, v34
v_lshl_add_u32 v32, v33, 5, v32
v_bfe_u32 v33, v34, 1, 1
v_lshl_add_u32 v32, v33, 4, v32
s_lshl_b32 s13, s9, 7
s_add_u32 m0, s39, {LDS_MEM}
s_nop 0
buffer_load_dwordx4 v32, {SRDW}, s13 offen lds
s_add_u32 m0, s39, {LDS_MEM + 4096}
s_add_u32 s13, s13, 512
buffer_load_dwordx4 v32, {SRDW}, s13 offen lds
s_waitcnt lgkmcnt(0)""")
    for r in range(0, 16, 2): A(f"v_mov_b64 {v(vAk0+r,2)}, 0")
    A(f"v_mov_b32 v{vVP}, 0\nv_mov_b32 v{vVP+2}, 0\nv_mov_b32 v{vVP+1}, 0\nv_mov_b32 v{vVP+3}, 0\nv_mov_b32 v{vPm+1}, 0")
    for i in range(6):
        for x in wq_read(A, i, SLQ[i]): A(x)
    A(f"""s_mov_b32 s15, 0
s_cmp_lg_u32 s9, 0
s_cbranch_scc1 {P}_k1
{P}_k0:
buffer_load_dword v33, off, {SRD}, s{sKVF} sc1
s_waitcnt vmcnt(0)
v_readfirstlane_b32 s13, v33
s_cmp_ge_u32 s13, 2
s_cbranch_scc1 {P}_k1
s_sleep 1
s_add_u32 s15, s15, 1
s_cmp_lt_u32 s15, {4*TMO}
s_cbranch_scc1 {P}_k0
{P}_k1:
s_barrier""")
    kv_dma(A)
    A(f"s_add_u32 s{sKV}, s{sKV}, {KVSEG}\ns_mov_b32 s14, 0\ns_mov_b32 s15, 0")
    if opt.get("cnt"):
        for r in list(range(60, 90)) + [94, 95]: A(f"s_mov_b32 s{r}, 0")
        A("s_memtime s[78:79]")
    if opt.get("rt"): A(f"s_memrealtime s[86:87]")
    A("s_waitcnt vmcnt(0) lgkmcnt(0)")
    A(f"s_add_u32 s{sKm}, s54, {LDS_K + 8192}\ns_add_u32 s52, s39, 4096\ns_barrier")
    A(f"s_cmp_eq_u32 s44, 0\ns_cbranch_scc1 {P}_fb")
    for (tg, c) in [("", "f"), (f"{P}_fb:", "s")]:
        if tg: A(tg)
        for q in range(3): A(f"s_cmp_eq_u32 s9, {q}\ns_cbranch_scc1 {P}_{c}{q}_entry")
        A(f"s_branch {P}_{c}3_entry")
    for q in range(4): variant(A, f"{P}_f{q}", layer, 0, q, True, opt)
    o2 = dict(opt); o2.update(d2=[0,0,0,0])
    for q in range(4): variant(A, f"{P}_s{q}", layer, 0, q, False, o2)
    A(f"""{P}_fin:
s_cmp_lg_u32 s9, 2
s_cbranch_scc1 {P}_fin2
s_mov_b64 exec, 1
buffer_store_dword v{vT1}, off, {SRD}, s55 sc1
s_mov_b64 exec, -1
{P}_fin2:""")
    if opt.get("trace"):
        A(f"s_lshl_b32 s13, s12, 2\ns_add_u32 s13, s13, s9\ns_lshl_b32 s13, s13, 6\ns_add_u32 s13, s13, {WS_FLAG + 16384}")
        for k_ in range(14):
            A(f"v_mov_b32 v32, s{60+2*k_}\nbuffer_store_dword v32, off, {SRD}, s13 offset:{4*k_}\ns_nop 1")
    if opt.get("cnt"):
        A(f"""s_memtime s[60:61]
s_waitcnt lgkmcnt(0)
s_sub_u32 s82, s60, s78
s_sub_u32 s83, s78, s100
s_lshl_b32 s13, s12, 2
s_add_u32 s13, s13, s9
s_lshl_b32 s13, s13, 6
s_add_u32 s13, s13, {WS_FLAG}""")
        for k_ in range(16):
            A(f"v_mov_b32 v32, s{82+k_}\nbuffer_store_dword v32, off, {SRD}, s13 offset:{4*k_}\ns_nop 1")
    if opt.get("rt"):
        A(f"s_memrealtime s[88:89]\ns_waitcnt lgkmcnt(0)\ns_cmp_lg_u32 s{sSync}, {WS_SYNC}\ns_cbranch_scc1 {P}_rt2\ns_mov_b32 s90, s86\ns_mov_b32 s91, s88\n{P}_rt2:\ns_mov_b32 s84, s86\ns_mov_b32 s85, s88")
    if opt.get("mega"):
        A(f"s_cmp_lg_u32 s{sSync}, {WS_SYNC}\ns_cbranch_scc1 {P}_done\ns_add_u32 s{sSync}, s{sSync}, {MB}\ns_waitcnt vmcnt(0)\ns_barrier\ns_branch {P}_restart")
```

```python
from common import *
import chain
from kkv import kv_task
from katt import att_task
TMO = 400000

def poll_until(A, lab, load, cond, sleep=4):
    A(f"s_mov_b32 s15, 0\n{lab}:\n{load}\ns_waitcnt vmcnt(0)\n{cond}\ns_cbranch_scc1 {lab}_ok\ns_sleep {sleep}\ns_add_u32 s15, s15, 1\ns_cmp_lt_u32 s15, {TMO}\ns_cbranch_scc1 {lab}\n{lab}_ok:")

def wg_atomic(A, lab, soff_reg, dst, srd="s[16:19]"):
    A(f"""v_mov_b32 v2, 0
v_mov_b32 v3, 1
s_cmp_lg_u32 s9, 0
s_cbranch_scc1 {lab}_a
s_mov_b64 exec, 1
buffer_atomic_add v3, off, {srd}, s{soff_reg} sc0
s_waitcnt vmcnt(0)
ds_write_b32 v2, v3
s_waitcnt lgkmcnt(0)
s_mov_b64 exec, -1
{lab}_a:
s_barrier
ds_read_b32 v3, v2
s_waitcnt lgkmcnt(0)
v_readfirstlane_b32 s{dst}, v3
s_barrier""")

DBG = "s[92:95]"
def role_poll(A, lab, r0, init=False):
    cond = "\n".join([f"v_readlane_b32 s14, v{r0+1}, 0"] + [f"v_readlane_b32 s13, v{r0+1}, {32+i}\ns_add_u32 s14, s14, s13" for i in range(1, 16)]) + "\ns_cmp_ge_u32 s14, 256"
    ld = f"v_lshrrev_b32 v{r0}, 2, v1\nbuffer_load_dword v{r0+1}, v{r0}, {DBG}, 0 offen sc1"
    A(f"s_cmp_lg_u32 s9, 0\ns_cbranch_scc1 {lab}_ok")
    poll_until(A, lab, ld, cond, sleep=10)
    A(f"s_barrier\ns_cmp_eq_u32 s9, 0\ns_cbranch_scc1 {lab}_w0\n{ld}\ns_waitcnt vmcnt(0)\n{lab}_w0:")
    A(f"v_cmp_eq_u32 vcc, 32, v{r0+1}\ns_and_b32 s13, vcc_hi, 0xfe\ns_and_b32 s14, vcc_lo, 1\ns_or_b32 s13, s13, s14\ns_cmp_eq_u32 s13, 0xff\ns_cselect_b32 s13, 1, 0\nv_readlane_b32 s14, v{r0+1}, 0")
def init_wait(A, lab, r=2):
    A(f"s_cmp_lg_u32 s9, 0\ns_cbranch_scc1 {lab}_ok")
    poll_until(A, lab, f"buffer_load_dword v{r}, off, {DBG}, 0 offset:4 sc1", f"v_readfirstlane_b32 s13, v{r}\ns_cmp_ge_u32 s13, 32", sleep=10)
    A("s_barrier")

def r1_task(A, P, sTB, sPart, sLg, sc1=False):
    X = 160; T = 168; R = 176
    A(f"""s_add_u32 s13, s{sLg}, 3
s_lshl_b32 s14, s9, s13
s_add_u32 s14, s14, s{sPart}
s_lshl_b32 s14, s14, 10
s_lshl_b32 s28, s{sTB}, 17
s_add_u32 s28, s28, s14
s_lshl_b32 s29, 4096, s13
s_lshl_b32 s30, 1, s{sLg}
s_sub_u32 s30, s30, 1
s_add_u32 s31, s28, {WS_OP}
s_mov_b32 s32, s31
s_add_u32 s33, s28, {WS_XA}""")
    for g in range(4):
        for p in range(8):
            A(f"buffer_load_dwordx4 {v(32 + 32*g + 4*p, 4)}, v1, s[16:19], s32 offen sc1\ns_add_u32 s32, s32, {2*MB}")
        A(f"buffer_load_dwordx4 {v(R + 4*g, 4)}, v1, s[16:19], s33 offen{' sc1' if sc1 else ''}")
        if g < 3:
            A(f"""s_and_b32 s13, s30, {g+1}
s_cmp_eq_u32 s13, 0
s_cselect_b32 s13, s29, 0
s_add_u32 s31, s31, s13
s_add_u32 s33, s33, s13
s_cmp_lg_u32 s13, 0
s_cselect_b32 s32, s31, s32""")
    A(f"s_add_u32 s33, s28, {WS_XB}")
    for r in range(0, 8, 2): A(f"v_mov_b64 {v(X + r, 2)}, 0")
    for g in range(4):
        A(f"s_waitcnt vmcnt({9*(3-g)})") if g == 0 else A(f"s_waitcnt vmcnt({9*(3-g)})")
        for p in range(8):
            for i in range(4):
                s_ = 32 + 32*g + 4*p + i
                A(f"v_lshlrev_b32 v{T}, 16, v{s_}\nv_and_b32 v{T+1}, 0xffff0000, v{s_}\nv_pk_add_f32 {v(X + 2*i, 2)}, {v(X + 2*i, 2)}, {v(T, 2)}")
        A(f"s_and_b32 s13, s30, {g+1}\ns_cmp_lg_u32 s13, 0\ns_cbranch_scc1 {P}_r{g}")
        for i in range(4):
            A(f"""v_cvt_pk_bf16_f32 v{T}, v{X+2*i}, v{X+2*i+1}
v_lshlrev_b32 v{T+2}, 16, v{T}
v_and_b32 v{T+3}, 0xffff0000, v{T}
v_lshlrev_b32 v{T+4}, 16, v{R+4*g+i}
v_and_b32 v{T+5}, 0xffff0000, v{R+4*g+i}
v_pk_add_f32 {v(T+2,2)}, {v(T+2,2)}, {v(T+4,2)}
v_cvt_pk_bf16_f32 v{R+4*g+i}, v{T+2}, v{T+3}
v_mov_b64 {v(X + 2*i, 2)}, 0""")
        A(f"buffer_store_dwordx4 {v(R + 4*g, 4)}, v1, s[16:19], s33 offen{' sc1' if sc1 else ''}\ns_add_u32 s33, s33, s29\n{P}_r{g}:")
```

```python
from common import *
import chain
from kkv import kv_task, kvf_task
from katt import att_task, tail_task, mini_r1, mini_r1_pre
from kmisc import *
from klayer import poll_until, wg_atomic, role_poll, init_wait, r1_task, TMO, DBG

def arrive(A, lab, addr_code, atomic=True, wave0=True, val=1):
    A(addr_code)
    A(f"v_mov_b32 v2, {val}")
    if wave0: A(f"s_cmp_lg_u32 s9, 0\ns_cbranch_scc1 {lab}")
    A("s_mov_b64 exec, 1\n" + ("buffer_atomic_add v2, off, s[16:19], s13" if atomic else "buffer_store_dword v2, off, s[16:19], s13 sc1") + "\ns_mov_b64 exec, -1")
    if wave0: A(f"{lab}:")

def wait16(A, lab, off, expect, base=56, wave0=True, first_extra=0, sleep=4, r=2, n=16, sh=4, split=None):
    if wave0: A(f"s_cmp_lg_u32 s9, 0\ns_cbranch_scc1 {lab}_ok")
    mk = hex((1 << n) - 1)
    A(f"v_lshlrev_b32 v{r}, {sh}, v1\nv_mov_b32 v{r+2}, {expect}")
    if split: A(f"v_mov_b32 v{r+1}, {split[1]}\nv_cmp_le_u32 vcc, {split[0]*16}, v1\nv_cndmask_b32 v{r+2}, v{r+2}, v{r+1}, vcc")
    if first_extra: A(f"v_writelane_b32 v{r+2}, {expect + first_extra}, 0")
    poll_until(A, lab, f"s_add_u32 s13, s{base}, {off}\ns_mov_b32 exec_hi, 0\ns_mov_b32 exec_lo, {mk}\nbuffer_load_dword v{r+1}, v{r}, s[16:19], s13 offen sc1\ns_mov_b64 exec, -1",
               f"v_cmp_ge_u32 vcc, v{r+1}, v{r+2}\ns_and_b32 s13, vcc_lo, {mk}\ns_cmp_eq_u32 s13, {mk}", sleep=sleep)
    if wave0: A("s_barrier")

def init_kernel(opt):
    A = Asm(); P = "ini"
    std_prologue(A, P, 80, [(4, KA_WS)])
    set_srd(A, 16, 4, WS_SIZE)
    A(f"""v_lshlrev_b32 v1, 4, v0
s_lshl_b32 s12, s2, 2
s_add_u32 s12, s12, s9
s_cmp_ge_u32 s12, 160
s_cselect_b32 s13, {MB - 160*4096}, 0
s_cselect_b32 s15, 160, 0
s_lshl_b32 s14, s12, 12
s_add_u32 s13, s13, s14
s_add_u32 s13, s13, {WS_SYNC}
s_sub_u32 s12, s12, s15
s_lshr_b32 s12, s12, 3
s_cmp_eq_u32 s12, 16
s_cselect_b32 s14, -1, 0
v_mov_b32 v4, s14
v_mov_b32 v5, s14
v_mov_b32 v6, s14
v_mov_b32 v7, s14""")
    for k in range(4): A(f"buffer_store_dwordx4 v[4:7], v1, s[16:19], s13 offen offset:{1024*k}")
    A(f"s_waitcnt vmcnt(0)\n{P}_end:\ns_endpgm")
    A.fix_hazards()
    return A, dict(name="init_kernel", grid=80, block=256, lds=0, vgpr=8, accum=8)

def mega_kernel(opt):
    A = Asm(strict=opt.get("strict", False)); P = "lay"
    rt = opt.get("rt")
    def stamp(k):
        if rt: A(f"""s_memrealtime s[86:87]
s_lshl_b32 s88, s75, 4
s_add_u32 s88, s88, {k}
s_lshl_b32 s88, s88, 10
s_lshl_b32 s89, s60, 2
s_add_u32 s88, s88, s89
s_add_u32 s88, s88, {WS_FLAG + 640*1024}
s_waitcnt lgkmcnt(0)
v_mov_b32 v2, s86
buffer_store_dword v2, off, s[16:19], s88""")
    def initfn(B, stage):
        if stage == 0:
            B(f"""s_and_b32 s13, s12, 15
s_lshl_b32 s13, s13, 2
s_add_u32 s13, s13, s9
s_mul_i32 s14, s13, 10240
s_lshr_b32 s13, s12, 4
s_lshl_b32 s13, s13, 20
s_add_u32 s15, s13, {WS_SYNC}""")
            for k in range(10):
                B(f"""s_sub_u32 s13, s14, {SY_MEM}
s_cmp_lt_u32 s13, 32768
s_cselect_b32 s13, -1, 0
v_mov_b32 v{48+4*(k&1)}, s13
v_mov_b32 v{49+4*(k&1)}, s13
v_mov_b32 v{50+4*(k&1)}, s13
v_mov_b32 v{51+4*(k&1)}, s13
s_add_u32 s13, s14, s15
buffer_store_dwordx4 {v(48+4*(k&1),4)}, v1, s[16:19], s13 offen sc1
s_add_u32 s14, s14, 1024""")
        else:
            B(f"v_mov_b32 v48, 1\ns_cmp_lg_u32 s9, 0\ns_cbranch_scc1 {P}_in1\ns_mov_b64 exec, 1\nbuffer_atomic_add v48, off, {DBG}, 0 offset:4\ns_mov_b64 exec, -1\n{P}_in1:")
    A(f"""s_cmp_ge_u32 s2, 256
s_cbranch_scc1 {P}_end
s_load_dwordx2 s[4:5], s[0:1], {KA_WS}
s_load_dwordx4 s[40:43], s[0:1], {KA_WQ}
s_load_dwordx4 s[44:47], s[0:1], {KA_WV}
s_load_dwordx2 s[48:49], s[0:1], {KA_MEM0}
s_load_dwordx2 s[76:77], s[0:1], {KA_X}
s_load_dwordx2 s[78:79], s[0:1], {KA_WR}
s_load_dwordx4 s[80:83], s[0:1], {KA_WI}
s_load_dwordx2 s[6:7], s[0:1], {KA_DBG}
s_getreg_b32 s8, hwreg(HW_REG_XCC_ID)
v_lshrrev_b32 v1, 6, v0
v_and_b32 v0, 63, v0
v_readfirstlane_b32 s9, v1
s_and_b32 s8, s8, 15
v_lshlrev_b32 v1, 4, v0
s_mov_b32 s56, {WS_SYNC}""")
    if opt.get("force_fb"): A("s_and_b32 s8, s2, 15")
    A("s_waitcnt lgkmcnt(0)")
    set_srd(A, 16, 4, WS_SIZE)
    set_srd(A, 92, 6, 256)
    A("s_lshl_b32 s10, s8, 2\ns_add_u32 s10, s10, 128\ns_cmp_eq_u32 s8, 0\ns_cselect_b32 s10, 0, s10")
    wg_atomic(A, f"{P}_t", 10, 12, DBG)
    A(f"""s_cmp_ge_u32 s12, 32
s_cbranch_scc1 {P}_slowrole
s_cmp_eq_u32 s8, 0
s_cbranch_scc1 {P}_member
s_cmp_ge_u32 s8, 8
s_cbranch_scc1 {P}_slowrole
s_sub_u32 s60, s8, 1
s_lshl_b32 s60, s60, 5
s_add_u32 s60, s60, s12
s_mov_b32 s61, 0
{P}_bulk:
v_mov_b32 v2, 0
v_readfirstlane_b32 s75, v2
; logical rank from (g,i) = (rank/28, rank%28)
s_mov_b32 s57, s60
s_mul_i32 s13, s57, 2341
s_lshr_b32 s13, s13, 16
s_mul_i32 s14, s13, 28
s_sub_u32 s14, s57, s14
s_lshl_b32 s60, s14, 3
s_add_u32 s60, s60, s13
s_cmp_lt_u32 s14, 8
s_cbranch_scc1 {P}_lr
s_sub_u32 s15, s14, 8
s_lshr_b32 s60, s15, 1
s_lshl_b32 s60, s60, 4
s_and_b32 s15, s15, 1
s_add_u32 s60, s60, s15
s_lshl_b32 s15, s13, 1
s_add_u32 s60, s60, s15
s_add_u32 s60, s60, 64
s_cmp_lt_u32 s14, 16
s_cbranch_scc1 {P}_lr
s_sub_u32 s15, s14, 16
s_lshr_b32 s60, s15, 2
s_lshl_b32 s60, s60, 5
s_and_b32 s15, s15, 3
s_add_u32 s60, s60, s15
s_lshl_b32 s15, s13, 2
s_add_u32 s60, s60, s15
s_add_u32 s60, s60, 128
{P}_lr:
s_movk_i32 s85, 200
s_cmp_lt_u32 s60, 64
s_cselect_b32 s85, s60, s85
s_sub_u32 s13, s60, 64
s_sub_u32 s14, s60, 128
s_cmp_lt_u32 s14, 32
s_cselect_b32 s85, s13, s85
s_sub_u32 s13, s60, 96
s_cmp_ge_u32 s60, 192
s_cselect_b32 s85, s13, s85
s_cmp_eq_u32 s60, 191
s_cselect_b32 s85, 128, s85
s_sub_u32 s66, s60, 64
s_cmp_ge_u32 s66, 64
s_cbranch_scc1 {P}_noln""")
    ln1_task(A, 66, 76)
    xnf = lambda sreg, extra: f"s_lshr_b32 s13, s{sreg}, 2\ns_lshl_b32 s13, s13, 8\ns_and_b32 s14, s{sreg}, 3\ns_lshl_b32 s14, s14, 2\ns_add_u32 s13, s13, s14\ns_add_u32 s13, s13, s56\ns_add_u32 s13, s13, {SY_XNF + extra}"
    A(f"""s_waitcnt vmcnt(0)
s_barrier
s_lshr_b32 s13, s66, 5
s_lshl_b32 s13, s13, 2
s_lshl_b32 s14, 1, s66
v_mov_b32 v2, s14
s_cmp_lg_u32 s9, 0
s_cbranch_scc1 {P}_noln1
s_mov_b64 exec, 1
buffer_atomic_or v2, off, {DBG}, s13 offset:32
s_mov_b64 exec, -1
{P}_noln1:""")
    stamp(9)
    A(f"""{P}_noln:
s_cmp_lt_u32 s85, 128
s_cbranch_scc1 {P}_layer""")
    def verify(tag, ini):
        A(f"s_bitcmp1_b32 s61, 0\ns_cbranch_scc1 {P}_ver{tag}")
        role_poll(A, f"{P}_rp1{tag}", 2)
        A(f"s_cmp_eq_u32 s13, 0\ns_cbranch_scc1 {P}_irr\ns_mov_b32 s61, 1\n{P}_ver{tag}:")
        if ini is None: return
        if ini:
            A(f"s_sub_u32 s12, s60, 160\ns_cmp_ge_u32 s12, 32\ns_cbranch_scc1 {P}_noini")
            initfn(A, 0)
            A("s_waitcnt vmcnt(0)\ns_barrier")
            initfn(A, 1)
            A(f"{P}_noini:")
        init_wait(A, f"{P}_iw{tag}")
        A("s_mov_b32 s61, 3")
    verify("a", True)
    uid = [0]
    def xld_():
        uid[0] += 1
        return f"s_cmp_lg_u32 s75, 0\ns_cbranch_scc1 {P}_xa{uid[0]}\nbuffer_load_dword v16, off, {DBG}, s35 offset:32 sc1\ns_branch {P}_xb{uid[0]}\n{P}_xa{uid[0]}:\nbuffer_load_dwordx4 v[16:19], off, s[16:19], s35 sc1\n{P}_xb{uid[0]}:"
    def xck_():
        uid[0] += 1
        return f"""s_cmp_lg_u32 s75, 0
s_cbranch_scc1 {P}_xa{uid[0]}
v_readfirstlane_b32 s13, v16
s_lshl_b32 s14, s66, 2
s_lshr_b32 s13, s13, s14
s_and_b32 s13, s13, 15
s_cmp_eq_u32 s13, 15
s_branch {P}_xb{uid[0]}
{P}_xa{uid[0]}:
v_and_b32 v16, v16, v17
v_and_b32 v18, v18, v19
v_and_b32 v16, v16, v18
v_readfirstlane_b32 s13, v16
s_cmp_lg_u32 s13, 0
{P}_xb{uid[0]}:"""
    xad = f"s_lshl_b32 s35, s66, 8\ns_add_u32 s35, s35, s56\ns_add_u32 s35, s35, {SY_XNF}\ns_lshr_b32 s13, s66, 3\ns_lshl_b32 s13, s13, 2\ns_cmp_eq_u32 s75, 0\ns_cselect_b32 s35, s13, s35"
    kvf_addr = f"s_lshl_b32 s13, s67, 8\ns_lshl_b32 s14, s66, 2\ns_add_u32 s13, s13, s14\ns_add_u32 s13, s13, s56\ns_add_u32 s13, s13, {SY_KVF}"
    A(f"""{P}_layer:
s_cmp_ge_u32 s85, 128
s_cbranch_scc1 {P}_nofast
s_mov_b32 s13, s85
s_lshr_b32 s67, s13, 5
s_lshl_b32 s67, s67, 3
s_and_b32 s14, s13, 7
s_add_u32 s67, s67, s14
s_bfe_u32 s68, s13, 0x10003
s_bfe_u32 s66, s13, 0x10004
{P}_kvf:""")
    def xwf(B):
        B("s_waitcnt lgkmcnt(0)")
        verify("b", None)
        B(f"{xad}\ns_cmp_lg_u32 s9, 0\ns_cbranch_scc1 {P}_xf_ok")
        poll_until(B, f"{P}_xf", xld_(), xck_(), sleep=opt.get("xsleep", 3))
        B("s_barrier")
    kvf_task(A, "kvf", 66, 67, 68, xwf)
    A(f"s_cmp_eq_u32 s61, 3\ns_cbranch_scc1 {P}_vdone")
    init_wait(A, f"{P}_iwb")
    A("s_mov_b32 s61, 3")
    A(f"{P}_vdone:\ns_waitcnt vmcnt(0)\ns_barrier")
    stamp(8)
    arrive(A, f"{P}_af", kvf_addr)
    A(f"""s_cmp_eq_u32 s68, 2
s_cbranch_scc1 {P}_qret
{P}_nofast:
s_lshr_b32 s62, s57, 5
s_and_b32 s63, s57, 31
s_cmp_lt_u32 s62, 4
s_cselect_b32 s64, 5, 4
s_movk_i32 s65, 16384
s_cselect_b32 s65, 13108, s65
{P}_kvl:
s_mul_i32 s66, s63, s65
s_lshr_b32 s66, s66, 16
s_mul_i32 s13, s66, s64
s_sub_u32 s13, s63, s13
s_mul_i32 s13, s13, 7
s_add_u32 s67, s13, s62
s_add_u32 s66, s66, 2""")
    def xw0(B): B(f"{xad}\ns_cmp_lg_u32 s9, 0\ns_cbranch_scc1 {P}_xw0\n{xld_()}\n{P}_xw0:")
    def xw1(B):
        B(f"s_cmp_lg_u32 s9, 0\ns_cbranch_scc1 {P}_xw_ok\ns_waitcnt vmcnt(24)\n{xck_()}\ns_cbranch_scc1 {P}_xw_ok")
        poll_until(B, f"{P}_xw", xld_(), xck_(), sleep=6)
        B("s_barrier")
    kv_task(A, "lkv", 66, 67, sc1=True, xwait=(xw0, xw1))
    A("s_waitcnt vmcnt(0)\ns_barrier")
    arrive(A, f"{P}_a1", kvf_addr, val=2)
    A(f"""s_add_u32 s63, s63, 32
s_mul_i32 s13, s64, 14
s_cmp_lt_u32 s63, s13
s_cbranch_scc1 {P}_kvl""")
    stamp(0)
    if opt.get("solo"): A(f"s_branch {P}_done")
    A(f"s_cmp_lg_u32 s75, 0\ns_cbranch_scc1 {P}_notab")
    table_task(A, "tab", 60, 78, 80)
    A("s_waitcnt vmcnt(0)\ns_barrier")
    arrive(A, f"{P}_a2", f"s_and_b32 s13, s60, 15\ns_lshl_b32 s13, s13, 8\ns_add_u32 s13, s13, {WS_SYNC + SY_TBL}")
    A(f"""{P}_notab:
s_cmp_lt_u32 s60, 192
s_cbranch_scc1 {P}_noq
s_sub_u32 s67, s60, 192
s_mov_b32 s66, 14
s_mov_b32 s68, 2
s_branch {P}_kvf
{P}_qret:
s_add_u32 s66, s66, 1
s_cmp_eq_u32 s66, 15
s_cbranch_scc1 {P}_kvf
s_branch {P}_srv
{P}_noq:
s_lshr_b32 s68, s60, 6
s_min_u32 s68, s68, 2
s_lshl_b32 s13, s68, 6
s_sub_u32 s13, s60, s13
s_add_u32 s14, s68, 3
s_lshr_b32 s66, s13, s14
s_lshl_b32 s15, s66, s14
s_sub_u32 s67, s13, s15
s_cmp_eq_u32 s68, 0
s_cselect_b32 s13, 0, 4
s_lshl_b32 s14, s68, 2
s_add_u32 s13, s13, s14
s_add_u32 s66, s66, s13
{P}_att:
s_lshr_b32 s69, 4, s68
s_mul_i32 s70, s67, s69
s_lshl_b32 s71, 1, s69
s_sub_u32 s71, s71, 1
s_lshl_b32 s72, s70, 8
s_add_u32 s72, s72, s56""")
    def kvwait(B):
        poll_until(B, f"{P}_kw", f"v_lshlrev_b32 v14, 4, v1\ns_lshl_b32 s13, s66, 2\ns_add_u32 s13, s13, s72\ns_add_u32 s13, s13, {SY_KVF}\ns_mov_b64 exec, 15\nbuffer_load_dword v15, v14, s[16:19], s13 offen sc1\ns_mov_b64 exec, -1",
                   "v_cmp_le_u32 vcc, 2, v15\ns_and_b32 s13, vcc_lo, s71\ns_cmp_eq_u32 s13, s71", sleep=8)
    def pwait(B):
        B(f"s_cmp_lg_u32 s9, 0\ns_cbranch_scc1 {P}_pw_ok")
        poll_until(B, f"{P}_pw", f"v_lshlrev_b32 v14, 4, v1\ns_add_u32 s13, s72, {SY_PROG}\ns_mov_b64 exec, 15\nbuffer_load_dword v15, v14, s[16:19], s13 offen sc1\ns_mov_b64 exec, -1",
                   "s_lshl_b32 s14, s66, 2\ns_add_u32 s14, s14, 4\nv_cmp_le_u32 vcc, s14, v15\ns_and_b32 s13, vcc_lo, s71\ns_cmp_eq_u32 s13, s71", sleep=opt.get("psleep", 6))
        B("s_barrier")
    att_task(A, "lat", 66, 70, 67, 69, sc1=True, waitfn=pwait, kvwait=kvwait)
    A("v_lshrrev_b32 v0, 4, v1\ns_waitcnt vmcnt(0)\ns_barrier")
    stamp(1)
    A(f"s_lshl_b32 s73, s66, 8\ns_add_u32 s73, s73, s56")
    arrive(A, f"{P}_a3", f"s_add_u32 s13, s73, {SY_CNT}")
    A(f"s_mov_b32 s74, {WS_SYNC}")
    wait16(A, f"{P}_tw", SY_TBL, 14, base=74)
    A("s_and_b32 s74, s67, 3")
    r2_prefetch(A, 74)
    def cwait(lab, off):
        A(f"s_cmp_lg_u32 s9, 0\ns_cbranch_scc1 {lab}_ok")
        poll_until(A, lab, f"s_add_u32 s13, s73, {off}\nbuffer_load_dword v2, off, s[16:19], s13 sc1", "v_readfirstlane_b32 s13, v2\ns_lshl_b32 s14, 8, s68\ns_cmp_ge_u32 s13, s14", sleep=2)
        A("s_barrier")
    cwait(f"{P}_cw", SY_CNT)
    stamp(2)
    r1_task(A, P, 66, 67, 68, sc1=True)
    A("s_waitcnt vmcnt(0)\ns_barrier")
    arrive(A, f"{P}_a4", f"s_add_u32 s13, s73, {SY_X1C}")
    A(f"s_cmp_ge_u32 s67, 16\ns_cbranch_scc1 {P}_nor2")
    cwait(f"{P}_x1", SY_X1C)
    stamp(3)
    A(f"{P}_r2l:\ns_lshr_b32 s84, s67, 2\ns_lshl_b32 s13, s66, 2\ns_add_u32 s84, s84, s13\n{P}_r2go:")
    r2_task(A, 84, 74)
    A("s_waitcnt vmcnt(0)\ns_barrier")
    arrive(A, f"{P}_a5", f"s_lshr_b32 s13, s84, 2\ns_sub_u32 s14, s84, 42\ns_cmp_ge_u32 s84, 56\ns_cselect_b32 s13, s14, s13\ns_lshl_b32 s13, s13, 7\ns_add_u32 s13, s13, s56\ns_add_u32 s13, s13, {SY_FTC}")
    A(f"""s_lshl_b32 s13, 8, s68
s_add_u32 s67, s67, s13
s_cmp_lt_u32 s67, 16
s_cbranch_scc1 {P}_r2l
{P}_nor2:""")
    stamp(4)
    A(f"""s_cmp_ge_u32 s60, 192
s_cbranch_scc1 {P}_colp
s_cmp_ge_u32 s60, 128
s_cbranch_scc1 {P}_col
s_cmp_ge_u32 s60, 64
s_cbranch_scc1 {P}_inv
s_lshr_b32 s84, s60, 4
s_lshl_b32 s73, s84, 8
s_add_u32 s73, s73, s56
s_add_u32 s84, s84, 56
s_and_b32 s69, s60, 7
s_bfe_u32 s70, s60, 0x10003
s_lshl_b32 s72, s69, 10
s_add_u32 s72, s72, s56""")
    def tkw(B):
        B(f"s_cmp_lg_u32 s9, 0\ns_cbranch_scc1 {P}_tk_ok")
        poll_until(B, f"{P}_tk", f"v_lshlrev_b32 v14, 4, v1\ns_add_u32 s13, s72, {SY_KVF + 56}\ns_mov_b64 exec, 15\nbuffer_load_dwordx2 v[16:17], v14, s[16:19], s13 offen sc1\ns_mov_b64 exec, -1",
                   "v_min_u32 v15, v16, v17\nv_cmp_le_u32 vcc, 3, v15\ns_and_b32 s13, vcc_lo, 15\ns_cmp_eq_u32 s13, 15", sleep=8)
        B("s_barrier")
    def tpw(B):
        B(f"s_cmp_lg_u32 s9, 0\ns_cbranch_scc1 {P}_tp_ok")
        poll_until(B, f"{P}_tp", f"v_lshlrev_b32 v14, 4, v1\ns_add_u32 s13, s72, {SY_PROG}\ns_mov_b64 exec, 15\nbuffer_load_dword v15, v14, s[16:19], s13 offen sc1\ns_mov_b64 exec, -1",
                   "v_cmp_lt_u32 vcc, s84, v15\ns_and_b32 s13, vcc_lo, 15\ns_cmp_eq_u32 s13, 15", sleep=opt.get("tsleep", 2))
        B("s_barrier")
    tail_task(A, "tl", 84, 69, 70, tkw, tpw)
    A("s_waitcnt vmcnt(0)\ns_barrier")
    stamp(10)
    arrive(A, f"{P}_a8", f"s_add_u32 s13, s73, {SY_ROLE}")
    def twait(lab, off, n):
        A(f"s_cmp_lg_u32 s9, 0\ns_cbranch_scc1 {lab}_ok")
        poll_until(A, lab, f"s_add_u32 s13, s73, {off}\nbuffer_load_dword v2, off, s[16:19], s13 sc1", f"v_readfirstlane_b32 s13, v2\ns_cmp_ge_u32 s13, {n}", sleep=1)
        A("s_barrier")
    A(f"""s_cmp_ge_u32 s84, 60
s_cbranch_scc1 {P}_tend
s_sub_u32 s84, 119, s84
s_sub_u32 s73, s84, 56
s_lshl_b32 s73, s73, 8
s_add_u32 s73, s73, s56
s_branch tl_again
{P}_tend:
v_lshrrev_b32 v0, 4, v1
s_branch {P}_col
{P}_srv:
s_mov_b32 s74, {WS_SYNC}""")
    wait16(A, f"{P}_tw2", SY_TBL, 14, base=74)
    A(f"""s_lshl_b32 s84, s85, 1
s_lshr_b32 s13, s9, 1
s_add_u32 s84, s84, s13""")
    col_prefetch(A, 84)
    A(f"""s_and_b32 s74, s60, 3
s_sub_u32 s84, s60, 192
s_lshr_b32 s84, s84, 2
s_lshl_b32 s73, s84, 8
s_add_u32 s73, s73, s56
s_add_u32 s84, s84, 56
s_waitcnt vmcnt(20)""")
    r2_prefetch(A, 74)
    mini_r1_pre(A, 84, 74)
    twait(f"{P}_t1", SY_ROLE, 16)
    stamp(11)
    mini_r1(A, "tl", 84, 74)
    A("s_waitcnt vmcnt(0)\ns_barrier")
    arrive(A, f"{P}_a9", f"s_add_u32 s13, s73, {SY_ROLE + 2048}")
    twait(f"{P}_t2", SY_ROLE + 2048, 4)
    stamp(12)
    A(f"""s_movk_i32 s67, 100
s_mov_b32 s68, 2
s_lshr_b32 s73, s84, 2
s_lshl_b32 s73, s73, 8
s_add_u32 s73, s73, s56
s_branch {P}_r2go
{P}_inv:
s_sub_u32 s84, s60, 64""")
    inv_prefetch(A, 84)
    wait16(A, f"{P}_gw", SY_GTC, 4, first_extra=1, sleep=opt.get("gsleep", 2), r=8, n=32, sh=3)
    stamp(6)
    inv_resid(A)
    inv_task(A, "inv", 84, 75, 82)
    A("s_waitcnt vmcnt(0)\ns_barrier")
    stamp(7)
    arrive(A, f"{P}_a6", xnf(84, MB), atomic=False)
    A(f"""s_branch {P}_next
{P}_col:
s_cmp_ge_u32 s85, 129
s_cbranch_scc1 {P}_next
s_lshl_b32 s84, s85, 1
s_lshr_b32 s13, s9, 1
s_add_u32 s84, s84, s13""")
    col_prefetch(A, 84)
    A(f"{P}_colp:\ns_lshl_b32 s84, s85, 1\ns_lshr_b32 s13, s9, 1\ns_add_u32 s84, s84, s13")
    col_setup(A, 84)
    wait16(A, f"{P}_fw", SY_FTC, 16, sleep=opt.get("fsleep", 2), r=16, n=22, sh=3, split=(14, 4))
    stamp(5)
    col_task(A, "col", 84)
    stamp(14)
    A(f"s_waitcnt vmcnt(0)")
    stamp(13)
    A("s_barrier")
    arrive(A, f"{P}_a7", f"s_and_b32 s13, s85, 31\ns_lshl_b32 s13, s13, 7\ns_add_u32 s13, s13, s56\ns_add_u32 s13, s13, {SY_GTC}")
    A(f"""{P}_next:
s_cmp_lg_u32 s75, 0
s_cbranch_scc1 {P}_done
s_mov_b32 s75, 1
s_add_u32 s56, s56, {MB}
s_branch {P}_layer
{P}_slowrole:""")
    role_poll(A, f"{P}_rp2", 2)
    A(f"""{P}_irr:
s_min_u32 s74, s14, 32
s_sub_u32 s74, 32, s74
s_movk_i32 s10, 192
s_barrier""")
    wg_atomic(A, f"{P}_g", 10, 60, DBG)
    A(f"""s_mov_b32 s61, 1
s_cmp_ge_u32 s60, s74
s_cbranch_scc0 {P}_adopt
s_sub_u32 s60, s60, s74
s_cmp_ge_u32 s60, 224
s_cbranch_scc1 {P}_done
s_branch {P}_bulk
{P}_adopt:
s_sub_u32 s12, 31, s60
{P}_member:""")
    dld = f"v_lshrrev_b32 v49, 2, v1\nbuffer_load_dword v48, v49, {DBG}, 0 offen sc1"
    def modefn(B, stage):
        if stage == 0:
            B(dld); return
        cond = "\n".join(["v_readlane_b32 s14, v48, 0", "s_cmp_ge_u32 s14, 32", "s_cselect_b32 s44, 1, 0"] + [f"v_readlane_b32 s13, v48, {32+i}\ns_add_u32 s14, s14, s13" for i in range(1, 16)]) + \
            "\nv_readlane_b32 s13, v48, 1\ns_cmp_ge_u32 s13, 32\ns_cselect_b32 s14, s14, 0\ns_cmp_ge_u32 s14, 256"
        B(f"{cond}\ns_cbranch_scc1 {P}_md_ok")
        poll_until(B, f"{P}_md", dld, cond, sleep=10)
        B("s_mov_b32 s13, s44")
    chain.chain_member(A, P, dict(opt.get("chain", {}), rt=rt, mega=not opt.get('solo')), modefn)
    A(f"{P}_done:\ns_waitcnt vmcnt(0)\n{P}_end:\ns_endpgm")
    co = opt.get("chain", {})
    if co.get("nocomm"):
        seen = False; L2 = []
        for x in A.L:
            if isinstance(x, str) and x.endswith("_top:"): seen = True
            if seen and isinstance(x, Ins):
                if x.mn == "s_cbranch_vccnz" and any(t in x.text for t in ("_rr", "_gr", "_redo")): continue
                if x.mn == "s_waitcnt" and "vmcnt" in x.text and "lgkm" not in x.text: continue
                if any(t in x.text for t in co.get("drop", [])): continue
            L2.append(x)
        A.L = L2
    A.fix_hazards(name=P, verbose=opt.get("verbose"))
    if co.get("trace"):
        a0, stride = co["trace"]
        L2 = []; cnt = None; k_ = 0
        for x in A.L:
            if isinstance(x, str) and x.endswith("_top:"): cnt = 0; k_ = 0
            if isinstance(x, str) and x.endswith("_cutend:"): cnt = None
            L2.append(x)
            if cnt is not None and isinstance(x, Ins):
                if cnt >= a0 and (cnt - a0) % stride == 0 and k_ < 14:
                    L2.append(Ins(f"s_memtime s[{60+2*k_}:{61+2*k_}]")); k_ += 1
                cnt += 1
        A.L = L2
    return A, dict(name="main_kernel" if opt.get("list") else "interleave_layers__memory_aug_recurrent_mem_tr__spectral_gfnet__prompt_kernel", plain=not opt.get("list"), grid=256, block=256, lds=163840, vgpr=512, accum=256)
```

```python
from common import *

LDS_MEM, LDS_K, LDS_V, LDS_F, LDS_O, LDS_OD, LDS_WQ = 0, 8192, 24576, 0, 4096, 6144, 32768
vKr = 16; sKm = 47
FS = 1088
vL16, vG512, vFw, vFr, vOw, vOr, vPst, vMst, vSamp, vIK, vIN = 1, 2, 3, 4, 5, 6, 7, 8, 9, 10, 11
vGat = 0
vAS = 12; vM1 = 16; vWq0 = 17; vWq1 = 18; vSmp = 19
vKQ = 20; vVP = 24; vPm = 28; vT0 = 30; vT1 = 31
vMEM = 32
vSx0, vSx1, vSm, vE, vPx, vL = 32, 36, 40, 44, 54, 58
vAk0, vAq0, vAk1, vAq1 = 64, 68, 72, 76
vF = 64; vOUT = 64
vAv0, vAv1 = 80, 84
vO0, vO1 = 96, 100
vThr = 9
KVSEG = 8192
PUBSEG = 4096
vSTG = 88
vVx = 88; vKx = 96
vOF = 32; vPK = 48; vRL = 56; vRA = 48; vRT = 52
vWo = 128
sW, sH, sStep, sKV, sPub, sPart, sInb, sMemN, sMemP, sGat, sPh, sT, sC, sDead = 9, 12, 24, 25, 26, 27, 28, 29, 30, 31, 32, 33, 34, 3
sMask = 36; sSync, sPartB, sMemB, sKVF = 56, 57, 58, 59
vKF = 9
SRD = "s[16:19]"; SRDW = "s[20:23]"
TMO = 200000
CPS = 8192 + 0
MSL = 13

def smf(A, d, am, b, idx): A(f"v_smfmac_f32_16x16x64_bf16 {v(d,4)}, {v(am,4)}, {b}, {v(idx)}")

def lane_consts(A, layer, opt):
    L = 0
    t0, t1, t2 = 20, 21, 22
    vGT = 30
    A(f"""v_lshlrev_b32 v{vL16}, 4, v0
v_lshrrev_b32 v{t0}, 4, v0
v_and_b32 v{t1}, 15, v0
v_lshlrev_b32 v{vG512}, 9, v{t0}
v_lshl_add_u32 v{vG512}, v{t1}, 4, v{vG512}
v_bfe_u32 v{t2}, v0, 3, 1
v_lshlrev_b32 v{vFw}, 8, v{t2}
v_lshl_add_u32 v{vFw}, v{t0}, 6, v{vFw}
v_and_b32 v{t2}, 7, v0
v_lshl_add_u32 v{vFw}, v{t2}, 3, v{vFw}
s_lshl_b32 s14, s9, 10
s_add_u32 s14, s14, {LDS_F}
v_add_u32 v{vFw}, s14, v{vFw}
v_and_b32 v{t2}, 3, v0
v_lshlrev_b32 v{vFr}, 6, v{t2}
v_bfe_u32 v{t2}, v0, 5, 1
v_lshl_add_u32 v{vFr}, v{t2}, 9, v{vFr}
v_bfe_u32 v{t2}, v0, 2, 3
v_lshl_add_u32 v{vFr}, v{t2}, 3, v{vFr}
v_add_u32 v{vFr}, {LDS_F}, v{vFr}
v_lshlrev_b32 v{vOw}, 7, v{t0}
v_bfe_u32 v{t2}, v0, 2, 2
v_lshl_add_u32 v{vOw}, v{t2}, 5, v{vOw}
v_and_b32 v{t2}, 1, v0
v_lshl_add_u32 v{vOw}, v{t2}, 4, v{vOw}
s_lshl_b32 s14, s9, 9
s_add_u32 s14, s14, {LDS_O}
v_add_u32 v{vOw}, s14, v{vOw}
v_add_u32 v{t2}, {LDS_OD - LDS_O + 8}, v{vOw}
s_lshl_b32 s15, s9, 9
v_subrev_u32 v{t2}, s15, v{t2}
v_and_b32 v23, 2, v0
v_cmp_ne_u32 vcc, 0, v23
v_cndmask_b32 v{vOw}, v{t2}, v{vOw}, vcc
v_mov_b32 v{t2}, 0x4444
v_mov_b32 v23, 0xeeee
v_cndmask_b32 v{vIK}, v{t2}, v23, vcc
v_and_b32 v24, 8, v0
v_cmp_ne_u32 vcc, 0, v24
v_cndmask_b32 v{vIN}, v{t2}, v23, vcc
v_lshlrev_b32 v{vOr}, 7, v{t0}
v_and_b32 v{t2}, 7, v0
v_lshl_add_u32 v{vOr}, v{t2}, 4, v{vOr}
v_add_u32 v{vOr}, {LDS_O}, v{vOr}
; vPst = (2w+sel)*8192 + (2*g1+(n>>3))*2048 + h*64 + (n&7)*8
v_lshrrev_b32 v{vPst}, 5, v0
s_lshl_b32 s13, s9, 1
v_add_u32 v{vPst}, s13, v{vPst}
v_lshlrev_b32 v{vPst}, 13, v{vPst}
v_bfe_u32 v{t2}, v0, 3, 2
v_lshl_add_u32 v{vPst}, v{t2}, 11, v{vPst}
v_and_b32 v{t2}, 7, v0
v_lshl_add_u32 v{vPst}, v{t2}, 3, v{vPst}
s_lshl_b32 s14, s12, 6
v_add_u32 v{vPst}, s14, v{vPst}
; vMst = h*256 + w*64 + gt*16 + cw*4 (lanes with n>=4 out of range)
v_lshlrev_b32 v{vMst}, 4, v{t0}
v_and_b32 v{t2}, 3, v0
v_lshl_add_u32 v{vMst}, v{t2}, 2, v{vMst}
s_lshl_b32 s14, s12, 6
s_lshl_b32 s15, s9, 11
s_add_u32 s14, s14, s15
v_add_u32 v{vMst}, s14, v{vMst}
v_and_b32 v24, 12, v0
v_cmp_ne_u32 vcc, 0, v24
v_mov_b32 v24, 0x80000000
v_cndmask_b32 v{vMst}, v{vMst}, v24, vcc
s_mov_b32 s{sMask}, 0xcccccccc
s_mov_b32 s{sMask+1}, 0xcccccccc
s_mov_b32 s{sT}, {f32bits(40.0):#x}
s_lshl_b32 s14, s9, 11
s_add_u32 s14, s14, {LDS_MEM}
v_add_u32 v19, s14, v{vL16}
v_lshlrev_b32 v{vGT}, 8, v{t0}
v_bfe_u32 v{t2}, v0, 3, 1
v_lshl_add_u32 v{vGT}, v{t2}, 7, v{vGT}
v_bfe_u32 v{t2}, v0, 1, 1
v_lshl_add_u32 v{vGT}, v{t2}, 6, v{vGT}
v_bfe_u32 v{t2}, v0, 2, 1
v_lshl_add_u32 v{vGT}, v{t2}, 5, v{vGT}
v_and_b32 v{t2}, 1, v0
v_lshl_add_u32 v{vGT}, v{t2}, 4, v{vGT}
v_lshrrev_b32 v{t2}, 2, v{t1}
v_and_b32 v23, 3, v{t1}
v_lshl_add_u32 v{t2}, v23, 2, v{t2}
v_mov_b32 v24, 0x3f80
v_mov_b32 v25, 0x3f800000
v_mov_b32 v26, 0x3f803f80""")
    for r in range(4):
        A(f"""v_mov_b32 v{vAS+r}, 0
v_cmp_eq_u32 vcc, {2*r}, v{t2}
v_cndmask_b32 v{vAS+r}, v{vAS+r}, v24, vcc
v_cmp_eq_u32 vcc, {2*r+1}, v{t2}
v_cndmask_b32 v{vAS+r}, v{vAS+r}, v25, vcc
v_cmp_le_u32 vcc, 8, v{t2}
v_cndmask_b32 v{vAS+r}, v{vAS+r}, v26, vcc""")
    A(f"""v_add_u32 v16, {LDS_K}, v{vG512}
s_lshl_b32 s13, s9, 14
s_add_u32 s13, s13, {LDS_WQ}
v_add_u32 v{vWq0}, s13, v{vL16}
v_add_u32 v{vWq1}, 0x10000, v{vWq0}
s_mov_b32 s{sC}, {f32bits(math.log2(math.e) / math.sqrt(128.0)):#x}""")

def weights_prologue(A, mid=None, opt={}, late=None):
    dA = [32, 33, 34, 35]; dO = [36, 37]; tA = [38, 39]; tO = 40; tc = [41, 42]
    x, y = 44, 45
    A(f"""; DMA source offsets for Wq/k/v : rr*8192 + ((cc ^ 2(rr&1) ^ 4j)*16)
v_lshrrev_b32 v{x}, 4, v0
v_and_b32 v{y}, 1, v{x}
v_lshlrev_b32 v{y}, 1, v{y}
v_and_b32 v46, 15, v0
v_xor_b32 v{y}, v{y}, v46
v_lshlrev_b32 v{x}, 13, v{x}""")
    for j in range(4):
        A(f"v_xor_b32 v46, {4*j}, v{y}\nv_lshl_add_u32 v{dA[j]}, v46, 4, v{x}")
    A(f"""; scalar bases
s_lshl_b32 s50, s12, 8
s_lshl_b32 s13, s9, 18
s_add_u32 s50, s50, s13        ; h*256 + w*32 rows*8192
s_lshl_b32 s51, s12, 17
s_lshl_b32 s13, s9, 13
s_add_u32 s51, s51, s13        ; h*131072 + w*8 rows*1024
s_lshl_b32 s52, s9, 13         ; w*8192 (lds)""")
    A(f"""; Wo DMA: (l ^ 4*((j&1) | ((w>>1)<<1)))*16
s_lshr_b32 s13, s9, 1
s_lshl_b32 s13, s13, 3
v_xor_b32 v{y}, s13, v0
v_lshlrev_b32 v{dO[0]}, 4, v{y}
v_xor_b32 v{y}, 4, v{y}
v_lshlrev_b32 v{dO[1]}, 4, v{y}""")
    mats = sum([[m_] * 4 for m_ in opt.get('word', [42, 44, 46])], []) + [40] * 4
    NT = ' nt' if opt.get('wnt', 1) else ''
    slot = lambda i: ((i + 4) % 5) * 32768
    def issue(i):
        if i % 4 == 0: set_srd(A, 20, mats[i], 4 * MB)
        c = i % 4
        tok = None
        for j in range(8):
            A(f"s_add_u32 m0, s52, {slot(i) + j*1024}")
            if mats[i] == 46:
                A(f"s_add_u32 s13, s51, {c*32768 + j*1024}")
                tok = A(f"buffer_load_dwordx4 v{dO[j&1]}, {SRDW}, s13 offen{NT} lds")
            else:
                A(f"s_add_u32 s13, s50, {(128*c + 4*j)*8192}")
                tok = A(f"buffer_load_dwordx4 v{dA[j&3]}, {SRDW}, s13 offen{NT} lds")
        return tok
    toks = {}
    for i in range(4): toks[i] = issue(i)
    mid(A)
    A(f"""; tr addr for Wq/k/v: row0=16(gb>>1)+4(gb&1)+(r&1)+8(r>>1); f=2(r&1)+4((gb&1)+2(r>>1)); chunk=4w+2te+(c>>1)
v_bfe_u32 v{x}, v0, 5, 1
v_lshlrev_b32 v{x}, 4, v{x}
v_bfe_u32 v46, v0, 4, 1
v_lshl_add_u32 v{x}, v46, 2, v{x}
v_lshlrev_b32 v{y}, 2, v46
v_bfe_u32 v46, v0, 2, 1
v_add_u32 v{x}, v{x}, v46
v_lshl_add_u32 v{y}, v46, 1, v{y}
v_bfe_u32 v46, v0, 3, 1
v_lshl_add_u32 v{x}, v46, 3, v{x}
v_lshl_add_u32 v{y}, v46, 3, v{y}
v_lshlrev_b32 v{x}, 8, v{x}
v_and_b32 v46, 1, v0
v_lshl_add_u32 v{x}, v46, 3, v{x}
v_bfe_u32 v46, v0, 1, 1
s_lshl_b32 s13, s9, 2
v_add_u32 v46, s13, v46
v_xor_b32 v46, v46, v{y}
v_lshl_add_u32 v{tA[0]}, v46, 4, v{x}
v_xor_b32 v46, 2, v46
v_lshl_add_u32 v{tA[1]}, v46, 4, v{x}
v_bfe_u32 v{x}, v0, 4, 1
v_lshlrev_b32 v{y}, 3, v{x}
v_lshlrev_b32 v{x}, 4, v{x}
v_bfe_u32 v46, v0, 5, 1
v_lshl_add_u32 v{x}, v46, 2, v{x}
v_bfe_u32 v46, v0, 2, 1
v_add_u32 v{x}, v{x}, v46
v_lshl_add_u32 v{y}, v46, 2, v{y}
v_lshlrev_b32 v{x}, 10, v{x}
v_and_b32 v46, 1, v0
v_lshl_add_u32 v{x}, v46, 3, v{x}
v_bfe_u32 v46, v0, 1, 1
v_bfe_u32 v47, v0, 3, 1
v_lshl_add_u32 v46, v47, 1, v46
v_add_u32 v46, s13, v46
v_xor_b32 v46, v46, v{y}
v_lshl_add_u32 v{tO}, v46, 4, v{x}""")
    for i in range(16):
        A.wvm(toks[i])
        A("s_barrier")
        if i == 11 and late: late(A)
        if i + 4 < 16: toks[i + 4] = issue(i + 4)
        c = i % 4
        if i == 14:
            for f in range(8):
                for part in range(2):
                    A(f"ds_write_b128 v{vWq0}, {v(64 + f*8 + part*4, 4)} offset:{f*2048 + part*1024}")
            A("s_waitcnt lgkmcnt(0)")
        if mats[i] == 46:
            A(f"v_add_u32 v{tc[0]}, {slot(i)}, v{tO}")
            for p in range(4):
                for xx in range(4):
                    A(f"ds_read_b64_tr_b16 {v(vWo + (p*4 + c)*8 + 2*xx, 2)}, v{tc[0]} offset:{(8*(xx>>1) + 2*(xx&1))*1024 + p*256}")
        else:
            A(f"v_add_u32 v{tc[0]}, {slot(i)}, v{tA[0]}\nv_add_u32 v{tc[1]}, {slot(i)}, v{tA[1]}")
            for tt in range(2):
                for te in range(2):
                    t = 2 * c + tt
                    for xx in range(4):
                        if mats[i] == 42: dst = a((t*2 + te)*8 + 2*xx, 2)
                        elif mats[i] == 44: dst = a(128 + (t*2 + te)*8 + 2*xx, 2)
                        else: dst = v(64 + (((t & 3)*2 + te)*8) + 2*xx, 2)
                        A(f"ds_read_b64_tr_b16 {dst}, v{tc[te]} offset:{(64*tt + 32*(xx>>1) + 2*(xx&1))*256}")
        A("s_waitcnt lgkmcnt(0)")
    A("s_barrier")
    for f in range(8):
        for part in range(2):
            A(f"ds_write_b128 v{vWq1}, {v(64 + f*8 + part*4, 4)} offset:{f*2048 + part*1024}")

NS = 6
SLQ = [5, 0, 1, 2, 3, 4]
def slot_reg(sl): return vAv0 if sl == 5 else vSTG + 8 * sl
def wq_read(A, i, sl):
    t, te = i >> 1, i & 1
    base = vWq0 if t < 4 else vWq1
    off = ((t & 3) * 2 + te) * 2048
    r = slot_reg(sl)
    return [f"ds_read_b128 {v(r,4)}, v{base} offset:{off}", f"ds_read_b128 {v(r+4,4)}, v{base} offset:{off+1024}"]

def step_scalars(A, layer, nxt):
    part = f"s{sPartB}"; mem = f"s{sMemB}"
    return f"""s_and_b32 s13, s{sStep}, 1
s_lshl_b32 s13, s13, 18
s_add_u32 s{sPart}, s13, {part}
s_add_u32 s{sInb}, s{sPart}, s43
s_add_u32 s13, s{sStep}, 1
s_and_b32 s13, s13, 3
s_lshl_b32 s13, s13, {MSL}
s_add_u32 s{sMemN}, s13, {mem}
s_and_b32 s13, s{sStep}, 3
s_lshl_b32 s13, s13, {MSL}
s_add_u32 s{sMemP}, s13, {mem}
s_lshr_b32 s13, s{sStep}, 1
s_and_b32 s13, s13, 1
s_xor_b32 s{sPh}, s13, 1""".split("\n")

def delay(A, c):
    c = max(0, c) // 4
    while c > 0:
        n = min(c, 16); A(f"s_nop {n-1}"); c -= n

def kv_dma(A):
    for (ldsb, so) in [(LDS_K, 0), (LDS_V, WS_V - WS_K)]:
        A(f"s_add_u32 m0, s54, {ldsb}\ns_add_u32 s13, s{sKV}, {so}")
        A(f"buffer_load_dwordx4 v{vL16}, {SRD}, s13 offen sc1 lds\nbuffer_load_dwordx4 v{vL16}, {SRD}, s13 offen offset:1024 sc1 lds")

gS = [48, 56]
rS = [56, 80, 32]
vFA = 16; sF1, sF2, sFv = 44, 45, 46; sF1w, sF2w = 50, 51
vLw = 19
sGat2 = 42
CHKFIRST = [True]

def gload(r): return [f"buffer_load_dwordx4 {v(r,4)}, v{vGat}, {SRD}, s{sGat} offen sc1", f"buffer_load_dwordx4 {v(r+4,4)}, v{vGat}, {SRD}, s{sGat} offen offset:1024 sc1"]
def gwrite(r): return f"ds_write_b128 v{vLw}, {v(r,4)}\nds_write_b128 v{vLw}, {v(r+4,4)} offset:1024"
def gproc(A, r, ny, spec=2):
    A(f"s_waitcnt vmcnt({ny+1})")
    if spec >= 1: A(f"ds_write_b128 v{vLw}, {v(r,4)}")
    A(f"v_max3_u32 v{vT0}, v{r}, v{r+1}, v{r+2}\ns_waitcnt vmcnt({ny})")
    if spec >= 2: A(f"ds_write_b128 v{vLw}, {v(r+4,4)} offset:1024")
    A(f"""v_max3_u32 v{vT0}, v{vT0}, v{r+3}, v{r+4}
v_max3_u32 v{vT0}, v{vT0}, v{r+5}, v{r+6}
v_max_u32 v{vT0}, v{vT0}, v{r+7}
v_cmp_eq_u32 vcc, -1, v{vT0}""")
def g2dma(): return f"buffer_load_dwordx4 v{vGat}, {SRD}, s{sGat2} offen sc1 lds"
def rload(r): return [f"buffer_load_dwordx4 {v(r,4)}, v{vL16}, {SRD}, s{sInb} offen sc1", f"buffer_load_dwordx4 {v(r+4,4)}, v{vL16}, {SRD}, s{sInb} offen offset:1024 sc1"]
def rproc(A, r, n_younger, st=None):
    A(f"""s_waitcnt vmcnt({n_younger+1})
v_mfma_f32_16x16x32_bf16 {v(vRA,4)}, {v(vAS,4)}, {v(r,4)}, 0
v_bitop3_b32 v{vT0}, v{r}, v{r+2}, s{sPh} bitop3:0x7e
s_waitcnt vmcnt({n_younger})""")
    if st: st(7)
    A(f"""v_mfma_f32_16x16x32_bf16 {v(vRA,4)}, {v(vAS,4)}, {v(r+4,4)}, {v(vRA,4)}
v_bitop3_b32 v{vT1}, v{r+4}, v{r+6}, s{sPh} bitop3:0x7e
v_bitop3_b32 v{vT0}, v{vT0}, v{vT1}, 1 bitop3:0xa8
v_cmp_ne_u32 vcc, 0, v{vT0}""")

def kvf_check(P):
    return f"""s_add_u32 s13, s{sStep}, 1
s_min_u32 s13, s13, 63
s_lshr_b32 s13, s13, 2
s_lshl_b32 s13, 2, s13
s_sub_u32 s13, s13, 1
{P}_kc:
v_cmp_le_u32 vcc, 2, v{vKF}
s_and_b32 s38, vcc_lo, s13
s_cmp_lg_u32 s38, s13
s_cbranch_scc1 {P}_kw
{P}_kok:"""
def kvf_wait(A, P, tmo):
    A(f"{P}_kw:")
    tmo(15, f"{P}_kto")
    A(f"""s_sleep 8
v_lshrrev_b32 v{vKF}, 2, v{vL16}
buffer_load_dword v{vKF}, v{vKF}, {SRD}, s{sKVF} offen sc1
s_waitcnt vmcnt(0)
s_branch {P}_kc
{P}_kto:
s_mov_b32 s{sDead}, {TMO}
s_branch {P}_kok""")

def pf_setup(w, opt):
    return [f"s_add_u32 s{sKV}, s{sKV}, {KVSEG}", f"s_xor_b32 s{sKm}, s{sKm}, 0x6000", f"v_xor_b32 v{vKr}, 0x6000, v{vKr}", f"s_add_u32 m0, s39, {LDS_MEM + 4096}"]

def pubmix():
    q = "quad_perm:[0,1,0,1] row_mask:0xf bank_mask:0xf"
    return [f"s_mov_b64 vcc, s[{sMask}:{sMask+1}]", f"v_mov_b32_dpp v{vT0}, v{vVP} {q}", f"v_mov_b32_dpp v{vT1}, v{vVP+2} {q}",
            f"v_cndmask_b32 v{vKQ}, v{vKQ}, v{vVP}, vcc", f"v_cndmask_b32 v{vKQ+1}, v{vKQ+1}, v{vVP+2}, vcc",
            f"v_cndmask_b32 v{vKQ+2}, v{vKQ+2}, v{vT0}, vcc", f"v_cndmask_b32 v{vKQ+3}, v{vKQ+3}, v{vT1}, vcc"]

def gather_events(p, w, opt):
    n1 = opt.get("n1", 2) if w < 2 else 0
    dg = opt.get("dg", 128)
    t0 = opt.get("d2", [120, 60, 0, 0])[w]
    return [(t0 + k * dg, gS[k]) for k in range(n1)], n1

def body(A, P, layer, p, w, fast, last, opt):
    SC = "" if fast else " sc1"
    sfx = "_l" if last else ""
    stamp = opt.get("stamp")
    def st(k):
        if stamp and not last and k in opt.get("st", range(11)): A(f"s_memtime s[{60+2*k}:{61+2*k}]")
        if not last and opt.get("wv") == k: A("s_memtime s[62:63]\ns_waitcnt vmcnt(0)\ns_memtime s[64:65]\ns_waitcnt lgkmcnt(0)\ns_sub_u32 s13, s64, s62\ns_add_u32 s83, s83, s13\ns_max_u32 s84, s84, s13")
        if not last and opt.get("cut") == k: A(f"s_add_u32 s{sStep}, s{sStep}, 1\ns_branch {P}_cutend")
    A.reset_counts()
    ev, n1 = gather_events(p, w, opt)
    nxt = [0]
    tk = {}
    nab = 1 if opt.get("abs") else 0
    B1 = None
    if w < 2:
        spec = opt.get("spec", 0)
        gproc(A, gS[0], 2 * (n1 - 1) + nab, spec)
        A(f"s_cbranch_vccnz {P}_gr{sfx}")
        for x in gwrite(gS[0]).split("\n")[spec:]: A(x)
        A(f"{P}_gok{sfx}:\ns_waitcnt lgkmcnt(0)")
        st(9)
    A("s_barrier")
    st(0)
    mrd = lambda t: f"ds_read_b128 {v(vMEM+4*t,4)}, v{vL16} offset:{LDS_MEM + t*1024}"
    mt = {}
    for t in range(3): mt[t] = A(mrd(t))
    A(g2dma())
    A(f"{P}_entry2{sfx}:")
    A(f"s_mov_b32 m0, s{sKm}")
    seq = []
    for t in range(4): seq += [("k", 0, t), ("q", 0, t), ("k", 1, t), ("q", 1, t)]
    for te in range(2):
        for t in range(4, 8): seq += [("k", te, t), ("q", te, t)]
    N1 = 32
    V = [[] for _ in range(N1)]; S = [[] for _ in range(N1)]; X = [[] for _ in range(N1)]
    B2 = opt.get("b2", 12)
    quse = [(idx, 2 * t + te) for idx, (m, te, t) in enumerate(seq) if m == "q"]
    sl_seq = SLQ + [(n_ - 6) % 5 for n_ in range(6, 16)]
    slot = {f: sl_seq[n_] for n_, (idx, f) in enumerate(quse)}
    jobs = []
    lastuse = {}
    for n_, (idx, f) in enumerate(quse):
        if n_ >= NS:
            for x in wq_read(A, f, slot[f]): jobs.append((lastuse[slot[f]], idx, "wq", f, x))
        lastuse[slot[f]] = idx
    first = {}
    for idx, (m, te, t) in enumerate(seq): first.setdefault(t, idx)
    for t in range(3 if B1 is None else 2, 8): jobs.append(((0 if B1 is None else B1) if t < 4 else B2, first[t] - 3, "mem", t, mrd(t)))
    if not last:
        for n_, (c, u) in enumerate([(c, u) for c in range(2) for u in range(4)]):
            jobs.append((max(lastuse[1 + n_ // 2], opt.get("kx0", 24)), 100 + lastuse[1 + n_ // 2], "kx", n_, f"ds_read_b128 {v(vKx + (c*4+u)*4, 4)}, v{vKr} offset:{u*2048 + c*256}"))
        for n_ in range(2):
            jobs.append((max(lastuse[0], opt.get("kx0", 24)), 90, "kx", 8 + n_, f"ds_read_b128 {v(vVx+4*n_,4)}, v{vG512} offset:{LDS_V + w*2048 + 256*n_}"))
    D = [[] for _ in range(N1)]
    nod = set()
    for g_ in range(N1):
        cap = 2 if g_ in (B1, B2) else (0 if g_ in nod else 1)
        for _ in range(cap):
            av = [j for j in jobs if j[0] <= g_]
            if not av: break
            j = min(av, key=lambda j: j[1]); jobs.remove(j); D[g_].append(j[2:])
    assert all(j[2] == "kx" for j in jobs)
    X[B2].append(lambda: A(f"s_waitcnt vmcnt({nxt[0]})"))
    X[B2].append("s_barrier")
    for t in range(4, 8):
        r = vMEM + 4 * t
        V[first[t]].append(f"v_max_u32 v{vT0}, v{r}, v{r+1}" if t == 4 else f"v_max3_u32 v{vT0}, v{vT0}, v{r}, v{r+1}")
        V[first[t] + 1].append(f"v_max3_u32 v{vT0}, v{vT0}, v{r+2}, v{r+3}")
    V[24].append(f"v_cmp_eq_u32 vcc, -1, v{vT0}")
    f0 = [f"v_add_f32 v{vAk0}, v{vAk0}, v{vAk0+2}", f"v_add_f32 v{vAk0+1}, v{vAk0+1}, v{vAk0+3}",
          f"v_add_f32 v{vAq0}, v{vAq0}, v{vAq0+2}", f"v_add_f32 v{vAq0+1}, v{vAq0+1}, v{vAq0+3}",
          f"v_mul_f32 v{vAq0}, s{sC}, v{vAq0}", f"v_mul_f32 v{vAq0+1}, s{sC}, v{vAq0+1}",
          f"v_cvt_pk_bf16_f32 v{vKQ}, v{vAk0}, v{vAk0+1}"]
    for n_, x in enumerate(f0): V[25 + n_].append(x)
    for r in range(8): V[3 + r].append(f"v_mov_b32 v{vAv0+r}, 0")
    ext = []
    if not last and not opt.get("nokv"):
        ext.append(f"buffer_load_dwordx4 v{vL16}, {SRD}, s{sKV} offen sc1 lds")
        ext.append(f"buffer_load_dwordx4 v{vL16}, {SRD}, s{sKV} offen offset:1024 sc1 lds")
    if not opt.get("nopub"):
        ext.append(f"buffer_store_dwordx4 {v(vKQ,4)}, v{vL16}, {SRD}, s40 offen sc1")
        if w == 2: ext.append(f"v_mov_b32 v{vT1}, s41\ns_mov_b64 exec, 1\nbuffer_store_dword v{vT1}, off, {SRD}, s55 sc1\ns_mov_b64 exec, -1")
    if w == 3 and not last: ext.append(f"v_lshrrev_b32 v{vKF}, 2, v{vL16}\nbuffer_load_dword v{vKF}, v{vKF}, {SRD}, s{sKVF} offen sc1")
    pz = opt.get("pz", 2)
    pos_ = [pz + w + 4 * n_ for n_ in range(len(ext))]
    pos_ = [x if x < B2 - 1 else x + 4 for x in pos_]
    for n_, x in enumerate(ext): X[pos_[n_]].append(x)
    nxt[0] = sum(1 for x in pos_ if x < B2)
    S[26].append(f"s_add_u32 s{sGat}, s{sMemN}, s54"); S[28].append(f"s_add_u32 s{sGat2}, s{sMemN}, s52")
    wqtok = {}
    def need_wait(idx):
        m, te, t = seq[idx]
        need = [mt.get(t, "missing")]
        if m == "q" and (2 * t + te) in wqtok: need.append(wqtok[2 * t + te])
        if "missing" in need: return False
        ns = [A.lgk_n(x) for x in need if A.lgk_n(x) is not None]
        if ns: A(f"s_waitcnt lgkmcnt({min(ns)})")
        return True
    hoist = opt.get("hoist", 1)
    for idx, (m, te, t) in enumerate(seq):
        need_wait(idx)
        if idx == 0 and not opt.get("abs"): st(1)
        if m == "k": smf(A, [vAk0, vAk1][te], vMEM + 4 * t, a((t * 2 + te) * 8, 8), vIK)
        else: smf(A, [vAq0, vAq1][te], vMEM + 4 * t, v(slot_reg(slot[2 * t + te]), 8), vIK)
        for x in X[idx]: (x() if callable(x) else A(x))
        if hoist and idx + 1 < N1 and V[idx] and not (B2 <= idx < B2 + 5): need_wait(idx + 1)
        for x in S[idx]: A(x)
        for (kind, key, txt) in D[idx]:
            tok = A(txt)
            {"wq": wqtok, "mem": mt, "kx": {}}[kind][key] = tok
        for x in V[idx]: A(x)
    st(2)
    def sv(j): smf(A, [vAv0, vAv1][j & 1], vMEM + 4 * (j >> 1), a(128 + j * 8, 8), vIK)
    kxr = [j[4] for j in jobs]
    if last: kxr = []
    def rdk(n_):
        for _ in range(n_):
            if kxr: A(kxr.pop(0))
    fsplit = opt.get("fsplit", 1) and not last
    sv(0); rdk(1); A(f"v_cvt_pk_bf16_f32 v{vKQ+1}, v{vAq0}, v{vAq0+1}")
    sv(1)
    if fsplit: A(f"ds_write_b64 v{vFw}, {v(vKQ,2)}")
    else: rdk(1)
    A(f"v_add_f32 v{vAk1}, v{vAk1}, v{vAk1+2}")
    A(f"""v_add_f32 v{vAk1+1}, v{vAk1+1}, v{vAk1+3}
v_add_f32 v{vAq1}, v{vAq1}, v{vAq1+2}
v_add_f32 v{vAq1+1}, v{vAq1+1}, v{vAq1+3}
v_cvt_pk_bf16_f32 v{vKQ+2}, v{vAk1}, v{vAk1+1}
v_mul_f32 v{vAq1}, s{sC}, v{vAq1}
v_mul_f32 v{vAq1+1}, s{sC}, v{vAq1+1}
v_cvt_pk_bf16_f32 v{vKQ+3}, v{vAq1}, v{vAq1+1}""")
    vfold = [f"v_add_f32 v{vAv0}, v{vAv0}, v{vAv0+2}", f"v_add_f32 v{vAv0+1}, v{vAv0+1}, v{vAv0+3}",
             f"v_cvt_pk_bf16_f32 v{vVP}, v{vAv0}, v{vAv0+1}", f"v_add_f32 v{vAv1}, v{vAv1}, v{vAv1+2}",
             f"v_add_f32 v{vAv1+1}, v{vAv1+1}, v{vAv1+3}", f"v_cvt_pk_bf16_f32 v{vVP+2}, v{vAv1}, v{vAv1+1}"]
    if last:
        A(f"s_cbranch_vccnz {P}_redo_l")
        A(f"ds_write2_b64 v{vFw}, {v(vKQ,2)}, {v(vKQ+2,2)} offset1:64")
        for j in range(2, 9): sv(j)
        A("s_waitcnt lgkmcnt(0)\ns_barrier")
        for jj in range(2): A(f"ds_read_b64_tr_b16 {v(vKQ + 2*jj, 2)}, v{vFr} offset:{1024*w + 256*jj}")
        for j in range(9, 16): sv(j)
        for x in vfold: A(x)
        A("s_waitcnt lgkmcnt(0)")
        for x in pubmix(): A(x)
        A(f"buffer_store_dwordx4 {v(vKQ,4)}, v{vL16}, {SRD}, s{sPub} offen sc1")
        return
    if fsplit:
        fw = A(f"ds_write_b64 v{vFw}, {v(vKQ+2,2)} offset:512")
        sv(2)
    else:
        sv(2)
        fw = A(f"ds_write2_b64 v{vFw}, {v(vKQ,2)}, {v(vKQ+2,2)} offset1:64")
    NBF = opt.get("nbf", 7)
    for j in range(3, NBF):
        sv(j)
        rdk(1)
    rdk(10)
    A(f"s_cbranch_vccnz {P}_redo")
    A.wlg(fw); A("s_barrier")
    st(3)
    ft = []
    for tr in range(2): ft.append(A(f"ds_read_b64_tr_b16 {v(vF + 2*tr, 2)}, v{vFr} offset:{256*tr}"))
    dma = [f"buffer_load_dwordx4 v{vL16}, {SRD}, s13 offen sc1 lds",
           f"buffer_load_dwordx4 v{vL16}, {SRD}, s13 offen offset:1024 sc1 lds"]
    if opt.get("nokv"): dma = []
    NV1 = opt.get("nv1", 12)
    A(f"s_add_u32 m0, s54, {LDS_V}\ns_add_u32 s13, s{sKV}, {WS_V - WS_K}")
    dpos = {opt.get("dz", 0) + w + 4 * n_: x for n_, x in enumerate(dma)}
    gi = [0]
    def gap():
        if gi[0] in dpos: A(dpos.pop(gi[0]))
        gi[0] += 1
    for j in range(NBF, NV1):
        sv(j); gap()
        u = j - NBF + 1
        if u < 4:
            for jj in range(2):
                ft.append(A(f"ds_read_b64_tr_b16 {v(vF + 4*u + 2*jj, 2)}, v{vFr} offset:{1024*u + 256*jj}"))
    st(4)
    def mf(d, aa, bb, first_):
        A(f"v_mfma_f32_16x16x32_bf16 {v(d,4)}, {v(aa,4)}, {v(bb,4)}, " + ("0" if first_ else v(d, 4)))
    ex = lambda k_, src: f"v_exp_f32 v{vE+k_}, v{src}"
    cv = lambda d, x: f"v_cvt_pk_bf16_f32 v{d}, v{x}, v{x+1}"
    sq = [("x", 0, u) for u in range(4)] + [("x", 1, u) for u in range(4)]
    sq += [("v", j, 0) for j in range(NV1, 16)] + [("m", 0, u) for u in range(4)]
    G = {}
    fill = [ex(0, vSx0), ex(1, vSx0 + 1), ex(2, vSx0 + 2), ex(3, vSx0 + 3), ex(4, vSx1), ex(5, vSx1 + 1), ex(6, vSx1 + 2), ex(7, vSx1 + 3)]
    pos = 6
    while fill and pos < len(sq):
        G.setdefault(pos, []).append(fill.pop(0)); pos += 1
    tail = fill + [cv(vPx, vE), cv(vPx + 1, vE + 2), cv(vPx + 2, vE + 4), cv(vPx + 3, vE + 6)]
    while tail and pos < len(sq):
        G.setdefault(pos, []).extend(tail[:2]); tail = tail[2:]; pos += 1
    A.wlg(ft[-1])
    for r in range(4): G.setdefault(r, []).append(f"v_mov_b32 v{vKQ+r}, v{vF+4*w+r}")
    for n_, (kind, tile, u) in enumerate(sq):
        if kind == "x": mf([vSx0, vSx1][tile], vKx + (tile * 4 + u) * 4, vF + 4 * u, u == 0)
        elif kind == "m": mf(vSm, vF + 4 * u, vF + 4 * u, u == 0)
        else: sv(tile)
        gap()
        for x in G.get(n_, []): A(x)
    for k_ in sorted(dpos): A(dpos[k_])
    for x in tail: A(x)
    m16 = lambda d, aa, bb: A(f"v_mfma_f32_16x16x16_bf16 {v(d,4)}, {v(aa,2)}, {v(bb,2)}, {v(d,4)}")
    A(vfold[0]); A(vfold[1])
    mf(vL, vAS, vPx, True); A(vfold[2]); A(vfold[3])
    mf(vO0, vVx, vPx, True); A(ex(8, vSm))
    mf(vO1, vVx + 4, vPx, True); A(ex(9, vSm + 1))
    A(vfold[4]); A(cv(vPm, vE + 8)); A(vfold[5])
    A(f"v_max3_f32 v{vT1}, |v{vSx0}|, |v{vSx0+1}|, |v{vSx0+2}|")
    m16(vL, vAS, vPm)
    A(f"v_max3_f32 v{vT1}, v{vT1}, |v{vSx0+3}|, |v{vSx1}|\nv_max3_f32 v{vT1}, v{vT1}, |v{vSx1+1}|, |v{vSx1+2}|")
    m16(vO0, vVP, vPm)
    A(f"v_max3_f32 v{vT1}, v{vT1}, |v{vSx1+3}|, |v{vSm}|\nv_max_f32 v{vT1}, v{vT1}, |v{vSm+1}|")
    m16(vO1, vVP + 2, vPm)
    A(f"v_rcp_f32 v{vT0}, v{vL+2}")
    A(f"v_cmp_lt_f32 vcc, s{sT}, v{vT1}")
    if opt.get("force_slow"): A(f"v_cmp_lt_f32 vcc, -1.0, v{vT1}")
    for r in range(4): A(f"v_mul_f32 v{vO0+r}, v{vT0}, v{vO0+r}")
    A(cv(vE, vO0)); A(cv(vE + 1, vO0 + 2))
    if opt.get("ow2", 1): A(f"ds_write_b64 v{vOw}, {v(vE,2)}")
    for r in range(2): A(f"v_pk_mul_f32 {v(vO1+2*r,2)}, {v(vO1+2*r,2)}, {v(vT0,2)} op_sel_hi:[1,0]")
    A(cv(vE + 2, vO1)); A(cv(vE + 3, vO1 + 2))
    ow = A(f"ds_write_b64 v{vOw}, {v(vE+2,2)} offset:8") if opt.get("ow2", 1) else A(f"ds_write_b128 v{vOw}, {v(vE,4)}")
    A(f"s_and_b64 vcc, vcc, s[{sMask}:{sMask+1}]\ns_cbranch_vccnz {P}_slow")
    A(f"{P}_norm:")
    zg = opt.get("zgap", 0)
    for r in range(0, 4 if zg else 8, 2): A(f"v_mov_b64 {v(vOUT+r,2)}, 0")
    A.wlg(ow); A("s_barrier")
    st(5)
    ot = [A(f"ds_read_b128 {v(vOF+4*kk,4)}, v{vOr} offset:{kk*512}") for kk in range(4)]
    A(f"s_add_u32 s13, s{sPart}, 0")
    for r in (range(4, 10, 2) if zg else range(8, 16, 2)): A(f"v_mov_b64 {v(vOUT+r,2)}, 0")
    Z = {0: 10, 1: 11, 2: 12, 3: 13, 4: 14, 6: 15} if zg else {}
    pre = []
    for n_ in range(1, 6): pre += wq_read(A, quse[n_][1], SLQ[n_])
    def epi(pp):
        return [f"v_cvt_pk_bf16_f32 v{vPK+2*pp}, v{vOUT+4*pp}, v{vOUT+4*pp+1}",
                f"v_cvt_pk_bf16_f32 v{vPK+2*pp+1}, v{vOUT+4*pp+2}, v{vOUT+4*pp+3}",
                f"v_bfi_b32 v{vPK+2*pp}, 1, s{sPh}, v{vPK+2*pp}",
                f"buffer_store_dwordx2 {v(vPK+2*pp,2)}, v{vPst}, {SRD}, s13 offen{SC}"]
    if opt.get("e1fast", 1):
        e1 = 6; E = {5: epi(0), 9: epi(1), 13: epi(2)[0:1], 14: epi(2)[1:2], 15: epi(2)[2:3]}
    else:
        e1 = 9; E = {5: epi(0), 9: epi(1)[0:1], 10: epi(1)[1:2], 11: epi(1)[2:3], 12: epi(1)[3:4], 13: epi(2)[0:1], 14: epi(2)[1:2], 15: epi(2)[2:3]}
    rsch = opt.get("rs", [[16, 200], [120, 250], [260, 390], [320, 450]])[w]
    rtk = []
    def rissue():
        if opt.get("abs") and not rtk: A("s_memtime s[68:69]")
        for x in rload(rS[len(rtk)]): t_ = A(x)
        rtk.append(t_)
    for n_ in range(16):
        pp, kk = n_ >> 2, n_ & 3
        if n_ == 0: A.wlg(ot[1])
        if n_ == 2: A.wlg(ot[3])
        smf(A, vOUT + 4 * pp, vOF + 4 * kk, v(vWo + n_ * 8, 8), vIN)
        if n_ == 8: A(f"s_add_u32 s13, s{sPart}, {65536}")
        if n_ == 13: A(f"s_add_u32 s13, s{sPart}, {2*65536}")
        if n_ in rsch: rissue()
        elif pre and n_ >= 3 and n_ not in (5, e1 + 3): A(pre.pop(0))
        if n_ in Z: A(f"v_mov_b32 v{vOUT + Z[n_]}, 0")
        for x in E.get(n_, []): A(x)
        if n_ == 5: st(10)
    A(epi(2)[3])
    A(f"s_add_u32 s13, s{sPart}, {3*65536}")
    while pre: A(pre.pop(0))
    A(f"s_mov_b32 s40, s{sPub}\ns_add_u32 s{sPub}, s{sPub}, {PUBSEG}\ns_mov_b32 s14, 0\ns_mov_b32 s15, 0")
    for x in epi(3)[:3]: A(x)
    if 16 in rsch: rissue()
    A(epi(3)[3])
    st(6)
    idle = [f"v_mov_b64 {v(vAk0+r,2)}, 0" for r in range(0, 16, 2)]
    idle2 = pubmix()
    def wait_fill(d):
        while idle and d >= 4: A(idle.pop(0)); d -= 4
        delay(A, d)
    cur = 0
    for tm in [x - 100 for x in rsch if x >= 100]:
        wait_fill(tm - cur); cur = max(cur, tm) + 12
        rissue()
    while idle: A(idle.pop(0))
    opt["_rfirst"] = [A.vm_n(rtk[k_]) + 2 * k_ for k_ in range(1, len(rtk))]
    rproc(A, rS[0], A.vm_n(rtk[0]), st)
    A(f"""s_cbranch_vccnz {P}_rr
{P}_rok:
{"s_memtime s[66:67]" if opt.get("abs") else "s_nop 0"}
v_add_f32_dpp v{vRT}, v{vRA}, v{vRA} row_ror:4 row_mask:0xf bank_mask:0xf ;NOHAZ
v_add_f32_dpp v{vRT+1}, v{vRA+1}, v{vRA+1} row_ror:4 row_mask:0xf bank_mask:0xf ;NOHAZ
v_add_f32_dpp v{vRT+2}, v{vRT}, v{vRT} row_ror:8 row_mask:0xf bank_mask:0xf
v_add_f32_dpp v{vRT+3}, v{vRT+1}, v{vRT+1} row_ror:8 row_mask:0xf bank_mask:0xf
v_cvt_pk_bf16_f32 v{vT0}, v{vRT+2}, v{vRT+3}
buffer_store_dword v{vT0}, v{vMst}, {SRD}, s{sMemN} offen{SC}""")
    st(8)
    A(f"v_mov_b32 v{vT1}, -1\nbuffer_store_dword v{vT1}, v{vMst}, {SRD}, s{sMemP} offen{SC}")
    if opt.get("dumpmem"):
        A(f"s_lshl_b32 s13, s{sStep}, 16\ns_add_u32 s13, s13, {WS_OP + 65536}\nbuffer_store_dword v{vT0}, v{vMst}, {SRD}, s13 offen")
    idle += [f"s_mov_b32 s41, s{sStep}", f"s_add_u32 s{sStep}, s{sStep}, 1"] + idle2
    post = step_scalars(A, layer, 0) + pf_setup(w, opt)
    if stamp:
        idle += ["s_waitcnt lgkmcnt(0)"]
        for k_ in list(range(1, 9)) + [10]:
            idle += [f"s_sub_u32 s13, s{60+2*k_}, s60", f"s_add_u32 s{82+k_}, s{82+k_}, s13"]
        idle += ["s_sub_u32 s13, s60, s78", "s_add_u32 s91, s91, s13"]
    absd = []
    if opt.get("abs"):
        absd = ["s_waitcnt lgkmcnt(0)", f"s_lshl_b32 s13, s41, 13", f"s_lshl_b32 s38, s12, 8", "s_add_u32 s13, s13, s38", f"s_add_u32 s13, s13, {WS_OP + 8*MB + w*64}"]
        for k_ in range(11):
            absd += [f"v_writelane_b32 v{vT1}, s{60+2*k_}, {k_}"]
        absd += [f"v_lshrrev_b32 v{vT0}, 2, v{vL16}", f"s_mov_b64 exec, 0xffff", f"buffer_store_dword v{vT1}, v{vT0}, {SRD}, s13 offen", "s_mov_b64 exec, -1"]
    idle += post
    cur = 0
    done5 = False
    for n_, (tm, r) in enumerate(ev):
        if n_ == 1:
            A("s_waitcnt vmcnt(4)")
            for x in wq_read(A, 0, 5): A(x)
            cur += 12; done5 = True
        wait_fill(tm - cur); cur = max(cur, tm) + 12
        if r == gS[0]: st(1) if opt.get("abs") else None
        for x in gload(r): A(x)
    while idle: A(idle.pop(0))
    if w == 3: A(kvf_check(P))
    if not done5:
        A(f"s_waitcnt vmcnt({2 + 2 * n1})")
        for x in wq_read(A, 0, 5): A(x)
    for x in absd: A(x)

def variant(A, P, layer, p, w, fast, opt):
    A(f".p2align 6\n{P}_top:")
    body(A, P, layer, p, w, fast, False, opt)
    A(f"""{P}_cutend:
{"s_waitcnt lgkmcnt(0)" if "cut" in opt else ""}
s_cmp_lt_u32 s{sStep}, 63
s_cbranch_scc1 {P}_top""")
    body(A, P, layer, p, w, fast, True, opt)
    A(f"""s_waitcnt vmcnt(0)
s_barrier
v_mov_b32 v{vT1}, 64
s_branch {opt['_K']}_fin""")
    for sfx in ["", "_l"]:
        A(f"{P}_entry{sfx}:")
        for t in range(3): A(f"ds_read_b128 {v(vMEM+4*t,4)}, v{vL16} offset:{LDS_MEM + t*1024}")
        A(f"s_branch {P}_entry2{sfx}")
    cn = lambda r: A(f"s_add_u32 s{r}, s{r}, 1") if opt.get("cnt") else None
    def tmo(cnt, ok):
        A(f"""s_add_u32 s{cnt}, s{cnt}, s{sDead}
s_cmp_ge_u32 s{cnt}, {TMO}
s_cbranch_scc1 {ok}""")
    def retry(lab, sets, load, proc, okl, cnt, cidx, first):
        n = len(sets)
        A(f"{lab}:")
        for k_ in range(n - 1):
            cn(cidx)
            for x in load(sets[k_]): A(x)
            proc(A, sets[k_ + 1], first[k_])
            A(f"s_cbranch_vccz {okl}")
        sets = sets[n - 1:] + sets[:n - 1]
        A(f"{lab}_lp:")
        for k_ in range(n):
            cn(cidx)
            for x in load(sets[k_]): A(x)
            proc(A, sets[(k_ + 1) % n], len(load(0)) * (n - 1))
            A(f"s_cbranch_vccz {okl}")
        tmo(cnt, f"{lab}_to"); A(f"s_branch {lab}_lp\n{lab}_to:\ns_mov_b32 s{sDead}, {TMO}\ns_branch {okl}")
    retry(f"{P}_rr", rS[:len(opt["_rfirst"]) + 1], rload, rproc, f"{P}_rok", 14, 94, opt["_rfirst"])
    for sfx in ["", "_l"]:
        ev, n1 = gather_events(p, w, opt)
        if w < 2: retry(f"{P}_gr{sfx}", gS[:n1], gload, gproc, f"{P}_gok{sfx}", 15, 95, [2 * (n1 - 1)] * (n1 - 1))
        A(f"{P}_redo{sfx}:")
        cn(89)
        A(f"""s_add_u32 s15, s15, s{sDead}
s_cmp_ge_u32 s15, {TMO}
s_cbranch_scc1 {opt['_K']}_end
s_waitcnt vmcnt(0) lgkmcnt(0)
s_barrier
s_add_u32 s40, s53, {WS_FLAG + 65536}
s_add_u32 s{sGat2}, s{sMemP}, s39
s_add_u32 s{sGat}, s{sMemP}, s39
s_add_u32 s{sGat2}, s{sGat2}, 4096
s_add_u32 m0, s39, {LDS_MEM}
s_nop 0
buffer_load_dwordx4 v{vGat}, {SRD}, s{sGat} offen sc1 lds
s_add_u32 m0, s39, {LDS_MEM + 4096}""")
        for r in range(0, 16, 2): A(f"v_mov_b64 {v(vAk0+r,2)}, 0")
        A(g2dma())
        for i in range(6):
            for x in wq_read(A, i, SLQ[i]): A(x)
        A(f"s_waitcnt vmcnt(0) lgkmcnt(0)\ns_barrier\ns_branch {P}_entry{sfx}")
    if w == 3: kvf_wait(A, P, tmo)
    A(f"{P}_slow:\ns_waitcnt lgkmcnt(0)\ns_nop 7")
    A(f"""v_max3_f32 v{vT0}, v{vSx0}, v{vSx0+1}, v{vSx0+2}
v_max3_f32 v{vT1}, v{vSx0+3}, v{vSx1}, v{vSx1+1}
v_max3_f32 v{vT0}, v{vT0}, v{vSx1+2}, v{vSx1+3}
v_max3_f32 v{vT1}, v{vT1}, v{vSm}, v{vSm+1}
v_max_f32 v{vT0}, v{vT0}, v{vT1}
v_mov_b32 v{vT1}, v{vT0}
v_permlane32_swap_b32 v{vT0}, v{vT1}
v_max_f32 v{vT0}, v{vT0}, v{vT1}
v_mov_b32 v{vT1}, v{vT0}
v_permlane16_swap_b32 v{vT0}, v{vT1}
v_max_f32 v{vT0}, v{vT0}, v{vT1}""")
    srcs = [vSx0 + i for i in range(4)] + [vSx1 + i for i in range(4)] + [vSm, vSm + 1]
    for k_, x in enumerate(srcs): A(f"v_sub_f32 v{vE+k_}, v{x}, v{vT0}")
    for k_ in range(10): A(f"v_exp_f32 v{vE+k_}, v{vE+k_}")
    for k_ in range(4): A(f"v_cvt_pk_bf16_f32 v{vPx+k_}, v{vE+2*k_}, v{vE+2*k_+1}")
    A(f"v_cvt_pk_bf16_f32 v{vPm}, v{vE+8}, v{vE+9}")
    for (d, aa) in [(vO0, vVx), (vO1, vVx + 4), (vL, vAS)]:
        A(f"v_mfma_f32_16x16x32_bf16 {v(d,4)}, {v(aa,4)}, {v(vPx,4)}, 0")
    for (d, aa) in [(vL, vAS), (vO0, vVP), (vO1, vVP + 2)]:
        A(f"v_mfma_f32_16x16x16_bf16 {v(d,4)}, {v(aa,2)}, {v(vPm,2)}, {v(d,4)}")
    A("s_nop 7")
    A(f"v_rcp_f32 v{vT0}, v{vL+2}")
    for r in range(8): A(f"v_mul_f32 v{vO0+r}, v{vT0}, v{vO0+r}")
    for r in range(4): A(f"v_cvt_pk_bf16_f32 v{vE+r}, v{vO0+2*r}, v{vO0+2*r+1}")
    A(f"ds_write_b128 v{vOw}, {v(vE,4)}\ns_waitcnt lgkmcnt(0)\ns_branch {P}_norm")

def chain_member(A, P, opt, modefn, initfn=None):
    layer = 0
    opt = dict(opt); opt["_K"] = P
    A(f"s_mov_b32 s{sDead}, 1")
    weights_prologue(A, lambda B: lane_consts(B, layer, opt), opt, lambda B: modefn(B, 0))
    if opt.get("rt"): A("s_memrealtime s[98:99]")
    modefn(A, 1)
    A(f"s_mov_b32 s44, s13\nv_mov_b32 v0, v30\n{P}_restart:")
    A(f"""v_add_u32 v{vKr}, {LDS_K}, v{vG512}
s_lshl_b32 s54, s9, 11
s_lshl_b32 s53, s12, 13
s_add_u32 s53, s53, s54
s_lshl_b32 s39, s9, 10
s_lshl_b32 s{sKV}, s12, 19
s_add_u32 s{sKV}, s{sKV}, s54
s_add_u32 s{sKV}, s{sKV}, {WS_K}
s_lshl_b32 s{sPub}, s12, 18
s_add_u32 s{sPub}, s{sPub}, s39
s_add_u32 s{sPub}, s{sPub}, {WS_KVM}
s_add_u32 s40, s53, {WS_FLAG + 65536}
v_mov_b32 v32, 0
v_readfirstlane_b32 s{sStep}, v32
s_mov_b32 s41, 0
s_lshl_b32 s43, s9, 16
s_lshl_b32 s13, s12, 11
s_add_u32 s43, s43, s13
s_add_u32 s{sPartB}, s{sSync}, {SY_PART}
s_add_u32 s{sMemB}, s{sSync}, {SY_MEM}
s_lshl_b32 s13, s12, 8
s_add_u32 s13, s13, s{sSync}
s_add_u32 s55, s13, {SY_PROG}
s_add_u32 s{sKVF}, s13, {SY_KVF}""")
    for x in step_scalars(A, layer, 0): A(x)
    set_srd(A, 20, 48, 8192)
    A(f"""v_lshrrev_b32 v34, 4, v{vL16}
v_lshrrev_b32 v32, 2, v34
v_and_b32 v32, 3, v32
v_lshlrev_b32 v32, 1, v32
v_and_b32 v33, 1, v34
v_add_u32 v32, v32, v33
v_lshlrev_b32 v32, 10, v32
v_lshrrev_b32 v33, 4, v34
v_lshl_add_u32 v32, v33, 5, v32
v_bfe_u32 v33, v34, 1, 1
v_lshl_add_u32 v32, v33, 4, v32
s_lshl_b32 s13, s9, 7
s_add_u32 m0, s39, {LDS_MEM}
s_nop 0
buffer_load_dwordx4 v32, {SRDW}, s13 offen lds
s_add_u32 m0, s39, {LDS_MEM + 4096}
s_add_u32 s13, s13, 512
buffer_load_dwordx4 v32, {SRDW}, s13 offen lds
s_waitcnt lgkmcnt(0)""")
    for r in range(0, 16, 2): A(f"v_mov_b64 {v(vAk0+r,2)}, 0")
    A(f"v_mov_b32 v{vVP}, 0\nv_mov_b32 v{vVP+2}, 0\nv_mov_b32 v{vVP+1}, 0\nv_mov_b32 v{vVP+3}, 0\nv_mov_b32 v{vPm+1}, 0")
    for i in range(6):
        for x in wq_read(A, i, SLQ[i]): A(x)
    A(f"""s_mov_b32 s15, 0
s_add_u32 s{sKm}, s54, {LDS_K + 8192}
s_add_u32 s52, s39, 4096
s_waitcnt vmcnt(0) lgkmcnt(0)
s_cmp_lg_u32 s9, 0
s_cbranch_scc1 {P}_k1
{P}_k0:
buffer_load_dword v33, off, {SRD}, s{sKVF} sc1
s_waitcnt vmcnt(0)
v_readfirstlane_b32 s13, v33
s_cmp_ge_u32 s13, 2
s_cbranch_scc1 {P}_k1
s_add_u32 s15, s15, 1
s_cmp_lt_u32 s15, {4*TMO}
s_cbranch_scc1 {P}_k0
{P}_k1:
s_barrier""")
    kv_dma(A)
    A(f"s_add_u32 s{sKV}, s{sKV}, {KVSEG}\ns_mov_b32 s14, 0\ns_mov_b32 s15, 0")
    if opt.get("cnt"):
        for r in list(range(60, 90)) + [94, 95]: A(f"s_mov_b32 s{r}, 0")
        A("s_memtime s[78:79]")
    if opt.get("rt"): A(f"s_memrealtime s[86:87]")
    if opt.get("cnt") or opt.get("rt"): A("s_waitcnt lgkmcnt(0)")
    A(f"s_cmp_eq_u32 s44, 0\ns_cbranch_scc1 {P}_fb")
    for (tg, c) in [("", "f"), (f"{P}_fb:", "s")]:
        if tg: A(tg)
        for q in range(3): A(f"s_cmp_eq_u32 s9, {q}\ns_cbranch_scc1 {P}_{c}{q}_entry")
        A(f"s_branch {P}_{c}3_entry")
    for q in range(4): variant(A, f"{P}_f{q}", layer, 0, q, True, opt)
    o2 = dict(opt); o2.update(d2=[0,0,0,0])
    for q in range(4): variant(A, f"{P}_s{q}", layer, 0, q, False, o2)
    A(f"""{P}_fin:
s_cmp_lg_u32 s9, 2
s_cbranch_scc1 {P}_fin2
s_mov_b64 exec, 1
buffer_store_dword v{vT1}, off, {SRD}, s55 sc1
s_mov_b64 exec, -1
{P}_fin2:""")
    if opt.get("trace"):
        A(f"s_lshl_b32 s13, s12, 2\ns_add_u32 s13, s13, s9\ns_lshl_b32 s13, s13, 6\ns_add_u32 s13, s13, {WS_FLAG + 16384}")
        for k_ in range(14):
            A(f"v_mov_b32 v32, s{60+2*k_}\nbuffer_store_dword v32, off, {SRD}, s13 offset:{4*k_}\ns_nop 1")
    if opt.get("cnt"):
        A(f"""s_memtime s[60:61]
s_waitcnt lgkmcnt(0)
s_sub_u32 s82, s60, s78
s_sub_u32 s83, s78, s100
s_lshl_b32 s13, s12, 2
s_add_u32 s13, s13, s9
s_lshl_b32 s13, s13, 6
s_add_u32 s13, s13, {WS_FLAG}""")
        for k_ in range(16):
            A(f"v_mov_b32 v32, s{82+k_}\nbuffer_store_dword v32, off, {SRD}, s13 offset:{4*k_}\ns_nop 1")
    if opt.get("rt"):
        A(f"s_memrealtime s[88:89]\ns_waitcnt lgkmcnt(0)\ns_cmp_lg_u32 s{sSync}, {WS_SYNC}\ns_cbranch_scc1 {P}_rt2\ns_mov_b32 s90, s86\ns_mov_b32 s91, s88\n{P}_rt2:\ns_mov_b32 s84, s86\ns_mov_b32 s85, s88")
    if opt.get("mega"):
        A(f"s_cmp_lg_u32 s{sSync}, {WS_SYNC}\ns_cbranch_scc1 {P}_done\ns_add_u32 s{sSync}, s{sSync}, {MB}\ns_waitcnt vmcnt(0)\ns_barrier\ns_branch {P}_restart")
```

```python
from common import *
SC = " sc1"

def ln1_task(A, sSeg, sX, mid=None):
    set_srd(A, 20, sX, 2 * MB)
    A(f"""v_lshrrev_b32 v2, 5, v0
v_and_b32 v3, 31, v0
v_lshlrev_b32 v4, 10, v3
v_lshl_add_u32 v4, v2, 4, v4
s_lshl_b32 s12, s{sSeg}, 15
s_lshl_b32 s13, s9, 8
s_add_u32 s13, s13, s12
s_lshl_b32 s14, s9, 13
s_add_u32 s14, s14, s12
s_add_u32 s26, s14, {WS_XA}
s_add_u32 s24, s26, 4096
s_add_u32 s25, s14, 4096
v_lshlrev_b32 v5, 3, v3""")
    for k in range(8): A(f"buffer_load_dwordx4 {v(16+4*k,4)}, v4, s[20:23], s13 offen offset:{32*k}")
    A("s_waitcnt vmcnt(0)")
    if mid: mid(A)
    unpack(A, 64, 16, 32)
    layernorm(A, 64, 64, 6, 5, 0, 4, 128)
    for k in range(8): A(f"buffer_store_dwordx4 {v(128+4*k,4)}, v1, s[16:19], s{14 if k < 4 else 25} offen offset:{1024*(k&3)}{SC}")
    for k in range(8): A(f"buffer_store_dwordx4 {v(16+4*k,4)}, v1, s[16:19], s{26 if k < 4 else 24} offen offset:{1024*(k&3)}{SC}")

def table_task(A, P, sIdx, sWR, sWI):
    A(f"""v_lshrrev_b32 v2, 5, v0
v_and_b32 v3, 31, v0
s_cmp_ge_u32 s{sIdx}, 128
s_cbranch_scc1 {P}_wt
s_and_b32 s12, s{sIdx}, 63
s_lshl_b32 s12, s12, 3
s_lshl_b32 s13, s9, 1
s_add_u32 s12, s12, s13
s_lshr_b32 s14, s12, 5
s_and_b32 s15, s12, 31
s_lshl_b32 s24, s12, 10
s_lshl_b32 s14, s14, 5
s_lshl_b32 s15, s15, 4
v_lshl_add_u32 v7, v2, 3, s15
s_mov_b32 s25, 0
s_cmp_ge_u32 s{sIdx}, 64
s_cbranch_scc1 {P}_ti
v_add_u32 v4, s14, v3
v_lshrrev_b32 v5, 1, v4
v_and_b32 v6, 1, v4
v_lshlrev_b32 v6, 7, v6
v_cmp_eq_u32 vcc, 1, v4
v_mov_b32 v9, 256
v_cndmask_b32 v5, v5, v9, vcc
v_cndmask_b32 v6, v6, 0, vcc
v_mul_u32_u24 v8, v7, v5
v_add_u32 v8, v8, v6
s_add_u32 s24, s24, {WS_TF}
{P}_tfl:""")
    for j in range(8):
        A(f"v_and_b32 v9, 511, v8\nv_cvt_f32_u32 v9, v9\nv_mul_f32 v9, {f32bits(1/512):#x}, v9\nv_cos_f32 v{16+j}, v9\nv_add_u32 v8, v8, v5")
    for j in range(4): A(f"v_cvt_pk_bf16_f32 v{24+j}, v{16+2*j}, v{17+2*j}")
    A(f"""v_lshl_add_u32 v8, v5, 3, v8
buffer_store_dwordx4 v[24:27], v1, s[16:19], s24 offen{SC}
s_add_u32 s24, s24, 1024
s_add_u32 s25, s25, 1
s_cmp_lt_u32 s25, 2
s_cbranch_scc1 {P}_tfl
s_branch {P}_tdone
{P}_ti:""")
    dperm_code(A, 4, 3, 5)
    A(f"v_add_u32 v4, s14, v4\ns_add_u32 s24, s24, {WS_TI}\n{P}_til:")
    for j in range(8):
        A(f"""v_add_u32 v5, {j}, v7
v_lshrrev_b32 v6, 1, v5
v_cmp_eq_u32 vcc, 1, v5
v_mov_b32 v9, 256
v_cndmask_b32 v6, v6, v9, vcc
v_mov_b32 v9, {128*(j&1)}
v_cndmask_b32 v9, v9, 0, vcc
v_mad_u32_u24 v8, v6, v4, v9
v_and_b32 v8, 511, v8
v_cvt_f32_u32 v8, v8
v_mul_f32 v8, {f32bits(1/512):#x}, v8
v_cos_f32 v8, v8
v_cmp_gt_u32 vcc, 2, v5
v_add_f32 v9, v8, v8
v_cndmask_b32 v{16+j}, v9, v8, vcc""")
    for j in range(4): A(f"v_cvt_pk_bf16_f32 v{24+j}, v{16+2*j}, v{17+2*j}")
    A(f"""v_add_u32 v7, 16, v7
buffer_store_dwordx4 v[24:27], v1, s[16:19], s24 offen{SC}
s_add_u32 s24, s24, 1024
s_add_u32 s25, s25, 1
s_cmp_lt_u32 s25, 2
s_cbranch_scc1 {P}_til
s_branch {P}_tdone
{P}_wt:
s_sub_u32 s12, s{sIdx}, 128
s_lshl_b32 s12, s12, 2
s_add_u32 s12, s12, s9
s_cmp_ge_u32 s12, 257
s_cbranch_scc1 {P}_ct""")
    set_srd(A, 20, sWR, 2048 * 257 * 2); set_srd(A, 24, sWI, 2048 * 257 * 2)
    A(f"""v_lshl_add_u32 v4, v2, 8, v3
v_mul_u32_u24 v4, 514, v4
s_lshl_b32 s13, s12, 1
s_lshl_b32 s28, s12, 13
s_add_u32 s28, s28, {WS_WT}
s_mov_b32 s29, 0
s_mov_b32 s30, {f32bits(2.0 ** -20):#x}
{P}_wtl:""")
    for r in range(16):
        k1 = 8 * (r >> 2) + (r & 3)
        A(f"s_add_u32 s14, s13, {64 * k1 * 514}")
        A(f"buffer_load_ushort v{32 + r}, v4, s[20:23], s14 offen\nbuffer_load_ushort v{48 + r}, v4, s[24:27], s14 offen")
    A("s_waitcnt vmcnt(0)")
    for i in range(16):
        A(f"v_lshlrev_b32 v{32+i}, 16, v{32+i}\nv_lshlrev_b32 v{48+i}, 16, v{48+i}\nv_mul_f32 v{32+i}, s30, v{32+i}\nv_mul_f32 v{48+i}, s30, v{48+i}\nv_cvt_pk_bf16_f32 v{64+i}, v{32+i}, v{48+i}")
    for q in range(4): A(f"buffer_store_dwordx4 {v(64+4*q,4)}, v1, s[16:19], s28 offen offset:{1024*q}{SC}")
    A(f"""s_add_u32 s28, s28, 4096
s_add_u32 s13, s13, {32 * 514}
s_add_u32 s29, s29, 1
s_cmp_lt_u32 s29, 2
s_cbranch_scc1 {P}_wtl
s_branch {P}_tdone
{P}_ct:
s_sub_u32 s12, s12, 257
s_cmp_ge_u32 s12, 60
s_cbranch_scc1 {P}_tdone""")
    dperm_code(A, 5, 3, 6)
    A(f"""s_mov_b32 s25, 0
s_mov_b32 s28, 0
s_mov_b32 s29, 0
s_cmp_ge_u32 s12, 28
s_cbranch_scc1 {P}_c2
s_cmp_ge_u32 s12, 16
s_cbranch_scc1 {P}_c1
s_and_b32 s24, s12, 3
s_lshl_b32 s24, s24, 4
s_and_b32 s25, s12, 4
s_lshl_b32 s25, s25, 3
s_mov_b32 s26, 5
s_cmp_ge_u32 s12, 8
s_cselect_b32 s27, 1536, 0
s_branch {P}_cg
{P}_c1:
s_sub_u32 s13, s12, 16
s_cmp_ge_u32 s13, 6
s_cselect_b32 s28, 1, 0
s_cselect_b32 s14, 6, 0
s_sub_u32 s13, s13, s14
s_and_b32 s24, s13, 1
s_lshl_b32 s24, s24, 4
s_mov_b32 s26, 6
s_lshr_b32 s13, s13, 1
s_cmp_eq_u32 s13, 1
s_cselect_b32 s27, 1536, 0
s_cmp_eq_u32 s13, 2
s_cselect_b32 s27, 512, s27
s_branch {P}_cg
{P}_c2:
s_sub_u32 s13, s12, 28
s_lshr_b32 s28, s13, 4
s_mov_b32 s29, 1
s_mov_b32 s26, 0
s_and_b32 s14, s13, 8
s_cmp_lg_u32 s14, 0
s_cselect_b32 s27, 1536, 0
s_and_b32 s24, s13, 3
s_lshl_b32 s24, s24, 3
s_and_b32 s14, s13, 4
s_lshl_b32 s14, s14, 3
s_cmp_lg_u32 s28, 0
s_cselect_b32 s15, s14, 0
s_cselect_b32 s25, 0, s14
s_add_u32 s24, s24, s15
{P}_cg:
s_cmp_lg_u32 s28, 0
s_cselect_b64 vcc, -1, 0
v_cndmask_b32 v8, v3, v5, vcc
v_add_u32 v8, s25, v8
v_lshl_add_u32 v6, v2, 2, s24""")
    for j in range(8):
        A(f"""v_add_u32 v7, {8*(j>>2) + (j&3)}, v6
v_mul_u32_u24 v7, v7, v8
v_lshlrev_b32 v7, s26, v7
v_add_u32 v7, s27, v7
v_and_b32 v7, 2047, v7
v_cvt_f32_u32 v7, v7
v_mul_f32 v7, {f32bits(1/2048):#x}, v7
v_cos_f32 v{32+j}, v7""")
    A(f"s_cmp_lg_u32 s29, 0\ns_cbranch_scc1 {P}_cs")
    for j in range(4): A(f"v_cvt_pk_bf16_f32 v{32+j}, v{32+2*j}, v{33+2*j}")
    A(f"{P}_cs:\ns_lshl_b32 s13, s12, 10\ns_add_u32 s13, s13, {WS_CT}\nbuffer_store_dwordx4 v[32:35], v1, s[16:19], s13 offen{SC}\n{P}_tdone:")

def r2_prefetch(A, sQ):
    A(f"s_lshl_b32 s29, s{sQ}, 2\ns_add_u32 s29, s29, s9\ns_lshl_b32 s29, s29, 15\ns_add_u32 s29, s29, {WS_TF}")
    for k in range(32):
        A((f"s_add_u32 s29, s29, 4096\n" if (k % 4 == 0 and k) else "") + f"buffer_load_dwordx4 {a(4*k, 4)}, v1, s[16:19], s29 offen offset:{(k&3)*1024}{SC}")

def r2_task(A, sSeg, sQ):
    S0, S1, X = 48, 80, 112
    A(f"""s_lshl_b32 s24, s{sSeg}, 15
s_lshl_b32 s14, s9, 13
s_add_u32 s24, s24, s14
s_add_u32 s25, s24, {WS_XB}
s_add_u32 s26, s25, 4096""")
    for k in range(8): A(f"buffer_load_dwordx4 {v(S0 + 4*k, 4)}, v1, s[16:19], s{25 if k < 4 else 26} offen offset:{1024*(k&3)}{SC}")
    A("v_and_b32 v3, 31, v0\nv_lshlrev_b32 v5, 3, v3\nv_add_u32 v2, s14, v1")
    dperm_code(A, 4, 3, 6)
    A(f"""v_lshrrev_b32 v6, 5, v0
v_lshl_add_u32 v4, v6, 5, v4
v_lshlrev_b32 v4, 4, v4
s_lshl_b32 s15, s{sQ}, 2
s_add_u32 s15, s15, s9
s_lshl_b32 s15, s15, 6
s_add_u32 s15, s15, s{sSeg}
s_lshl_b32 s15, s15, 11
s_add_u32 s15, s15, {WS_FT}
s_waitcnt vmcnt(0)""")
    unpack(A, X, S0, 32)
    layernorm(A, X, 64, 16, 5, 32768, 4, S1)
    for k in range(8): A(f"ds_write_b128 v2, {v(S1 + 4*k, 4)} offset:{1024*k}")
    A("s_waitcnt lgkmcnt(0)\ns_barrier")
    A.reset_counts()
    xt = [A(f"ds_read_b128 {v(X + 4*(k % 16), 4)}, v4 offset:{1024*k}") for k in range(12)]
    for k in range(32):
        A.wlg(xt[k])
        mf32(A, v(16, 16), v(X + 4*(k % 16), 4), a(4*k, 4), k == 0)
        if k + 12 < 32: xt.append(A(f"ds_read_b128 {v(X + 4*((k+12) % 16), 4)}, v4 offset:{1024*(k+12)}"))
    A("""s_lshl_b32 s13, s9, 11
s_add_u32 s13, s13, 36864
v_bfe_u32 v7, v3, 1, 2
v_xor_b32 v7, v7, v6
v_lshlrev_b32 v7, 4, v7
v_lshl_add_u32 v7, v3, 6, v7
v_add_u32 v7, s13, v7
v_xor_b32 v8, 32, v7
v_bfe_u32 v9, v0, 3, 2
v_lshlrev_b32 v9, 4, v9
v_xor_b32 v9, v9, v1
v_add_u32 v9, s13, v9""")
    for i in range(8): A(f"v_cvt_pk_bf16_f32 v{32+i}, v{16+2*i}, v{17+2*i}")
    A("ds_write_b128 v7, v[32:35]\nds_write_b128 v8, v[36:39]\ns_waitcnt lgkmcnt(0)\nds_read_b128 v[40:43], v9\nds_read_b128 v[44:47], v9 offset:1024")
    for q in range(2): A(f"s_waitcnt lgkmcnt({1-q})\nbuffer_store_dwordx4 {v(40 + 4*q, 4)}, v1, s[16:19], s15 offen offset:{1024*q}{SC}")

XR, XI, NG, D, TW, W, T, CA = 16, 32, 48, 64, 176, 240, 96, 128
def col_prefetch(A, sCol):
    A(f"s_and_b32 s29, s9, 1\ns_lshl_b32 s30, s29, 12\ns_add_u32 s30, s30, {WS_CT}\ns_lshl_b32 s31, s29, 11")
    for tb_ in range(2):
        for j in range(4):
            A(f"s_xor_b32 s13, s31, {j*1024}\ns_add_u32 s13, s13, s30\ns_add_u32 s13, s13, {tb_*8192}\nbuffer_load_dwordx4 {a(CA + 16*tb_ + 4*j, 4)}, v1, s[16:19], s13 offen{SC}")
    for q in range(12): A(f"s_mov_b32 s13, {WS_CT + (16+q)*1024}\nbuffer_load_dwordx4 {a(CA + 32 + 4*q, 4)}, v1, s[16:19], s13 offen{SC}")
    for tb_ in range(4):
        A(f"s_add_u32 s13, s30, {(28 + 8*tb_)*1024}")
        for q in range(4): A(f"buffer_load_dwordx4 {v(TW + 16*tb_ + 4*q, 4)}, v1, s[16:19], s13 offen offset:{q*1024}{SC}")
    A(f"s_min_u32 s13, s{sCol}, 256\ns_lshl_b32 s13, s13, 13\ns_lshl_b32 s14, s29, 12\ns_add_u32 s13, s13, s14\ns_add_u32 s13, s13, {WS_WT}")
    for q in range(4): A(f"buffer_load_dwordx4 {v(W + 4*q, 4)}, v1, s[16:19], s13 offen offset:{q*1024}{SC}")
def col_setup(A, sCol):
    A(f"""s_and_b32 s29, s9, 1
s_and_b32 s12, s{sCol}, 255
s_lshr_b32 s13, s12, 4
s_lshl_b32 s13, s13, 17
s_and_b32 s14, s12, 15
s_lshl_b32 s14, s14, 7
s_add_u32 s24, s13, s14
s_lshl_b32 s13, s29, 16
s_add_u32 s24, s24, s13
s_add_u32 s25, s24, {WS_FT}
s_add_u32 s26, s24, {WS_GT}
s_lshr_b32 s28, s9, 1
s_lshl_b32 s28, s28, 13
s_lshl_b32 s27, s9, 12
v_lshrrev_b32 v2, 3, v0
v_and_b32 v3, 7, v0
v_bfe_u32 v4, v0, 4, 1
v_lshlrev_b32 v4, 2, v4
v_xor_b32 v4, v3, v4
v_lshlrev_b32 v4, 4, v4
v_lshl_add_u32 v4, v2, 11, v4
v_bfe_u32 v5, v0, 2, 2
v_lshrrev_b32 v6, 5, v0
v_lshl_add_u32 v7, v6, 2, v5
v_lshlrev_b32 v7, 7, v7
v_bfe_u32 v8, v0, 4, 1
v_lshl_add_u32 v7, v8, 5, v7
v_and_b32 v8, 3, v0
v_lshl_add_u32 v7, v8, 3, v7
v_add_u32 v7, s28, v7
v_lshrrev_b32 v8, 1, v5
v_lshl_add_u32 v9, v8, 6, v7
v_xor_b32 v8, 1, v8
v_lshl_add_u32 v10, v8, 6, v7
s_cmp_eq_u32 s{sCol}, 256
s_cselect_b64 vcc, -1, 0
s_cselect_b32 s15, 64, 0
v_cndmask_b32 v9, v9, v10, vcc
s_lshl_b32 s13, s29, 12
v_subrev_u32 v11, s13, v9
v_subrev_u32 v12, s13, v10
v_add_u32 v9, s13, v9
v_add_u32 v10, s13, v10
s_add_u32 s13, s27, 16384
v_add_u32 v13, s13, v1
v_xor_b32 v14, 4096, v13
v_and_b32 v15, 31, v0
v_and_b32 v8, 7, v0
v_xor_b32 v8, v8, v6
v_lshlrev_b32 v8, 4, v8
v_lshl_add_u32 v15, v15, 7, v8
s_add_u32 s13, s27, 32768
v_add_u32 v15, s13, v15
v_xor_b32 v8, v3, v2
v_lshlrev_b32 v8, 4, v8
v_lshl_add_u32 v8, v2, 7, v8
v_add_u32 v5, s13, v8
v_lshlrev_b32 v7, 4, v3
v_lshl_add_u32 v7, v2, 11, v7
v_add_u32 v7, s15, v7
s_cmp_eq_u32 s12, 0
s_cselect_b32 s13, 4, 8
v_mov_b32 v8, 0x80000000
v_cmp_gt_u32 vcc, s13, v3
v_cndmask_b32 v7, v8, v7, vcc""")

def col_task(A, P, sCol):
    A(f"s_cmp_ge_u32 s{sCol}, 257\ns_cbranch_scc1 {P}_idle")
    for j in range(4): A(f"s_add_u32 m0, s27, {j*1024}\ns_add_u32 s13, s25, {j*16384}\nbuffer_load_dwordx4 v4, s[16:19], s13 offen{SC} lds")
    A("s_waitcnt vmcnt(0)\ns_barrier")
    for ks in range(4):
        for jj in range(2):
            A(f"ds_read_b64_tr_b16 {v(XR + 4*ks + 2*jj, 2)}, v{9 if ks < 2 else 11} offset:{(16*ks + 8*jj)*128}")
            A(f"ds_read_b64_tr_b16 {v(XI + 4*ks + 2*jj, 2)}, v{10 if ks < 2 else 12} offset:{(16*ks + 8*jj)*128}")
    A(f"s_waitcnt lgkmcnt(0)\ns_cmp_lg_u32 s12, 0\ns_cbranch_scc1 {P}_cplx")
    for i in range(0, 16, 2): A(f"v_mov_b64 {v(XI+i,2)}, 0")
    A(f"{P}_cplx:")
    C64 = lambda ks: a(CA + 4*ks, 4); S64 = lambda ks: a(CA + 16 + 4*ks, 4)
    T32 = lambda which, kt: a(CA + 32 + 8*which + 4*kt, 4)
    Dr, Di = v(D, 16), v(D + 16, 16)
    def cmul(sign, cs):
        for r in range(0, 16, 2):
            dr, di = v(D + r, 2), v(D + 16 + r, 2)
            c, s_ = cs(r)
            n1 = " neg_lo:[1,0,0] neg_hi:[1,0,0]"
            t = T + 4 * ((r >> 1) & 1)
            A(f"v_pk_mul_f32 {v(t,2)}, {dr}, {c}\nv_pk_mul_f32 {v(t+2,2)}, {di}, {c}")
            A(f"v_pk_fma_f32 {v(t,2)}, {di}, {s_}, {v(t,2)}{n1 if sign > 0 else ''}\nv_pk_fma_f32 {v(t+2,2)}, {dr}, {s_}, {v(t+2,2)}{'' if sign > 0 else n1}")
            A(f"v_cvt_pk_bf16_f32 v{XR + r//2}, v{t}, v{t+1}\nv_cvt_pk_bf16_f32 v{XI + r//2}, v{t+2}, v{t+3}")
    for ks in range(4):
        mf32(A, Dr, v(XR + 4*ks, 4), C64(ks), ks == 0)
        for i in range(2): A(f"v_xor_b32 v{NG+4*ks+i}, 0x80008000, v{XR+4*ks+i}")
        mf32(A, Di, v(XI + 4*ks, 4), C64(ks), ks == 0)
        for i in range(2, 4): A(f"v_xor_b32 v{NG+4*ks+i}, 0x80008000, v{XR+4*ks+i}")
    for ks in range(4):
        mf32(A, Dr, v(XI + 4*ks, 4), S64(ks)); mf32(A, Di, v(NG + 4*ks, 4), S64(ks))
    for r in range(16): A(f"v_and_b32 v{T+24+r}, 0xffff0000, v{W+r}\nv_lshlrev_b32 v{T+8+r}, 16, v{W+r}")
    cmul(-1, lambda r: (v(TW + r, 2), v(TW + 16 + r, 2)))
    for kt in range(2):
        mf32(A, Dr, T32(0, kt), v(XR + 4*kt, 4), kt == 0); mf32(A, Di, T32(0, kt), v(XI + 4*kt, 4), kt == 0)
    for kt in range(2):
        mf32(A, Dr, T32(1, kt), v(XI + 4*kt, 4)); mf32(A, Di, T32(2, kt), v(XR + 4*kt, 4))
    cmul(+1, lambda r: (v(T + 8 + r, 2), v(T + 24 + r, 2)))
    for kt in range(2):
        mf32(A, Dr, v(XR + 4*kt, 4), T32(3, kt), kt == 0); mf32(A, Di, v(XI + 4*kt, 4), T32(3, kt), kt == 0)
    for kt in range(2):
        mf32(A, Dr, v(XI + 4*kt, 4), T32(5, kt)); mf32(A, Di, v(XR + 4*kt, 4), T32(4, kt))
    cmul(+1, lambda r: (v(TW + 32 + r, 2), v(TW + 48 + r, 2)))
    for q in range(2): A(f"ds_write_b128 v13, {v(XR + 4*q, 4)} offset:{q*1024}\nds_write_b128 v13, {v(XI + 4*q, 4)} offset:{2048 + q*1024}")
    for i in range(8): A(f"v_xor_b32 v{NG+i}, 0x80008000, v{XI+i}")
    A("s_waitcnt lgkmcnt(0)\ns_barrier")
    for q in range(2): A(f"ds_read_b128 {v(XR + 8 + 4*q, 4)}, v14 offset:{q*1024}\nds_read_b128 {v(XI + 8 + 4*q, 4)}, v14 offset:{2048 + q*1024}")
    for ks in range(2):
        mf32(A, Dr, v(XR + 4*ks, 4), C64(ks), ks == 0); mf32(A, Di, v(XI + 4*ks, 4), C64(ks), ks == 0)
        mf32(A, Dr, v(NG + 4*ks, 4), S64(ks)); mf32(A, Di, v(XR + 4*ks, 4), S64(ks))
    A("s_waitcnt lgkmcnt(0)")
    for ks in range(2, 4):
        mf32(A, Dr, v(XR + 4*ks, 4), C64(ks))
        for i in range(4): A(f"v_xor_b32 v{NG+4*ks+i}, 0x80008000, v{XI+4*ks+i}")
        mf32(A, Di, v(XI + 4*ks, 4), C64(ks))
        mf32(A, Di, v(XR + 4*ks, 4), S64(ks)); mf32(A, Dr, v(NG + 4*ks, 4), S64(ks))
    for part in range(2):
        for q in range(2):
            for i in range(4): A(f"v_cvt_pk_bf16_f32 v{TW + 8*part + 4*q + i}, v{D + 16*part + 8*q + 2*i}, v{D + 16*part + 8*q + 2*i + 1}")
            if part or q: A(f"v_xor_b32 v8, {(2*q + 4*part)*16}, v15")
            A(f"ds_write_b128 v{8 if (part or q) else 15}, {v(TW + 8*part + 4*q, 4)}")
    A("s_waitcnt lgkmcnt(0)")
    for i in range(4): A(f"ds_read_b128 {v(XR + 4*i, 4)}, v5 offset:{i*1024}")
    for i in range(4):
        A(f"s_add_u32 s13, s26, {i*16384}\ns_waitcnt lgkmcnt({3-i})\nbuffer_store_dwordx4 {v(XR + 4*i, 4)}, v7, s[16:19], s13 offen{SC}")
    A(f"s_branch {P}_fin\n{P}_idle:\ns_barrier\ns_barrier\n{P}_fin:")

IR, IB, ID, IS = 16, 48, 64, 8
def inv_prefetch(A, sSeg):
    A(f"s_lshl_b32 s24, s9, 17\ns_add_u32 s24, s24, {WS_TI}\ns_lshl_b32 s14, s9, 15\ns_add_u32 s14, s14, 32768\nv_add_u32 v4, s14, v1")
    for n in range(128):
        if n in (48, 96): A("s_waitcnt vmcnt(14)")
        A(f"s_add_u32 s13, s24, {(n & 3)*32768 + (n >> 2)*1024}")
        if n < 96: A(f"buffer_load_dwordx4 {a(4*n, 4) if n < 64 else v(128 + 4*(n-64), 4)}, v1, s[16:19], s13 offen{SC}")
        else: A(f"s_add_u32 m0, s14, {(n-96)*1024}\ns_nop 0\nbuffer_load_dwordx4 v1, s[16:19], s13 offen{SC} lds")
    A(f"""s_lshl_b32 s12, s{sSeg}, 11
s_lshl_b32 s13, s9, 19
s_add_u32 s12, s12, s13
s_add_u32 s12, s12, {WS_GT}
s_lshl_b32 s14, s9, 13
s_lshl_b32 s25, s{sSeg}, 15
s_add_u32 s25, s25, s14
s_add_u32 s26, s25, {WS_XB}
s_add_u32 s27, s26, 4096
v_bfe_u32 v5, v0, 2, 2
v_lshrrev_b32 v6, 5, v0
v_lshl_add_u32 v7, v6, 3, v5
v_lshlrev_b32 v7, 6, v7
v_bfe_u32 v8, v0, 4, 1
v_lshl_add_u32 v7, v8, 5, v7
v_and_b32 v8, 3, v0
v_lshl_add_u32 v7, v8, 3, v7
v_and_b32 v3, 31, v0
v_lshlrev_b32 v5, 3, v3""")
def inv_resid(A):
    for k in range(8): A(f"buffer_load_dwordx4 {v(IR + 4*k, 4)}, v1, s[16:19], s{26 if k < 4 else 27} offen offset:{1024*(k&3)}{SC}")

def inv_task(A, P, sSeg, sLayer, sOut, of=''):
    A.reset_counts()
    for j in range(8):
        A(f"s_add_u32 m0, s14, {j*1024}\ns_add_u32 s13, s12, {(j>>1)*131072 + (j&1)*1024}")
        A(f"buffer_load_dwordx4 v1, s[16:19], s13 offen{SC} lds")
    A("s_waitcnt vmcnt(8)")
    unpack(A, ID, IR, 32)
    A("s_waitcnt vmcnt(0)\ns_barrier")
    def bread(ks):
        t = None
        for jj in range(2): t = A(f"ds_read_b64_tr_b16 {v(IB + 4*(ks & 3) + 2*jj, 2)}, v7 offset:{(16*ks + 4*jj)*64}")
        return t
    bt = [bread(k) for k in range(3)]
    lt = {}
    freg = lambda n: a(4 * n, 4) if n < 64 else (v(128 + 4 * (n - 64), 4) if n < 96 else a(4 * (n - 96), 4))
    for ks in range(32):
        for t in range(4):
            n = ks * 4 + t
            need = [bt[ks]] + ([lt[n]] if n in lt else [])
            ns = [A.lgk_n(x) for x in need if A.lgk_n(x) is not None]
            if ns: A(f"s_waitcnt lgkmcnt({min(ns)})")
            mf32(A, v(ID + 16*t, 16), freg(n), v(IB + 4*(ks & 3), 4))
            if t == 0 and ks + 3 < 32: bt.append(bread(ks + 3))
            if 4 <= n < 36: lt[92 + n] = A(f"ds_read_b128 {a(4*(n-4), 4)}, v4 offset:{(n-4)*1024}")
    for i in range(32): A(f"v_cvt_pk_bf16_f32 v{128+i}, v{ID+2*i}, v{ID+2*i+1}")
    A(f"s_cmp_eq_u32 s{sLayer}, 0\ns_cbranch_scc1 {P}_mid")
    set_srd(A, 20, sOut, 2 * MB)
    A(f"""s_lshl_b32 s15, s9, 15
s_add_u32 s15, s15, 32768
v_and_b32 v8, 15, v3
v_xor_b32 v8, v8, v6
v_lshlrev_b32 v8, 4, v8
v_lshl_add_u32 v8, v3, 8, v8
v_add_u32 v8, s15, v8
v_lshrrev_b32 v9, 4, v0
v_and_b32 v10, 15, v0
v_lshlrev_b32 v4, 4, v10
v_lshl_add_u32 v4, v9, 10, v4
v_xor_b32 v10, v10, v9
v_lshlrev_b32 v10, 4, v10
v_lshl_add_u32 v10, v9, 8, v10
v_add_u32 v10, s15, v10
s_lshl_b32 s13, s{sSeg}, 15
s_lshl_b32 s15, s9, 8
s_add_u32 s13, s13, s15""")
    for k in range(8): A(f"v_xor_b32 v9, {32*k}, v8\nds_write_b128 v9, {v(128 + 4*k, 4)}")
    A("s_waitcnt lgkmcnt(0)")
    for k in range(8): A(f"v_xor_b32 v9, {64*(k&3)}, v10\nds_read_b128 {v(IR + 4*k, 4)}, v9 offset:{1024*k}")
    for k in range(8): A(f"s_waitcnt lgkmcnt({7-k})\nbuffer_store_dwordx4 {v(IR + 4*k, 4)}, v4, s[20:23], s13 offen{of}\ns_add_u32 s13, s13, 4096")
    A(f"s_branch {P}_iend\n{P}_mid:")
    A(f"s_add_u32 s26, s25, {WS_XA}\ns_add_u32 s27, s26, 4096\ns_add_u32 s28, s25, 4096")
    for k in range(8): A(f"buffer_store_dwordx4 {v(128 + 4*k, 4)}, v1, s[16:19], s{26 if k < 4 else 27} offen offset:{1024*(k&3)}{SC}")
    A("s_barrier")
    layernorm(A, ID, 64, 48, 5, 32768, 4, IR)
    for k in range(8): A(f"buffer_store_dwordx4 {v(IR + 4*k, 4)}, v1, s[16:19], s{25 if k < 4 else 28} offen offset:{1024*(k&3)}{SC}")
    A(f"{P}_iend:")
```

```python
from common import *
import chain
from kkv import kv_task, kvf_task
from katt import att_task, tail_task, mini_r1, mini_r1_pre
from kmisc import *
from klayer import poll_until, wg_atomic, role_poll, init_wait, r1_task, TMO, DBG

def arrive(A, lab, addr_code, atomic=True, wave0=True, val=1):
    A(addr_code)
    A(f"v_mov_b32 v2, {val}")
    if wave0: A(f"s_cmp_lg_u32 s9, 0\ns_cbranch_scc1 {lab}")
    A("s_mov_b64 exec, 1\n" + ("buffer_atomic_add v2, off, s[16:19], s13" if atomic else "buffer_store_dword v2, off, s[16:19], s13 sc1") + "\ns_mov_b64 exec, -1")
    if wave0: A(f"{lab}:")

def wait16(A, lab, off, expect, base=56, wave0=True, first_extra=0, sleep=4, r=2, n=16, sh=4, split=None):
    if wave0: A(f"s_cmp_lg_u32 s9, 0\ns_cbranch_scc1 {lab}_ok")
    mk = hex((1 << n) - 1)
    A(f"v_lshlrev_b32 v{r}, {sh}, v1\nv_mov_b32 v{r+2}, {expect}")
    if split: A(f"v_mov_b32 v{r+1}, {split[1]}\nv_cmp_le_u32 vcc, {split[0]*16}, v1\nv_cndmask_b32 v{r+2}, v{r+2}, v{r+1}, vcc")
    if first_extra: A(f"v_writelane_b32 v{r+2}, {expect + first_extra}, 0")
    poll_until(A, lab, f"s_add_u32 s13, s{base}, {off}\ns_mov_b32 exec_hi, 0\ns_mov_b32 exec_lo, {mk}\nbuffer_load_dword v{r+1}, v{r}, s[16:19], s13 offen sc1\ns_mov_b64 exec, -1",
               f"v_cmp_ge_u32 vcc, v{r+1}, v{r+2}\ns_and_b32 s13, vcc_lo, {mk}\ns_cmp_eq_u32 s13, {mk}", sleep=sleep)
    if wave0: A("s_barrier")

def code_prefetch(A, lab0, lab1, part=None, r=2):
    A(f"""s_getpc_b64 s[10:11]
{lab0}_pc{r}:
s_add_u32 s10, s10, {lab0}-{lab0}_pc{r}
s_addc_u32 s11, s11, -1""") if False else None

def init_kernel(opt):
    A = Asm(); P = "ini"
    std_prologue(A, P, 80, [(4, KA_WS)])
    set_srd(A, 16, 4, WS_SIZE)
    A(f"""v_lshlrev_b32 v1, 4, v0
s_lshl_b32 s12, s2, 2
s_add_u32 s12, s12, s9
s_cmp_ge_u32 s12, 160
s_cselect_b32 s13, {MB - 160*4096}, 0
s_cselect_b32 s15, 160, 0
s_lshl_b32 s14, s12, 12
s_add_u32 s13, s13, s14
s_add_u32 s13, s13, {WS_SYNC}
s_sub_u32 s12, s12, s15
s_lshr_b32 s12, s12, 3
s_cmp_eq_u32 s12, 16
s_cselect_b32 s14, -1, 0
v_mov_b32 v4, s14
v_mov_b32 v5, s14
v_mov_b32 v6, s14
v_mov_b32 v7, s14""")
    for k in range(4): A(f"buffer_store_dwordx4 v[4:7], v1, s[16:19], s13 offen offset:{1024*k}")
    A(f"s_waitcnt vmcnt(0)\n{P}_end:\ns_endpgm")
    A.fix_hazards()
    return A, dict(name="init_kernel", grid=80, block=256, lds=0, vgpr=8, accum=8)

def mega_kernel(opt):
    A = Asm(strict=opt.get("strict", False)); P = "lay"
    rt = opt.get("rt")
    def stamp(k):
        if rt: A(f"""s_memrealtime s[86:87]
s_lshl_b32 s88, s75, 4
s_add_u32 s88, s88, {k}
s_lshl_b32 s88, s88, 10
s_lshl_b32 s89, s60, 2
s_add_u32 s88, s88, s89
s_add_u32 s88, s88, {WS_FLAG + 640*1024}
s_waitcnt lgkmcnt(0)
v_mov_b32 v2, s86
buffer_store_dword v2, off, s[16:19], s88""")
    def initfn(B, stage):
        if stage == 0:
            B(f"""s_and_b32 s13, s12, 15
s_lshl_b32 s13, s13, 2
s_add_u32 s13, s13, s9
s_mul_i32 s14, s13, 10240
s_lshr_b32 s13, s12, 4
s_lshl_b32 s13, s13, 20
s_add_u32 s15, s13, {WS_SYNC}""")
            for k in range(10):
                B(f"""s_sub_u32 s13, s14, {SY_MEM}
s_cmp_lt_u32 s13, 32768
s_cselect_b32 s13, -1, 0
v_mov_b32 v{48+4*(k&1)}, s13
v_mov_b32 v{49+4*(k&1)}, s13
v_mov_b32 v{50+4*(k&1)}, s13
v_mov_b32 v{51+4*(k&1)}, s13
s_add_u32 s13, s14, s15
buffer_store_dwordx4 {v(48+4*(k&1),4)}, v1, s[16:19], s13 offen sc1
s_add_u32 s14, s14, 1024""")
        else:
            B(f"v_mov_b32 v48, 1\ns_cmp_lg_u32 s9, 0\ns_cbranch_scc1 {P}_in1\ns_mov_b64 exec, 1\nbuffer_atomic_add v48, off, {DBG}, 0 offset:4\ns_mov_b64 exec, -1\n{P}_in1:")
    A(f"""s_cmp_ge_u32 s2, 256
s_cbranch_scc1 {P}_end
s_load_dwordx2 s[4:5], s[0:1], {KA_WS}
s_load_dwordx4 s[40:43], s[0:1], {KA_WQ}
s_load_dwordx4 s[44:47], s[0:1], {KA_WV}
s_load_dwordx2 s[48:49], s[0:1], {KA_MEM0}
s_load_dwordx2 s[76:77], s[0:1], {KA_X}
s_load_dwordx2 s[78:79], s[0:1], {KA_WR}
s_load_dwordx4 s[80:83], s[0:1], {KA_WI}
s_load_dwordx2 s[6:7], s[0:1], {KA_DBG}
s_getreg_b32 s8, hwreg(HW_REG_XCC_ID)
v_lshrrev_b32 v1, 6, v0
v_and_b32 v0, 63, v0
v_readfirstlane_b32 s9, v1
s_and_b32 s8, s8, 15
v_lshlrev_b32 v1, 4, v0
s_mov_b32 s56, {WS_SYNC}""")
    if opt.get("force_fb"): A("s_and_b32 s8, s2, 15")
    A("s_waitcnt lgkmcnt(0)")
    set_srd(A, 16, 4, WS_SIZE)
    set_srd(A, 92, 6, 256)
    A("s_lshl_b32 s10, s8, 2\ns_add_u32 s10, s10, 128\ns_cmp_eq_u32 s8, 0\ns_cselect_b32 s10, 0, s10")
    def tick(B, tag):
        B(f"""s_cmp_lg_u32 s9, s61
s_cbranch_scc1 {P}_tk0{tag}
s_mov_b64 exec, 1
buffer_atomic_add v200, off, {DBG}, s10 sc0
s_mov_b64 exec, -1
{P}_tk0{tag}:""")
    A(f"""v_mov_b32 v200, 1
s_mov_b32 s61, 0
s_lshr_b32 s66, s2, 2
s_cmp_eq_u32 s8, 0
s_cbranch_scc1 {P}_tkx
s_bitcmp0_b32 s2, 1
s_cbranch_scc1 {P}_ln
{P}_tkx:""")
    tick(A, "a")
    A(f"s_branch {P}_tk1\n{P}_ln:\ns_lshl_b32 s61, s61, 2")
    ln1_task(A, 66, 76, lambda B: tick(B, "b"))
    A("s_lshr_b32 s61, s61, 2")
    A(f"""s_waitcnt vmcnt(0)
s_barrier
s_lshr_b32 s13, s66, 5
s_lshl_b32 s13, s13, 2
s_lshl_b32 s14, 1, s66
v_mov_b32 v2, s14
s_cmp_lg_u32 s9, 0
s_cbranch_scc1 {P}_noln1
s_mov_b64 exec, 1
buffer_atomic_or v2, off, {DBG}, s13 offset:32
s_mov_b64 exec, -1
{P}_noln1:
s_cmp_lg_u32 s61, 0
s_cbranch_scc1 {P}_layer
{P}_tk1:
v_mov_b32 v2, 2048
s_cmp_lg_u32 s9, 0
s_cbranch_scc1 {P}_tk2
s_waitcnt vmcnt(0)
s_mov_b64 exec, 1
ds_write_b32 v2, v200
s_waitcnt lgkmcnt(0)
s_mov_b64 exec, -1
{P}_tk2:
s_barrier
ds_read_b32 v3, v2
s_waitcnt lgkmcnt(0)
v_readfirstlane_b32 s12, v3
s_barrier""")
    if opt.get("cpf", 1):
        A(f"""s_getpc_b64 s[10:11]
{P}_pc:
s_and_b32 s13, s12, 31
s_lshl_b32 s13, s13, 2
s_add_u32 s13, s13, s9
s_lshl_b32 s13, s13, 11
v_lshlrev_b32 v2, 7, v0
v_add_u32 v2, s13, v2
v_min_u32 v2, {P}_end-{P}_pc, v2
v_and_b32 v2, -4, v2
s_mov_b64 exec, 0xffff
global_load_dword v3, v2, s[10:11]
s_mov_b64 exec, -1""")
    A(f"""s_cmp_ge_u32 s12, 32
s_cbranch_scc1 {P}_slowrole
s_cmp_eq_u32 s8, 0
s_cbranch_scc1 {P}_member
s_cmp_ge_u32 s8, 8
s_cbranch_scc1 {P}_slowrole
s_sub_u32 s60, s8, 1
s_lshl_b32 s60, s60, 5
s_add_u32 s60, s60, s12
{P}_bulk:
v_mov_b32 v2, 0
v_readfirstlane_b32 s75, v2
; logical rank from (g,i) = (rank/28, rank%28)
s_mov_b32 s57, s60
s_mul_i32 s13, s57, 2341
s_lshr_b32 s13, s13, 16
s_mul_i32 s14, s13, 28
s_sub_u32 s14, s57, s14
s_lshl_b32 s60, s14, 3
s_add_u32 s60, s60, s13
s_cmp_lt_u32 s14, 8
s_cbranch_scc1 {P}_lr
s_sub_u32 s15, s14, 8
s_lshr_b32 s60, s15, 1
s_lshl_b32 s60, s60, 4
s_and_b32 s15, s15, 1
s_add_u32 s60, s60, s15
s_lshl_b32 s15, s13, 1
s_add_u32 s60, s60, s15
s_add_u32 s60, s60, 64
s_cmp_lt_u32 s14, 16
s_cbranch_scc1 {P}_lr
s_sub_u32 s15, s14, 16
s_lshr_b32 s60, s15, 2
s_lshl_b32 s60, s60, 5
s_and_b32 s15, s15, 3
s_add_u32 s60, s60, s15
s_lshl_b32 s15, s13, 2
s_add_u32 s60, s60, s15
s_add_u32 s60, s60, 128
{P}_lr:
s_movk_i32 s85, 200
s_cmp_lt_u32 s60, 64
s_cselect_b32 s85, s60, s85
s_sub_u32 s13, s60, 64
s_sub_u32 s14, s60, 128
s_cmp_lt_u32 s14, 32
s_cselect_b32 s85, s13, s85
s_sub_u32 s13, s60, 96
s_cmp_ge_u32 s60, 192
s_cselect_b32 s85, s13, s85
s_cmp_eq_u32 s60, 191
s_cselect_b32 s85, 128, s85
s_cmp_lt_u32 s85, 128
s_cbranch_scc1 {P}_layer""")
    xnf = lambda sreg, extra: f"s_lshr_b32 s13, s{sreg}, 2\ns_lshl_b32 s13, s13, 8\ns_and_b32 s14, s{sreg}, 3\ns_lshl_b32 s14, s14, 2\ns_add_u32 s13, s13, s14\ns_add_u32 s13, s13, s56\ns_add_u32 s13, s13, {SY_XNF + extra}"
    def verify(tag, ini):
        A(f"s_bitcmp1_b32 s61, 0\ns_cbranch_scc1 {P}_ver{tag}")
        role_poll(A, f"{P}_rp1{tag}", 2)
        A(f"s_cmp_eq_u32 s13, 0\ns_cbranch_scc1 {P}_irr\ns_mov_b32 s61, 1\n{P}_ver{tag}:")
        if ini is None: return
        if ini:
            A(f"s_sub_u32 s12, s60, 160\ns_cmp_ge_u32 s12, 32\ns_cbranch_scc1 {P}_noini")
            initfn(A, 0)
            A("s_waitcnt vmcnt(0)\ns_barrier")
            initfn(A, 1)
            A(f"{P}_noini:")
        init_wait(A, f"{P}_iw{tag}")
        A("s_mov_b32 s61, 3")
    verify("a", True)
    A(f"""s_sub_u32 s66, s60, 64
s_cmp_ge_u32 s66, 64
s_cbranch_scc1 {P}_layer
s_lshr_b32 s13, s66, 5
s_lshl_b32 s13, s13, 2
v_mov_b32 v2, 2048
s_cmp_lg_u32 s9, 0
s_cbranch_scc1 {P}_c1
buffer_load_dword v3, off, {DBG}, s13 offset:32 sc1
s_waitcnt vmcnt(0)
ds_write_b32 v2, v3
s_waitcnt lgkmcnt(0)
{P}_c1:
s_barrier
ds_read_b32 v3, v2
s_waitcnt lgkmcnt(0)
v_readfirstlane_b32 s13, v3
s_barrier
s_bitcmp0_b32 s13, s66
s_cbranch_scc1 {P}_ln""")
    uid = [0]
    def xld_():
        uid[0] += 1
        return f"s_cmp_lg_u32 s75, 0\ns_cbranch_scc1 {P}_xa{uid[0]}\nbuffer_load_dword v16, off, {DBG}, s35 offset:32 sc1\ns_branch {P}_xb{uid[0]}\n{P}_xa{uid[0]}:\nbuffer_load_dwordx4 v[16:19], off, s[16:19], s35 sc1\n{P}_xb{uid[0]}:"
    def xck_():
        uid[0] += 1
        return f"""s_cmp_lg_u32 s75, 0
s_cbranch_scc1 {P}_xa{uid[0]}
v_readfirstlane_b32 s13, v16
s_lshl_b32 s14, s66, 2
s_lshr_b32 s13, s13, s14
s_and_b32 s13, s13, 15
s_cmp_eq_u32 s13, 15
s_branch {P}_xb{uid[0]}
{P}_xa{uid[0]}:
v_and_b32 v16, v16, v17
v_and_b32 v18, v18, v19
v_and_b32 v16, v16, v18
v_readfirstlane_b32 s13, v16
s_cmp_lg_u32 s13, 0
{P}_xb{uid[0]}:"""
    xad = f"s_lshl_b32 s35, s66, 8\ns_add_u32 s35, s35, s56\ns_add_u32 s35, s35, {SY_XNF}\ns_lshr_b32 s13, s66, 3\ns_lshl_b32 s13, s13, 2\ns_cmp_eq_u32 s75, 0\ns_cselect_b32 s35, s13, s35"
    kvf_addr = f"s_lshl_b32 s13, s67, 8\ns_lshl_b32 s14, s66, 2\ns_add_u32 s13, s13, s14\ns_add_u32 s13, s13, s56\ns_add_u32 s13, s13, {SY_KVF}"
    A(f"""{P}_layer:
s_cmp_ge_u32 s85, 128
s_cbranch_scc1 {P}_nofast
s_mov_b32 s13, s85
s_lshr_b32 s67, s13, 5
s_lshl_b32 s67, s67, 3
s_and_b32 s14, s13, 7
s_add_u32 s67, s67, s14
s_bfe_u32 s68, s13, 0x10003
s_bfe_u32 s66, s13, 0x10004
{P}_kvf:""")
    def xwf(B):
        B("s_waitcnt lgkmcnt(0)")
        verify("b", None)
        B(f"{xad}\ns_cmp_lg_u32 s9, 0\ns_cbranch_scc1 {P}_xf_ok")
        poll_until(B, f"{P}_xf", xld_(), xck_(), sleep=opt.get("xsleep", 3))
        B("s_barrier")
    kvf_task(A, "kvf", 66, 67, 68, xwf)
    A(f"s_cmp_eq_u32 s61, 3\ns_cbranch_scc1 {P}_vdone")
    init_wait(A, f"{P}_iwb")
    A("s_mov_b32 s61, 3")
    A(f"{P}_vdone:\ns_waitcnt vmcnt(0)\ns_barrier")
    stamp(8)
    arrive(A, f"{P}_af", kvf_addr)
    A(f"""s_cmp_eq_u32 s68, 2
s_cbranch_scc1 {P}_qret
{P}_nofast:
s_lshr_b32 s62, s57, 5
s_and_b32 s63, s57, 31
s_cmp_lt_u32 s62, 4
s_cselect_b32 s64, 5, 4
s_movk_i32 s65, 16384
s_cselect_b32 s65, 13108, s65
{P}_kvl:
s_mul_i32 s66, s63, s65
s_lshr_b32 s66, s66, 16
s_mul_i32 s13, s66, s64
s_sub_u32 s13, s63, s13
s_mul_i32 s13, s13, 7
s_add_u32 s67, s13, s62
s_add_u32 s66, s66, 2""")
    def xw0(B): B(f"{xad}\ns_cmp_lg_u32 s9, 0\ns_cbranch_scc1 {P}_xw0\n{xld_()}\n{P}_xw0:")
    def xw1(B):
        B(f"s_cmp_lg_u32 s9, 0\ns_cbranch_scc1 {P}_xw_ok\ns_waitcnt vmcnt(24)\n{xck_()}\ns_cbranch_scc1 {P}_xw_ok")
        poll_until(B, f"{P}_xw", xld_(), xck_(), sleep=6)
        B("s_barrier")
    kv_task(A, "lkv", 66, 67, sc1=True, xwait=(xw0, xw1))
    A("s_waitcnt vmcnt(0)\ns_barrier")
    arrive(A, f"{P}_a1", kvf_addr, val=2)
    A(f"""s_add_u32 s63, s63, 32
s_mul_i32 s13, s64, 14
s_cmp_lt_u32 s63, s13
s_cbranch_scc1 {P}_kvl""")
    stamp(0)
    if opt.get("solo"): A(f"s_branch {P}_done")
    A(f"s_cmp_lg_u32 s75, 0\ns_cbranch_scc1 {P}_notab")
    table_task(A, "tab", 60, 78, 80)
    A("s_waitcnt vmcnt(0)\ns_barrier")
    arrive(A, f"{P}_a2", f"s_and_b32 s13, s60, 15\ns_lshl_b32 s13, s13, 8\ns_add_u32 s13, s13, {WS_SYNC + SY_TBL}")
    A(f"""{P}_notab:
s_cmp_lt_u32 s60, 192
s_cbranch_scc1 {P}_noq
s_sub_u32 s67, s60, 192
s_mov_b32 s66, 14
s_mov_b32 s68, 2
s_branch {P}_kvf
{P}_qret:
s_add_u32 s66, s66, 1
s_cmp_eq_u32 s66, 15
s_cbranch_scc1 {P}_kvf
s_branch {P}_srv
{P}_noq:
s_lshr_b32 s68, s60, 6
s_min_u32 s68, s68, 2
s_lshl_b32 s13, s68, 6
s_sub_u32 s13, s60, s13
s_add_u32 s14, s68, 3
s_lshr_b32 s66, s13, s14
s_lshl_b32 s15, s66, s14
s_sub_u32 s67, s13, s15
s_cmp_eq_u32 s68, 0
s_cselect_b32 s13, 0, 4
s_lshl_b32 s14, s68, 2
s_add_u32 s13, s13, s14
s_add_u32 s66, s66, s13
{P}_att:
s_lshr_b32 s69, 4, s68
s_mul_i32 s70, s67, s69
s_lshl_b32 s71, 1, s69
s_sub_u32 s71, s71, 1
s_lshl_b32 s72, s70, 8
s_add_u32 s72, s72, s56""")
    def kvwait(B):
        poll_until(B, f"{P}_kw", f"v_lshlrev_b32 v14, 4, v1\ns_lshl_b32 s13, s66, 2\ns_add_u32 s13, s13, s72\ns_add_u32 s13, s13, {SY_KVF}\ns_mov_b64 exec, 15\nbuffer_load_dword v15, v14, s[16:19], s13 offen sc1\ns_mov_b64 exec, -1",
                   "v_cmp_le_u32 vcc, 2, v15\ns_and_b32 s13, vcc_lo, s71\ns_cmp_eq_u32 s13, s71", sleep=8)
    def pwait(B):
        B(f"s_cmp_lg_u32 s9, 0\ns_cbranch_scc1 {P}_pw_ok")
        poll_until(B, f"{P}_pw", f"v_lshlrev_b32 v14, 4, v1\ns_add_u32 s13, s72, {SY_PROG}\ns_mov_b64 exec, 15\nbuffer_load_dword v15, v14, s[16:19], s13 offen sc1\ns_mov_b64 exec, -1",
                   "s_lshl_b32 s14, s66, 2\ns_add_u32 s14, s14, 4\nv_cmp_le_u32 vcc, s14, v15\ns_and_b32 s13, vcc_lo, s71\ns_cmp_eq_u32 s13, s71", sleep=opt.get("psleep", 6))
        B("s_barrier")
    att_task(A, "lat", 66, 70, 67, 69, sc1=True, waitfn=pwait, kvwait=kvwait)
    A("v_lshrrev_b32 v0, 4, v1\ns_waitcnt vmcnt(0)\ns_barrier")
    stamp(1)
    A(f"s_lshl_b32 s73, s66, 8\ns_add_u32 s73, s73, s56")
    arrive(A, f"{P}_a3", f"s_add_u32 s13, s73, {SY_CNT}")
    A(f"s_mov_b32 s74, {WS_SYNC}")
    wait16(A, f"{P}_tw", SY_TBL, 14, base=74)
    A("s_and_b32 s74, s67, 3")
    r2_prefetch(A, 74)
    def cwait(lab, off):
        A(f"s_cmp_lg_u32 s9, 0\ns_cbranch_scc1 {lab}_ok")
        poll_until(A, lab, f"s_add_u32 s13, s73, {off}\nbuffer_load_dword v2, off, s[16:19], s13 sc1", "v_readfirstlane_b32 s13, v2\ns_lshl_b32 s14, 8, s68\ns_cmp_ge_u32 s13, s14", sleep=2)
        A("s_barrier")
    cwait(f"{P}_cw", SY_CNT)
    stamp(2)
    r1_task(A, P, 66, 67, 68, sc1=True)
    A("s_waitcnt vmcnt(0)\ns_barrier")
    arrive(A, f"{P}_a4", f"s_add_u32 s13, s73, {SY_X1C}")
    A(f"s_cmp_ge_u32 s67, 16\ns_cbranch_scc1 {P}_nor2")
    cwait(f"{P}_x1", SY_X1C)
    stamp(3)
    A(f"{P}_r2l:\ns_lshr_b32 s84, s67, 2\ns_lshl_b32 s13, s66, 2\ns_add_u32 s84, s84, s13\n{P}_r2go:")
    r2_task(A, 84, 74)
    A("s_waitcnt vmcnt(0)\ns_barrier")
    arrive(A, f"{P}_a5", f"s_lshr_b32 s13, s84, 2\ns_sub_u32 s14, s84, 42\ns_cmp_ge_u32 s84, 56\ns_cselect_b32 s13, s14, s13\ns_lshl_b32 s13, s13, 7\ns_add_u32 s13, s13, s56\ns_add_u32 s13, s13, {SY_FTC}")
    A(f"""s_lshl_b32 s13, 8, s68
s_add_u32 s67, s67, s13
s_cmp_lt_u32 s67, 16
s_cbranch_scc1 {P}_r2l
{P}_nor2:""")
    stamp(4)
    A(f"""s_cmp_ge_u32 s60, 192
s_cbranch_scc1 {P}_colp
s_cmp_ge_u32 s60, 128
s_cbranch_scc1 {P}_col
s_cmp_ge_u32 s60, 64
s_cbranch_scc1 {P}_inv
s_lshr_b32 s84, s60, 4
s_lshl_b32 s73, s84, 8
s_add_u32 s73, s73, s56
s_add_u32 s84, s84, 56
s_and_b32 s69, s60, 7
s_bfe_u32 s70, s60, 0x10003
s_lshl_b32 s72, s69, 10
s_add_u32 s72, s72, s56""")
    def tkw(B):
        B(f"s_cmp_lg_u32 s9, 0\ns_cbranch_scc1 {P}_tk_ok")
        poll_until(B, f"{P}_tk", f"v_lshlrev_b32 v14, 4, v1\ns_add_u32 s13, s72, {SY_KVF + 56}\ns_mov_b64 exec, 15\nbuffer_load_dwordx2 v[16:17], v14, s[16:19], s13 offen sc1\ns_mov_b64 exec, -1",
                   "v_min_u32 v15, v16, v17\nv_cmp_le_u32 vcc, 3, v15\ns_and_b32 s13, vcc_lo, 15\ns_cmp_eq_u32 s13, 15", sleep=8)
        B("s_barrier")
    def tpw(B):
        B(f"s_cmp_lg_u32 s9, 0\ns_cbranch_scc1 {P}_tp_ok")
        poll_until(B, f"{P}_tp", f"v_lshlrev_b32 v14, 4, v1\ns_add_u32 s13, s72, {SY_PROG}\ns_mov_b64 exec, 15\nbuffer_load_dword v15, v14, s[16:19], s13 offen sc1\ns_mov_b64 exec, -1",
                   "v_cmp_lt_u32 vcc, s84, v15\ns_and_b32 s13, vcc_lo, 15\ns_cmp_eq_u32 s13, 15", sleep=opt.get("tsleep", 2))
        B("s_barrier")
    tail_task(A, "tl", 84, 69, 70, tkw, tpw)
    A("s_waitcnt vmcnt(0)\ns_barrier")
    stamp(10)
    arrive(A, f"{P}_a8", f"s_add_u32 s13, s73, {SY_ROLE}")
    def twait(lab, off, n):
        A(f"s_cmp_lg_u32 s9, 0\ns_cbranch_scc1 {lab}_ok")
        poll_until(A, lab, f"s_add_u32 s13, s73, {off}\nbuffer_load_dword v2, off, s[16:19], s13 sc1", f"v_readfirstlane_b32 s13, v2\ns_cmp_ge_u32 s13, {n}", sleep=1)
        A("s_barrier")
    A(f"""s_cmp_ge_u32 s84, 60
s_cbranch_scc1 {P}_tend
s_sub_u32 s84, 119, s84
s_sub_u32 s73, s84, 56
s_lshl_b32 s73, s73, 8
s_add_u32 s73, s73, s56
s_branch tl_again
{P}_tend:
v_lshrrev_b32 v0, 4, v1
s_branch {P}_col
{P}_srv:
s_mov_b32 s74, {WS_SYNC}""")
    wait16(A, f"{P}_tw2", SY_TBL, 14, base=74)
    A(f"""s_lshl_b32 s84, s85, 1
s_lshr_b32 s13, s9, 1
s_add_u32 s84, s84, s13""")
    col_prefetch(A, 84)
    A(f"""s_and_b32 s74, s60, 3
s_sub_u32 s84, s60, 192
s_lshr_b32 s84, s84, 2
s_lshl_b32 s73, s84, 8
s_add_u32 s73, s73, s56
s_add_u32 s84, s84, 56
s_waitcnt vmcnt(20)""")
    r2_prefetch(A, 74)
    mini_r1_pre(A, 84, 74)
    twait(f"{P}_t1", SY_ROLE, 16)
    stamp(11)
    mini_r1(A, "tl", 84, 74)
    A("s_waitcnt vmcnt(0)\ns_barrier")
    arrive(A, f"{P}_a9", f"s_add_u32 s13, s73, {SY_ROLE + 2048}")
    twait(f"{P}_t2", SY_ROLE + 2048, 4)
    stamp(12)
    A(f"""s_movk_i32 s67, 100
s_mov_b32 s68, 2
s_lshr_b32 s73, s84, 2
s_lshl_b32 s73, s73, 8
s_add_u32 s73, s73, s56
s_branch {P}_r2go
{P}_inv:
s_sub_u32 s84, s60, 64""")
    inv_prefetch(A, 84)
    wait16(A, f"{P}_gw", SY_GTC, 4, first_extra=1, sleep=opt.get("gsleep", 2), r=8, n=32, sh=3)
    stamp(6)
    inv_resid(A)
    inv_task(A, "inv", 84, 75, 82)
    A("s_waitcnt vmcnt(0)\ns_barrier")
    stamp(7)
    arrive(A, f"{P}_a6", xnf(84, MB), atomic=False)
    A(f"""s_branch {P}_next
{P}_col:
s_cmp_ge_u32 s85, 129
s_cbranch_scc1 {P}_next
s_lshl_b32 s84, s85, 1
s_lshr_b32 s13, s9, 1
s_add_u32 s84, s84, s13""")
    col_prefetch(A, 84)
    A(f"{P}_colp:\ns_lshl_b32 s84, s85, 1\ns_lshr_b32 s13, s9, 1\ns_add_u32 s84, s84, s13")
    col_setup(A, 84)
    wait16(A, f"{P}_fw", SY_FTC, 16, sleep=opt.get("fsleep", 2), r=16, n=22, sh=3, split=(14, 4))
    stamp(5)
    col_task(A, "col", 84)
    stamp(14)
    A(f"s_waitcnt vmcnt(0)")
    stamp(13)
    A("s_barrier")
    arrive(A, f"{P}_a7", f"s_and_b32 s13, s85, 31\ns_lshl_b32 s13, s13, 7\ns_add_u32 s13, s13, s56\ns_add_u32 s13, s13, {SY_GTC}")
    A(f"""{P}_next:
s_cmp_lg_u32 s75, 0
s_cbranch_scc1 {P}_done
s_mov_b32 s75, 1
s_add_u32 s56, s56, {MB}
s_branch {P}_layer
{P}_slowrole:""")
    role_poll(A, f"{P}_rp2", 2)
    A(f"""{P}_irr:
s_min_u32 s74, s14, 32
s_sub_u32 s74, 32, s74
s_movk_i32 s10, 192
s_barrier""")
    wg_atomic(A, f"{P}_g", 10, 60, DBG)
    A(f"""s_mov_b32 s61, 1
s_cmp_ge_u32 s60, s74
s_cbranch_scc0 {P}_adopt
s_sub_u32 s60, s60, s74
s_cmp_ge_u32 s60, 224
s_cbranch_scc1 {P}_done
s_branch {P}_bulk
{P}_adopt:
s_sub_u32 s12, 31, s60
{P}_member:""")
    dld = f"v_lshrrev_b32 v49, 2, v1\nbuffer_load_dword v48, v49, {DBG}, 0 offen sc1"
    def modefn(B, stage):
        if stage == 0:
            B(dld); return
        cond = "\n".join(["v_readlane_b32 s14, v48, 0", "s_cmp_ge_u32 s14, 32", "s_cselect_b32 s44, 1, 0"] + [f"v_readlane_b32 s13, v48, {32+i}\ns_add_u32 s14, s14, s13" for i in range(1, 16)]) + \
            "\nv_readlane_b32 s13, v48, 1\ns_cmp_ge_u32 s13, 32\ns_cselect_b32 s14, s14, 0\ns_cmp_ge_u32 s14, 256"
        B(f"{cond}\ns_cbranch_scc1 {P}_md_ok")
        poll_until(B, f"{P}_md", dld, cond, sleep=10)
        B("s_mov_b32 s13, s44")
    chain.chain_member(A, P, dict(opt.get("chain", {}), rt=rt, mega=not opt.get('solo')), modefn)
    A(f"{P}_done:\ns_waitcnt vmcnt(0)\n{P}_end:\ns_endpgm")
    co = opt.get("chain", {})
    if co.get("nocomm"):
        seen = False; L2 = []
        for x in A.L:
            if isinstance(x, str) and x.endswith("_top:"): seen = True
            if seen and isinstance(x, Ins):
                if x.mn == "s_cbranch_vccnz" and any(t in x.text for t in ("_rr", "_gr", "_redo")): continue
                if x.mn == "s_waitcnt" and "vmcnt" in x.text and "lgkm" not in x.text: continue
                if any(t in x.text for t in co.get("drop", [])): continue
            L2.append(x)
        A.L = L2
    A.fix_hazards(name=P, verbose=opt.get("verbose"))
    if co.get("trace"):
        a0, stride = co["trace"]
        L2 = []; cnt = None; k_ = 0
        for x in A.L:
            if isinstance(x, str) and x.endswith("_top:"): cnt = 0; k_ = 0
            if isinstance(x, str) and x.endswith("_cutend:"): cnt = None
            L2.append(x)
            if cnt is not None and isinstance(x, Ins):
                if cnt >= a0 and (cnt - a0) % stride == 0 and k_ < 14:
                    L2.append(Ins(f"s_memtime s[{60+2*k_}:{61+2*k_}]")); k_ += 1
                cnt += 1
        A.L = L2
    return A, dict(name="main_kernel" if opt.get("list") else "interleave_layers__memory_aug_recurrent_mem_tr__spectral_gfnet__prompt_kernel", plain=not opt.get("list"), grid=256, block=256, lds=163840, vgpr=512, accum=256)
```

```python
from common import *

LDS_MEM, LDS_K, LDS_V, LDS_F, LDS_O, LDS_OD, LDS_WQ = 0, 8192, 24576, 0, 4096, 6144, 32768
vKr = 16; sKm = 47
FS = 1088
vL16, vG512, vFw, vFr, vOw, vOr, vPst, vMst, vSamp, vIK, vIN = 1, 2, 3, 4, 5, 6, 7, 8, 9, 10, 11
vGat = 0
vAS = 12; vM1 = 16; vWq0 = 17; vWq1 = 18; vSmp = 19
vKQ = 20; vVP = 24; vPm = 28; vT0 = 30; vT1 = 31
vMEM = 32
vSx0, vSx1, vSm, vE, vPx, vL = 32, 36, 40, 44, 54, 58
vAk0, vAq0, vAk1, vAq1 = 64, 68, 72, 76
vF = 64; vOUT = 64
vAv0, vAv1 = 80, 84
vO0, vO1 = 96, 100
vThr = 9
KVSEG = 8192
PUBSEG = 4096
vSTG = 88
vVx = 88; vKx = 96
vOF = 32; vPK = 48; vRL = 56; vRA = 48; vRT = 52
vWo = 128
sW, sH, sStep, sKV, sPub, sPart, sInb, sMemN, sMemP, sGat, sPh, sT, sC, sDead = 9, 12, 24, 25, 26, 27, 28, 29, 30, 31, 32, 33, 34, 3
sMask = 36; sSync, sPartB, sMemB, sKVF = 56, 57, 58, 59
vKF = 9
SRD = "s[16:19]"; SRDW = "s[20:23]"
TMO = 200000
CPS = 8192 + 0
MSL = 13

def smf(A, d, am, b, idx): A(f"v_smfmac_f32_16x16x64_bf16 {v(d,4)}, {v(am,4)}, {b}, {v(idx)}")

def lane_consts(A, layer, opt):
    L = 0
    t0, t1, t2 = 20, 21, 22
    vGT = 30
    A(f"""v_lshlrev_b32 v{vL16}, 4, v0
v_lshrrev_b32 v{t0}, 4, v0
v_and_b32 v{t1}, 15, v0
v_lshlrev_b32 v{vG512}, 9, v{t0}
v_lshl_add_u32 v{vG512}, v{t1}, 4, v{vG512}
v_bfe_u32 v{t2}, v0, 3, 1
v_lshlrev_b32 v{vFw}, 8, v{t2}
v_lshl_add_u32 v{vFw}, v{t0}, 6, v{vFw}
v_and_b32 v{t2}, 7, v0
v_lshl_add_u32 v{vFw}, v{t2}, 3, v{vFw}
s_lshl_b32 s14, s9, 10
s_add_u32 s14, s14, {LDS_F}
v_add_u32 v{vFw}, s14, v{vFw}
v_and_b32 v{t2}, 3, v0
v_lshlrev_b32 v{vFr}, 6, v{t2}
v_bfe_u32 v{t2}, v0, 5, 1
v_lshl_add_u32 v{vFr}, v{t2}, 9, v{vFr}
v_bfe_u32 v{t2}, v0, 2, 3
v_lshl_add_u32 v{vFr}, v{t2}, 3, v{vFr}
v_add_u32 v{vFr}, {LDS_F}, v{vFr}
v_lshlrev_b32 v{vOw}, 7, v{t0}
v_bfe_u32 v{t2}, v0, 2, 2
v_lshl_add_u32 v{vOw}, v{t2}, 5, v{vOw}
v_and_b32 v{t2}, 1, v0
v_lshl_add_u32 v{vOw}, v{t2}, 4, v{vOw}
s_lshl_b32 s14, s9, 9
s_add_u32 s14, s14, {LDS_O}
v_add_u32 v{vOw}, s14, v{vOw}
v_add_u32 v{t2}, {LDS_OD - LDS_O + 8}, v{vOw}
s_lshl_b32 s15, s9, 9
v_subrev_u32 v{t2}, s15, v{t2}
v_and_b32 v23, 2, v0
v_cmp_ne_u32 vcc, 0, v23
v_cndmask_b32 v{vOw}, v{t2}, v{vOw}, vcc
v_mov_b32 v{t2}, 0x4444
v_mov_b32 v23, 0xeeee
v_cndmask_b32 v{vIK}, v{t2}, v23, vcc
v_and_b32 v24, 8, v0
v_cmp_ne_u32 vcc, 0, v24
v_cndmask_b32 v{vIN}, v{t2}, v23, vcc
v_lshlrev_b32 v{vOr}, 7, v{t0}
v_and_b32 v{t2}, 7, v0
v_lshl_add_u32 v{vOr}, v{t2}, 4, v{vOr}
v_add_u32 v{vOr}, {LDS_O}, v{vOr}
; vPst = (2w+sel)*8192 + (2*g1+(n>>3))*2048 + h*64 + (n&7)*8
v_lshrrev_b32 v{vPst}, 5, v0
s_lshl_b32 s13, s9, 1
v_add_u32 v{vPst}, s13, v{vPst}
v_lshlrev_b32 v{vPst}, 13, v{vPst}
v_bfe_u32 v{t2}, v0, 3, 2
v_lshl_add_u32 v{vPst}, v{t2}, 11, v{vPst}
v_and_b32 v{t2}, 7, v0
v_lshl_add_u32 v{vPst}, v{t2}, 3, v{vPst}
s_lshl_b32 s14, s12, 6
v_add_u32 v{vPst}, s14, v{vPst}
; vMst = h*256 + w*64 + gt*16 + cw*4 (lanes with n>=4 out of range)
v_lshlrev_b32 v{vMst}, 4, v{t0}
v_and_b32 v{t2}, 3, v0
v_lshl_add_u32 v{vMst}, v{t2}, 2, v{vMst}
s_lshl_b32 s14, s12, 6
s_lshl_b32 s15, s9, 11
s_add_u32 s14, s14, s15
v_add_u32 v{vMst}, s14, v{vMst}
v_bfe_u32 v24, v0, 2, 2
v_cmp_le_u32 vcc, {opt.get("nc", 1)}, v24
v_mul_u32_u24 v24, {opt.get("cps", 8192)}, v24
v_add_u32 v{vMst}, v{vMst}, v24
v_mov_b32 v24, 0x80000000
v_cndmask_b32 v{vMst}, v{vMst}, v24, vcc
s_mov_b32 s{sMask}, 0xcccccccc
s_mov_b32 s{sMask+1}, 0xcccccccc
s_mov_b32 s{sT}, {f32bits(40.0):#x}
s_lshl_b32 s14, s9, 11
s_add_u32 s14, s14, {LDS_MEM}
v_add_u32 v19, s14, v{vL16}
v_lshlrev_b32 v{vGT}, 8, v{t0}
v_bfe_u32 v{t2}, v0, 3, 1
v_lshl_add_u32 v{vGT}, v{t2}, 7, v{vGT}
v_bfe_u32 v{t2}, v0, 1, 1
v_lshl_add_u32 v{vGT}, v{t2}, 6, v{vGT}
v_bfe_u32 v{t2}, v0, 2, 1
v_lshl_add_u32 v{vGT}, v{t2}, 5, v{vGT}
v_and_b32 v{t2}, 1, v0
v_lshl_add_u32 v{vGT}, v{t2}, 4, v{vGT}
s_and_b32 s14, s12, {opt.get("nc", 1) - 1}
s_mul_i32 s14, s14, {opt.get("cps", 8192)}
v_add_u32 v{vGT}, s14, v{vGT}
v_lshrrev_b32 v{t2}, 2, v{t1}
v_and_b32 v23, 3, v{t1}
v_lshl_add_u32 v{t2}, v23, 2, v{t2}
v_mov_b32 v24, 0x3f80
v_mov_b32 v25, 0x3f800000
v_mov_b32 v26, 0x3f803f80""")
    for r in range(4):
        A(f"""v_mov_b32 v{vAS+r}, 0
v_cmp_eq_u32 vcc, {2*r}, v{t2}
v_cndmask_b32 v{vAS+r}, v{vAS+r}, v24, vcc
v_cmp_eq_u32 vcc, {2*r+1}, v{t2}
v_cndmask_b32 v{vAS+r}, v{vAS+r}, v25, vcc
v_cmp_le_u32 vcc, 8, v{t2}
v_cndmask_b32 v{vAS+r}, v{vAS+r}, v26, vcc""")
    A(f"""v_add_u32 v16, {LDS_K}, v{vG512}
s_lshl_b32 s13, s9, 14
s_add_u32 s13, s13, {LDS_WQ}
v_add_u32 v{vWq0}, s13, v{vL16}
v_add_u32 v{vWq1}, 0x10000, v{vWq0}
s_mov_b32 s{sC}, {f32bits(math.log2(math.e) / math.sqrt(128.0)):#x}""")

def weights_prologue(A, mid=None, opt={}, late=None):
    dA = [32, 33, 34, 35]; dO = [36, 37]; tA = [38, 39]; tO = 40; tc = [41, 42]
    x, y = 44, 45
    A(f"""; DMA source offsets for Wq/k/v : rr*8192 + ((cc ^ 2(rr&1) ^ 4j)*16)
v_lshrrev_b32 v{x}, 4, v0
v_and_b32 v{y}, 1, v{x}
v_lshlrev_b32 v{y}, 1, v{y}
v_and_b32 v46, 15, v0
v_xor_b32 v{y}, v{y}, v46
v_lshlrev_b32 v{x}, 13, v{x}""")
    for j in range(4):
        A(f"v_xor_b32 v46, {4*j}, v{y}\nv_lshl_add_u32 v{dA[j]}, v46, 4, v{x}")
    A(f"""; scalar bases
s_lshl_b32 s50, s12, 8
s_lshl_b32 s13, s9, 18
s_add_u32 s50, s50, s13        ; h*256 + w*32 rows*8192
s_lshl_b32 s51, s12, 17
s_lshl_b32 s13, s9, 13
s_add_u32 s51, s51, s13        ; h*131072 + w*8 rows*1024
s_lshl_b32 s52, s9, 13         ; w*8192 (lds)""")
    A(f"""; Wo DMA: (l ^ 4*((j&1) | ((w>>1)<<1)))*16
s_lshr_b32 s13, s9, 1
s_lshl_b32 s13, s13, 3
v_xor_b32 v{y}, s13, v0
v_lshlrev_b32 v{dO[0]}, 4, v{y}
v_xor_b32 v{y}, 4, v{y}
v_lshlrev_b32 v{dO[1]}, 4, v{y}""")
    mats = sum([[m_] * 4 for m_ in opt.get('word', [42, 44, 46])], []) + [40] * 4
    NT = ' nt' if opt.get('wnt', 1) else ''
    slot = lambda i: ((i + 4) % 5) * 32768
    def issue(i):
        if i % 4 == 0: set_srd(A, 20, mats[i], 4 * MB)
        c = i % 4
        tok = None
        for j in range(8):
            A(f"s_add_u32 m0, s52, {slot(i) + j*1024}")
            if mats[i] == 46:
                A(f"s_add_u32 s13, s51, {c*32768 + j*1024}")
                tok = A(f"buffer_load_dwordx4 v{dO[j&1]}, {SRDW}, s13 offen{NT} lds")
            else:
                A(f"s_add_u32 s13, s50, {(128*c + 4*j)*8192}")
                tok = A(f"buffer_load_dwordx4 v{dA[j&3]}, {SRDW}, s13 offen{NT} lds")
        return tok
    toks = {}
    for i in range(4): toks[i] = issue(i)
    if opt.get("help", 1):
        far = opt.get("far", 1)
        A(f"""s_and_b32 s13, s12, 3
s_sub_u32 s13, s13, {far + 1}
s_and_b32 s13, s13, 3
s_cmp_eq_u32 s13, 3
s_cbranch_scc1 {opt['_K']}_nohelp
s_lshl_b32 s13, s13, 2
s_add_u32 s13, s13, s9            ; 0..11
s_and_b32 s14, s13, 3
s_cmp_ge_u32 s14, {opt.get("hn", 3)}
s_cbranch_scc1 {opt['_K']}_nohelp
s_lshr_b32 s13, s13, 2
s_mul_i32 s13, s13, {opt.get("hn", 3)}
s_add_u32 s13, s13, s14
s_add_u32 s13, s13, {max(0, 8 - 3 * opt.get("hn", 3))}
s_lshl_b32 s13, s13, 19
s_and_b32 s14, s12, 28
s_or_b32 s14, s14, {far}
s_lshl_b32 s14, s14, 8
s_cmp_ge_u32 s13, {4*MB}
s_cselect_b32 s24, s44, s40
s_cselect_b32 s25, s45, s41
s_cselect_b32 s15, {2*MB}, 0
s_mov_b32 s26, {4*MB}
s_mov_b32 s27, 0x20000
s_sub_u32 s13, s13, s15
s_add_u32 s13, s13, s14
v_lshlrev_b32 v48, 13, v0
buffer_load_dword v49, v48, s[24:27], s13 offen
buffer_load_dword v50, v48, s[24:27], s13 offen offset:128
{opt['_K']}_nohelp:""")
        A.vm = A.vm[:-2]
    mid(A)
    A(f"""; tr addr for Wq/k/v: row0=16(gb>>1)+4(gb&1)+(r&1)+8(r>>1); f=2(r&1)+4((gb&1)+2(r>>1)); chunk=4w+2te+(c>>1)
v_bfe_u32 v{x}, v0, 5, 1
v_lshlrev_b32 v{x}, 4, v{x}
v_bfe_u32 v46, v0, 4, 1
v_lshl_add_u32 v{x}, v46, 2, v{x}
v_lshlrev_b32 v{y}, 2, v46
v_bfe_u32 v46, v0, 2, 1
v_add_u32 v{x}, v{x}, v46
v_lshl_add_u32 v{y}, v46, 1, v{y}
v_bfe_u32 v46, v0, 3, 1
v_lshl_add_u32 v{x}, v46, 3, v{x}
v_lshl_add_u32 v{y}, v46, 3, v{y}
v_lshlrev_b32 v{x}, 8, v{x}
v_and_b32 v46, 1, v0
v_lshl_add_u32 v{x}, v46, 3, v{x}
v_bfe_u32 v46, v0, 1, 1
s_lshl_b32 s13, s9, 2
v_add_u32 v46, s13, v46
v_xor_b32 v46, v46, v{y}
v_lshl_add_u32 v{tA[0]}, v46, 4, v{x}
v_xor_b32 v46, 2, v46
v_lshl_add_u32 v{tA[1]}, v46, 4, v{x}
v_bfe_u32 v{x}, v0, 4, 1
v_lshlrev_b32 v{y}, 3, v{x}
v_lshlrev_b32 v{x}, 4, v{x}
v_bfe_u32 v46, v0, 5, 1
v_lshl_add_u32 v{x}, v46, 2, v{x}
v_bfe_u32 v46, v0, 2, 1
v_add_u32 v{x}, v{x}, v46
v_lshl_add_u32 v{y}, v46, 2, v{y}
v_lshlrev_b32 v{x}, 10, v{x}
v_and_b32 v46, 1, v0
v_lshl_add_u32 v{x}, v46, 3, v{x}
v_bfe_u32 v46, v0, 1, 1
v_bfe_u32 v47, v0, 3, 1
v_lshl_add_u32 v46, v47, 1, v46
v_add_u32 v46, s13, v46
v_xor_b32 v46, v46, v{y}
v_lshl_add_u32 v{tO}, v46, 4, v{x}""")
    for i in range(16):
        A.wvm(toks[i])
        A("s_barrier")
        if i == 11 and late: late(A)
        if i + 4 < 16: toks[i + 4] = issue(i + 4)
        c = i % 4
        if i == 14:
            for f in range(8):
                for part in range(2):
                    A(f"ds_write_b128 v{vWq0}, {v(64 + f*8 + part*4, 4)} offset:{f*2048 + part*1024}")
            A("s_waitcnt lgkmcnt(0)")
        if mats[i] == 46:
            A(f"v_add_u32 v{tc[0]}, {slot(i)}, v{tO}")
            for p in range(4):
                for xx in range(4):
                    A(f"ds_read_b64_tr_b16 {v(vWo + (p*4 + c)*8 + 2*xx, 2)}, v{tc[0]} offset:{(8*(xx>>1) + 2*(xx&1))*1024 + p*256}")
        else:
            A(f"v_add_u32 v{tc[0]}, {slot(i)}, v{tA[0]}\nv_add_u32 v{tc[1]}, {slot(i)}, v{tA[1]}")
            for tt in range(2):
                for te in range(2):
                    t = 2 * c + tt
                    for xx in range(4):
                        if mats[i] == 42: dst = a((t*2 + te)*8 + 2*xx, 2)
                        elif mats[i] == 44: dst = a(128 + (t*2 + te)*8 + 2*xx, 2)
                        else: dst = v(64 + (((t & 3)*2 + te)*8) + 2*xx, 2)
                        A(f"ds_read_b64_tr_b16 {dst}, v{tc[te]} offset:{(64*tt + 32*(xx>>1) + 2*(xx&1))*256}")
        A("s_waitcnt lgkmcnt(0)")
    A("s_barrier")
    for f in range(8):
        for part in range(2):
            A(f"ds_write_b128 v{vWq1}, {v(64 + f*8 + part*4, 4)} offset:{f*2048 + part*1024}")

NS = 6
SLQ = [5, 0, 1, 2, 3, 4]
def slot_reg(sl): return vAv0 if sl == 5 else vSTG + 8 * sl
def wq_read(A, i, sl):
    t, te = i >> 1, i & 1
    base = vWq0 if t < 4 else vWq1
    off = ((t & 3) * 2 + te) * 2048
    r = slot_reg(sl)
    return [f"ds_read_b128 {v(r,4)}, v{base} offset:{off}", f"ds_read_b128 {v(r+4,4)}, v{base} offset:{off+1024}"]

def step_scalars(A, layer, nxt):
    part = f"s{sPartB}"; mem = f"s{sMemB}"
    return f"""s_and_b32 s13, s{sStep}, 1
s_lshl_b32 s13, s13, 18
s_add_u32 s{sPart}, s13, {part}
s_add_u32 s{sInb}, s{sPart}, s43
s_add_u32 s13, s{sStep}, 1
s_and_b32 s13, s13, 3
s_lshl_b32 s13, s13, {MSL}
s_add_u32 s{sMemN}, s13, {mem}
s_and_b32 s13, s{sStep}, 3
s_lshl_b32 s13, s13, {MSL}
s_add_u32 s{sMemP}, s13, {mem}
s_lshr_b32 s13, s{sStep}, 1
s_and_b32 s13, s13, 1
s_xor_b32 s{sPh}, s13, 1""".split("\n")

def delay(A, c):
    c = max(0, c) // 4
    while c > 0:
        n = min(c, 16); A(f"s_nop {n-1}"); c -= n

def kv_dma(A):
    for (ldsb, so) in [(LDS_K, 0), (LDS_V, WS_V - WS_K)]:
        A(f"s_add_u32 m0, s54, {ldsb}\ns_add_u32 s13, s{sKV}, {so}")
        A(f"buffer_load_dwordx4 v{vL16}, {SRD}, s13 offen sc1 lds\nbuffer_load_dwordx4 v{vL16}, {SRD}, s13 offen offset:1024 sc1 lds")

gS = [48, 56]
rS = [56, 80, 32]
vFA = 16; sF1, sF2, sFv = 44, 45, 46; sF1w, sF2w = 50, 51
vLw = 19
sGat2 = 42
CHKFIRST = [True]

def gload(r): return [f"buffer_load_dwordx4 {v(r,4)}, v{vGat}, {SRD}, s{sGat} offen sc1", f"buffer_load_dwordx4 {v(r+4,4)}, v{vGat}, {SRD}, s{sGat} offen offset:1024 sc1"]
def gwrite(r): return f"ds_write_b128 v{vLw}, {v(r,4)}\nds_write_b128 v{vLw}, {v(r+4,4)} offset:1024"
def gproc(A, r, ny, spec=2):
    A(f"s_waitcnt vmcnt({ny+1})")
    if spec >= 1: A(f"ds_write_b128 v{vLw}, {v(r,4)}")
    A(f"v_max3_u32 v{vT0}, v{r}, v{r+1}, v{r+2}\ns_waitcnt vmcnt({ny})")
    if spec >= 2: A(f"ds_write_b128 v{vLw}, {v(r+4,4)} offset:1024")
    A(f"""v_max3_u32 v{vT0}, v{vT0}, v{r+3}, v{r+4}
v_max3_u32 v{vT0}, v{vT0}, v{r+5}, v{r+6}
v_max_u32 v{vT0}, v{vT0}, v{r+7}
v_cmp_eq_u32 vcc, -1, v{vT0}""")
def g2dma(): return f"buffer_load_dwordx4 v{vGat}, {SRD}, s{sGat2} offen sc1 lds"
def rload(r): return [f"buffer_load_dwordx4 {v(r,4)}, v{vL16}, {SRD}, s{sInb} offen sc1", f"buffer_load_dwordx4 {v(r+4,4)}, v{vL16}, {SRD}, s{sInb} offen offset:1024 sc1"]
def rproc(A, r, n_younger, st=None):
    A(f"""s_waitcnt vmcnt({n_younger+1})
v_mfma_f32_16x16x32_bf16 {v(vRA,4)}, {v(vAS,4)}, {v(r,4)}, 0
v_bitop3_b32 v{vT0}, v{r}, v{r+2}, s{sPh} bitop3:0x7e
s_waitcnt vmcnt({n_younger})""")
    if st: st(7)
    A(f"""v_mfma_f32_16x16x32_bf16 {v(vRA,4)}, {v(vAS,4)}, {v(r+4,4)}, {v(vRA,4)}
v_bitop3_b32 v{vT1}, v{r+4}, v{r+6}, s{sPh} bitop3:0x7e
v_bitop3_b32 v{vT0}, v{vT0}, v{vT1}, 1 bitop3:0xa8
v_cmp_ne_u32 vcc, 0, v{vT0}""")

def kvf_check(P):
    return f"""s_add_u32 s13, s{sStep}, 1
s_min_u32 s13, s13, 63
s_lshr_b32 s38, s13, 2
s_add_u32 s38, s38, 2
s_lshr_b32 s13, s13, 1
s_min_u32 s13, s13, s38
s_lshl_b32 s13, 2, s13
s_sub_u32 s13, s13, 1
{P}_kc:
v_cmp_le_u32 vcc, 4, v{vKF}
s_and_b32 s38, vcc_lo, s13
s_cmp_lg_u32 s38, s13
s_cbranch_scc1 {P}_kw
{P}_kok:"""
def kvf_wait(A, P, tmo):
    A(f"{P}_kw:")
    tmo(15, f"{P}_kto")
    A(f"""s_sleep 8
v_lshrrev_b32 v{vKF}, 2, v{vL16}
buffer_load_dword v{vKF}, v{vKF}, {SRD}, s{sKVF} offen sc1
s_waitcnt vmcnt(0)
s_branch {P}_kc
{P}_kto:
s_mov_b32 s{sDead}, {TMO}
s_branch {P}_kok""")

def pf_setup(w, opt):
    return [f"s_add_u32 s{sKV}, s{sKV}, {KVSEG}", f"s_xor_b32 s{sKm}, s{sKm}, 0x6000", f"v_xor_b32 v{vKr}, 0x6000, v{vKr}", f"s_add_u32 m0, s39, {LDS_MEM + 4096}"]

def pubmix():
    q = "quad_perm:[0,1,0,1] row_mask:0xf bank_mask:0xf"
    return [f"s_mov_b64 vcc, s[{sMask}:{sMask+1}]", f"v_mov_b32_dpp v{vT0}, v{vVP} {q}", f"v_mov_b32_dpp v{vT1}, v{vVP+2} {q}",
            f"v_cndmask_b32 v{vKQ}, v{vKQ}, v{vVP}, vcc", f"v_cndmask_b32 v{vKQ+1}, v{vKQ+1}, v{vVP+2}, vcc",
            f"v_cndmask_b32 v{vKQ+2}, v{vKQ+2}, v{vT0}, vcc", f"v_cndmask_b32 v{vKQ+3}, v{vKQ+3}, v{vT1}, vcc"]

def gather_events(p, w, opt):
    n1 = opt.get("n1", 2) if w < 2 else 0
    dg = opt.get("dg", 128)
    t0 = opt.get("d2", [120, 60, 0, 0])[w]
    return [(t0 + k * dg, gS[k]) for k in range(n1)], n1

def body(A, P, layer, p, w, fast, last, opt):
    SC = "" if fast else " sc1"
    sfx = "_l" if last else ""
    stamp = opt.get("stamp")
    def st(k):
        if stamp and not last and k in opt.get("st", range(11)): A(f"s_memtime s[{60+2*k}:{61+2*k}]")
        if not last and opt.get("wv") == k: A("s_memtime s[62:63]\ns_waitcnt vmcnt(0)\ns_memtime s[64:65]\ns_waitcnt lgkmcnt(0)\ns_sub_u32 s13, s64, s62\ns_add_u32 s83, s83, s13\ns_max_u32 s84, s84, s13")
        if not last and opt.get("cut") == k: A(f"s_add_u32 s{sStep}, s{sStep}, 1\ns_branch {P}_cutend")
    A.reset_counts()
    ev, n1 = gather_events(p, w, opt)
    nxt = [0]
    tk = {}
    nab = 1 if opt.get("abs") else 0
    B1 = None
    if w < 2:
        spec = opt.get("spec", 0)
        gproc(A, gS[0], 2 * (n1 - 1) + nab, spec)
        A(f"s_cbranch_vccnz {P}_gr{sfx}")
        for x in gwrite(gS[0]).split("\n")[spec:]: A(x)
        A(f"{P}_gok{sfx}:\ns_waitcnt lgkmcnt(0)")
        st(9)
    A("s_barrier")
    st(0)
    mrd = lambda t: f"ds_read_b128 {v(vMEM+4*t,4)}, v{vL16} offset:{LDS_MEM + t*1024}"
    mt = {}
    for t in range(3): mt[t] = A(mrd(t))
    A(g2dma())
    A(f"{P}_entry2{sfx}:")
    A(f"s_mov_b32 m0, s{sKm}")
    seq = []
    for t in range(4): seq += [("k", 0, t), ("q", 0, t), ("k", 1, t), ("q", 1, t)]
    for te in range(2):
        for t in range(4, 8): seq += [("k", te, t), ("q", te, t)]
    N1 = 32
    V = [[] for _ in range(N1)]; S = [[] for _ in range(N1)]; X = [[] for _ in range(N1)]
    B2 = opt.get("b2", 12)
    quse = [(idx, 2 * t + te) for idx, (m, te, t) in enumerate(seq) if m == "q"]
    sl_seq = SLQ + [(n_ - 6) % 5 for n_ in range(6, 16)]
    slot = {f: sl_seq[n_] for n_, (idx, f) in enumerate(quse)}
    jobs = []
    lastuse = {}
    for n_, (idx, f) in enumerate(quse):
        if n_ >= NS:
            for x in wq_read(A, f, slot[f]): jobs.append((lastuse[slot[f]], idx, "wq", f, x))
        lastuse[slot[f]] = idx
    first = {}
    for idx, (m, te, t) in enumerate(seq): first.setdefault(t, idx)
    for t in range(3 if B1 is None else 2, 8): jobs.append(((0 if B1 is None else B1) if t < 4 else B2, first[t] - 3, "mem", t, mrd(t)))
    if not last:
        for n_, (c, u) in enumerate([(c, u) for c in range(2) for u in range(4)]):
            jobs.append((max(lastuse[1 + n_ // 2], opt.get("kx0", 24)), 100 + lastuse[1 + n_ // 2], "kx", n_, f"ds_read_b128 {v(vKx + (c*4+u)*4, 4)}, v{vKr} offset:{u*2048 + c*256}"))
        for n_ in range(2):
            jobs.append((max(lastuse[0], opt.get("kx0", 24)), 90, "kx", 8 + n_, f"ds_read_b128 {v(vVx+4*n_,4)}, v{vG512} offset:{LDS_V + w*2048 + 256*n_}"))
    D = [[] for _ in range(N1)]
    nod = set()
    for g_ in range(N1):
        cap = 2 if g_ in (B1, B2) else (0 if g_ in nod else 1)
        for _ in range(cap):
            av = [j for j in jobs if j[0] <= g_]
            if not av: break
            j = min(av, key=lambda j: j[1]); jobs.remove(j); D[g_].append(j[2:])
    assert all(j[2] == "kx" for j in jobs)
    X[B2].append(lambda: A(f"s_waitcnt vmcnt({nxt[0]})"))
    X[B2].append("s_barrier")
    for t in range(4, 8):
        r = vMEM + 4 * t
        V[first[t]].append(f"v_max_u32 v{vT0}, v{r}, v{r+1}" if t == 4 else f"v_max3_u32 v{vT0}, v{vT0}, v{r}, v{r+1}")
        V[first[t] + 1].append(f"v_max3_u32 v{vT0}, v{vT0}, v{r+2}, v{r+3}")
    V[24].append(f"v_cmp_eq_u32 vcc, -1, v{vT0}")
    f0 = [f"v_add_f32 v{vAk0}, v{vAk0}, v{vAk0+2}", f"v_add_f32 v{vAk0+1}, v{vAk0+1}, v{vAk0+3}",
          f"v_add_f32 v{vAq0}, v{vAq0}, v{vAq0+2}", f"v_add_f32 v{vAq0+1}, v{vAq0+1}, v{vAq0+3}",
          f"v_mul_f32 v{vAq0}, s{sC}, v{vAq0}", f"v_mul_f32 v{vAq0+1}, s{sC}, v{vAq0+1}",
          f"v_cvt_pk_bf16_f32 v{vKQ}, v{vAk0}, v{vAk0+1}"]
    for n_, x in enumerate(f0): V[25 + n_].append(x)
    for r in range(8): V[3 + r].append(f"v_mov_b32 v{vAv0+r}, 0")
    ext = []
    if not last and not opt.get("nokv"):
        ext.append(f"buffer_load_dwordx4 v{vL16}, {SRD}, s{sKV} offen sc1 lds")
        ext.append(f"buffer_load_dwordx4 v{vL16}, {SRD}, s{sKV} offen offset:1024 sc1 lds")
    if not opt.get("nopub"):
        ext.append(f"buffer_store_dwordx4 {v(vKQ,4)}, v{vL16}, {SRD}, s40 offen sc1")
        if w == 2: ext.append(f"v_mov_b32 v{vT1}, s41\ns_mov_b64 exec, 1\nbuffer_store_dword v{vT1}, off, {SRD}, s55 sc1\ns_mov_b64 exec, -1")
    if w == 3 and not last: ext.append(f"v_lshrrev_b32 v{vKF}, 2, v{vL16}\nbuffer_load_dword v{vKF}, v{vKF}, {SRD}, s{sKVF} offen sc1")
    pz = opt.get("pz", 2)
    pos_ = [pz + w + 4 * n_ for n_ in range(len(ext))]
    pos_ = [x if x < B2 - 1 else x + 4 for x in pos_]
    for n_, x in enumerate(ext): X[pos_[n_]].append(x)
    nxt[0] = sum(1 for x in pos_ if x < B2)
    S[26].append(f"s_add_u32 s{sGat}, s{sMemN}, s54"); S[28].append(f"s_add_u32 s{sGat2}, s{sMemN}, s52")
    wqtok = {}
    def need_wait(idx):
        m, te, t = seq[idx]
        need = [mt.get(t, "missing")]
        if m == "q" and (2 * t + te) in wqtok: need.append(wqtok[2 * t + te])
        if "missing" in need: return False
        ns = [A.lgk_n(x) for x in need if A.lgk_n(x) is not None]
        if ns: A(f"s_waitcnt lgkmcnt({min(ns)})")
        return True
    hoist = opt.get("hoist", 1)
    for idx, (m, te, t) in enumerate(seq):
        need_wait(idx)
        if idx == 0 and not opt.get("abs"): st(1)
        if m == "k": smf(A, [vAk0, vAk1][te], vMEM + 4 * t, a((t * 2 + te) * 8, 8), vIK)
        else: smf(A, [vAq0, vAq1][te], vMEM + 4 * t, v(slot_reg(slot[2 * t + te]), 8), vIK)
        for x in X[idx]: (x() if callable(x) else A(x))
        if hoist and idx + 1 < N1 and V[idx] and not (B2 <= idx < B2 + 5): need_wait(idx + 1)
        for x in S[idx]: A(x)
        for (kind, key, txt) in D[idx]:
            tok = A(txt)
            {"wq": wqtok, "mem": mt, "kx": {}}[kind][key] = tok
        for x in V[idx]: A(x)
    st(2)
    def sv(j): smf(A, [vAv0, vAv1][j & 1], vMEM + 4 * (j >> 1), a(128 + j * 8, 8), vIK)
    kxr = [j[4] for j in jobs]
    if last: kxr = []
    def rdk(n_):
        for _ in range(n_):
            if kxr: A(kxr.pop(0))
    fsplit = opt.get("fsplit", 1) and not last
    sv(0); rdk(1); A(f"v_cvt_pk_bf16_f32 v{vKQ+1}, v{vAq0}, v{vAq0+1}")
    sv(1)
    if fsplit: A(f"ds_write_b64 v{vFw}, {v(vKQ,2)}")
    else: rdk(1)
    A(f"v_add_f32 v{vAk1}, v{vAk1}, v{vAk1+2}")
    A(f"""v_add_f32 v{vAk1+1}, v{vAk1+1}, v{vAk1+3}
v_add_f32 v{vAq1}, v{vAq1}, v{vAq1+2}
v_add_f32 v{vAq1+1}, v{vAq1+1}, v{vAq1+3}
v_cvt_pk_bf16_f32 v{vKQ+2}, v{vAk1}, v{vAk1+1}
v_mul_f32 v{vAq1}, s{sC}, v{vAq1}
v_mul_f32 v{vAq1+1}, s{sC}, v{vAq1+1}
v_cvt_pk_bf16_f32 v{vKQ+3}, v{vAq1}, v{vAq1+1}""")
    vfold = [f"v_add_f32 v{vAv0}, v{vAv0}, v{vAv0+2}", f"v_add_f32 v{vAv0+1}, v{vAv0+1}, v{vAv0+3}",
             f"v_cvt_pk_bf16_f32 v{vVP}, v{vAv0}, v{vAv0+1}", f"v_add_f32 v{vAv1}, v{vAv1}, v{vAv1+2}",
             f"v_add_f32 v{vAv1+1}, v{vAv1+1}, v{vAv1+3}", f"v_cvt_pk_bf16_f32 v{vVP+2}, v{vAv1}, v{vAv1+1}"]
    if last:
        A(f"s_cbranch_vccnz {P}_redo_l")
        A(f"ds_write2_b64 v{vFw}, {v(vKQ,2)}, {v(vKQ+2,2)} offset1:64")
        for j in range(2, 9): sv(j)
        A("s_waitcnt lgkmcnt(0)\ns_barrier")
        for jj in range(2): A(f"ds_read_b64_tr_b16 {v(vKQ + 2*jj, 2)}, v{vFr} offset:{1024*w + 256*jj}")
        for j in range(9, 16): sv(j)
        for x in vfold: A(x)
        A("s_waitcnt lgkmcnt(0)")
        for x in pubmix(): A(x)
        A(f"buffer_store_dwordx4 {v(vKQ,4)}, v{vL16}, {SRD}, s{sPub} offen sc1")
        return
    if fsplit:
        fw = A(f"ds_write_b64 v{vFw}, {v(vKQ+2,2)} offset:512")
        sv(2)
    else:
        sv(2)
        fw = A(f"ds_write2_b64 v{vFw}, {v(vKQ,2)}, {v(vKQ+2,2)} offset1:64")
    NBF = opt.get("nbf", 7)
    for j in range(3, NBF):
        sv(j)
        rdk(1)
    rdk(10)
    A(f"s_cbranch_vccnz {P}_redo")
    A.wlg(fw); A("s_barrier")
    st(3)
    ft = []
    for tr in range(2): ft.append(A(f"ds_read_b64_tr_b16 {v(vF + 2*tr, 2)}, v{vFr} offset:{256*tr}"))
    dma = [f"buffer_load_dwordx4 v{vL16}, {SRD}, s13 offen sc1 lds",
           f"buffer_load_dwordx4 v{vL16}, {SRD}, s13 offen offset:1024 sc1 lds"]
    if opt.get("nokv"): dma = []
    NV1 = opt.get("nv1", 12)
    A(f"s_add_u32 m0, s54, {LDS_V}\ns_add_u32 s13, s{sKV}, {WS_V - WS_K}")
    dpos = {opt.get("dz", 0) + w + 4 * n_: x for n_, x in enumerate(dma)}
    gi = [0]
    def gap():
        if gi[0] in dpos: A(dpos.pop(gi[0]))
        gi[0] += 1
    for j in range(NBF, NV1):
        sv(j); gap()
        u = j - NBF + 1
        if u < 4:
            for jj in range(2):
                ft.append(A(f"ds_read_b64_tr_b16 {v(vF + 4*u + 2*jj, 2)}, v{vFr} offset:{1024*u + 256*jj}"))
    st(4)
    def mf(d, aa, bb, first_):
        A(f"v_mfma_f32_16x16x32_bf16 {v(d,4)}, {v(aa,4)}, {v(bb,4)}, " + ("0" if first_ else v(d, 4)))
    ex = lambda k_, src: f"v_exp_f32 v{vE+k_}, v{src}"
    cv = lambda d, x: f"v_cvt_pk_bf16_f32 v{d}, v{x}, v{x+1}"
    sq = [("x", 0, u) for u in range(4)] + [("x", 1, u) for u in range(4)]
    sq += [("v", j, 0) for j in range(NV1, 16)] + [("m", 0, u) for u in range(4)]
    G = {}
    fill = [ex(0, vSx0), ex(1, vSx0 + 1), ex(2, vSx0 + 2), ex(3, vSx0 + 3), ex(4, vSx1), ex(5, vSx1 + 1), ex(6, vSx1 + 2), ex(7, vSx1 + 3)]
    pos = 6
    while fill and pos < len(sq):
        G.setdefault(pos, []).append(fill.pop(0)); pos += 1
    tail = fill + [cv(vPx, vE), cv(vPx + 1, vE + 2), cv(vPx + 2, vE + 4), cv(vPx + 3, vE + 6)]
    while tail and pos < len(sq):
        G.setdefault(pos, []).extend(tail[:2]); tail = tail[2:]; pos += 1
    A.wlg(ft[-1])
    for r in range(4): G.setdefault(r, []).append(f"v_mov_b32 v{vKQ+r}, v{vF+4*w+r}")
    for n_, (kind, tile, u) in enumerate(sq):
        if kind == "x": mf([vSx0, vSx1][tile], vKx + (tile * 4 + u) * 4, vF + 4 * u, u == 0)
        elif kind == "m": mf(vSm, vF + 4 * u, vF + 4 * u, u == 0)
        else: sv(tile)
        gap()
        for x in G.get(n_, []): A(x)
    for k_ in sorted(dpos): A(dpos[k_])
    for x in tail: A(x)
    m16 = lambda d, aa, bb: A(f"v_mfma_f32_16x16x16_bf16 {v(d,4)}, {v(aa,2)}, {v(bb,2)}, {v(d,4)}")
    A(vfold[0]); A(vfold[1])
    mf(vL, vAS, vPx, True); A(vfold[2]); A(vfold[3])
    mf(vO0, vVx, vPx, True); A(ex(8, vSm))
    mf(vO1, vVx + 4, vPx, True); A(ex(9, vSm + 1))
    A(vfold[4]); A(cv(vPm, vE + 8)); A(vfold[5])
    A(f"v_max3_f32 v{vT1}, |v{vSx0}|, |v{vSx0+1}|, |v{vSx0+2}|")
    m16(vL, vAS, vPm)
    A(f"v_max3_f32 v{vT1}, v{vT1}, |v{vSx0+3}|, |v{vSx1}|\nv_max3_f32 v{vT1}, v{vT1}, |v{vSx1+1}|, |v{vSx1+2}|")
    m16(vO0, vVP, vPm)
    A(f"v_max3_f32 v{vT1}, v{vT1}, |v{vSx1+3}|, |v{vSm}|\nv_max_f32 v{vT1}, v{vT1}, |v{vSm+1}|")
    m16(vO1, vVP + 2, vPm)
    A(f"v_rcp_f32 v{vT0}, v{vL+2}")
    A(f"v_cmp_lt_f32 vcc, s{sT}, v{vT1}")
    if opt.get("force_slow"): A(f"v_cmp_lt_f32 vcc, -1.0, v{vT1}")
    for r in range(4): A(f"v_mul_f32 v{vO0+r}, v{vT0}, v{vO0+r}")
    A(cv(vE, vO0)); A(cv(vE + 1, vO0 + 2))
    if opt.get("ow2", 1): A(f"ds_write_b64 v{vOw}, {v(vE,2)}")
    for r in range(2): A(f"v_pk_mul_f32 {v(vO1+2*r,2)}, {v(vO1+2*r,2)}, {v(vT0,2)} op_sel_hi:[1,0]")
    A(cv(vE + 2, vO1)); A(cv(vE + 3, vO1 + 2))
    ow = A(f"ds_write_b64 v{vOw}, {v(vE+2,2)} offset:8") if opt.get("ow2", 1) else A(f"ds_write_b128 v{vOw}, {v(vE,4)}")
    A(f"s_and_b64 vcc, vcc, s[{sMask}:{sMask+1}]\ns_cbranch_vccnz {P}_slow")
    A(f"{P}_norm:")
    zg = opt.get("zgap", 0)
    for r in range(0, 4 if zg else 8, 2): A(f"v_mov_b64 {v(vOUT+r,2)}, 0")
    A.wlg(ow); A("s_barrier")
    st(5)
    ot = [A(f"ds_read_b128 {v(vOF+4*kk,4)}, v{vOr} offset:{kk*512}") for kk in range(4)]
    A(f"s_add_u32 s13, s{sPart}, 0")
    for r in (range(4, 10, 2) if zg else range(8, 16, 2)): A(f"v_mov_b64 {v(vOUT+r,2)}, 0")
    Z = {0: 10, 1: 11, 2: 12, 3: 13, 4: 14, 6: 15} if zg else {}
    pre = []
    for n_ in range(1, 6): pre += wq_read(A, quse[n_][1], SLQ[n_])
    def epi(pp):
        return [f"v_cvt_pk_bf16_f32 v{vPK+2*pp}, v{vOUT+4*pp}, v{vOUT+4*pp+1}",
                f"v_cvt_pk_bf16_f32 v{vPK+2*pp+1}, v{vOUT+4*pp+2}, v{vOUT+4*pp+3}",
                f"v_bfi_b32 v{vPK+2*pp}, 1, s{sPh}, v{vPK+2*pp}",
                f"buffer_store_dwordx2 {v(vPK+2*pp,2)}, v{vPst}, {SRD}, s13 offen{SC}"]
    if opt.get("e1fast", 1):
        e1 = 6; E = {5: epi(0), 9: epi(1), 13: epi(2)[0:1], 14: epi(2)[1:2], 15: epi(2)[2:3]}
    else:
        e1 = 9; E = {5: epi(0), 9: epi(1)[0:1], 10: epi(1)[1:2], 11: epi(1)[2:3], 12: epi(1)[3:4], 13: epi(2)[0:1], 14: epi(2)[1:2], 15: epi(2)[2:3]}
    rsch = opt.get("rs", [[16, 200], [120, 250], [260, 390], [320, 450]])[w]
    rtk = []
    def rissue():
        if opt.get("abs") and not rtk: A("s_memtime s[68:69]")
        for x in rload(rS[len(rtk)]): t_ = A(x)
        rtk.append(t_)
    for n_ in range(16):
        pp, kk = n_ >> 2, n_ & 3
        if n_ == 0: A.wlg(ot[1])
        if n_ == 2: A.wlg(ot[3])
        smf(A, vOUT + 4 * pp, vOF + 4 * kk, v(vWo + n_ * 8, 8), vIN)
        if n_ == 8: A(f"s_add_u32 s13, s{sPart}, {65536}")
        if n_ == 13: A(f"s_add_u32 s13, s{sPart}, {2*65536}")
        if n_ in rsch: rissue()
        elif pre and n_ >= 3 and n_ not in (5, e1 + 3): A(pre.pop(0))
        if n_ in Z: A(f"v_mov_b32 v{vOUT + Z[n_]}, 0")
        for x in E.get(n_, []): A(x)
        if n_ == 5: st(10)
    A(epi(2)[3])
    A(f"s_add_u32 s13, s{sPart}, {3*65536}")
    while pre: A(pre.pop(0))
    A(f"s_mov_b32 s40, s{sPub}\ns_add_u32 s{sPub}, s{sPub}, {PUBSEG}\ns_mov_b32 s14, 0\ns_mov_b32 s15, 0")
    for x in epi(3)[:3]: A(x)
    if 16 in rsch: rissue()
    A(epi(3)[3])
    st(6)
    idle = [f"v_mov_b64 {v(vAk0+r,2)}, 0" for r in range(0, 16, 2)]
    idle2 = pubmix()
    def wait_fill(d):
        while idle and d >= 4: A(idle.pop(0)); d -= 4
        delay(A, d)
    cur = 0
    for tm in [x - 100 for x in rsch if x >= 100]:
        wait_fill(tm - cur); cur = max(cur, tm) + 12
        rissue()
    while idle: A(idle.pop(0))
    opt["_rfirst"] = [A.vm_n(rtk[k_]) + 2 * k_ for k_ in range(1, len(rtk))]
    rproc(A, rS[0], A.vm_n(rtk[0]), st)
    A(f"""s_cbranch_vccnz {P}_rr
{P}_rok:
{"s_memtime s[66:67]" if opt.get("abs") else "s_nop 0"}
v_add_f32_dpp v{vRT}, v{vRA}, v{vRA} row_ror:4 row_mask:0xf bank_mask:0xf ;NOHAZ
v_add_f32_dpp v{vRT+1}, v{vRA+1}, v{vRA+1} row_ror:4 row_mask:0xf bank_mask:0xf ;NOHAZ
v_add_f32_dpp v{vRT+2}, v{vRT}, v{vRT} row_ror:8 row_mask:0xf bank_mask:0xf
v_add_f32_dpp v{vRT+3}, v{vRT+1}, v{vRT+1} row_ror:8 row_mask:0xf bank_mask:0xf
v_cvt_pk_bf16_f32 v{vT0}, v{vRT+2}, v{vRT+3}
buffer_store_dword v{vT0}, v{vMst}, {SRD}, s{sMemN} offen{SC}""")
    st(8)
    A(f"v_mov_b32 v{vT1}, -1\nbuffer_store_dword v{vT1}, v{vMst}, {SRD}, s{sMemP} offen{SC}")
    if opt.get("dumpmem"):
        A(f"s_lshl_b32 s13, s{sStep}, 16\ns_add_u32 s13, s13, {WS_OP + 65536}\nbuffer_store_dword v{vT0}, v{vMst}, {SRD}, s13 offen")
    idle += [f"s_mov_b32 s41, s{sStep}", f"s_add_u32 s{sStep}, s{sStep}, 1"] + idle2
    post = step_scalars(A, layer, 0) + pf_setup(w, opt)
    if stamp:
        idle += ["s_waitcnt lgkmcnt(0)"]
        for k_ in list(range(1, 9)) + [10]:
            idle += [f"s_sub_u32 s13, s{60+2*k_}, s60", f"s_add_u32 s{82+k_}, s{82+k_}, s13"]
        idle += ["s_sub_u32 s13, s60, s78", "s_add_u32 s91, s91, s13"]
    absd = []
    if opt.get("abs"):
        absd = ["s_waitcnt lgkmcnt(0)", f"s_lshl_b32 s13, s41, 13", f"s_lshl_b32 s38, s12, 8", "s_add_u32 s13, s13, s38", f"s_add_u32 s13, s13, {WS_OP + 8*MB + w*64}"]
        for k_ in range(11):
            absd += [f"v_writelane_b32 v{vT1}, s{60+2*k_}, {k_}"]
        absd += [f"v_lshrrev_b32 v{vT0}, 2, v{vL16}", f"s_mov_b64 exec, 0xffff", f"buffer_store_dword v{vT1}, v{vT0}, {SRD}, s13 offen", "s_mov_b64 exec, -1"]
    idle += post
    cur = 0
    done5 = False
    for n_, (tm, r) in enumerate(ev):
        if n_ == 1:
            A("s_waitcnt vmcnt(4)")
            for x in wq_read(A, 0, 5): A(x)
            cur += 12; done5 = True
        wait_fill(tm - cur); cur = max(cur, tm) + 12
        if r == gS[0]: st(1) if opt.get("abs") else None
        for x in gload(r): A(x)
    while idle: A(idle.pop(0))
    if w == 3: A(kvf_check(P))
    if not done5:
        A(f"s_waitcnt vmcnt({2 + 2 * n1})")
        for x in wq_read(A, 0, 5): A(x)
    for x in absd: A(x)

def variant(A, P, layer, p, w, fast, opt):
    A(f".p2align 6\n{P}_top:")
    body(A, P, layer, p, w, fast, False, opt)
    A(f"""{P}_cutend:
{"s_waitcnt lgkmcnt(0)" if "cut" in opt else ""}
s_cmp_lt_u32 s{sStep}, 63
s_cbranch_scc1 {P}_top""")
    body(A, P, layer, p, w, fast, True, opt)
    A(f"""s_waitcnt vmcnt(0)
s_barrier
v_mov_b32 v{vT1}, 64
s_branch {opt['_K']}_fin""")
    for sfx in ["", "_l"]:
        A(f"{P}_entry{sfx}:")
        for t in range(3): A(f"ds_read_b128 {v(vMEM+4*t,4)}, v{vL16} offset:{LDS_MEM + t*1024}")
        A(f"s_branch {P}_entry2{sfx}")
    cn = lambda r: A(f"s_add_u32 s{r}, s{r}, 1") if opt.get("cnt") else None
    def tmo(cnt, ok):
        A(f"""s_add_u32 s{cnt}, s{cnt}, s{sDead}
s_cmp_ge_u32 s{cnt}, {TMO}
s_cbranch_scc1 {ok}""")
    def retry(lab, sets, load, proc, okl, cnt, cidx, first):
        n = len(sets)
        A(f"{lab}:")
        for k_ in range(n - 1):
            cn(cidx)
            for x in load(sets[k_]): A(x)
            proc(A, sets[k_ + 1], first[k_])
            A(f"s_cbranch_vccz {okl}")
        sets = sets[n - 1:] + sets[:n - 1]
        A(f"{lab}_lp:")
        for k_ in range(n):
            cn(cidx)
            for x in load(sets[k_]): A(x)
            proc(A, sets[(k_ + 1) % n], len(load(0)) * (n - 1))
            A(f"s_cbranch_vccz {okl}")
        tmo(cnt, f"{lab}_to"); A(f"s_branch {lab}_lp\n{lab}_to:\ns_mov_b32 s{sDead}, {TMO}\ns_branch {okl}")
    retry(f"{P}_rr", rS[:len(opt["_rfirst"]) + 1], rload, rproc, f"{P}_rok", 14, 94, opt["_rfirst"])
    for sfx in ["", "_l"]:
        ev, n1 = gather_events(p, w, opt)
        if w < 2: retry(f"{P}_gr{sfx}", gS[:n1], gload, gproc, f"{P}_gok{sfx}", 15, 95, [2 * (n1 - 1)] * (n1 - 1))
        A(f"{P}_redo{sfx}:")
        cn(89)
        A(f"""s_add_u32 s15, s15, s{sDead}
s_cmp_ge_u32 s15, {TMO}
s_cbranch_scc1 {opt['_K']}_end
s_waitcnt vmcnt(0) lgkmcnt(0)
s_barrier
s_add_u32 s40, s53, {WS_FLAG + 65536}
s_add_u32 s{sGat2}, s{sMemP}, s39
s_add_u32 s{sGat}, s{sMemP}, s39
s_add_u32 s{sGat2}, s{sGat2}, 4096
s_add_u32 m0, s39, {LDS_MEM}
s_nop 0
buffer_load_dwordx4 v{vGat}, {SRD}, s{sGat} offen sc1 lds
s_add_u32 m0, s39, {LDS_MEM + 4096}""")
        for r in range(0, 16, 2): A(f"v_mov_b64 {v(vAk0+r,2)}, 0")
        A(g2dma())
        for i in range(6):
            for x in wq_read(A, i, SLQ[i]): A(x)
        A(f"s_waitcnt vmcnt(0) lgkmcnt(0)\ns_barrier\ns_branch {P}_entry{sfx}")
    if w == 3: kvf_wait(A, P, tmo)
    A(f"{P}_slow:\ns_waitcnt lgkmcnt(0)\ns_nop 7")
    A(f"""v_max3_f32 v{vT0}, v{vSx0}, v{vSx0+1}, v{vSx0+2}
v_max3_f32 v{vT1}, v{vSx0+3}, v{vSx1}, v{vSx1+1}
v_max3_f32 v{vT0}, v{vT0}, v{vSx1+2}, v{vSx1+3}
v_max3_f32 v{vT1}, v{vT1}, v{vSm}, v{vSm+1}
v_max_f32 v{vT0}, v{vT0}, v{vT1}
v_mov_b32 v{vT1}, v{vT0}
v_permlane32_swap_b32 v{vT0}, v{vT1}
v_max_f32 v{vT0}, v{vT0}, v{vT1}
v_mov_b32 v{vT1}, v{vT0}
v_permlane16_swap_b32 v{vT0}, v{vT1}
v_max_f32 v{vT0}, v{vT0}, v{vT1}""")
    srcs = [vSx0 + i for i in range(4)] + [vSx1 + i for i in range(4)] + [vSm, vSm + 1]
    for k_, x in enumerate(srcs): A(f"v_sub_f32 v{vE+k_}, v{x}, v{vT0}")
    for k_ in range(10): A(f"v_exp_f32 v{vE+k_}, v{vE+k_}")
    for k_ in range(4): A(f"v_cvt_pk_bf16_f32 v{vPx+k_}, v{vE+2*k_}, v{vE+2*k_+1}")
    A(f"v_cvt_pk_bf16_f32 v{vPm}, v{vE+8}, v{vE+9}")
    for (d, aa) in [(vO0, vVx), (vO1, vVx + 4), (vL, vAS)]:
        A(f"v_mfma_f32_16x16x32_bf16 {v(d,4)}, {v(aa,4)}, {v(vPx,4)}, 0")
    for (d, aa) in [(vL, vAS), (vO0, vVP), (vO1, vVP + 2)]:
        A(f"v_mfma_f32_16x16x16_bf16 {v(d,4)}, {v(aa,2)}, {v(vPm,2)}, {v(d,4)}")
    A("s_nop 7")
    A(f"v_rcp_f32 v{vT0}, v{vL+2}")
    for r in range(8): A(f"v_mul_f32 v{vO0+r}, v{vT0}, v{vO0+r}")
    for r in range(4): A(f"v_cvt_pk_bf16_f32 v{vE+r}, v{vO0+2*r}, v{vO0+2*r+1}")
    A(f"ds_write_b128 v{vOw}, {v(vE,4)}\ns_waitcnt lgkmcnt(0)\ns_branch {P}_norm")

def chain_member(A, P, opt, modefn, initfn=None):
    layer = 0
    opt = dict(opt); opt["_K"] = P
    A(f"s_mov_b32 s{sDead}, 1")
    weights_prologue(A, lambda B: lane_consts(B, layer, opt), opt, lambda B: modefn(B, 0))
    if opt.get("rt"): A("s_memrealtime s[98:99]")
    modefn(A, 1)
    A(f"s_mov_b32 s44, s13\nv_mov_b32 v0, v30\n{P}_restart:")
    A(f"""v_add_u32 v{vKr}, {LDS_K}, v{vG512}
s_lshl_b32 s54, s9, 11
s_lshl_b32 s53, s12, 13
s_add_u32 s53, s53, s54
s_lshl_b32 s39, s9, 10
s_lshl_b32 s{sKV}, s12, 19
s_add_u32 s{sKV}, s{sKV}, s54
s_add_u32 s{sKV}, s{sKV}, {WS_K}
s_lshl_b32 s{sPub}, s12, 18
s_add_u32 s{sPub}, s{sPub}, s39
s_add_u32 s{sPub}, s{sPub}, {WS_KVM}
s_add_u32 s40, s53, {WS_FLAG + 65536}
v_mov_b32 v32, 0
v_readfirstlane_b32 s{sStep}, v32
s_mov_b32 s41, 0
s_lshl_b32 s43, s9, 16
s_lshl_b32 s13, s12, 11
s_add_u32 s43, s43, s13
s_add_u32 s{sPartB}, s{sSync}, {SY_PART}
s_add_u32 s{sMemB}, s{sSync}, {SY_MEM}
s_lshl_b32 s13, s12, 8
s_add_u32 s13, s13, s{sSync}
s_add_u32 s55, s13, {SY_PROG}
s_add_u32 s{sKVF}, s13, {SY_KVF}""")
    for x in step_scalars(A, layer, 0): A(x)
    set_srd(A, 20, 48, 8192)
    A(f"""v_lshrrev_b32 v34, 4, v{vL16}
v_lshrrev_b32 v32, 2, v34
v_and_b32 v32, 3, v32
v_lshlrev_b32 v32, 1, v32
v_and_b32 v33, 1, v34
v_add_u32 v32, v32, v33
v_lshlrev_b32 v32, 10, v32
v_lshrrev_b32 v33, 4, v34
v_lshl_add_u32 v32, v33, 5, v32
v_bfe_u32 v33, v34, 1, 1
v_lshl_add_u32 v32, v33, 4, v32
s_lshl_b32 s13, s9, 7
s_add_u32 m0, s39, {LDS_MEM}
s_nop 0
buffer_load_dwordx4 v32, {SRDW}, s13 offen lds
s_add_u32 m0, s39, {LDS_MEM + 4096}
s_add_u32 s13, s13, 512
buffer_load_dwordx4 v32, {SRDW}, s13 offen lds
s_waitcnt lgkmcnt(0)""")
    for r in range(0, 16, 2): A(f"v_mov_b64 {v(vAk0+r,2)}, 0")
    A(f"v_mov_b32 v{vVP}, 0\nv_mov_b32 v{vVP+2}, 0\nv_mov_b32 v{vVP+1}, 0\nv_mov_b32 v{vVP+3}, 0\nv_mov_b32 v{vPm+1}, 0")
    for i in range(6):
        for x in wq_read(A, i, SLQ[i]): A(x)
    A(f"""s_mov_b32 s15, 0
s_add_u32 s{sKm}, s54, {LDS_K + 8192}
s_add_u32 s52, s39, 4096
s_waitcnt vmcnt(0) lgkmcnt(0)
s_cmp_lg_u32 s9, 0
s_cbranch_scc1 {P}_k1
{P}_k0:
buffer_load_dword v33, off, {SRD}, s{sKVF} sc1
s_waitcnt vmcnt(0)
v_readfirstlane_b32 s13, v33
s_cmp_ge_u32 s13, 4
s_cbranch_scc1 {P}_k1
s_add_u32 s15, s15, 1
s_cmp_lt_u32 s15, {4*TMO}
s_cbranch_scc1 {P}_k0
{P}_k1:
s_barrier""")
    kv_dma(A)
    A(f"s_add_u32 s{sKV}, s{sKV}, {KVSEG}\ns_mov_b32 s14, 0\ns_mov_b32 s15, 0")
    if opt.get("cnt"):
        for r in list(range(60, 90)) + [94, 95]: A(f"s_mov_b32 s{r}, 0")
        A("s_memtime s[78:79]")
    if opt.get("rt"): A(f"s_memrealtime s[86:87]")
    if opt.get("cnt") or opt.get("rt"): A("s_waitcnt lgkmcnt(0)")
    A(f"s_cmp_eq_u32 s44, 0\ns_cbranch_scc1 {P}_fb")
    for (tg, c) in [("", "f"), (f"{P}_fb:", "s")]:
        if tg: A(tg)
        for q in range(3): A(f"s_cmp_eq_u32 s9, {q}\ns_cbranch_scc1 {P}_{c}{q}_entry")
        A(f"s_branch {P}_{c}3_entry")
    for q in range(4): variant(A, f"{P}_f{q}", layer, 0, q, True, opt)
    o2 = dict(opt); o2.update(d2=[0,0,0,0])
    for q in range(4): variant(A, f"{P}_s{q}", layer, 0, q, False, o2)
    A(f"""{P}_fin:
s_cmp_lg_u32 s9, 2
s_cbranch_scc1 {P}_fin2
s_mov_b64 exec, 1
buffer_store_dword v{vT1}, off, {SRD}, s55 sc1
s_mov_b64 exec, -1
{P}_fin2:""")
    if opt.get("trace"):
        A(f"s_lshl_b32 s13, s12, 2\ns_add_u32 s13, s13, s9\ns_lshl_b32 s13, s13, 6\ns_add_u32 s13, s13, {WS_FLAG + 16384}")
        for k_ in range(14):
            A(f"v_mov_b32 v32, s{60+2*k_}\nbuffer_store_dword v32, off, {SRD}, s13 offset:{4*k_}\ns_nop 1")
    if opt.get("cnt"):
        A(f"""s_memtime s[60:61]
s_waitcnt lgkmcnt(0)
s_sub_u32 s82, s60, s78
s_sub_u32 s83, s78, s100
s_lshl_b32 s13, s12, 2
s_add_u32 s13, s13, s9
s_lshl_b32 s13, s13, 6
s_add_u32 s13, s13, {WS_FLAG}""")
        for k_ in range(16):
            A(f"v_mov_b32 v32, s{82+k_}\nbuffer_store_dword v32, off, {SRD}, s13 offset:{4*k_}\ns_nop 1")
    if opt.get("rt"):
        A(f"s_memrealtime s[88:89]\ns_waitcnt lgkmcnt(0)\ns_cmp_lg_u32 s{sSync}, {WS_SYNC}\ns_cbranch_scc1 {P}_rt2\ns_mov_b32 s90, s86\ns_mov_b32 s91, s88\n{P}_rt2:\ns_mov_b32 s84, s86\ns_mov_b32 s85, s88")
    if opt.get("mega"):
        A(f"s_cmp_lg_u32 s{sSync}, {WS_SYNC}\ns_cbranch_scc1 {P}_done\ns_add_u32 s{sSync}, s{sSync}, {MB}\ns_waitcnt vmcnt(0)\ns_barrier\ns_branch {P}_restart")
```

```python
from common import *

def kv_setup(A):
    set_srd(A, 20, 42, 4 * MB); set_srd(A, 24, 44, 4 * MB)

def kv_task(A, P, sTB, sH, sc1=False, xwait=None):
    SC = " sc1" if sc1 else ""
    kv_setup(A)
    vD, vT, vX = 2, 4, 8
    A(f"""s_lshl_b32 s28, s{sTB}, 17
s_lshl_b32 s13, s9, 15
s_add_u32 s28, s28, s13
s_add_u32 s28, s28, {WS_XN}
s_lshl_b32 s29, s{sH}, 8
s_lshl_b32 s13, s9, 17
s_add_u32 s29, s29, s13
s_lshl_b32 s30, s9, 12
v_lshrrev_b32 v9, 4, v0
v_and_b32 v10, 15, v0
v_lshlrev_b32 v11, 2, v9
v_xor_b32 v10, v10, v11
v_lshlrev_b32 v10, 4, v10
v_lshl_add_u32 v{vD}, v9, 13, v10""")
    def dma():
        L = []
        for j in range(4):
            L.append(f"s_add_u32 m0, s30, {j*1024}\ns_add_u32 s13, s28, {j*1024}\nbuffer_load_dwordx4 v1, s[16:19], s13 offen{SC} lds")
        for mtx in range(2):
            for j in range(4):
                L.append(f"s_add_u32 m0, s30, {16384*(1+mtx) + j*1024}\ns_add_u32 s13, s29, {4*j*8192}\nbuffer_load_dwordx4 v{vD}, s[{20+4*mtx}:{23+4*mtx}], s13 offen lds")
        return L
    adv = f"s_add_u32 s28, s28, 4096\ns_add_u32 s29, s29, {64*8192}"
    if xwait: xwait[0](A)
    for part in range(2):
        A(f"s_mov_b32 s31, 0\n{P}_pl{part}:")
        for x in (dma()[4:] if part == 0 else dma()[:4]): A(x)
        A(adv.split("\n")[1 - part])
        A(f"s_add_u32 s30, s30, 49152\ns_add_u32 s31, s31, 1\ns_cmp_lt_u32 s31, 3\ns_cbranch_scc1 {P}_pl{part}\ns_lshl_b32 s30, s9, 12")
        if part == 0 and xwait: xwait[1](A)
    A(f"""v_bfe_u32 v9, v0, 2, 2
v_lshrrev_b32 v10, 5, v0
v_lshl_add_u32 v10, v10, 3, v9
v_lshlrev_b32 v10, 8, v10
v_bfe_u32 v11, v0, 4, 1
v_lshl_add_u32 v10, v11, 5, v10
v_and_b32 v11, 3, v0
v_lshl_add_u32 v10, v11, 3, v10
s_lshr_b32 s13, s9, 1
s_lshl_b32 s13, s13, 14
s_add_u32 s13, s13, 16384
v_add_u32 v10, s13, v10""")
    for te in range(4): A(f"v_xor_b32 v11, {te}, v9\nv_lshl_add_u32 v{vT+te}, v11, 6, v10")
    A(f"""s_and_b32 s13, s9, 1
s_lshl_b32 s13, s13, 13
v_add_u32 v{vX}, s13, v1
s_mov_b32 s31, 0                 ; chunk
s_mov_b32 s32, 0
s_mov_b32 s34, 49152
s_waitcnt vmcnt(8)
s_barrier""")
    FR = [32, 56]
    def reads(k):
        b = FR[k & 1]
        L = [f"ds_read_b128 {v(b + 4*s_, 4)}, v{vX} offset:{s_*4096 + k*1024}" for s_ in range(2)]
        for te in range(4):
            for jj in range(2):
                L.append(f"ds_read_b64_tr_b16 {v(b + 8 + 4*te + 2*jj, 2)}, v{vT+te} offset:{(16*k + 4*jj)*256}")
        return L
    for x in reads(0): A(x)
    A(f"s_cmp_ge_u32 s9, 2\ns_cbranch_scc1 {P}_vw")
    for isv in range(2):
        Q = f"{P}_{isv}"
        if isv: A(f"{P}_vw:")
        def step(k, first, pend):
            fill = reads((k + 1) & 3)
            b = FR[k & 1]; n = 0
            for s_ in range(2):
                for te in range(4):
                    d = v(128 + (s_ * 4 + te) * 16, 16); xa = v(b + 4 * s_, 4); wa = v(b + 8 + 4 * te, 4)
                    if isv: mf32(A, d, xa, wa, first)
                    else: mf32(A, d, wa, xa, first)
                    for _ in range([3, 3, 2, 2, 0, 0, 0, 0][n]):
                        if fill: A(fill.pop(0))
                    if n in (4, 5, 6) and pend: A(pend.pop(0))
                    n += 1
        A("s_waitcnt lgkmcnt(0)")
        step(0, True, [])
        A("s_waitcnt lgkmcnt(0)"); step(1, False, [])
        A("s_waitcnt lgkmcnt(0)"); step(2, False, [])
        A(f"s_waitcnt vmcnt(4)\n{Q}_lp:")
        A(f"""s_waitcnt vmcnt(12) lgkmcnt(0)
s_barrier
s_add_u32 s32, s32, 1
s_cmp_eq_u32 s32, 3
s_cselect_b32 s33, {(-98304) & 0xffffffff:#x}, s34
s_cselect_b32 s32, 0, s32
s_cmp_ge_u32 s31, 5
s_cselect_b32 s28, 0x7ff00000, s28
s_cselect_b32 s29, 0x7ff00000, s29""")
        for r in [vT, vT+1, vT+2, vT+3, vX]: A(f"v_add_u32 v{r}, s33, v{r}")
        pend = dma()
        step(3, False, pend)
        A(f"s_cmp_eq_u32 s31, 7\ns_cbranch_scc1 {Q}_ex")
        for k in range(3):
            A("s_waitcnt lgkmcnt(0)"); step(k, False, pend)
        A(adv)
        A(f"s_add_u32 s30, s30, s33\ns_add_u32 s31, s31, 1\ns_branch {Q}_lp\n{Q}_ex:")
        A(f"""s_lshl_b32 s31, s{sH}, 6
s_lshl_b32 s13, s{sTB}, 2
s_add_u32 s31, s31, s13
s_and_b32 s13, s9, 1
s_lshl_b32 s13, s13, 1
s_add_u32 s31, s31, s13
s_lshl_b32 s31, s31, 13
s_add_u32 s31, s31, {WS_V if isv else WS_K}
s_waitcnt lgkmcnt(0)""")
        for s_ in range(2):
            for te in range(4):
                d = 128 + (s_ * 4 + te) * 16
                o = 32 + ((s_ * 4 + te) & 3) * 8
                for q in range(2):
                    src = [d + 4*q, d + 4*q + 2, d + 4*q + 8, d + 4*q + 10] if isv else [d + 8*q + 2*i for i in range(4)]
                    for i in range(4): A(f"v_cvt_pk_bf16_f32 v{o + 4*q + i}, v{src[i]}, v{src[i]+1}")
                A(f"s_add_u32 s13, s31, {s_*8192 + te*2048}")
                for q in range(2): A(f"buffer_store_dwordx4 {v(o + 4*q, 4)}, v1, s[16:19], s13 offen offset:{q*1024}{SC}")
        if not isv: A(f"s_branch {P}_kvdone")
    A(f"{P}_kvdone:")

def kv_kernel(opt):
    A = Asm(strict=opt.get("strict", False)); P = "kv"
    std_prologue(A, P, 512, [(4, KA_WS), (42, KA_WK), (44, KA_WV)])
    set_srd(A, 16, 4, WS_SIZE)
    A("""v_lshlrev_b32 v1, 4, v0
s_and_b32 s36, s2, 7
s_lshl_b32 s36, s36, 2
s_lshr_b32 s13, s2, 3
s_and_b32 s13, s13, 3
s_add_u32 s36, s36, s13
s_lshr_b32 s37, s2, 5""")
    kv_task(A, P, 37, 36)
    A(f"s_waitcnt vmcnt(0)\n{P}_end:\ns_endpgm")
    A.fix_hazards(name=P, verbose=opt.get("verbose"))
    return A, dict(name="kv_kernel", grid=512, block=256, lds=147456, vgpr=256, accum=256)

def kvf_task(A, P, sTB, sH, sKV, xwait):
    vD, vT = 2, 4
    A(f"""s_cmp_eq_u32 s{sKV}, 0
s_cselect_b32 s20, s42, s44
s_cselect_b32 s21, s43, s45
s_cmp_eq_u32 s{sKV}, 2
s_cselect_b32 s20, s40, s20
s_cselect_b32 s21, s41, s21
s_cselect_b32 s33, {WS_Q - WS_K - 2*(WS_V - WS_K)}, 0
s_mov_b32 s22, {4*MB}
s_mov_b32 s23, 0x20000
s_lshl_b32 s29, s{sH}, 8
s_lshl_b32 s13, s9, 20
s_add_u32 s29, s29, s13          ; h*256 + w*128 rows*8192
s_lshl_b32 s30, s9, 15
s_add_u32 s30, s30, 32768
v_lshrrev_b32 v9, 4, v0
v_and_b32 v10, 15, v0
v_lshlrev_b32 v11, 2, v9
v_xor_b32 v10, v10, v11
v_lshlrev_b32 v10, 4, v10
v_lshl_add_u32 v{vD}, v9, 13, v10
s_mov_b32 s31, 0
{P}_wl:""")
    for j in range(4): A(f"s_add_u32 m0, s30, {j*1024}\ns_add_u32 s13, s29, {4*j*8192}\nbuffer_load_dwordx4 v{vD}, s[20:23], s13 offen lds")
    A(f"""s_add_u32 s30, s30, 4096
s_add_u32 s29, s29, {16*8192}
s_add_u32 s31, s31, 1
s_cmp_lt_u32 s31, 8
s_cbranch_scc1 {P}_wl
v_bfe_u32 v9, v0, 2, 2
v_lshrrev_b32 v10, 5, v0
v_lshl_add_u32 v10, v10, 3, v9
v_lshlrev_b32 v10, 8, v10
v_bfe_u32 v11, v0, 4, 1
v_lshl_add_u32 v10, v11, 5, v10
v_and_b32 v11, 3, v0
v_lshl_add_u32 v10, v11, 3, v10
v_add_u32 v10, 32768, v10""")
    for te in range(4): A(f"v_xor_b32 v11, {te}, v9\nv_lshl_add_u32 v{vT+te}, v11, 6, v10")
    A(f"""s_lshl_b32 s28, s{sTB}, 2
s_add_u32 s28, s28, s9
s_lshl_b32 s31, s{sH}, 6
s_add_u32 s31, s31, s28
s_lshl_b32 s31, s31, 13
s_mul_i32 s13, s{sKV}, {WS_V - WS_K}
s_add_u32 s31, s31, s13
s_add_u32 s31, s31, s33
s_add_u32 s31, s31, {WS_K}
s_lshl_b32 s28, s28, 15
s_add_u32 s28, s28, {WS_XN}
s_waitcnt vmcnt(0)
s_barrier""")
    FR = [32, 48]
    def reads(k):
        return [f"ds_read_b64_tr_b16 {v(FR[k & 1] + 4*te + 2*jj, 2)}, v{vT+te} offset:{(16*(k & 15) + 4*jj)*256}" for te in range(4) for jj in range(2)]
    for x in reads(0): A(x)
    xwait(A)
    A.reset_counts()
    xt = []
    for k in range(32):
        if k % 4 == 0 and k: A("s_add_u32 s28, s28, 4096")
        xt.append(A(f"buffer_load_dwordx4 {v(128 + 4*k, 4)}, v1, s[16:19], s28 offen offset:{(k&3)*1024} sc1"))
    vm0 = list(A.vm)
    A(f"s_cmp_eq_u32 s{sKV}, 1\ns_cbranch_scc1 {P}_v")
    for isv in range(2):
        if isv: A(f"{P}_v:")
        A.vm = list(vm0)
        for k in range(32):
            n = A.vm_n(xt[k])
            A(f"s_waitcnt vmcnt({n}) lgkmcnt(0)")
            if k == 15:
                for te in range(4): A(f"v_add_u32 v{vT+te}, 0x10000, v{vT+te}")
            fill = reads(k + 1) if k < 31 else []
            for te in range(4):
                d = v(64 + 16 * te, 16); xa = v(128 + 4 * k, 4); wa = v(FR[k & 1] + 4 * te, 4)
                if isv: mf32(A, d, xa, wa, k == 0)
                else: mf32(A, d, wa, xa, k == 0)
                for _ in range([3, 3, 2, 0][te]):
                    if fill: A(fill.pop(0))
        for te in range(4):
            d = 64 + 16 * te; o = 32 + te * 8
            for q in range(2):
                src = [d + 4*q, d + 4*q + 2, d + 4*q + 8, d + 4*q + 10] if isv else [d + 8*q + 2*i for i in range(4)]
                for i in range(4): A(f"v_cvt_pk_bf16_f32 v{o + 4*q + i}, v{src[i]}, v{src[i]+1}")
            if te == 2: A("s_add_u32 s31, s31, 4096")
            for q in range(2): A(f"buffer_store_dwordx4 {v(o + 4*q, 4)}, v1, s[16:19], s31 offen offset:{(te&1)*2048 + q*1024} sc1")
        if not isv: A(f"s_branch {P}_fd")
    A(f"{P}_fd:")

def kvs_task(A, P, sH, sKV, sSub, xwait, flag):
    vD, vT = 2, 4
    A(f"""s_cmp_eq_u32 s{sKV}, 0
s_cselect_b32 s20, s42, s44
s_cselect_b32 s21, s43, s45
s_mov_b32 s22, {4*MB}
s_mov_b32 s23, 0x20000
s_lshl_b32 s29, s{sH}, 8
s_lshl_b32 s13, s9, 20
s_add_u32 s29, s29, s13
s_lshl_b32 s30, s9, 15
s_add_u32 s30, s30, 32768
v_lshrrev_b32 v9, 4, v0
v_and_b32 v10, 15, v0
v_lshlrev_b32 v11, 2, v9
v_xor_b32 v10, v10, v11
v_lshlrev_b32 v10, 4, v10
v_lshl_add_u32 v{vD}, v9, 13, v10
s_mov_b32 s31, 0
{P}_wl:""")
    for j in range(4): A(f"s_add_u32 m0, s30, {j*1024}\ns_add_u32 s13, s29, {4*j*8192}\nbuffer_load_dwordx4 v{vD}, s[20:23], s13 offen lds")
    A(f"""s_add_u32 s30, s30, 4096
s_add_u32 s29, s29, {16*8192}
s_add_u32 s31, s31, 1
s_cmp_lt_u32 s31, 8
s_cbranch_scc1 {P}_wl
v_bfe_u32 v9, v0, 2, 2
v_lshrrev_b32 v10, 5, v0
v_lshl_add_u32 v10, v10, 3, v9
v_lshlrev_b32 v10, 8, v10
v_bfe_u32 v11, v0, 4, 1
v_lshl_add_u32 v10, v11, 5, v10
v_and_b32 v11, 3, v0
v_lshl_add_u32 v10, v11, 3, v10
v_add_u32 v10, 32768, v10
v_xor_b32 v11, s9, v9
v_lshl_add_u32 v{vT}, v11, 6, v10
v_add_u32 v{vT+1}, 0x10000, v{vT}
s_lshl_b32 s31, s{sH}, 6
s_add_u32 s31, s31, s{sSub}
s_lshl_b32 s31, s31, 13
s_mul_i32 s13, s{sKV}, {WS_V - WS_K}
s_add_u32 s31, s31, s13
s_lshl_b32 s13, s9, 11
s_add_u32 s31, s31, s13
s_add_u32 s31, s31, {WS_K}         ; output
s_lshl_b32 s28, s{sSub}, 15
s_lshl_b32 s30, s9, 13
s_add_u32 s28, s28, s30
s_add_u32 s28, s28, {WS_XN}
s_waitcnt vmcnt(0)
s_barrier""")
    for k in range(32):
        for jj in range(2): A(f"ds_read_b64_tr_b16 {a(4*k + 2*jj, 2)}, v{vT + (k >> 4)} offset:{(16*(k & 15) + 4*jj)*256}")
    def xdma():
        for j in range(0, 8, 4):
            A(f"s_add_u32 m0, s30, {j*1024}\ns_add_u32 s13, s28, {j*1024}")
            for i in range(4): A(f"buffer_load_dwordx4 v1, s[16:19], s13 offen offset:{i*1024} sc1 lds")
        A("s_add_u32 s30, s30, 32768\ns_add_u32 s28, s28, 65536")
    A("s_mov_b32 s66, 0\ns_mov_b32 s34, 0\nv_mov_b32 v5, v1")
    xwait(A)
    xdma()
    A(f"s_waitcnt vmcnt(0)\n{P}_pl:\ns_barrier\ns_cmp_lg_u32 s34, 1\ns_cbranch_scc1 {P}_nx\ns_mov_b32 s66, 1")
    xwait(A)
    A(f"{P}_nx:\ns_cmp_eq_u32 s34, 3\ns_cbranch_scc1 {P}_nd")
    xdma()
    A(f"{P}_nd:")
    A.reset_counts()
    xt = [A(f"ds_read_b128 {v(32 + 4*k, 4)}, v5 offset:{1024*k}") for k in range(12)]
    lg0 = list(A.lg)
    A(f"s_cmp_eq_u32 s{sKV}, 1\ns_cbranch_scc1 {P}_v")
    for isv in range(2):
        if isv: A(f"{P}_v:")
        A.lg = list(lg0); x2 = list(xt)
        for k in range(32):
            A.wlg(x2[k])
            xa = v(32 + 4 * (k % 16), 4)
            if isv: mf32(A, v(96, 16), xa, a(4*k, 4), k == 0)
            else: mf32(A, v(96, 16), a(4*k, 4), xa, k == 0)
            if k + 12 < 32: x2.append(A(f"ds_read_b128 {v(32 + 4*((k+12) % 16), 4)}, v5 offset:{1024*(k+12)}"))
        for q in range(2):
            src = [96 + 4*q, 98 + 4*q, 104 + 4*q, 106 + 4*q] if isv else [96 + 8*q + 2*i for i in range(4)]
            for i in range(4): A(f"v_cvt_pk_bf16_f32 v{112 + 4*q + i}, v{src[i]}, v{src[i]+1}")
        if not isv: A(f"s_branch {P}_st")
    A(f"{P}_st:")
    for q in range(2): A(f"buffer_store_dwordx4 {v(112 + 4*q, 4)}, v1, s[16:19], s31 offen offset:{q*1024} sc1")
    A("s_add_u32 s31, s31, 16384\nv_add_u32 v5, 0x8000, v5")
    flag(A)
    A(f"s_add_u32 s34, s34, 1\ns_cmp_lt_u32 s34, 4\ns_cbranch_scc1 {P}_pl")
```

```python
from common import *
import chain
from kkv import kv_task, kvf_task, kvs_task
from katt import att_task, tail_task, mini_r1, mini_r1_pre
from kmisc import *
from klayer import poll_until, wg_atomic, role_poll, init_wait, r1_task, TMO, DBG

def arrive(A, lab, addr_code, atomic=True, wave0=True, val=1):
    A(addr_code)
    A(f"v_mov_b32 v2, {val}")
    if wave0: A(f"s_cmp_lg_u32 s9, 0\ns_cbranch_scc1 {lab}")
    A("s_mov_b64 exec, 1\n" + ("buffer_atomic_add v2, off, s[16:19], s13" if atomic else "buffer_store_dword v2, off, s[16:19], s13 sc1") + "\ns_mov_b64 exec, -1")
    if wave0: A(f"{lab}:")

def wait16(A, lab, off, expect, base=56, wave0=True, first_extra=0, sleep=4, r=2, n=16, sh=4, split=None):
    if wave0: A(f"s_cmp_lg_u32 s9, 0\ns_cbranch_scc1 {lab}_ok")
    mk = hex((1 << n) - 1)
    A(f"v_lshlrev_b32 v{r}, {sh}, v1\nv_mov_b32 v{r+2}, {expect}")
    if split: A(f"v_mov_b32 v{r+1}, {split[1]}\nv_cmp_le_u32 vcc, {split[0]*16}, v1\nv_cndmask_b32 v{r+2}, v{r+2}, v{r+1}, vcc")
    if first_extra: A(f"v_writelane_b32 v{r+2}, {expect + first_extra}, 0")
    poll_until(A, lab, f"s_add_u32 s13, s{base}, {off}\ns_mov_b32 exec_hi, 0\ns_mov_b32 exec_lo, {mk}\nbuffer_load_dword v{r+1}, v{r}, s[16:19], s13 offen sc1\ns_mov_b64 exec, -1",
               f"v_cmp_ge_u32 vcc, v{r+1}, v{r+2}\ns_and_b32 s13, vcc_lo, {mk}\ns_cmp_eq_u32 s13, {mk}", sleep=sleep)
    if wave0: A("s_barrier")

def code_prefetch(A, lab0, lab1, part=None, r=2):
    A(f"""s_getpc_b64 s[10:11]
{lab0}_pc{r}:
s_add_u32 s10, s10, {lab0}-{lab0}_pc{r}
s_addc_u32 s11, s11, -1""") if False else None

def coarse(A, lab, thr, r, opt):
    if not opt.get("coarse", 1): return
    A(f"s_cmp_lg_u32 s9, 0\ns_cbranch_scc1 {lab}_ok")
    poll_until(A, lab, f"s_add_u32 s13, s56, {SY_PROG}\nbuffer_load_dword v{r}, off, s[16:19], s13 sc1", f"v_readfirstlane_b32 s13, v{r}\n{thr}\ns_cmp_ge_i32 s13, s14", sleep=opt.get("csleep", 40))

def init_kernel(opt):
    A = Asm(); P = "ini"
    std_prologue(A, P, 80, [(4, KA_WS)])
    set_srd(A, 16, 4, WS_SIZE)
    A(f"""v_lshlrev_b32 v1, 4, v0
s_lshl_b32 s12, s2, 2
s_add_u32 s12, s12, s9
s_cmp_ge_u32 s12, 160
s_cselect_b32 s13, {MB - 160*4096}, 0
s_cselect_b32 s15, 160, 0
s_lshl_b32 s14, s12, 12
s_add_u32 s13, s13, s14
s_add_u32 s13, s13, {WS_SYNC}
s_sub_u32 s12, s12, s15
s_lshr_b32 s12, s12, 3
s_cmp_eq_u32 s12, 16
s_cselect_b32 s14, -1, 0
v_mov_b32 v4, s14
v_mov_b32 v5, s14
v_mov_b32 v6, s14
v_mov_b32 v7, s14""")
    for k in range(4): A(f"buffer_store_dwordx4 v[4:7], v1, s[16:19], s13 offen offset:{1024*k}")
    A(f"s_waitcnt vmcnt(0)\n{P}_end:\ns_endpgm")
    A.fix_hazards()
    return A, dict(name="init_kernel", grid=80, block=256, lds=0, vgpr=8, accum=8)

def mega_kernel(opt):
    A = Asm(strict=opt.get("strict", False)); P = "lay"
    rt = opt.get("rt")
    def stamp(k):
        if rt: A(f"""s_memrealtime s[86:87]
s_lshl_b32 s88, s75, 4
s_add_u32 s88, s88, {k}
s_lshl_b32 s88, s88, 10
s_lshl_b32 s89, s60, 2
s_add_u32 s88, s88, s89
s_add_u32 s88, s88, {WS_FLAG + 640*1024}
s_waitcnt lgkmcnt(0)
v_mov_b32 v2, s86
buffer_store_dword v2, off, s[16:19], s88""")
    def initfn(B, stage):
        if stage == 0:
            B(f"""s_and_b32 s13, s12, 15
s_lshl_b32 s13, s13, 2
s_add_u32 s13, s13, s9
s_mul_i32 s14, s13, 10240
s_lshr_b32 s13, s12, 4
s_lshl_b32 s13, s13, 20
s_add_u32 s15, s13, {WS_SYNC}""")
            for k in range(10):
                B(f"""s_sub_u32 s13, s14, {SY_MEM}
s_cmp_lt_u32 s13, 32768
s_cselect_b32 s13, -1, 0
v_mov_b32 v{48+4*(k&1)}, s13
v_mov_b32 v{49+4*(k&1)}, s13
v_mov_b32 v{50+4*(k&1)}, s13
v_mov_b32 v{51+4*(k&1)}, s13
s_add_u32 s13, s14, s15
buffer_store_dwordx4 {v(48+4*(k&1),4)}, v1, s[16:19], s13 offen sc1
s_add_u32 s14, s14, 1024""")
        else:
            B(f"v_mov_b32 v48, 1\ns_cmp_lg_u32 s9, 0\ns_cbranch_scc1 {P}_in1\ns_mov_b64 exec, 1\nbuffer_atomic_add v48, off, {DBG}, 0 offset:4\ns_mov_b64 exec, -1\n{P}_in1:")
    A(f"""s_cmp_ge_u32 s2, 256
s_cbranch_scc1 {P}_end
s_load_dwordx2 s[4:5], s[0:1], {KA_WS}
s_load_dwordx4 s[40:43], s[0:1], {KA_WQ}
s_load_dwordx4 s[44:47], s[0:1], {KA_WV}
s_load_dwordx2 s[48:49], s[0:1], {KA_MEM0}
s_load_dwordx2 s[76:77], s[0:1], {KA_X}
s_load_dwordx2 s[78:79], s[0:1], {KA_WR}
s_load_dwordx4 s[80:83], s[0:1], {KA_WI}
s_load_dwordx2 s[6:7], s[0:1], {KA_DBG}
s_getreg_b32 s8, hwreg(HW_REG_XCC_ID)
v_lshrrev_b32 v1, 6, v0
v_and_b32 v0, 63, v0
v_readfirstlane_b32 s9, v1
s_and_b32 s8, s8, 15
v_lshlrev_b32 v1, 4, v0
s_mov_b32 s56, {WS_SYNC}""")
    if opt.get("force_fb"): A("s_and_b32 s8, s2, 15")
    A("s_waitcnt lgkmcnt(0)")
    set_srd(A, 16, 4, WS_SIZE)
    set_srd(A, 92, 6, 256)
    A("s_lshl_b32 s10, s8, 2\ns_add_u32 s10, s10, 128\ns_cmp_eq_u32 s8, 0\ns_cselect_b32 s10, 0, s10")
    def tick(B, tag):
        B(f"""s_cmp_lg_u32 s9, s61
s_cbranch_scc1 {P}_tk0{tag}
s_mov_b64 exec, 1
buffer_atomic_add v200, off, {DBG}, s10 sc0
s_mov_b64 exec, -1
{P}_tk0{tag}:""")
    A(f"""v_mov_b32 v200, 1
s_mov_b32 s61, 0
s_lshr_b32 s66, s2, 2
s_cmp_eq_u32 s8, 0
s_cbranch_scc1 {P}_tkx
s_bitcmp0_b32 s2, 1
s_cbranch_scc1 {P}_ln
{P}_tkx:""")
    tick(A, "a")
    A(f"s_branch {P}_tk1\n{P}_ln:\ns_lshl_b32 s61, s61, 2")
    ln1_task(A, 66, 76, lambda B: tick(B, "b"))
    A("s_lshr_b32 s61, s61, 2")
    A(f"""s_waitcnt vmcnt(0)
s_barrier
s_lshr_b32 s13, s66, 5
s_lshl_b32 s13, s13, 2
s_lshl_b32 s14, 1, s66
v_mov_b32 v2, s14
s_cmp_lg_u32 s9, 0
s_cbranch_scc1 {P}_noln1
s_mov_b64 exec, 1
buffer_atomic_or v2, off, {DBG}, s13 offset:32
s_mov_b64 exec, -1
{P}_noln1:
s_cmp_lg_u32 s61, 0
s_cbranch_scc1 {P}_layer
{P}_tk1:
v_mov_b32 v2, 2048
s_cmp_lg_u32 s9, 0
s_cbranch_scc1 {P}_tk2
s_waitcnt vmcnt(0)
s_mov_b64 exec, 1
ds_write_b32 v2, v200
s_waitcnt lgkmcnt(0)
s_mov_b64 exec, -1
{P}_tk2:
s_barrier
ds_read_b32 v3, v2
s_waitcnt lgkmcnt(0)
v_readfirstlane_b32 s12, v3
s_barrier""")
    if opt.get("cpf", 1):
        A(f"""s_getpc_b64 s[10:11]
{P}_pc:
s_and_b32 s13, s12, 31
s_lshl_b32 s13, s13, 2
s_add_u32 s13, s13, s9
s_lshl_b32 s13, s13, 11
v_lshlrev_b32 v2, 7, v0
v_add_u32 v2, s13, v2
v_min_u32 v2, {P}_end-{P}_pc, v2
v_and_b32 v2, -4, v2
s_mov_b64 exec, 0xffff
global_load_dword v3, v2, s[10:11]
s_mov_b64 exec, -1""")
    A(f"""s_cmp_ge_u32 s12, 32
s_cbranch_scc1 {P}_slowrole
s_cmp_eq_u32 s8, 0
s_cbranch_scc1 {P}_member
s_cmp_ge_u32 s8, 8
s_cbranch_scc1 {P}_slowrole
s_sub_u32 s60, s8, 1
s_lshl_b32 s60, s60, 5
s_add_u32 s60, s60, s12
{P}_bulk:
v_mov_b32 v2, 0
v_readfirstlane_b32 s75, v2
; logical rank from (g,i) = (rank/28, rank%28)
s_mov_b32 s57, s60
s_mul_i32 s13, s57, 2341
s_lshr_b32 s13, s13, 16
s_mul_i32 s14, s13, 28
s_sub_u32 s14, s57, s14
s_lshl_b32 s60, s14, 3
s_add_u32 s60, s60, s13
s_cmp_lt_u32 s14, 8
s_cbranch_scc1 {P}_lr
s_sub_u32 s15, s14, 8
s_lshr_b32 s60, s15, 1
s_lshl_b32 s60, s60, 4
s_and_b32 s15, s15, 1
s_add_u32 s60, s60, s15
s_lshl_b32 s15, s13, 1
s_add_u32 s60, s60, s15
s_add_u32 s60, s60, 64
s_cmp_lt_u32 s14, 16
s_cbranch_scc1 {P}_lr
s_sub_u32 s15, s14, 16
s_lshr_b32 s60, s15, 2
s_lshl_b32 s60, s60, 5
s_and_b32 s15, s15, 3
s_add_u32 s60, s60, s15
s_lshl_b32 s15, s13, 2
s_add_u32 s60, s60, s15
s_add_u32 s60, s60, 128
{P}_lr:
s_movk_i32 s85, 200
s_cmp_lt_u32 s60, 64
s_cselect_b32 s85, s60, s85
s_sub_u32 s13, s60, 64
s_sub_u32 s14, s60, 128
s_cmp_lt_u32 s14, 32
s_cselect_b32 s85, s13, s85
s_sub_u32 s13, s60, 96
s_cmp_ge_u32 s60, 192
s_cselect_b32 s85, s13, s85
s_cmp_eq_u32 s60, 191
s_cselect_b32 s85, 128, s85
s_cmp_lt_u32 s85, 128
s_cbranch_scc1 {P}_layer""")
    xnf = lambda sreg, extra: f"s_lshr_b32 s13, s{sreg}, 2\ns_lshl_b32 s13, s13, 8\ns_and_b32 s14, s{sreg}, 3\ns_lshl_b32 s14, s14, 2\ns_add_u32 s13, s13, s14\ns_add_u32 s13, s13, s56\ns_add_u32 s13, s13, {SY_XNF + extra}"
    def verify(tag, ini):
        A(f"s_bitcmp1_b32 s61, 0\ns_cbranch_scc1 {P}_ver{tag}")
        role_poll(A, f"{P}_rp1{tag}", 2)
        A(f"s_cmp_eq_u32 s13, 0\ns_cbranch_scc1 {P}_irr\ns_mov_b32 s61, 1\n{P}_ver{tag}:")
        if ini is None: return
        if ini:
            A(f"s_sub_u32 s12, s60, 160\ns_cmp_ge_u32 s12, 32\ns_cbranch_scc1 {P}_noini")
            initfn(A, 0)
            A("s_waitcnt vmcnt(0)\ns_barrier")
            initfn(A, 1)
            A(f"{P}_noini:")
        init_wait(A, f"{P}_iw{tag}")
        A("s_mov_b32 s61, 3")
    verify("a", True)
    A(f"""s_sub_u32 s66, s60, 64
s_cmp_ge_u32 s66, 64
s_cbranch_scc1 {P}_layer
s_lshr_b32 s13, s66, 5
s_lshl_b32 s13, s13, 2
v_mov_b32 v2, 2048
s_cmp_lg_u32 s9, 0
s_cbranch_scc1 {P}_c1
buffer_load_dword v3, off, {DBG}, s13 offset:32 sc1
s_waitcnt vmcnt(0)
ds_write_b32 v2, v3
s_waitcnt lgkmcnt(0)
{P}_c1:
s_barrier
ds_read_b32 v3, v2
s_waitcnt lgkmcnt(0)
v_readfirstlane_b32 s13, v3
s_barrier
s_bitcmp0_b32 s13, s66
s_cbranch_scc1 {P}_ln""")
    uid = [0]
    def xld_():
        uid[0] += 1
        return f"s_cmp_lg_u32 s75, 0\ns_cbranch_scc1 {P}_xa{uid[0]}\nbuffer_load_dword v16, off, {DBG}, s35 offset:32 sc1\ns_branch {P}_xb{uid[0]}\n{P}_xa{uid[0]}:\nbuffer_load_dwordx4 v[16:19], off, s[16:19], s35 sc1\n{P}_xb{uid[0]}:"
    def xck_():
        uid[0] += 1
        return f"""s_cmp_lg_u32 s75, 0
s_cbranch_scc1 {P}_xa{uid[0]}
v_readfirstlane_b32 s13, v16
s_lshl_b32 s14, s66, 2
s_lshr_b32 s13, s13, s14
s_and_b32 s13, s13, 15
s_cmp_eq_u32 s13, 15
s_branch {P}_xb{uid[0]}
{P}_xa{uid[0]}:
v_and_b32 v16, v16, v17
v_and_b32 v18, v18, v19
v_and_b32 v16, v16, v18
v_readfirstlane_b32 s13, v16
s_cmp_lg_u32 s13, 0
{P}_xb{uid[0]}:"""
    xad = f"s_lshl_b32 s35, s66, 8\ns_add_u32 s35, s35, s56\ns_add_u32 s35, s35, {SY_XNF}\ns_lshr_b32 s13, s66, 3\ns_lshl_b32 s13, s13, 2\ns_cmp_eq_u32 s75, 0\ns_cselect_b32 s35, s13, s35"
    kvf_addr = f"s_lshl_b32 s13, s67, 8\ns_lshl_b32 s14, s66, 2\ns_add_u32 s13, s13, s14\ns_add_u32 s13, s13, s56\ns_add_u32 s13, s13, {SY_KVF + 8}"
    A(f"""{P}_layer:
s_cmp_ge_u32 s85, 128
s_cbranch_scc1 {P}_nofast
s_mov_b32 s13, s85
s_lshr_b32 s67, s13, 5
s_lshl_b32 s67, s67, 3
s_and_b32 s14, s13, 7
s_add_u32 s67, s67, s14
s_bfe_u32 s68, s13, 0x10003
s_bfe_u32 s69, s13, 0x10004""")
    xn = [0]
    def xwf(B, ver=True):
        xn[0] += 1; t = xn[0]
        B("s_waitcnt lgkmcnt(0)")
        if ver and t == 1: verify("b", None)
        B(f"{xad}\ns_cmp_lg_u32 s9, 0\ns_cbranch_scc1 {P}_xf{t}_ok")
        poll_until(B, f"{P}_xf{t}", xld_(), xck_(), sleep=opt.get("xsleep", 2))
        B("s_barrier")
    def sflag(B):
        B(f"s_cmp_eq_u32 s61, 3\ns_cbranch_scc1 {P}_vdone")
        init_wait(B, f"{P}_iwb")
        B(f"s_mov_b32 s61, 3\n{P}_vdone:\ns_waitcnt vmcnt(0)\ns_barrier")
        if rt: B(f"s_cmp_lg_u32 s34, 0\ns_cbranch_scc1 {P}_ns8"); stamp(8); B(f"{P}_ns8:")
        arrive(B, f"{P}_af", f"s_lshl_b32 s13, s67, 8\ns_lshl_b32 s14, s34, 2\ns_add_u32 s13, s13, s14\ns_add_u32 s13, s13, s56\ns_add_u32 s13, s13, {SY_KVF}")
    kvs_task(A, "kvs", 67, 68, 69, xwf, sflag)
    A(f"s_branch {P}_nofast\n{P}_kvf:")
    kvf_task(A, "kvf", 66, 67, 68, lambda B: xwf(B, False))
    A("s_waitcnt vmcnt(0)\ns_barrier")
    arrive(A, f"{P}_aq", kvf_addr)
    A(f"""s_branch {P}_qret
{P}_nofast:
s_lshr_b32 s62, s57, 5
s_and_b32 s63, s57, 31
s_cmp_lt_u32 s62, 4
s_cselect_b32 s64, 5, 4
s_movk_i32 s65, 16384
s_cselect_b32 s65, 13108, s65
{P}_kvl:
s_mul_i32 s66, s63, s65
s_lshr_b32 s66, s66, 16
s_mul_i32 s13, s66, s64
s_sub_u32 s13, s63, s13
s_mul_i32 s13, s13, 7
s_add_u32 s67, s13, s62
s_add_u32 s66, s66, 2""")
    def xw0(B): B(f"{xad}\ns_cmp_lg_u32 s9, 0\ns_cbranch_scc1 {P}_xw0\n{xld_()}\n{P}_xw0:")
    def xw1(B):
        B(f"s_cmp_lg_u32 s9, 0\ns_cbranch_scc1 {P}_xw_ok\ns_waitcnt vmcnt(24)\n{xck_()}\ns_cbranch_scc1 {P}_xw_ok")
        poll_until(B, f"{P}_xw", xld_(), xck_(), sleep=6)
        B("s_barrier")
    kv_task(A, "lkv", 66, 67, sc1=True, xwait=(xw0, xw1))
    A("s_waitcnt vmcnt(0)\ns_barrier")
    arrive(A, f"{P}_a1", kvf_addr, val=4)
    A(f"""s_add_u32 s63, s63, 32
s_mul_i32 s13, s64, 14
s_cmp_lt_u32 s63, s13
s_cbranch_scc1 {P}_kvl""")
    stamp(0)
    if opt.get("solo"): A(f"s_branch {P}_done")
    A(f"s_cmp_lg_u32 s75, 0\ns_cbranch_scc1 {P}_notab")
    table_task(A, "tab", 60, 78, 80)
    A("s_waitcnt vmcnt(0)\ns_barrier")
    arrive(A, f"{P}_a2", f"s_and_b32 s13, s60, 15\ns_lshl_b32 s13, s13, 8\ns_add_u32 s13, s13, {WS_SYNC + SY_TBL}")
    A(f"""{P}_notab:
s_cmp_lt_u32 s60, 192
s_cbranch_scc1 {P}_noq
s_sub_u32 s67, s60, 192
s_mov_b32 s66, 14
s_mov_b32 s68, 2
s_branch {P}_kvf
{P}_qret:
s_add_u32 s66, s66, 1
s_cmp_eq_u32 s66, 15
s_cbranch_scc1 {P}_kvf
s_branch {P}_srv
{P}_noq:
s_lshr_b32 s68, s60, 6
s_min_u32 s68, s68, 2
s_lshl_b32 s13, s68, 6
s_sub_u32 s13, s60, s13
s_add_u32 s14, s68, 3
s_lshr_b32 s66, s13, s14
s_lshl_b32 s15, s66, s14
s_sub_u32 s67, s13, s15
s_cmp_eq_u32 s68, 0
s_cselect_b32 s13, 0, 4
s_lshl_b32 s14, s68, 2
s_add_u32 s13, s13, s14
s_add_u32 s66, s66, s13
{P}_att:
s_lshr_b32 s69, 4, s68
s_mul_i32 s70, s67, s69
s_lshl_b32 s71, 1, s69
s_sub_u32 s71, s71, 1
s_lshl_b32 s72, s70, 8
s_add_u32 s72, s72, s56""")
    def kvwait(B):
        poll_until(B, f"{P}_kw", f"""v_lshlrev_b32 v14, 4, v1
s_lshl_b32 s13, s66, 2
s_add_u32 s14, s13, 8
s_lshl_b32 s13, s13, 1
s_cmp_lt_u32 s66, 2
s_cselect_b32 s13, s13, s14
s_cselect_b32 s14, 4, 0
s_add_u32 s13, s13, s72
s_add_u32 s13, s13, {SY_KVF}
s_add_u32 s14, s14, s13
s_mov_b64 exec, 15
buffer_load_dword v15, v14, s[16:19], s13 offen sc1
buffer_load_dword v16, v14, s[16:19], s14 offen sc1
s_mov_b64 exec, -1""",
                   "v_min_u32 v15, v15, v16\nv_cmp_le_u32 vcc, 4, v15\ns_and_b32 s13, vcc_lo, s71\ns_cmp_eq_u32 s13, s71", sleep=8)
    def pwait(B):
        coarse(B, f"{P}_pc1", "s_lshl_b32 s14, s66, 2\ns_add_u32 s14, s14, 2", 15, opt)
        B(f"s_cmp_lg_u32 s9, 0\ns_cbranch_scc1 {P}_pw_ok")
        poll_until(B, f"{P}_pw", f"v_lshlrev_b32 v14, 4, v1\ns_add_u32 s13, s72, {SY_PROG}\ns_mov_b64 exec, 15\nbuffer_load_dword v15, v14, s[16:19], s13 offen sc1\ns_mov_b64 exec, -1",
                   "s_lshl_b32 s14, s66, 2\ns_add_u32 s14, s14, 4\nv_cmp_le_u32 vcc, s14, v15\ns_and_b32 s13, vcc_lo, s71\ns_cmp_eq_u32 s13, s71", sleep=opt.get("psleep", 6))
        B("s_barrier")
    att_task(A, "lat", 66, 70, 67, 69, sc1=True, waitfn=pwait, kvwait=kvwait)
    A("v_lshrrev_b32 v0, 4, v1\ns_waitcnt vmcnt(0)\ns_barrier")
    stamp(1)
    A(f"s_lshl_b32 s73, s66, 8\ns_add_u32 s73, s73, s56")
    arrive(A, f"{P}_a3", f"s_add_u32 s13, s73, {SY_CNT}")
    A(f"s_mov_b32 s74, {WS_SYNC}")
    wait16(A, f"{P}_tw", SY_TBL, 14, base=74)
    A("s_and_b32 s74, s67, 3")
    r2_prefetch(A, 74)
    def cwait(lab, off):
        A(f"s_cmp_lg_u32 s9, 0\ns_cbranch_scc1 {lab}_ok")
        poll_until(A, lab, f"s_add_u32 s13, s73, {off}\nbuffer_load_dword v2, off, s[16:19], s13 sc1", "v_readfirstlane_b32 s13, v2\ns_lshl_b32 s14, 8, s68\ns_cmp_ge_u32 s13, s14", sleep=2)
        A("s_barrier")
    cwait(f"{P}_cw", SY_CNT)
    stamp(2)
    r1_task(A, P, 66, 67, 68, sc1=True)
    A("s_waitcnt vmcnt(0)\ns_barrier")
    arrive(A, f"{P}_a4", f"s_add_u32 s13, s73, {SY_X1C}")
    A(f"s_cmp_ge_u32 s67, 16\ns_cbranch_scc1 {P}_nor2")
    cwait(f"{P}_x1", SY_X1C)
    stamp(3)
    A(f"{P}_r2l:\ns_lshr_b32 s84, s67, 2\ns_lshl_b32 s13, s66, 2\ns_add_u32 s84, s84, s13\n{P}_r2go:")
    r2_task(A, 84, 74)
    A("s_waitcnt vmcnt(0)\ns_barrier")
    arrive(A, f"{P}_a5", f"s_lshr_b32 s13, s84, 2\ns_sub_u32 s14, s84, 42\ns_cmp_ge_u32 s84, 56\ns_cselect_b32 s13, s14, s13\ns_lshl_b32 s13, s13, 7\ns_add_u32 s13, s13, s56\ns_add_u32 s13, s13, {SY_FTC}")
    A(f"""s_lshl_b32 s13, 8, s68
s_add_u32 s67, s67, s13
s_cmp_lt_u32 s67, 16
s_cbranch_scc1 {P}_r2l
{P}_nor2:""")
    stamp(4)
    A(f"""s_cmp_ge_u32 s60, 192
s_cbranch_scc1 {P}_colp
s_cmp_ge_u32 s60, 128
s_cbranch_scc1 {P}_col
s_cmp_ge_u32 s60, 64
s_cbranch_scc1 {P}_inv
s_lshr_b32 s84, s60, 4
s_lshl_b32 s73, s84, 8
s_add_u32 s73, s73, s56
s_add_u32 s84, s84, 56
s_and_b32 s69, s60, 7
s_bfe_u32 s70, s60, 0x10003
s_lshl_b32 s72, s69, 10
s_add_u32 s72, s72, s56""")
    def tkw(B):
        B(f"s_cmp_lg_u32 s9, 0\ns_cbranch_scc1 {P}_tk_ok")
        poll_until(B, f"{P}_tk", f"v_lshlrev_b32 v14, 4, v1\ns_add_u32 s13, s72, {SY_KVF + 64}\ns_mov_b64 exec, 15\nbuffer_load_dwordx2 v[16:17], v14, s[16:19], s13 offen sc1\ns_mov_b64 exec, -1",
                   "v_min_u32 v15, v16, v17\nv_cmp_le_u32 vcc, 5, v15\ns_and_b32 s13, vcc_lo, 15\ns_cmp_eq_u32 s13, 15", sleep=8)
        B("s_barrier")
    def tpw(B):
        coarse(B, f"{P}_pc2", "s_sub_u32 s14, s84, 2", 15, opt)
        B(f"s_cmp_lg_u32 s9, 0\ns_cbranch_scc1 {P}_tp_ok")
        poll_until(B, f"{P}_tp", f"v_lshlrev_b32 v14, 4, v1\ns_add_u32 s13, s72, {SY_PROG}\ns_mov_b64 exec, 15\nbuffer_load_dword v15, v14, s[16:19], s13 offen sc1\ns_mov_b64 exec, -1",
                   "v_cmp_lt_u32 vcc, s84, v15\ns_and_b32 s13, vcc_lo, 15\ns_cmp_eq_u32 s13, 15", sleep=opt.get("tsleep", 2))
        B("s_barrier")
    tail_task(A, "tl", 84, 69, 70, tkw, tpw)
    A("s_waitcnt vmcnt(0)\ns_barrier")
    stamp(10)
    arrive(A, f"{P}_a8", f"s_add_u32 s13, s73, {SY_ROLE}")
    def twait(lab, off, n):
        A(f"s_cmp_lg_u32 s9, 0\ns_cbranch_scc1 {lab}_ok")
        poll_until(A, lab, f"s_add_u32 s13, s73, {off}\nbuffer_load_dword v2, off, s[16:19], s13 sc1", f"v_readfirstlane_b32 s13, v2\ns_cmp_ge_u32 s13, {n}", sleep=1)
        A("s_barrier")
    A(f"""s_cmp_ge_u32 s84, 60
s_cbranch_scc1 {P}_tend
s_sub_u32 s84, 119, s84
s_sub_u32 s73, s84, 56
s_lshl_b32 s73, s73, 8
s_add_u32 s73, s73, s56
s_branch tl_again
{P}_tend:
v_lshrrev_b32 v0, 4, v1
s_branch {P}_col
{P}_srv:
s_mov_b32 s74, {WS_SYNC}""")
    wait16(A, f"{P}_tw2", SY_TBL, 14, base=74)
    A(f"""s_lshl_b32 s84, s85, 1
s_lshr_b32 s13, s9, 1
s_add_u32 s84, s84, s13""")
    col_prefetch(A, 84)
    A(f"""s_and_b32 s74, s60, 3
s_sub_u32 s84, s60, 192
s_lshr_b32 s84, s84, 2
s_lshl_b32 s73, s84, 8
s_add_u32 s73, s73, s56
s_add_u32 s84, s84, 56
s_waitcnt vmcnt(20)""")
    r2_prefetch(A, 74)
    mini_r1_pre(A, 84, 74)
    coarse(A, f"{P}_pc3", "s_sub_u32 s14, s84, 1", 2, opt)
    twait(f"{P}_t1", SY_ROLE, 16)
    stamp(11)
    mini_r1(A, "tl", 84, 74)
    A("s_waitcnt vmcnt(0)\ns_barrier")
    arrive(A, f"{P}_a9", f"s_add_u32 s13, s73, {SY_ROLE + 2048}")
    twait(f"{P}_t2", SY_ROLE + 2048, 4)
    stamp(12)
    A(f"""s_movk_i32 s67, 100
s_mov_b32 s68, 2
s_lshr_b32 s73, s84, 2
s_lshl_b32 s73, s73, 8
s_add_u32 s73, s73, s56
s_branch {P}_r2go
{P}_inv:
s_sub_u32 s84, s60, 64""")
    inv_prefetch(A, 84)
    coarse(A, f"{P}_pc4", "s_mov_b32 s14, 64", 8, opt)
    A("s_lshl_b32 s14, s9, 13")
    wait16(A, f"{P}_gw", SY_GTC, 4, first_extra=1, sleep=opt.get("gsleep", 2), r=8, n=32, sh=3)
    stamp(6)
    inv_resid(A)
    inv_task(A, "inv", 84, 75, 82, opt.get("of", ""))
    if not rt: A(f"s_cmp_lg_u32 s75, 0\ns_cbranch_scc1 {P}_end")
    A("s_waitcnt vmcnt(0)\ns_barrier")
    stamp(7)
    arrive(A, f"{P}_a6", xnf(84, MB), atomic=False)
    A(f"""s_branch {P}_next
{P}_col:
s_cmp_ge_u32 s85, 129
s_cbranch_scc1 {P}_next
s_lshl_b32 s84, s85, 1
s_lshr_b32 s13, s9, 1
s_add_u32 s84, s84, s13""")
    col_prefetch(A, 84)
    A(f"{P}_colp:\ns_lshl_b32 s84, s85, 1\ns_lshr_b32 s13, s9, 1\ns_add_u32 s84, s84, s13")
    col_setup(A, 84)
    coarse(A, f"{P}_pc5", "s_mov_b32 s14, 64", 16, opt)
    wait16(A, f"{P}_fw", SY_FTC, 16, sleep=opt.get("fsleep", 2), r=16, n=22, sh=3, split=(14, 4))
    stamp(5)
    col_task(A, "col", 84)
    stamp(14)
    A(f"s_waitcnt vmcnt(0)")
    stamp(13)
    A("s_barrier")
    arrive(A, f"{P}_a7", f"s_and_b32 s13, s85, 31\ns_lshl_b32 s13, s13, 7\ns_add_u32 s13, s13, s56\ns_add_u32 s13, s13, {SY_GTC}")
    A(f"""{P}_next:
s_cmp_lg_u32 s75, 0
s_cbranch_scc1 {P}_done
s_mov_b32 s75, 1
s_add_u32 s56, s56, {MB}
s_branch {P}_layer
{P}_slowrole:""")
    role_poll(A, f"{P}_rp2", 2)
    A(f"""{P}_irr:
s_min_u32 s74, s14, 32
s_sub_u32 s74, 32, s74
s_movk_i32 s10, 192
s_barrier""")
    wg_atomic(A, f"{P}_g", 10, 60, DBG)
    A(f"""s_mov_b32 s61, 1
s_cmp_ge_u32 s60, s74
s_cbranch_scc0 {P}_adopt
s_sub_u32 s60, s60, s74
s_cmp_ge_u32 s60, 224
s_cbranch_scc1 {P}_done
s_branch {P}_bulk
{P}_adopt:
s_sub_u32 s12, 31, s60
{P}_member:""")
    if rt: A("s_memrealtime s[62:63]\ns_getreg_b32 s101, hwreg(HW_REG_HW_ID)\ns_waitcnt lgkmcnt(0)\ns_and_b32 s101, s101, 0xffff\ns_lshl_b32 s62, s12, 16\ns_or_b32 s101, s101, s62")
    dld = f"v_lshrrev_b32 v49, 2, v1\nbuffer_load_dword v48, v49, {DBG}, 0 offen sc1"
    def modefn(B, stage):
        if stage == 0:
            B(dld); return
        cond = "\n".join(["v_readlane_b32 s14, v48, 0", "s_cmp_ge_u32 s14, 32", "s_cselect_b32 s44, 1, 0"] + [f"v_readlane_b32 s13, v48, {32+i}\ns_add_u32 s14, s14, s13" for i in range(1, 16)]) + \
            "\nv_readlane_b32 s13, v48, 1\ns_cmp_ge_u32 s13, 32\ns_cselect_b32 s14, s14, 0\ns_cmp_ge_u32 s14, 256"
        B(f"{cond}\ns_cbranch_scc1 {P}_md_ok")
        poll_until(B, f"{P}_md", dld, cond, sleep=10)
        B("s_mov_b32 s13, s44")
    chain.chain_member(A, P, dict(opt.get("chain", {}), rt=rt, mega=not opt.get('solo')), modefn)
    A(f"{P}_done:\ns_waitcnt vmcnt(0)\n{P}_end:\ns_endpgm")
    co = opt.get("chain", {})
    if co.get("nocomm"):
        seen = False; L2 = []
        for x in A.L:
            if isinstance(x, str) and x.endswith("_top:"): seen = True
            if seen and isinstance(x, Ins):
                if x.mn == "s_cbranch_vccnz" and any(t in x.text for t in ("_rr", "_gr", "_redo")): continue
                if x.mn == "s_waitcnt" and "vmcnt" in x.text and "lgkm" not in x.text: continue
                if any(t in x.text for t in co.get("drop", [])): continue
            L2.append(x)
        A.L = L2
    A.fix_hazards(name=P, verbose=opt.get("verbose"))
    if co.get("trace"):
        a0, stride = co["trace"]
        L2 = []; cnt = None; k_ = 0
        for x in A.L:
            if isinstance(x, str) and x.endswith("_top:"): cnt = 0; k_ = 0
            if isinstance(x, str) and x.endswith("_cutend:"): cnt = None
            L2.append(x)
            if cnt is not None and isinstance(x, Ins):
                if cnt >= a0 and (cnt - a0) % stride == 0 and k_ < 14:
                    L2.append(Ins(f"s_memtime s[{60+2*k_}:{61+2*k_}]")); k_ += 1
                cnt += 1
        A.L = L2
    return A, dict(name="main_kernel" if opt.get("list") else "interleave_layers__memory_aug_recurrent_mem_tr__spectral_gfnet__prompt_kernel", plain=not opt.get("list"), grid=256, block=256, lds=163840, vgpr=512, accum=256)
```

```python
from common import *

LDS_MEM, LDS_K, LDS_V, LDS_F, LDS_O, LDS_OD, LDS_WQ = 0, 8192, 24576, 0, 4096, 6144, 32768
vKr = 16; sKm = 47
FS = 1088
vL16, vG512, vFw, vFr, vOw, vOr, vPst, vMst, vSamp, vIK, vIN = 1, 2, 3, 4, 5, 6, 7, 8, 9, 10, 11
vGat = 0
vAS = 12; vM1 = 16; vWq0 = 17; vWq1 = 18; vSmp = 19
vKQ = 20; vVP = 24; vPm = 28; vT0 = 30; vT1 = 31
vMEM = 32
vSx0, vSx1, vSm, vE, vPx, vL = 32, 36, 40, 44, 54, 58
vAk0, vAq0, vAk1, vAq1 = 64, 68, 72, 76
vF = 64; vOUT = 64
vAv0, vAv1 = 80, 84
vO0, vO1 = 96, 100
vThr = 9
KVSEG = 8192
PUBSEG = 4096
vSTG = 88
vVx = 88; vKx = 96
vOF = 32; vPK = 48; vRL = 56; vRA = 48; vRT = 52
vWo = 128
sW, sH, sStep, sKV, sPub, sPart, sInb, sMemN, sMemP, sGat, sPh, sT, sC, sDead = 9, 12, 24, 25, 26, 27, 28, 29, 30, 31, 32, 33, 34, 3
sMask = 36; sSync, sPartB, sMemB, sKVF = 56, 57, 58, 59
vKF = 9
SRD = "s[16:19]"; SRDW = "s[20:23]"
TMO = 200000
CPS = 8192 + 0
MSL = 13

def smf(A, d, am, b, idx): A(f"v_smfmac_f32_16x16x64_bf16 {v(d,4)}, {v(am,4)}, {b}, {v(idx)}")

def lane_consts(A, layer, opt):
    L = 0
    t0, t1, t2 = 20, 21, 22
    vGT = 30
    A(f"""v_lshlrev_b32 v{vL16}, 4, v0
v_lshrrev_b32 v{t0}, 4, v0
v_and_b32 v{t1}, 15, v0
v_lshlrev_b32 v{vG512}, 9, v{t0}
v_lshl_add_u32 v{vG512}, v{t1}, 4, v{vG512}
v_bfe_u32 v{t2}, v0, 3, 1
v_lshlrev_b32 v{vFw}, 8, v{t2}
v_lshl_add_u32 v{vFw}, v{t0}, 6, v{vFw}
v_and_b32 v{t2}, 7, v0
v_lshl_add_u32 v{vFw}, v{t2}, 3, v{vFw}
s_lshl_b32 s14, s9, 10
s_add_u32 s14, s14, {LDS_F}
v_add_u32 v{vFw}, s14, v{vFw}
v_and_b32 v{t2}, 3, v0
v_lshlrev_b32 v{vFr}, 6, v{t2}
v_bfe_u32 v{t2}, v0, 5, 1
v_lshl_add_u32 v{vFr}, v{t2}, 9, v{vFr}
v_bfe_u32 v{t2}, v0, 2, 3
v_lshl_add_u32 v{vFr}, v{t2}, 3, v{vFr}
v_add_u32 v{vFr}, {LDS_F}, v{vFr}
v_lshlrev_b32 v{vOw}, 7, v{t0}
v_bfe_u32 v{t2}, v0, 2, 2
v_lshl_add_u32 v{vOw}, v{t2}, 5, v{vOw}
v_and_b32 v{t2}, 1, v0
v_lshl_add_u32 v{vOw}, v{t2}, 4, v{vOw}
s_lshl_b32 s14, s9, 9
s_add_u32 s14, s14, {LDS_O}
v_add_u32 v{vOw}, s14, v{vOw}
v_add_u32 v{t2}, {LDS_OD - LDS_O + 8}, v{vOw}
s_lshl_b32 s15, s9, 9
v_subrev_u32 v{t2}, s15, v{t2}
v_and_b32 v23, 2, v0
v_cmp_ne_u32 vcc, 0, v23
v_cndmask_b32 v{vOw}, v{t2}, v{vOw}, vcc
v_mov_b32 v{t2}, 0x4444
v_mov_b32 v23, 0xeeee
v_cndmask_b32 v{vIK}, v{t2}, v23, vcc
v_and_b32 v24, 8, v0
v_cmp_ne_u32 vcc, 0, v24
v_cndmask_b32 v{vIN}, v{t2}, v23, vcc
v_lshlrev_b32 v{vOr}, 7, v{t0}
v_and_b32 v{t2}, 7, v0
v_lshl_add_u32 v{vOr}, v{t2}, 4, v{vOr}
v_add_u32 v{vOr}, {LDS_O}, v{vOr}
; vPst = (2w+sel)*8192 + (2*g1+(n>>3))*2048 + h*64 + (n&7)*8
v_lshrrev_b32 v{vPst}, 5, v0
s_lshl_b32 s13, s9, 1
v_add_u32 v{vPst}, s13, v{vPst}
v_lshlrev_b32 v{vPst}, 13, v{vPst}
v_bfe_u32 v{t2}, v0, 3, 2
v_lshl_add_u32 v{vPst}, v{t2}, 11, v{vPst}
v_and_b32 v{t2}, 7, v0
v_lshl_add_u32 v{vPst}, v{t2}, 3, v{vPst}
s_lshl_b32 s14, s12, 6
v_add_u32 v{vPst}, s14, v{vPst}
; vMst = h*256 + w*64 + gt*16 + cw*4 (lanes with n>=4 out of range)
v_lshlrev_b32 v{vMst}, 4, v{t0}
v_and_b32 v{t2}, 3, v0
v_lshl_add_u32 v{vMst}, v{t2}, 2, v{vMst}
s_lshl_b32 s14, s12, 6
s_lshl_b32 s15, s9, 11
s_add_u32 s14, s14, s15
v_add_u32 v{vMst}, s14, v{vMst}
v_bfe_u32 v24, v0, 2, 2
v_cmp_le_u32 vcc, {opt.get("nc", 1)}, v24
v_mul_u32_u24 v24, {opt.get("cps", 8192)}, v24
v_add_u32 v{vMst}, v{vMst}, v24
v_mov_b32 v24, 0x80000000
v_cndmask_b32 v{vMst}, v{vMst}, v24, vcc
s_mov_b32 s{sMask}, 0xcccccccc
s_mov_b32 s{sMask+1}, 0xcccccccc
s_mov_b32 s{sT}, {f32bits(40.0):#x}
s_lshl_b32 s14, s9, 11
s_add_u32 s14, s14, {LDS_MEM}
v_add_u32 v19, s14, v{vL16}
v_lshlrev_b32 v{vGT}, 8, v{t0}
v_bfe_u32 v{t2}, v0, 3, 1
v_lshl_add_u32 v{vGT}, v{t2}, 7, v{vGT}
v_bfe_u32 v{t2}, v0, 1, 1
v_lshl_add_u32 v{vGT}, v{t2}, 6, v{vGT}
v_bfe_u32 v{t2}, v0, 2, 1
v_lshl_add_u32 v{vGT}, v{t2}, 5, v{vGT}
v_and_b32 v{t2}, 1, v0
v_lshl_add_u32 v{vGT}, v{t2}, 4, v{vGT}
s_and_b32 s14, s12, {opt.get("nc", 1) - 1}
s_mul_i32 s14, s14, {opt.get("cps", 8192)}
v_add_u32 v{vGT}, s14, v{vGT}
v_lshrrev_b32 v{t2}, 2, v{t1}
v_and_b32 v23, 3, v{t1}
v_lshl_add_u32 v{t2}, v23, 2, v{t2}
v_mov_b32 v24, 0x3f80
v_mov_b32 v25, 0x3f800000
v_mov_b32 v26, 0x3f803f80""")
    for r in range(4):
        A(f"""v_mov_b32 v{vAS+r}, 0
v_cmp_eq_u32 vcc, {2*r}, v{t2}
v_cndmask_b32 v{vAS+r}, v{vAS+r}, v24, vcc
v_cmp_eq_u32 vcc, {2*r+1}, v{t2}
v_cndmask_b32 v{vAS+r}, v{vAS+r}, v25, vcc
v_cmp_le_u32 vcc, 8, v{t2}
v_cndmask_b32 v{vAS+r}, v{vAS+r}, v26, vcc""")
    A(f"""v_add_u32 v16, {LDS_K}, v{vG512}
s_lshl_b32 s13, s9, 14
s_add_u32 s13, s13, {LDS_WQ}
v_add_u32 v{vWq0}, s13, v{vL16}
v_add_u32 v{vWq1}, 0x10000, v{vWq0}
s_mov_b32 s{sC}, {f32bits(math.log2(math.e) / math.sqrt(128.0)):#x}""")

def weights_prologue(A, mid=None, opt={}, late=None):
    dA = [32, 33, 34, 35]; dO = [36, 37]; tA = [38, 39]; tO = 40; tc = [41, 42]
    x, y = 44, 45
    A(f"""; DMA source offsets for Wq/k/v : rr*8192 + ((cc ^ 2(rr&1) ^ 4j)*16)
v_lshrrev_b32 v{x}, 4, v0
v_and_b32 v{y}, 1, v{x}
v_lshlrev_b32 v{y}, 1, v{y}
v_and_b32 v46, 15, v0
v_xor_b32 v{y}, v{y}, v46
v_lshlrev_b32 v{x}, 13, v{x}""")
    for j in range(4):
        A(f"v_xor_b32 v46, {4*j}, v{y}\nv_lshl_add_u32 v{dA[j]}, v46, 4, v{x}")
    A(f"""; scalar bases
s_lshl_b32 s50, s12, 8
s_lshl_b32 s13, s9, 18
s_add_u32 s50, s50, s13        ; h*256 + w*32 rows*8192
s_lshl_b32 s51, s12, 17
s_lshl_b32 s13, s9, 13
s_add_u32 s51, s51, s13        ; h*131072 + w*8 rows*1024
s_lshl_b32 s52, s9, 13         ; w*8192 (lds)""")
    A(f"""; Wo DMA: (l ^ 4*((j&1) | ((w>>1)<<1)))*16
s_lshr_b32 s13, s9, 1
s_lshl_b32 s13, s13, 3
v_xor_b32 v{y}, s13, v0
v_lshlrev_b32 v{dO[0]}, 4, v{y}
v_xor_b32 v{y}, 4, v{y}
v_lshlrev_b32 v{dO[1]}, 4, v{y}""")
    mats = sum([[m_] * 4 for m_ in opt.get('word', [42, 44, 46])], []) + [40] * 4
    NT = ' nt' if opt.get('wnt', 1) else ''
    slot = lambda i: ((i + 4) % 5) * 32768
    def issue(i):
        if i % 4 == 0: set_srd(A, 20, mats[i], 4 * MB)
        c = i % 4
        tok = None
        for j in range(8):
            A(f"s_add_u32 m0, s52, {slot(i) + j*1024}")
            if mats[i] == 46:
                A(f"s_add_u32 s13, s51, {c*32768 + j*1024}")
                tok = A(f"buffer_load_dwordx4 v{dO[j&1]}, {SRDW}, s13 offen{NT} lds")
            else:
                A(f"s_add_u32 s13, s50, {(128*c + 4*j)*8192}")
                tok = A(f"buffer_load_dwordx4 v{dA[j&3]}, {SRDW}, s13 offen{NT} lds")
        return tok
    toks = {}
    for i in range(4): toks[i] = issue(i)
    if opt.get("help", 1):
        far = opt.get("far", 1)
        A(f"""s_and_b32 s13, s12, 3
s_sub_u32 s13, s13, {far + 1}
s_and_b32 s13, s13, 3
s_cmp_eq_u32 s13, 3
s_cbranch_scc1 {opt['_K']}_nohelp
s_lshl_b32 s13, s13, 2
s_add_u32 s13, s13, s9            ; 0..11
s_and_b32 s14, s13, 3
s_cmp_ge_u32 s14, {opt.get("hn", 3)}
s_cbranch_scc1 {opt['_K']}_nohelp
s_lshr_b32 s13, s13, 2
s_mul_i32 s13, s13, {opt.get("hn", 3)}
s_add_u32 s13, s13, s14
s_add_u32 s13, s13, {max(0, 8 - 3 * opt.get("hn", 3))}
s_lshl_b32 s13, s13, 19
s_and_b32 s14, s12, 28
s_or_b32 s14, s14, {far}
s_lshl_b32 s14, s14, 8
s_cmp_ge_u32 s13, {4*MB}
s_cselect_b32 s24, s44, s40
s_cselect_b32 s25, s45, s41
s_cselect_b32 s15, {2*MB}, 0
s_mov_b32 s26, {4*MB}
s_mov_b32 s27, 0x20000
s_sub_u32 s13, s13, s15
s_add_u32 s13, s13, s14
v_lshlrev_b32 v48, 13, v0
buffer_load_dword v49, v48, s[24:27], s13 offen
buffer_load_dword v50, v48, s[24:27], s13 offen offset:128
{opt['_K']}_nohelp:""")
        A.vm = A.vm[:-2]
    mid(A)
    A(f"""; tr addr for Wq/k/v: row0=16(gb>>1)+4(gb&1)+(r&1)+8(r>>1); f=2(r&1)+4((gb&1)+2(r>>1)); chunk=4w+2te+(c>>1)
v_bfe_u32 v{x}, v0, 5, 1
v_lshlrev_b32 v{x}, 4, v{x}
v_bfe_u32 v46, v0, 4, 1
v_lshl_add_u32 v{x}, v46, 2, v{x}
v_lshlrev_b32 v{y}, 2, v46
v_bfe_u32 v46, v0, 2, 1
v_add_u32 v{x}, v{x}, v46
v_lshl_add_u32 v{y}, v46, 1, v{y}
v_bfe_u32 v46, v0, 3, 1
v_lshl_add_u32 v{x}, v46, 3, v{x}
v_lshl_add_u32 v{y}, v46, 3, v{y}
v_lshlrev_b32 v{x}, 8, v{x}
v_and_b32 v46, 1, v0
v_lshl_add_u32 v{x}, v46, 3, v{x}
v_bfe_u32 v46, v0, 1, 1
s_lshl_b32 s13, s9, 2
v_add_u32 v46, s13, v46
v_xor_b32 v46, v46, v{y}
v_lshl_add_u32 v{tA[0]}, v46, 4, v{x}
v_xor_b32 v46, 2, v46
v_lshl_add_u32 v{tA[1]}, v46, 4, v{x}
v_bfe_u32 v{x}, v0, 4, 1
v_lshlrev_b32 v{y}, 3, v{x}
v_lshlrev_b32 v{x}, 4, v{x}
v_bfe_u32 v46, v0, 5, 1
v_lshl_add_u32 v{x}, v46, 2, v{x}
v_bfe_u32 v46, v0, 2, 1
v_add_u32 v{x}, v{x}, v46
v_lshl_add_u32 v{y}, v46, 2, v{y}
v_lshlrev_b32 v{x}, 10, v{x}
v_and_b32 v46, 1, v0
v_lshl_add_u32 v{x}, v46, 3, v{x}
v_bfe_u32 v46, v0, 1, 1
v_bfe_u32 v47, v0, 3, 1
v_lshl_add_u32 v46, v47, 1, v46
v_add_u32 v46, s13, v46
v_xor_b32 v46, v46, v{y}
v_lshl_add_u32 v{tO}, v46, 4, v{x}""")
    for i in range(16):
        A.wvm(toks[i])
        A("s_barrier")
        if i == 11 and late: late(A)
        if i + 4 < 16: toks[i + 4] = issue(i + 4)
        c = i % 4
        if i == 14:
            for f in range(8):
                for part in range(2):
                    A(f"ds_write_b128 v{vWq0}, {v(64 + f*8 + part*4, 4)} offset:{f*2048 + part*1024}")
            A("s_waitcnt lgkmcnt(0)")
        if mats[i] == 46:
            A(f"v_add_u32 v{tc[0]}, {slot(i)}, v{tO}")
            for p in range(4):
                for xx in range(4):
                    A(f"ds_read_b64_tr_b16 {v(vWo + (p*4 + c)*8 + 2*xx, 2)}, v{tc[0]} offset:{(8*(xx>>1) + 2*(xx&1))*1024 + p*256}")
        else:
            A(f"v_add_u32 v{tc[0]}, {slot(i)}, v{tA[0]}\nv_add_u32 v{tc[1]}, {slot(i)}, v{tA[1]}")
            for tt in range(2):
                for te in range(2):
                    t = 2 * c + tt
                    for xx in range(4):
                        if mats[i] == 42: dst = a((t*2 + te)*8 + 2*xx, 2)
                        elif mats[i] == 44: dst = a(128 + (t*2 + te)*8 + 2*xx, 2)
                        else: dst = v(64 + (((t & 3)*2 + te)*8) + 2*xx, 2)
                        A(f"ds_read_b64_tr_b16 {dst}, v{tc[te]} offset:{(64*tt + 32*(xx>>1) + 2*(xx&1))*256}")
        A("s_waitcnt lgkmcnt(0)")
    A("s_barrier")
    for f in range(8):
        for part in range(2):
            A(f"ds_write_b128 v{vWq1}, {v(64 + f*8 + part*4, 4)} offset:{f*2048 + part*1024}")

NS = 6
SLQ = [5, 0, 1, 2, 3, 4]
def slot_reg(sl): return vAv0 if sl == 5 else vSTG + 8 * sl
def wq_read(A, i, sl):
    t, te = i >> 1, i & 1
    base = vWq0 if t < 4 else vWq1
    off = ((t & 3) * 2 + te) * 2048
    r = slot_reg(sl)
    return [f"ds_read_b128 {v(r,4)}, v{base} offset:{off}", f"ds_read_b128 {v(r+4,4)}, v{base} offset:{off+1024}"]

def step_scalars(A, layer, nxt):
    part = f"s{sPartB}"; mem = f"s{sMemB}"
    return f"""s_and_b32 s13, s{sStep}, 1
s_lshl_b32 s13, s13, 18
s_add_u32 s{sPart}, s13, {part}
s_add_u32 s{sInb}, s{sPart}, s43
s_add_u32 s13, s{sStep}, 1
s_and_b32 s13, s13, 3
s_lshl_b32 s13, s13, {MSL}
s_add_u32 s{sMemN}, s13, {mem}
s_and_b32 s13, s{sStep}, 3
s_lshl_b32 s13, s13, {MSL}
s_add_u32 s{sMemP}, s13, {mem}
s_lshr_b32 s13, s{sStep}, 1
s_and_b32 s13, s13, 1
s_xor_b32 s{sPh}, s13, 1""".split("\n")

def delay(A, c):
    c = max(0, c) // 4
    while c > 0:
        n = min(c, 16); A(f"s_nop {n-1}"); c -= n

def kv_dma(A):
    for (ldsb, so) in [(LDS_K, 0), (LDS_V, WS_V - WS_K)]:
        A(f"s_add_u32 m0, s54, {ldsb}\ns_add_u32 s13, s{sKV}, {so}")
        A(f"buffer_load_dwordx4 v{vL16}, {SRD}, s13 offen sc1 lds\nbuffer_load_dwordx4 v{vL16}, {SRD}, s13 offen offset:1024 sc1 lds")

gS = [48, 56]
rS = [56, 80, 32]
vFA = 16; sF1, sF2, sFv = 44, 45, 46; sF1w, sF2w = 50, 51
vLw = 19
sGat2 = 42
CHKFIRST = [True]

def gload(r): return [f"buffer_load_dwordx4 {v(r,4)}, v{vGat}, {SRD}, s{sGat} offen sc1", f"buffer_load_dwordx4 {v(r+4,4)}, v{vGat}, {SRD}, s{sGat} offen offset:1024 sc1"]
def gwrite(r): return f"ds_write_b128 v{vLw}, {v(r,4)}\nds_write_b128 v{vLw}, {v(r+4,4)} offset:1024"
def gproc(A, r, ny, spec=2):
    A(f"s_waitcnt vmcnt({ny+1})")
    if spec >= 1: A(f"ds_write_b128 v{vLw}, {v(r,4)}")
    A(f"v_max3_u32 v{vT0}, v{r}, v{r+1}, v{r+2}\ns_waitcnt vmcnt({ny})")
    if spec >= 2: A(f"ds_write_b128 v{vLw}, {v(r+4,4)} offset:1024")
    A(f"""v_max3_u32 v{vT0}, v{vT0}, v{r+3}, v{r+4}
v_max3_u32 v{vT0}, v{vT0}, v{r+5}, v{r+6}
v_max_u32 v{vT0}, v{vT0}, v{r+7}
v_cmp_eq_u32 vcc, -1, v{vT0}""")
def g2dma(): return f"buffer_load_dwordx4 v{vGat}, {SRD}, s{sGat2} offen sc1 lds"
def rload(r): return [f"buffer_load_dwordx4 {v(r,4)}, v{vL16}, {SRD}, s{sInb} offen sc1", f"buffer_load_dwordx4 {v(r+4,4)}, v{vL16}, {SRD}, s{sInb} offen offset:1024 sc1"]
def rproc(A, r, n_younger, st=None):
    A(f"""s_waitcnt vmcnt({n_younger+1})
v_mfma_f32_16x16x32_bf16 {v(vRA,4)}, {v(vAS,4)}, {v(r,4)}, 0
v_bitop3_b32 v{vT0}, v{r}, v{r+2}, s{sPh} bitop3:0x7e
s_waitcnt vmcnt({n_younger})""")
    if st: st(7)
    A(f"""v_mfma_f32_16x16x32_bf16 {v(vRA,4)}, {v(vAS,4)}, {v(r+4,4)}, {v(vRA,4)}
v_bitop3_b32 v{vT1}, v{r+4}, v{r+6}, s{sPh} bitop3:0x7e
v_bitop3_b32 v{vT0}, v{vT0}, v{vT1}, 1 bitop3:0xa8
v_cmp_ne_u32 vcc, 0, v{vT0}""")

def kvf_check(P):
    return f"""s_add_u32 s13, s{sStep}, 1
s_min_u32 s13, s13, 63
s_lshr_b32 s38, s13, 2
s_add_u32 s38, s38, 2
s_lshr_b32 s13, s13, 1
s_min_u32 s13, s13, s38
s_lshl_b32 s13, 2, s13
s_sub_u32 s13, s13, 1
{P}_kc:
v_cmp_le_u32 vcc, 4, v{vKF}
s_and_b32 s38, vcc_lo, s13
s_cmp_lg_u32 s38, s13
s_cbranch_scc1 {P}_kw
{P}_kok:"""
def kvf_wait(A, P, tmo):
    A(f"{P}_kw:")
    tmo(15, f"{P}_kto")
    A(f"""s_sleep 8
v_lshrrev_b32 v{vKF}, 2, v{vL16}
buffer_load_dword v{vKF}, v{vKF}, {SRD}, s{sKVF} offen sc1
s_waitcnt vmcnt(0)
s_branch {P}_kc
{P}_kto:
s_mov_b32 s{sDead}, {TMO}
s_branch {P}_kok""")

def pf_setup(w, opt):
    return [f"s_add_u32 s{sKV}, s{sKV}, {KVSEG}", f"s_xor_b32 s{sKm}, s{sKm}, 0x6000", f"v_xor_b32 v{vKr}, 0x6000, v{vKr}", f"s_add_u32 m0, s39, {LDS_MEM + 4096}"]

def pubmix():
    q = "quad_perm:[0,1,0,1] row_mask:0xf bank_mask:0xf"
    return [f"s_mov_b64 vcc, s[{sMask}:{sMask+1}]", f"v_mov_b32_dpp v{vT0}, v{vVP} {q}", f"v_mov_b32_dpp v{vT1}, v{vVP+2} {q}",
            f"v_cndmask_b32 v{vKQ}, v{vKQ}, v{vVP}, vcc", f"v_cndmask_b32 v{vKQ+1}, v{vKQ+1}, v{vVP+2}, vcc",
            f"v_cndmask_b32 v{vKQ+2}, v{vKQ+2}, v{vT0}, vcc", f"v_cndmask_b32 v{vKQ+3}, v{vKQ+3}, v{vT1}, vcc"]

def gather_events(p, w, opt):
    n1 = opt.get("n1", 2) if w < 2 else 0
    dg = opt.get("dg", 128)
    t0 = opt.get("d2", [120, 60, 0, 0])[w]
    return [(t0 + k * dg, gS[k]) for k in range(n1)], n1

def body(A, P, layer, p, w, fast, last, opt):
    SC = "" if fast else " sc1"
    sfx = "_l" if last else ""
    stamp = opt.get("stamp")
    def st(k):
        if stamp and not last and k in opt.get("st", range(11)): A(f"s_memtime s[{60+2*k}:{61+2*k}]")
        if not last and opt.get("wv") == k: A("s_memtime s[62:63]\ns_waitcnt vmcnt(0)\ns_memtime s[64:65]\ns_waitcnt lgkmcnt(0)\ns_sub_u32 s13, s64, s62\ns_add_u32 s83, s83, s13\ns_max_u32 s84, s84, s13")
        if not last and opt.get("cut") == k: A(f"s_add_u32 s{sStep}, s{sStep}, 1\ns_branch {P}_cutend")
    A.reset_counts()
    ev, n1 = gather_events(p, w, opt)
    nxt = [0]
    tk = {}
    nab = 1 if opt.get("abs") else 0
    B1 = None
    if w < 2:
        spec = opt.get("spec", 0)
        gproc(A, gS[0], 2 * (n1 - 1) + nab, spec)
        A(f"s_cbranch_vccnz {P}_gr{sfx}")
        for x in gwrite(gS[0]).split("\n")[spec:]: A(x)
        A(f"{P}_gok{sfx}:\ns_waitcnt lgkmcnt(0)")
        st(9)
    A("s_barrier")
    st(0)
    mrd = lambda t: f"ds_read_b128 {v(vMEM+4*t,4)}, v{vL16} offset:{LDS_MEM + t*1024}"
    mt = {}
    for t in range(3): mt[t] = A(mrd(t))
    A(g2dma())
    A(f"{P}_entry2{sfx}:")
    A(f"s_mov_b32 m0, s{sKm}")
    seq = []
    for t in range(4): seq += [("k", 0, t), ("q", 0, t), ("k", 1, t), ("q", 1, t)]
    for te in range(2):
        for t in range(4, 8): seq += [("k", te, t), ("q", te, t)]
    N1 = 32
    V = [[] for _ in range(N1)]; S = [[] for _ in range(N1)]; X = [[] for _ in range(N1)]
    B2 = opt.get("b2", 12)
    quse = [(idx, 2 * t + te) for idx, (m, te, t) in enumerate(seq) if m == "q"]
    sl_seq = SLQ + [(n_ - 6) % 5 for n_ in range(6, 16)]
    slot = {f: sl_seq[n_] for n_, (idx, f) in enumerate(quse)}
    jobs = []
    lastuse = {}
    for n_, (idx, f) in enumerate(quse):
        if n_ >= NS:
            for x in wq_read(A, f, slot[f]): jobs.append((lastuse[slot[f]], idx, "wq", f, x))
        lastuse[slot[f]] = idx
    first = {}
    for idx, (m, te, t) in enumerate(seq): first.setdefault(t, idx)
    for t in range(3 if B1 is None else 2, 8): jobs.append(((0 if B1 is None else B1) if t < 4 else B2, first[t] - 3, "mem", t, mrd(t)))
    if not last:
        for n_, (c, u) in enumerate([(c, u) for c in range(2) for u in range(4)]):
            jobs.append((max(lastuse[1 + n_ // 2], opt.get("kx0", 24)), 100 + lastuse[1 + n_ // 2], "kx", n_, f"ds_read_b128 {v(vKx + (c*4+u)*4, 4)}, v{vKr} offset:{u*2048 + c*256}"))
        for n_ in range(2):
            jobs.append((max(lastuse[0], opt.get("kx0", 24)), 90, "kx", 8 + n_, f"ds_read_b128 {v(vVx+4*n_,4)}, v{vG512} offset:{LDS_V + w*2048 + 256*n_}"))
    D = [[] for _ in range(N1)]
    nod = set()
    for g_ in range(N1):
        cap = 2 if g_ in (B1, B2) else (0 if g_ in nod else 1)
        for _ in range(cap):
            av = [j for j in jobs if j[0] <= g_]
            if not av: break
            j = min(av, key=lambda j: j[1]); jobs.remove(j); D[g_].append(j[2:])
    assert all(j[2] == "kx" for j in jobs)
    X[B2].append(lambda: A(f"s_waitcnt vmcnt({nxt[0]})"))
    X[B2].append("s_barrier")
    for t in range(4, 8):
        r = vMEM + 4 * t
        V[first[t]].append(f"v_max_u32 v{vT0}, v{r}, v{r+1}" if t == 4 else f"v_max3_u32 v{vT0}, v{vT0}, v{r}, v{r+1}")
        V[first[t] + 1].append(f"v_max3_u32 v{vT0}, v{vT0}, v{r+2}, v{r+3}")
    V[24].append(f"v_cmp_eq_u32 vcc, -1, v{vT0}")
    f0 = [f"v_add_f32 v{vAk0}, v{vAk0}, v{vAk0+2}", f"v_add_f32 v{vAk0+1}, v{vAk0+1}, v{vAk0+3}",
          f"v_add_f32 v{vAq0}, v{vAq0}, v{vAq0+2}", f"v_add_f32 v{vAq0+1}, v{vAq0+1}, v{vAq0+3}",
          f"v_mul_f32 v{vAq0}, s{sC}, v{vAq0}", f"v_mul_f32 v{vAq0+1}, s{sC}, v{vAq0+1}",
          f"v_cvt_pk_bf16_f32 v{vKQ}, v{vAk0}, v{vAk0+1}"]
    for n_, x in enumerate(f0): V[25 + n_].append(x)
    for r in range(8): V[3 + r].append(f"v_mov_b32 v{vAv0+r}, 0")
    ext = []
    if not last and not opt.get("nokv"):
        ext.append(f"buffer_load_dwordx4 v{vL16}, {SRD}, s{sKV} offen sc1 lds")
        ext.append(f"buffer_load_dwordx4 v{vL16}, {SRD}, s{sKV} offen offset:1024 sc1 lds")
    if not opt.get("nopub"):
        ext.append(f"buffer_store_dwordx4 {v(vKQ,4)}, v{vL16}, {SRD}, s40 offen sc1")
        if w == 2: ext.append(f"v_mov_b32 v{vT1}, s41\ns_mov_b64 exec, 1\nbuffer_store_dword v{vT1}, off, {SRD}, s55 sc1\ns_mov_b64 exec, -1")
    if w == 3 and not last: ext.append(f"v_lshrrev_b32 v{vKF}, 2, v{vL16}\nbuffer_load_dword v{vKF}, v{vKF}, {SRD}, s{sKVF} offen sc1")
    pz = opt.get("pz", 2)
    pos_ = [pz + w + 4 * n_ for n_ in range(len(ext))]
    pos_ = [x if x < B2 - 1 else x + 4 for x in pos_]
    for n_, x in enumerate(ext): X[pos_[n_]].append(x)
    nxt[0] = sum(1 for x in pos_ if x < B2)
    S[26].append(f"s_add_u32 s{sGat}, s{sMemN}, s54"); S[28].append(f"s_add_u32 s{sGat2}, s{sMemN}, s52")
    wqtok = {}
    def need_wait(idx):
        m, te, t = seq[idx]
        need = [mt.get(t, "missing")]
        if m == "q" and (2 * t + te) in wqtok: need.append(wqtok[2 * t + te])
        if "missing" in need: return False
        ns = [A.lgk_n(x) for x in need if A.lgk_n(x) is not None]
        if ns: A(f"s_waitcnt lgkmcnt({min(ns)})")
        return True
    hoist = opt.get("hoist", 1)
    for idx, (m, te, t) in enumerate(seq):
        need_wait(idx)
        if idx == 0 and not opt.get("abs"): st(1)
        if m == "k": smf(A, [vAk0, vAk1][te], vMEM + 4 * t, a((t * 2 + te) * 8, 8), vIK)
        else: smf(A, [vAq0, vAq1][te], vMEM + 4 * t, v(slot_reg(slot[2 * t + te]), 8), vIK)
        for x in X[idx]: (x() if callable(x) else A(x))
        if hoist and idx + 1 < N1 and V[idx] and not (B2 <= idx < B2 + 5): need_wait(idx + 1)
        for x in S[idx]: A(x)
        for (kind, key, txt) in D[idx]:
            tok = A(txt)
            {"wq": wqtok, "mem": mt, "kx": {}}[kind][key] = tok
        for x in V[idx]: A(x)
    st(2)
    def sv(j): smf(A, [vAv0, vAv1][j & 1], vMEM + 4 * (j >> 1), a(128 + j * 8, 8), vIK)
    kxr = [j[4] for j in jobs]
    if last: kxr = []
    def rdk(n_):
        for _ in range(n_):
            if kxr: A(kxr.pop(0))
    fsplit = opt.get("fsplit", 1) and not last
    sv(0); rdk(1); A(f"v_cvt_pk_bf16_f32 v{vKQ+1}, v{vAq0}, v{vAq0+1}")
    sv(1)
    if fsplit: A(f"ds_write_b64 v{vFw}, {v(vKQ,2)}")
    else: rdk(1)
    A(f"v_add_f32 v{vAk1}, v{vAk1}, v{vAk1+2}")
    A(f"""v_add_f32 v{vAk1+1}, v{vAk1+1}, v{vAk1+3}
v_add_f32 v{vAq1}, v{vAq1}, v{vAq1+2}
v_add_f32 v{vAq1+1}, v{vAq1+1}, v{vAq1+3}
v_cvt_pk_bf16_f32 v{vKQ+2}, v{vAk1}, v{vAk1+1}
v_mul_f32 v{vAq1}, s{sC}, v{vAq1}
v_mul_f32 v{vAq1+1}, s{sC}, v{vAq1+1}
v_cvt_pk_bf16_f32 v{vKQ+3}, v{vAq1}, v{vAq1+1}""")
    vfold = [f"v_add_f32 v{vAv0}, v{vAv0}, v{vAv0+2}", f"v_add_f32 v{vAv0+1}, v{vAv0+1}, v{vAv0+3}",
             f"v_cvt_pk_bf16_f32 v{vVP}, v{vAv0}, v{vAv0+1}", f"v_add_f32 v{vAv1}, v{vAv1}, v{vAv1+2}",
             f"v_add_f32 v{vAv1+1}, v{vAv1+1}, v{vAv1+3}", f"v_cvt_pk_bf16_f32 v{vVP+2}, v{vAv1}, v{vAv1+1}"]
    if last:
        A(f"s_cbranch_vccnz {P}_redo_l")
        A(f"ds_write2_b64 v{vFw}, {v(vKQ,2)}, {v(vKQ+2,2)} offset1:64")
        for j in range(2, 9): sv(j)
        A("s_waitcnt lgkmcnt(0)\ns_barrier")
        for jj in range(2): A(f"ds_read_b64_tr_b16 {v(vKQ + 2*jj, 2)}, v{vFr} offset:{1024*w + 256*jj}")
        for j in range(9, 16): sv(j)
        for x in vfold: A(x)
        A("s_waitcnt lgkmcnt(0)")
        for x in pubmix(): A(x)
        A(f"buffer_store_dwordx4 {v(vKQ,4)}, v{vL16}, {SRD}, s{sPub} offen sc1")
        return
    if fsplit:
        fw = A(f"ds_write_b64 v{vFw}, {v(vKQ+2,2)} offset:512")
        sv(2)
    else:
        sv(2)
        fw = A(f"ds_write2_b64 v{vFw}, {v(vKQ,2)}, {v(vKQ+2,2)} offset1:64")
    NBF = opt.get("nbf", 7)
    for j in range(3, NBF):
        sv(j)
        rdk(1)
    rdk(10)
    A(f"s_cbranch_vccnz {P}_redo")
    A.wlg(fw); A("s_barrier")
    st(3)
    ft = []
    for tr in range(2): ft.append(A(f"ds_read_b64_tr_b16 {v(vF + 2*tr, 2)}, v{vFr} offset:{256*tr}"))
    dma = [f"buffer_load_dwordx4 v{vL16}, {SRD}, s13 offen sc1 lds",
           f"buffer_load_dwordx4 v{vL16}, {SRD}, s13 offen offset:1024 sc1 lds"]
    if opt.get("nokv"): dma = []
    NV1 = opt.get("nv1", 12)
    A(f"s_add_u32 m0, s54, {LDS_V}\ns_add_u32 s13, s{sKV}, {WS_V - WS_K}")
    dpos = {opt.get("dz", 0) + w + 4 * n_: x for n_, x in enumerate(dma)}
    gi = [0]
    def gap():
        if gi[0] in dpos: A(dpos.pop(gi[0]))
        gi[0] += 1
    for j in range(NBF, NV1):
        sv(j); gap()
        u = j - NBF + 1
        if u < 4:
            for jj in range(2):
                ft.append(A(f"ds_read_b64_tr_b16 {v(vF + 4*u + 2*jj, 2)}, v{vFr} offset:{1024*u + 256*jj}"))
    st(4)
    def mf(d, aa, bb, first_):
        A(f"v_mfma_f32_16x16x32_bf16 {v(d,4)}, {v(aa,4)}, {v(bb,4)}, " + ("0" if first_ else v(d, 4)))
    ex = lambda k_, src: f"v_exp_f32 v{vE+k_}, v{src}"
    cv = lambda d, x: f"v_cvt_pk_bf16_f32 v{d}, v{x}, v{x+1}"
    sq = [("x", 0, u) for u in range(4)] + [("x", 1, u) for u in range(4)]
    sq += [("v", j, 0) for j in range(NV1, 16)] + [("m", 0, u) for u in range(4)]
    G = {}
    fill = [ex(0, vSx0), ex(1, vSx0 + 1), ex(2, vSx0 + 2), ex(3, vSx0 + 3), ex(4, vSx1), ex(5, vSx1 + 1), ex(6, vSx1 + 2), ex(7, vSx1 + 3)]
    pos = 6
    while fill and pos < len(sq):
        G.setdefault(pos, []).append(fill.pop(0)); pos += 1
    tail = fill + [cv(vPx, vE), cv(vPx + 1, vE + 2), cv(vPx + 2, vE + 4), cv(vPx + 3, vE + 6)]
    while tail and pos < len(sq):
        G.setdefault(pos, []).extend(tail[:2]); tail = tail[2:]; pos += 1
    A.wlg(ft[-1])
    for r in range(4): G.setdefault(r, []).append(f"v_mov_b32 v{vKQ+r}, v{vF+4*w+r}")
    for n_, (kind, tile, u) in enumerate(sq):
        if kind == "x": mf([vSx0, vSx1][tile], vKx + (tile * 4 + u) * 4, vF + 4 * u, u == 0)
        elif kind == "m": mf(vSm, vF + 4 * u, vF + 4 * u, u == 0)
        else: sv(tile)
        gap()
        for x in G.get(n_, []): A(x)
    for k_ in sorted(dpos): A(dpos[k_])
    for x in tail: A(x)
    m16 = lambda d, aa, bb: A(f"v_mfma_f32_16x16x16_bf16 {v(d,4)}, {v(aa,2)}, {v(bb,2)}, {v(d,4)}")
    A(vfold[0]); A(vfold[1])
    mf(vL, vAS, vPx, True); A(vfold[2]); A(vfold[3])
    mf(vO0, vVx, vPx, True); A(ex(8, vSm))
    mf(vO1, vVx + 4, vPx, True); A(ex(9, vSm + 1))
    A(vfold[4]); A(cv(vPm, vE + 8)); A(vfold[5])
    A(f"v_max3_f32 v{vT1}, |v{vSx0}|, |v{vSx0+1}|, |v{vSx0+2}|")
    m16(vL, vAS, vPm)
    A(f"v_max3_f32 v{vT1}, v{vT1}, |v{vSx0+3}|, |v{vSx1}|\nv_max3_f32 v{vT1}, v{vT1}, |v{vSx1+1}|, |v{vSx1+2}|")
    m16(vO0, vVP, vPm)
    A(f"v_max3_f32 v{vT1}, v{vT1}, |v{vSx1+3}|, |v{vSm}|\nv_max_f32 v{vT1}, v{vT1}, |v{vSm+1}|")
    m16(vO1, vVP + 2, vPm)
    A(f"v_rcp_f32 v{vT0}, v{vL+2}")
    A(f"v_cmp_lt_f32 vcc, s{sT}, v{vT1}")
    if opt.get("force_slow"): A(f"v_cmp_lt_f32 vcc, -1.0, v{vT1}")
    for r in range(4): A(f"v_mul_f32 v{vO0+r}, v{vT0}, v{vO0+r}")
    A(cv(vE, vO0)); A(cv(vE + 1, vO0 + 2))
    if opt.get("ow2", 1): A(f"ds_write_b64 v{vOw}, {v(vE,2)}")
    for r in range(2): A(f"v_pk_mul_f32 {v(vO1+2*r,2)}, {v(vO1+2*r,2)}, {v(vT0,2)} op_sel_hi:[1,0]")
    A(cv(vE + 2, vO1)); A(cv(vE + 3, vO1 + 2))
    ow = A(f"ds_write_b64 v{vOw}, {v(vE+2,2)} offset:8") if opt.get("ow2", 1) else A(f"ds_write_b128 v{vOw}, {v(vE,4)}")
    A(f"s_and_b64 vcc, vcc, s[{sMask}:{sMask+1}]\ns_cbranch_vccnz {P}_slow")
    A(f"{P}_norm:")
    zg = opt.get("zgap", 0)
    for r in range(0, 4 if zg else 8, 2): A(f"v_mov_b64 {v(vOUT+r,2)}, 0")
    A.wlg(ow); A("s_barrier")
    st(5)
    ot = [A(f"ds_read_b128 {v(vOF+4*kk,4)}, v{vOr} offset:{kk*512}") for kk in range(4)]
    A(f"s_add_u32 s13, s{sPart}, 0")
    for r in (range(4, 10, 2) if zg else range(8, 16, 2)): A(f"v_mov_b64 {v(vOUT+r,2)}, 0")
    Z = {0: 10, 1: 11, 2: 12, 3: 13, 4: 14, 6: 15} if zg else {}
    pre = []
    for n_ in range(1, 6): pre += wq_read(A, quse[n_][1], SLQ[n_])
    def epi(pp):
        return [f"v_cvt_pk_bf16_f32 v{vPK+2*pp}, v{vOUT+4*pp}, v{vOUT+4*pp+1}",
                f"v_cvt_pk_bf16_f32 v{vPK+2*pp+1}, v{vOUT+4*pp+2}, v{vOUT+4*pp+3}",
                f"v_bfi_b32 v{vPK+2*pp}, 1, s{sPh}, v{vPK+2*pp}",
                f"buffer_store_dwordx2 {v(vPK+2*pp,2)}, v{vPst}, {SRD}, s13 offen{SC}"]
    if opt.get("e1fast", 1):
        e1 = 6; E = {5: epi(0), 9: epi(1), 13: epi(2)[0:1], 14: epi(2)[1:2], 15: epi(2)[2:3]}
    else:
        e1 = 9; E = {5: epi(0), 9: epi(1)[0:1], 10: epi(1)[1:2], 11: epi(1)[2:3], 12: epi(1)[3:4], 13: epi(2)[0:1], 14: epi(2)[1:2], 15: epi(2)[2:3]}
    rsch = opt.get("rs", [[16, 200], [120, 250], [260, 390], [320, 450]])[w]
    rtk = []
    def rissue():
        if opt.get("abs") and not rtk: A("s_memtime s[68:69]")
        for x in rload(rS[len(rtk)]): t_ = A(x)
        rtk.append(t_)
    for n_ in range(16):
        pp, kk = n_ >> 2, n_ & 3
        if n_ == 0: A.wlg(ot[1])
        if n_ == 2: A.wlg(ot[3])
        smf(A, vOUT + 4 * pp, vOF + 4 * kk, v(vWo + n_ * 8, 8), vIN)
        if n_ == 8: A(f"s_add_u32 s13, s{sPart}, {65536}")
        if n_ == 13: A(f"s_add_u32 s13, s{sPart}, {2*65536}")
        if n_ in rsch: rissue()
        elif pre and n_ >= 3 and n_ not in (5, e1 + 3): A(pre.pop(0))
        if n_ in Z: A(f"v_mov_b32 v{vOUT + Z[n_]}, 0")
        for x in E.get(n_, []): A(x)
        if n_ == 5: st(10)
    hold2 = opt.get("hold2", 0)
    if not hold2:
        A(epi(2)[3])
        A(f"s_add_u32 s13, s{sPart}, {3*65536}")
    while pre: A(pre.pop(0))
    A(f"s_mov_b32 s40, s{sPub}\ns_add_u32 s{sPub}, s{sPub}, {PUBSEG}\ns_mov_b32 s14, 0\ns_mov_b32 s15, 0")
    for x in epi(3)[:3]: A(x)
    if 16 in rsch: rissue()
    elif hold2: delay(A, opt.get("h2d", 16))
    if hold2:
        A(epi(2)[3])
        A(f"s_add_u32 s13, s{sPart}, {3*65536}")
    A(epi(3)[3])
    st(6)
    idle = [f"v_mov_b64 {v(vAk0+r,2)}, 0" for r in range(0, 16, 2)]
    idle2 = pubmix()
    def wait_fill(d):
        while idle and d >= 4: A(idle.pop(0)); d -= 4
        delay(A, d)
    cur = 0
    for tm in [x - 100 for x in rsch if x >= 100]:
        wait_fill(tm - cur); cur = max(cur, tm) + 12
        rissue()
    while idle: A(idle.pop(0))
    opt["_rfirst"] = [A.vm_n(rtk[k_]) + 2 * k_ for k_ in range(1, len(rtk))]
    rproc(A, rS[0], A.vm_n(rtk[0]), st)
    A(f"""s_cbranch_vccnz {P}_rr
{P}_rok:
{"s_memtime s[66:67]" if opt.get("abs") else "s_nop 0"}
v_add_f32_dpp v{vRT}, v{vRA}, v{vRA} row_ror:4 row_mask:0xf bank_mask:0xf ;NOHAZ
v_add_f32_dpp v{vRT+1}, v{vRA+1}, v{vRA+1} row_ror:4 row_mask:0xf bank_mask:0xf ;NOHAZ
v_add_f32_dpp v{vRT+2}, v{vRT}, v{vRT} row_ror:8 row_mask:0xf bank_mask:0xf
v_add_f32_dpp v{vRT+3}, v{vRT+1}, v{vRT+1} row_ror:8 row_mask:0xf bank_mask:0xf
v_cvt_pk_bf16_f32 v{vT0}, v{vRT+2}, v{vRT+3}
buffer_store_dword v{vT0}, v{vMst}, {SRD}, s{sMemN} offen{SC}""")
    st(8)
    A(f"v_mov_b32 v{vT1}, -1\nbuffer_store_dword v{vT1}, v{vMst}, {SRD}, s{sMemP} offen{SC}")
    if opt.get("dumpmem"):
        A(f"s_lshl_b32 s13, s{sStep}, 16\ns_add_u32 s13, s13, {WS_OP + 65536}\nbuffer_store_dword v{vT0}, v{vMst}, {SRD}, s13 offen")
    idle += [f"s_mov_b32 s41, s{sStep}", f"s_add_u32 s{sStep}, s{sStep}, 1"] + idle2
    post = step_scalars(A, layer, 0) + pf_setup(w, opt)
    if stamp:
        idle += ["s_waitcnt lgkmcnt(0)"]
        for k_ in list(range(1, 9)) + [10]:
            idle += [f"s_sub_u32 s13, s{60+2*k_}, s60", f"s_add_u32 s{82+k_}, s{82+k_}, s13"]
        idle += ["s_sub_u32 s13, s60, s78", "s_add_u32 s91, s91, s13"]
    absd = []
    if opt.get("abs"):
        absd = ["s_waitcnt lgkmcnt(0)", f"s_lshl_b32 s13, s41, 13", f"s_lshl_b32 s38, s12, 8", "s_add_u32 s13, s13, s38", f"s_add_u32 s13, s13, {WS_OP + 8*MB + w*64}"]
        for k_ in range(11):
            absd += [f"v_writelane_b32 v{vT1}, s{60+2*k_}, {k_}"]
        absd += [f"v_lshrrev_b32 v{vT0}, 2, v{vL16}", f"s_mov_b64 exec, 0xffff", f"buffer_store_dword v{vT1}, v{vT0}, {SRD}, s13 offen", "s_mov_b64 exec, -1"]
    idle += post
    cur = 0
    done5 = False
    for n_, (tm, r) in enumerate(ev):
        if n_ == 1:
            A("s_waitcnt vmcnt(4)")
            for x in wq_read(A, 0, 5): A(x)
            cur += 12; done5 = True
        wait_fill(tm - cur); cur = max(cur, tm) + 12
        if r == gS[0]: st(1) if opt.get("abs") else None
        for x in gload(r): A(x)
    while idle: A(idle.pop(0))
    if w == 3: A(kvf_check(P))
    if not done5:
        A(f"s_waitcnt vmcnt({2 + 2 * n1})")
        for x in wq_read(A, 0, 5): A(x)
    for x in absd: A(x)

def variant(A, P, layer, p, w, fast, opt):
    A(f".p2align 6\n{P}_top:")
    body(A, P, layer, p, w, fast, False, opt)
    A(f"""{P}_cutend:
{"s_waitcnt lgkmcnt(0)" if "cut" in opt else ""}
s_cmp_lt_u32 s{sStep}, 63
s_cbranch_scc1 {P}_top""")
    body(A, P, layer, p, w, fast, True, opt)
    A(f"""s_waitcnt vmcnt(0)
s_barrier
v_mov_b32 v{vT1}, 64
s_branch {opt['_K']}_fin""")
    for sfx in ["", "_l"]:
        A(f"{P}_entry{sfx}:")
        for t in range(3): A(f"ds_read_b128 {v(vMEM+4*t,4)}, v{vL16} offset:{LDS_MEM + t*1024}")
        A(f"s_branch {P}_entry2{sfx}")
    cn = lambda r: A(f"s_add_u32 s{r}, s{r}, 1") if opt.get("cnt") else None
    def tmo(cnt, ok):
        A(f"""s_add_u32 s{cnt}, s{cnt}, s{sDead}
s_cmp_ge_u32 s{cnt}, {TMO}
s_cbranch_scc1 {ok}""")
    def retry(lab, sets, load, proc, okl, cnt, cidx, first):
        n = len(sets)
        A(f"{lab}:")
        for k_ in range(n - 1):
            cn(cidx)
            for x in load(sets[k_]): A(x)
            proc(A, sets[k_ + 1], first[k_])
            A(f"s_cbranch_vccz {okl}")
        sets = sets[n - 1:] + sets[:n - 1]
        A(f"{lab}_lp:")
        for k_ in range(n):
            cn(cidx)
            for x in load(sets[k_]): A(x)
            proc(A, sets[(k_ + 1) % n], len(load(0)) * (n - 1))
            A(f"s_cbranch_vccz {okl}")
        tmo(cnt, f"{lab}_to"); A(f"s_branch {lab}_lp\n{lab}_to:\ns_mov_b32 s{sDead}, {TMO}\ns_branch {okl}")
    retry(f"{P}_rr", rS[:len(opt["_rfirst"]) + 1], rload, rproc, f"{P}_rok", 14, 94, opt["_rfirst"])
    for sfx in ["", "_l"]:
        ev, n1 = gather_events(p, w, opt)
        if w < 2: retry(f"{P}_gr{sfx}", gS[:n1], gload, gproc, f"{P}_gok{sfx}", 15, 95, [2 * (n1 - 1)] * (n1 - 1))
        A(f"{P}_redo{sfx}:")
        cn(89)
        A(f"""s_add_u32 s15, s15, s{sDead}
s_cmp_ge_u32 s15, {TMO}
s_cbranch_scc1 {opt['_K']}_end
s_waitcnt vmcnt(0) lgkmcnt(0)
s_barrier
s_add_u32 s40, s53, {WS_FLAG + 65536}
s_add_u32 s{sGat2}, s{sMemP}, s39
s_add_u32 s{sGat}, s{sMemP}, s39
s_add_u32 s{sGat2}, s{sGat2}, 4096
s_add_u32 m0, s39, {LDS_MEM}
s_nop 0
buffer_load_dwordx4 v{vGat}, {SRD}, s{sGat} offen sc1 lds
s_add_u32 m0, s39, {LDS_MEM + 4096}""")
        for r in range(0, 16, 2): A(f"v_mov_b64 {v(vAk0+r,2)}, 0")
        A(g2dma())
        for i in range(6):
            for x in wq_read(A, i, SLQ[i]): A(x)
        A(f"s_waitcnt vmcnt(0) lgkmcnt(0)\ns_barrier\ns_branch {P}_entry{sfx}")
    if w == 3: kvf_wait(A, P, tmo)
    A(f"{P}_slow:\ns_waitcnt lgkmcnt(0)\ns_nop 7")
    A(f"""v_max3_f32 v{vT0}, v{vSx0}, v{vSx0+1}, v{vSx0+2}
v_max3_f32 v{vT1}, v{vSx0+3}, v{vSx1}, v{vSx1+1}
v_max3_f32 v{vT0}, v{vT0}, v{vSx1+2}, v{vSx1+3}
v_max3_f32 v{vT1}, v{vT1}, v{vSm}, v{vSm+1}
v_max_f32 v{vT0}, v{vT0}, v{vT1}
v_mov_b32 v{vT1}, v{vT0}
v_permlane32_swap_b32 v{vT0}, v{vT1}
v_max_f32 v{vT0}, v{vT0}, v{vT1}
v_mov_b32 v{vT1}, v{vT0}
v_permlane16_swap_b32 v{vT0}, v{vT1}
v_max_f32 v{vT0}, v{vT0}, v{vT1}""")
    srcs = [vSx0 + i for i in range(4)] + [vSx1 + i for i in range(4)] + [vSm, vSm + 1]
    for k_, x in enumerate(srcs): A(f"v_sub_f32 v{vE+k_}, v{x}, v{vT0}")
    for k_ in range(10): A(f"v_exp_f32 v{vE+k_}, v{vE+k_}")
    for k_ in range(4): A(f"v_cvt_pk_bf16_f32 v{vPx+k_}, v{vE+2*k_}, v{vE+2*k_+1}")
    A(f"v_cvt_pk_bf16_f32 v{vPm}, v{vE+8}, v{vE+9}")
    for (d, aa) in [(vO0, vVx), (vO1, vVx + 4), (vL, vAS)]:
        A(f"v_mfma_f32_16x16x32_bf16 {v(d,4)}, {v(aa,4)}, {v(vPx,4)}, 0")
    for (d, aa) in [(vL, vAS), (vO0, vVP), (vO1, vVP + 2)]:
        A(f"v_mfma_f32_16x16x16_bf16 {v(d,4)}, {v(aa,2)}, {v(vPm,2)}, {v(d,4)}")
    A("s_nop 7")
    A(f"v_rcp_f32 v{vT0}, v{vL+2}")
    for r in range(8): A(f"v_mul_f32 v{vO0+r}, v{vT0}, v{vO0+r}")
    for r in range(4): A(f"v_cvt_pk_bf16_f32 v{vE+r}, v{vO0+2*r}, v{vO0+2*r+1}")
    A(f"ds_write_b128 v{vOw}, {v(vE,4)}\ns_waitcnt lgkmcnt(0)\ns_branch {P}_norm")

def chain_member(A, P, opt, modefn, initfn=None):
    layer = 0
    opt = dict(opt); opt["_K"] = P
    A(f"s_mov_b32 s{sDead}, 1")
    weights_prologue(A, lambda B: lane_consts(B, layer, opt), opt, lambda B: modefn(B, 0))
    if opt.get("rt"): A("s_memrealtime s[98:99]")
    modefn(A, 1)
    A(f"s_mov_b32 s44, s13\nv_mov_b32 v0, v30\n{P}_restart:")
    A(f"""v_add_u32 v{vKr}, {LDS_K}, v{vG512}
s_lshl_b32 s54, s9, 11
s_lshl_b32 s53, s12, 13
s_add_u32 s53, s53, s54
s_lshl_b32 s39, s9, 10
s_lshl_b32 s{sKV}, s12, 19
s_add_u32 s{sKV}, s{sKV}, s54
s_add_u32 s{sKV}, s{sKV}, {WS_K}
s_lshl_b32 s{sPub}, s12, 18
s_add_u32 s{sPub}, s{sPub}, s39
s_add_u32 s{sPub}, s{sPub}, {WS_KVM}
s_add_u32 s40, s53, {WS_FLAG + 65536}
v_mov_b32 v32, 0
v_readfirstlane_b32 s{sStep}, v32
s_mov_b32 s41, 0
s_lshl_b32 s43, s9, 16
s_lshl_b32 s13, s12, 11
s_add_u32 s43, s43, s13
s_add_u32 s{sPartB}, s{sSync}, {SY_PART}
s_add_u32 s{sMemB}, s{sSync}, {SY_MEM}
s_lshl_b32 s13, s12, 8
s_add_u32 s13, s13, s{sSync}
s_add_u32 s55, s13, {SY_PROG}
s_add_u32 s{sKVF}, s13, {SY_KVF}""")
    for x in step_scalars(A, layer, 0): A(x)
    set_srd(A, 20, 48, 8192)
    A(f"""v_lshrrev_b32 v34, 4, v{vL16}
v_lshrrev_b32 v32, 2, v34
v_and_b32 v32, 3, v32
v_lshlrev_b32 v32, 1, v32
v_and_b32 v33, 1, v34
v_add_u32 v32, v32, v33
v_lshlrev_b32 v32, 10, v32
v_lshrrev_b32 v33, 4, v34
v_lshl_add_u32 v32, v33, 5, v32
v_bfe_u32 v33, v34, 1, 1
v_lshl_add_u32 v32, v33, 4, v32
s_lshl_b32 s13, s9, 7
s_add_u32 m0, s39, {LDS_MEM}
s_nop 0
buffer_load_dwordx4 v32, {SRDW}, s13 offen lds
s_add_u32 m0, s39, {LDS_MEM + 4096}
s_add_u32 s13, s13, 512
buffer_load_dwordx4 v32, {SRDW}, s13 offen lds
s_waitcnt lgkmcnt(0)""")
    for r in range(0, 16, 2): A(f"v_mov_b64 {v(vAk0+r,2)}, 0")
    A(f"v_mov_b32 v{vVP}, 0\nv_mov_b32 v{vVP+2}, 0\nv_mov_b32 v{vVP+1}, 0\nv_mov_b32 v{vVP+3}, 0\nv_mov_b32 v{vPm+1}, 0")
    for i in range(6):
        for x in wq_read(A, i, SLQ[i]): A(x)
    A(f"""s_mov_b32 s15, 0
s_add_u32 s{sKm}, s54, {LDS_K + 8192}
s_add_u32 s52, s39, 4096
s_waitcnt vmcnt(0) lgkmcnt(0)
s_cmp_lg_u32 s9, 0
s_cbranch_scc1 {P}_k1
{P}_k0:
buffer_load_dword v33, off, {SRD}, s{sKVF} sc1
s_waitcnt vmcnt(0)
v_readfirstlane_b32 s13, v33
s_cmp_ge_u32 s13, 4
s_cbranch_scc1 {P}_k1
s_add_u32 s15, s15, 1
s_cmp_lt_u32 s15, {4*TMO}
s_cbranch_scc1 {P}_k0
{P}_k1:
s_barrier""")
    kv_dma(A)
    A(f"s_add_u32 s{sKV}, s{sKV}, {KVSEG}\ns_mov_b32 s14, 0\ns_mov_b32 s15, 0")
    if opt.get("cnt"):
        for r in list(range(60, 90)) + [94, 95]: A(f"s_mov_b32 s{r}, 0")
        A("s_memtime s[78:79]")
    if opt.get("rt"): A(f"s_memrealtime s[86:87]")
    if opt.get("cnt") or opt.get("rt"): A("s_waitcnt lgkmcnt(0)")
    A(f"s_cmp_eq_u32 s44, 0\ns_cbranch_scc1 {P}_fb")
    for (tg, c) in [("", "f"), (f"{P}_fb:", "s")]:
        if tg: A(tg)
        for q in range(3): A(f"s_cmp_eq_u32 s9, {q}\ns_cbranch_scc1 {P}_{c}{q}_entry")
        A(f"s_branch {P}_{c}3_entry")
    for q in range(4): variant(A, f"{P}_f{q}", layer, 0, q, True, opt)
    o2 = dict(opt); o2.update(d2=[0,0,0,0])
    for q in range(4): variant(A, f"{P}_s{q}", layer, 0, q, False, o2)
    A(f"""{P}_fin:
s_cmp_lg_u32 s9, 2
s_cbranch_scc1 {P}_fin2
s_mov_b64 exec, 1
buffer_store_dword v{vT1}, off, {SRD}, s55 sc1
s_mov_b64 exec, -1
{P}_fin2:""")
    if opt.get("trace"):
        A(f"s_lshl_b32 s13, s12, 2\ns_add_u32 s13, s13, s9\ns_lshl_b32 s13, s13, 6\ns_add_u32 s13, s13, {WS_FLAG + 16384}")
        for k_ in range(14):
            A(f"v_mov_b32 v32, s{60+2*k_}\nbuffer_store_dword v32, off, {SRD}, s13 offset:{4*k_}\ns_nop 1")
    if opt.get("cnt"):
        A(f"""s_memtime s[60:61]
s_waitcnt lgkmcnt(0)
s_sub_u32 s82, s60, s78
s_sub_u32 s83, s78, s100
s_lshl_b32 s13, s12, 2
s_add_u32 s13, s13, s9
s_lshl_b32 s13, s13, 6
s_add_u32 s13, s13, {WS_FLAG}""")
        for k_ in range(16):
            A(f"v_mov_b32 v32, s{82+k_}\nbuffer_store_dword v32, off, {SRD}, s13 offset:{4*k_}\ns_nop 1")
    if opt.get("rt"):
        A(f"s_memrealtime s[88:89]\ns_waitcnt lgkmcnt(0)\ns_cmp_lg_u32 s{sSync}, {WS_SYNC}\ns_cbranch_scc1 {P}_rt2\ns_mov_b32 s90, s86\ns_mov_b32 s91, s88\n{P}_rt2:\ns_mov_b32 s84, s86\ns_mov_b32 s85, s88")
    if opt.get("mega"):
        A(f"s_cmp_lg_u32 s{sSync}, {WS_SYNC}\ns_cbranch_scc1 {P}_done\ns_add_u32 s{sSync}, s{sSync}, {MB}\ns_waitcnt vmcnt(0)\ns_barrier\ns_branch {P}_restart")
```

```python
from common import *

LDS_MEM, LDS_K, LDS_V, LDS_F, LDS_O, LDS_OD, LDS_WQ = 0, 8192, 24576, 0, 4096, 6144, 32768
vKr = 16; sKm = 47
FS = 1088
vL16, vG512, vFw, vFr, vOw, vOr, vPst, vMst, vSamp, vIK, vIN = 1, 2, 3, 4, 5, 6, 7, 8, 9, 10, 11
vGat = 0
vAS = 12; vM1 = 16; vWq0 = 17; vWq1 = 18; vSmp = 19
vKQ = 20; vVP = 24; vPm = 28; vT0 = 30; vT1 = 31
vMEM = 32
vSx0, vSx1, vSm, vE, vPx, vL = 32, 36, 40, 44, 54, 58
vAk0, vAq0, vAk1, vAq1 = 64, 68, 72, 76
vF = 64; vOUT = 64
vAv0, vAv1 = 80, 84
vO0, vO1 = 96, 100
vThr = 9
KVSEG = 8192
PUBSEG = 4096
vSTG = 88
vVx = 88; vKx = 96
vOF = 32; vPK = 48; vRL = 56; vRA = 48; vRT = 52
vWo = 128
sW, sH, sStep, sKV, sPub, sPart, sInb, sMemN, sMemP, sGat, sPh, sT, sC, sDead = 9, 12, 24, 25, 26, 27, 28, 29, 30, 31, 32, 33, 34, 3
sMask = 36; sSync, sPartB, sMemB, sKVF = 56, 57, 58, 59
vKF = 9
SRD = "s[16:19]"; SRDW = "s[20:23]"
TMO = 200000
CPS = 8192 + 0
MSL = 13

def smf(A, d, am, b, idx): A(f"v_smfmac_f32_16x16x64_bf16 {v(d,4)}, {v(am,4)}, {b}, {v(idx)}")

def lane_consts(A, layer, opt):
    L = 0
    t0, t1, t2 = 20, 21, 22
    vGT = 30
    A(f"""v_lshlrev_b32 v{vL16}, 4, v0
v_lshrrev_b32 v{t0}, 4, v0
v_and_b32 v{t1}, 15, v0
v_lshlrev_b32 v{vG512}, 9, v{t0}
v_lshl_add_u32 v{vG512}, v{t1}, 4, v{vG512}
v_bfe_u32 v{t2}, v0, 3, 1
v_lshlrev_b32 v{vFw}, 8, v{t2}
v_lshl_add_u32 v{vFw}, v{t0}, 6, v{vFw}
v_and_b32 v{t2}, 7, v0
v_lshl_add_u32 v{vFw}, v{t2}, 3, v{vFw}
s_lshl_b32 s14, s9, 10
s_add_u32 s14, s14, {LDS_F}
v_add_u32 v{vFw}, s14, v{vFw}
v_and_b32 v{t2}, 3, v0
v_lshlrev_b32 v{vFr}, 6, v{t2}
v_bfe_u32 v{t2}, v0, 5, 1
v_lshl_add_u32 v{vFr}, v{t2}, 9, v{vFr}
v_bfe_u32 v{t2}, v0, 2, 3
v_lshl_add_u32 v{vFr}, v{t2}, 3, v{vFr}
v_add_u32 v{vFr}, {LDS_F}, v{vFr}
v_lshlrev_b32 v{vOw}, 7, v{t0}
v_bfe_u32 v{t2}, v0, 2, 2
v_lshl_add_u32 v{vOw}, v{t2}, 5, v{vOw}
v_and_b32 v{t2}, 1, v0
v_lshl_add_u32 v{vOw}, v{t2}, 4, v{vOw}
s_lshl_b32 s14, s9, 9
s_add_u32 s14, s14, {LDS_O}
v_add_u32 v{vOw}, s14, v{vOw}
v_add_u32 v{t2}, {LDS_OD - LDS_O + 8}, v{vOw}
s_lshl_b32 s15, s9, 9
v_subrev_u32 v{t2}, s15, v{t2}
v_and_b32 v23, 2, v0
v_cmp_ne_u32 vcc, 0, v23
v_cndmask_b32 v{vOw}, v{t2}, v{vOw}, vcc
v_mov_b32 v{t2}, 0x4444
v_mov_b32 v23, 0xeeee
v_cndmask_b32 v{vIK}, v{t2}, v23, vcc
v_and_b32 v24, 8, v0
v_cmp_ne_u32 vcc, 0, v24
v_cndmask_b32 v{vIN}, v{t2}, v23, vcc
v_lshlrev_b32 v{vOr}, 7, v{t0}
v_and_b32 v{t2}, 7, v0
v_lshl_add_u32 v{vOr}, v{t2}, 4, v{vOr}
v_add_u32 v{vOr}, {LDS_O}, v{vOr}
; vPst = (2w+sel)*8192 + (2*g1+(n>>3))*2048 + h*64 + (n&7)*8
v_lshrrev_b32 v{vPst}, 5, v0
s_lshl_b32 s13, s9, 1
v_add_u32 v{vPst}, s13, v{vPst}
v_lshlrev_b32 v{vPst}, 13, v{vPst}
v_bfe_u32 v{t2}, v0, 3, 2
v_lshl_add_u32 v{vPst}, v{t2}, 11, v{vPst}
v_and_b32 v{t2}, 7, v0
v_lshl_add_u32 v{vPst}, v{t2}, 3, v{vPst}
s_lshl_b32 s14, s12, 6
v_add_u32 v{vPst}, s14, v{vPst}
; vMst = h*256 + w*64 + gt*16 + cw*4 (lanes with n>=4 out of range)
v_lshlrev_b32 v{vMst}, 4, v{t0}
v_and_b32 v{t2}, 3, v0
v_lshl_add_u32 v{vMst}, v{t2}, 2, v{vMst}
s_lshl_b32 s14, s12, 6
s_lshl_b32 s15, s9, 11
s_add_u32 s14, s14, s15
v_add_u32 v{vMst}, s14, v{vMst}
v_bfe_u32 v24, v0, 2, 2
v_cmp_le_u32 vcc, {opt.get("nc", 1)}, v24
v_mul_u32_u24 v24, {opt.get("cps", 8192)}, v24
v_add_u32 v{vMst}, v{vMst}, v24
v_mov_b32 v24, 0x80000000
v_cndmask_b32 v{vMst}, v{vMst}, v24, vcc
s_mov_b32 s{sMask}, 0xcccccccc
s_mov_b32 s{sMask+1}, 0xcccccccc
s_mov_b32 s{sT}, {f32bits(40.0):#x}
s_lshl_b32 s14, s9, 11
s_add_u32 s14, s14, {LDS_MEM}
v_add_u32 v19, s14, v{vL16}
v_lshlrev_b32 v{vGT}, 8, v{t0}
v_bfe_u32 v{t2}, v0, 3, 1
v_lshl_add_u32 v{vGT}, v{t2}, 7, v{vGT}
v_bfe_u32 v{t2}, v0, 1, 1
v_lshl_add_u32 v{vGT}, v{t2}, 6, v{vGT}
v_bfe_u32 v{t2}, v0, 2, 1
v_lshl_add_u32 v{vGT}, v{t2}, 5, v{vGT}
v_and_b32 v{t2}, 1, v0
v_lshl_add_u32 v{vGT}, v{t2}, 4, v{vGT}
s_and_b32 s14, s12, {opt.get("nc", 1) - 1}
s_mul_i32 s14, s14, {opt.get("cps", 8192)}
v_add_u32 v{vGT}, s14, v{vGT}
v_lshrrev_b32 v{t2}, 2, v{t1}
v_and_b32 v23, 3, v{t1}
v_lshl_add_u32 v{t2}, v23, 2, v{t2}
v_mov_b32 v24, 0x3f80
v_mov_b32 v25, 0x3f800000
v_mov_b32 v26, 0x3f803f80""")
    for r in range(4):
        A(f"""v_mov_b32 v{vAS+r}, 0
v_cmp_eq_u32 vcc, {2*r}, v{t2}
v_cndmask_b32 v{vAS+r}, v{vAS+r}, v24, vcc
v_cmp_eq_u32 vcc, {2*r+1}, v{t2}
v_cndmask_b32 v{vAS+r}, v{vAS+r}, v25, vcc
v_cmp_le_u32 vcc, 8, v{t2}
v_cndmask_b32 v{vAS+r}, v{vAS+r}, v26, vcc""")
    A(f"""v_add_u32 v16, {LDS_K}, v{vG512}
s_lshl_b32 s13, s9, 14
s_add_u32 s13, s13, {LDS_WQ}
v_add_u32 v{vWq0}, s13, v{vL16}
v_add_u32 v{vWq1}, 0x10000, v{vWq0}
s_mov_b32 s{sC}, {f32bits(math.log2(math.e) / math.sqrt(128.0)):#x}""")

def weights_prologue(A, mid=None, opt={}, late=None):
    dA = [32, 33, 34, 35]; dO = [36, 37]; tA = [38, 39]; tO = 40; tc = [41, 42]
    x, y = 44, 45
    A(f"""; DMA source offsets for Wq/k/v : rr*8192 + ((cc ^ 2(rr&1) ^ 4j)*16)
v_lshrrev_b32 v{x}, 4, v0
v_and_b32 v{y}, 1, v{x}
v_lshlrev_b32 v{y}, 1, v{y}
v_and_b32 v46, 15, v0
v_xor_b32 v{y}, v{y}, v46
v_lshlrev_b32 v{x}, 13, v{x}""")
    for j in range(4):
        A(f"v_xor_b32 v46, {4*j}, v{y}\nv_lshl_add_u32 v{dA[j]}, v46, 4, v{x}")
    A(f"""; scalar bases
s_lshl_b32 s50, s12, 8
s_lshl_b32 s13, s9, 18
s_add_u32 s50, s50, s13        ; h*256 + w*32 rows*8192
s_lshl_b32 s51, s12, 17
s_lshl_b32 s13, s9, 13
s_add_u32 s51, s51, s13        ; h*131072 + w*8 rows*1024
s_lshl_b32 s52, s9, 13         ; w*8192 (lds)""")
    A(f"""; Wo DMA: (l ^ 4*((j&1) | ((w>>1)<<1)))*16
s_lshr_b32 s13, s9, 1
s_lshl_b32 s13, s13, 3
v_xor_b32 v{y}, s13, v0
v_lshlrev_b32 v{dO[0]}, 4, v{y}
v_xor_b32 v{y}, 4, v{y}
v_lshlrev_b32 v{dO[1]}, 4, v{y}""")
    mats = sum([[m_] * 4 for m_ in opt.get('word', [42, 44, 46])], []) + [40] * 4
    NT = ' nt' if opt.get('wnt', 1) else ''
    slot = lambda i: ((i + 4) % 5) * 32768
    def issue(i):
        if i % 4 == 0: set_srd(A, 20, mats[i], 4 * MB)
        c = i % 4
        tok = None
        for j in range(8):
            A(f"s_add_u32 m0, s52, {slot(i) + j*1024}")
            if mats[i] == 46:
                A(f"s_add_u32 s13, s51, {c*32768 + j*1024}")
                tok = A(f"buffer_load_dwordx4 v{dO[j&1]}, {SRDW}, s13 offen{NT} lds")
            else:
                A(f"s_add_u32 s13, s50, {(128*c + 4*j)*8192}")
                tok = A(f"buffer_load_dwordx4 v{dA[j&3]}, {SRDW}, s13 offen{NT} lds")
        return tok
    toks = {}
    for i in range(4): toks[i] = issue(i)
    if opt.get("help", 1):
        far = opt.get("far", 1)
        A(f"""s_and_b32 s13, s12, 3
s_sub_u32 s13, s13, {far + 1}
s_and_b32 s13, s13, 3
s_cmp_eq_u32 s13, 3
s_cbranch_scc1 {opt['_K']}_nohelp
s_lshl_b32 s13, s13, 2
s_add_u32 s13, s13, s9            ; 0..11
s_and_b32 s14, s13, 3
s_cmp_ge_u32 s14, {opt.get("hn", 3)}
s_cbranch_scc1 {opt['_K']}_nohelp
s_lshr_b32 s13, s13, 2
s_mul_i32 s13, s13, {opt.get("hn", 3)}
s_add_u32 s13, s13, s14
s_add_u32 s13, s13, {max(0, 8 - 3 * opt.get("hn", 3))}
s_lshl_b32 s13, s13, 19
s_and_b32 s14, s12, 28
s_or_b32 s14, s14, {far}
s_lshl_b32 s14, s14, 8
s_cmp_ge_u32 s13, {4*MB}
s_cselect_b32 s24, s44, s40
s_cselect_b32 s25, s45, s41
s_cselect_b32 s15, {2*MB}, 0
s_mov_b32 s26, {4*MB}
s_mov_b32 s27, 0x20000
s_sub_u32 s13, s13, s15
s_add_u32 s13, s13, s14
v_lshlrev_b32 v48, 13, v0
buffer_load_dword v49, v48, s[24:27], s13 offen
buffer_load_dword v50, v48, s[24:27], s13 offen offset:128
{opt['_K']}_nohelp:""")
        A.vm = A.vm[:-2]
    mid(A)
    A(f"""; tr addr for Wq/k/v: row0=16(gb>>1)+4(gb&1)+(r&1)+8(r>>1); f=2(r&1)+4((gb&1)+2(r>>1)); chunk=4w+2te+(c>>1)
v_bfe_u32 v{x}, v0, 5, 1
v_lshlrev_b32 v{x}, 4, v{x}
v_bfe_u32 v46, v0, 4, 1
v_lshl_add_u32 v{x}, v46, 2, v{x}
v_lshlrev_b32 v{y}, 2, v46
v_bfe_u32 v46, v0, 2, 1
v_add_u32 v{x}, v{x}, v46
v_lshl_add_u32 v{y}, v46, 1, v{y}
v_bfe_u32 v46, v0, 3, 1
v_lshl_add_u32 v{x}, v46, 3, v{x}
v_lshl_add_u32 v{y}, v46, 3, v{y}
v_lshlrev_b32 v{x}, 8, v{x}
v_and_b32 v46, 1, v0
v_lshl_add_u32 v{x}, v46, 3, v{x}
v_bfe_u32 v46, v0, 1, 1
s_lshl_b32 s13, s9, 2
v_add_u32 v46, s13, v46
v_xor_b32 v46, v46, v{y}
v_lshl_add_u32 v{tA[0]}, v46, 4, v{x}
v_xor_b32 v46, 2, v46
v_lshl_add_u32 v{tA[1]}, v46, 4, v{x}
v_bfe_u32 v{x}, v0, 4, 1
v_lshlrev_b32 v{y}, 3, v{x}
v_lshlrev_b32 v{x}, 4, v{x}
v_bfe_u32 v46, v0, 5, 1
v_lshl_add_u32 v{x}, v46, 2, v{x}
v_bfe_u32 v46, v0, 2, 1
v_add_u32 v{x}, v{x}, v46
v_lshl_add_u32 v{y}, v46, 2, v{y}
v_lshlrev_b32 v{x}, 10, v{x}
v_and_b32 v46, 1, v0
v_lshl_add_u32 v{x}, v46, 3, v{x}
v_bfe_u32 v46, v0, 1, 1
v_bfe_u32 v47, v0, 3, 1
v_lshl_add_u32 v46, v47, 1, v46
v_add_u32 v46, s13, v46
v_xor_b32 v46, v46, v{y}
v_lshl_add_u32 v{tO}, v46, 4, v{x}""")
    for i in range(16):
        A.wvm(toks[i])
        A("s_barrier")
        if i == 11 and late: late(A)
        if i + 4 < 16: toks[i + 4] = issue(i + 4)
        c = i % 4
        if i == 14:
            for f in range(8):
                for part in range(2):
                    A(f"ds_write_b128 v{vWq0}, {v(64 + f*8 + part*4, 4)} offset:{f*2048 + part*1024}")
            A("s_waitcnt lgkmcnt(0)")
        if mats[i] == 46:
            A(f"v_add_u32 v{tc[0]}, {slot(i)}, v{tO}")
            for p in range(4):
                for xx in range(4):
                    A(f"ds_read_b64_tr_b16 {v(vWo + (p*4 + c)*8 + 2*xx, 2)}, v{tc[0]} offset:{(8*(xx>>1) + 2*(xx&1))*1024 + p*256}")
        else:
            A(f"v_add_u32 v{tc[0]}, {slot(i)}, v{tA[0]}\nv_add_u32 v{tc[1]}, {slot(i)}, v{tA[1]}")
            for tt in range(2):
                for te in range(2):
                    t = 2 * c + tt
                    for xx in range(4):
                        if mats[i] == 42: dst = a((t*2 + te)*8 + 2*xx, 2)
                        elif mats[i] == 44: dst = a(128 + (t*2 + te)*8 + 2*xx, 2)
                        else: dst = v(64 + (((t & 3)*2 + te)*8) + 2*xx, 2)
                        A(f"ds_read_b64_tr_b16 {dst}, v{tc[te]} offset:{(64*tt + 32*(xx>>1) + 2*(xx&1))*256}")
        A("s_waitcnt lgkmcnt(0)")
    A("s_barrier")
    for f in range(8):
        for part in range(2):
            A(f"ds_write_b128 v{vWq1}, {v(64 + f*8 + part*4, 4)} offset:{f*2048 + part*1024}")

NS = 6
SLQ = [5, 0, 1, 2, 3, 4]
def slot_reg(sl): return vAv0 if sl == 5 else vSTG + 8 * sl
def wq_read(A, i, sl):
    t, te = i >> 1, i & 1
    base = vWq0 if t < 4 else vWq1
    off = ((t & 3) * 2 + te) * 2048
    r = slot_reg(sl)
    return [f"ds_read_b128 {v(r,4)}, v{base} offset:{off}", f"ds_read_b128 {v(r+4,4)}, v{base} offset:{off+1024}"]

def step_scalars(A, layer, nxt):
    part = f"s{sPartB}"; mem = f"s{sMemB}"
    return f"""s_and_b32 s13, s{sStep}, 1
s_lshl_b32 s13, s13, 18
s_add_u32 s{sPart}, s13, {part}
s_add_u32 s{sInb}, s{sPart}, s43
s_add_u32 s13, s{sStep}, 1
s_and_b32 s13, s13, 3
s_lshl_b32 s13, s13, {MSL}
s_add_u32 s{sMemN}, s13, {mem}
s_and_b32 s13, s{sStep}, 3
s_lshl_b32 s13, s13, {MSL}
s_add_u32 s{sMemP}, s13, {mem}
s_lshr_b32 s13, s{sStep}, 1
s_and_b32 s13, s13, 1
s_xor_b32 s{sPh}, s13, 1""".split("\n")

def delay(A, c):
    c = max(0, c) // 4
    while c > 0:
        n = min(c, 16); A(f"s_nop {n-1}"); c -= n

def kv_dma(A):
    for (ldsb, so) in [(LDS_K, 0), (LDS_V, WS_V - WS_K)]:
        A(f"s_add_u32 m0, s54, {ldsb}\ns_add_u32 s13, s{sKV}, {so}")
        A(f"buffer_load_dwordx4 v{vL16}, {SRD}, s13 offen sc1 lds\nbuffer_load_dwordx4 v{vL16}, {SRD}, s13 offen offset:1024 sc1 lds")

gS = [48, 56]
rS = [56, 80, 32]
vFA = 16; sF1, sF2, sFv = 44, 45, 46; sF1w, sF2w = 50, 51
vLw = 19
sGat2 = 42
CHKFIRST = [True]

def gload(r): return [f"buffer_load_dwordx4 {v(r,4)}, v{vGat}, {SRD}, s{sGat} offen sc1", f"buffer_load_dwordx4 {v(r+4,4)}, v{vGat}, {SRD}, s{sGat} offen offset:1024 sc1"]
def gwrite(r): return f"ds_write_b128 v{vLw}, {v(r,4)}\nds_write_b128 v{vLw}, {v(r+4,4)} offset:1024"
def gproc(A, r, ny, spec=2):
    A(f"s_waitcnt vmcnt({ny+1})")
    if spec >= 1: A(f"ds_write_b128 v{vLw}, {v(r,4)}")
    A(f"v_max3_u32 v{vT0}, v{r}, v{r+1}, v{r+2}\ns_waitcnt vmcnt({ny})")
    if spec >= 2: A(f"ds_write_b128 v{vLw}, {v(r+4,4)} offset:1024")
    A(f"""v_max3_u32 v{vT0}, v{vT0}, v{r+3}, v{r+4}
v_max3_u32 v{vT0}, v{vT0}, v{r+5}, v{r+6}
v_max_u32 v{vT0}, v{vT0}, v{r+7}
v_cmp_eq_u32 vcc, -1, v{vT0}""")
def g2dma(): return f"buffer_load_dwordx4 v{vGat}, {SRD}, s{sGat2} offen sc1 lds"
def rload(r): return [f"buffer_load_dwordx4 {v(r,4)}, v{vL16}, {SRD}, s{sInb} offen sc1", f"buffer_load_dwordx4 {v(r+4,4)}, v{vL16}, {SRD}, s{sInb} offen offset:1024 sc1"]
def rproc(A, r, n_younger, st=None):
    A(f"""s_waitcnt vmcnt({n_younger+1})
v_mfma_f32_16x16x32_bf16 {v(vRA,4)}, {v(vAS,4)}, {v(r,4)}, 0
v_bitop3_b32 v{vT0}, v{r}, v{r+2}, s{sPh} bitop3:0x7e
s_waitcnt vmcnt({n_younger})""")
    if st: st(7)
    A(f"""v_mfma_f32_16x16x32_bf16 {v(vRA,4)}, {v(vAS,4)}, {v(r+4,4)}, {v(vRA,4)}
v_bitop3_b32 v{vT1}, v{r+4}, v{r+6}, s{sPh} bitop3:0x7e
v_bitop3_b32 v{vT0}, v{vT0}, v{vT1}, 1 bitop3:0xa8
v_cmp_ne_u32 vcc, 0, v{vT0}""")

def kvf_check(P):
    return f"""s_add_u32 s13, s{sStep}, 1
s_min_u32 s13, s13, 63
s_lshr_b32 s38, s13, 2
s_add_u32 s38, s38, 2
s_lshr_b32 s13, s13, 1
s_min_u32 s13, s13, s38
s_lshl_b32 s13, 2, s13
s_sub_u32 s13, s13, 1
{P}_kc:
v_cmp_le_u32 vcc, 4, v{vKF}
s_and_b32 s38, vcc_lo, s13
s_cmp_lg_u32 s38, s13
s_cbranch_scc1 {P}_kw
{P}_kok:"""
def kvf_wait(A, P, tmo):
    A(f"{P}_kw:")
    tmo(15, f"{P}_kto")
    A(f"""s_sleep 2
v_lshrrev_b32 v{vKF}, 2, v{vL16}
buffer_load_dword v{vKF}, v{vKF}, {SRD}, s{sKVF} offen sc1
s_waitcnt vmcnt(0)
s_branch {P}_kc
{P}_kto:
s_mov_b32 s{sDead}, {TMO}
s_branch {P}_kok""")

def pf_setup(w, opt):
    return [f"s_add_u32 s{sKV}, s{sKV}, {KVSEG}", f"s_xor_b32 s{sKm}, s{sKm}, 0x6000", f"v_xor_b32 v{vKr}, 0x6000, v{vKr}", f"s_add_u32 m0, s39, {LDS_MEM + 4096}"]

def pubmix():
    q = "quad_perm:[0,1,0,1] row_mask:0xf bank_mask:0xf"
    return [f"s_mov_b64 vcc, s[{sMask}:{sMask+1}]", f"v_mov_b32_dpp v{vT0}, v{vVP} {q}", f"v_mov_b32_dpp v{vT1}, v{vVP+2} {q}",
            f"v_cndmask_b32 v{vKQ}, v{vKQ}, v{vVP}, vcc", f"v_cndmask_b32 v{vKQ+1}, v{vKQ+1}, v{vVP+2}, vcc",
            f"v_cndmask_b32 v{vKQ+2}, v{vKQ+2}, v{vT0}, vcc", f"v_cndmask_b32 v{vKQ+3}, v{vKQ+3}, v{vT1}, vcc"]

def gather_events(p, w, opt):
    n1 = opt.get("n1", 2) if w < 2 else 0
    dg = opt.get("dg", 128)
    t0 = opt.get("d2", [120, 60, 0, 0])[w]
    return [(t0 + k * dg, gS[k]) for k in range(n1)], n1

def body(A, P, layer, p, w, fast, last, opt):
    SC = "" if fast else " sc1"
    sfx = "_l" if last else ""
    stamp = opt.get("stamp")
    def st(k):
        if stamp and not last and k in opt.get("st", range(11)): A(f"s_memtime s[{60+2*k}:{61+2*k}]")
        if not last and opt.get("wv") == k: A("s_memtime s[62:63]\ns_waitcnt vmcnt(0)\ns_memtime s[64:65]\ns_waitcnt lgkmcnt(0)\ns_sub_u32 s13, s64, s62\ns_add_u32 s83, s83, s13\ns_max_u32 s84, s84, s13")
        if not last and opt.get("cut") == k: A(f"s_add_u32 s{sStep}, s{sStep}, 1\ns_branch {P}_cutend")
    A.reset_counts()
    ev, n1 = gather_events(p, w, opt)
    nxt = [0]
    tk = {}
    nab = 1 if opt.get("abs") else 0
    B1 = None
    if w < 2:
        spec = opt.get("spec", 0)
        gproc(A, gS[0], 2 * (n1 - 1) + nab, spec)
        A(f"s_cbranch_vccnz {P}_gr{sfx}")
        for x in gwrite(gS[0]).split("\n")[spec:]: A(x)
        A(f"{P}_gok{sfx}:\ns_waitcnt lgkmcnt(0)")
        st(9)
    A("s_barrier")
    st(0)
    mrd = lambda t: f"ds_read_b128 {v(vMEM+4*t,4)}, v{vL16} offset:{LDS_MEM + t*1024}"
    mt = {}
    for t in range(3): mt[t] = A(mrd(t))
    A(g2dma())
    A(f"{P}_entry2{sfx}:")
    A(f"s_mov_b32 m0, s{sKm}")
    seq = []
    for t in range(4): seq += [("k", 0, t), ("q", 0, t), ("k", 1, t), ("q", 1, t)]
    for te in range(2):
        for t in range(4, 8): seq += [("k", te, t), ("q", te, t)]
    N1 = 32
    V = [[] for _ in range(N1)]; S = [[] for _ in range(N1)]; X = [[] for _ in range(N1)]
    B2 = opt.get("b2", 11)
    quse = [(idx, 2 * t + te) for idx, (m, te, t) in enumerate(seq) if m == "q"]
    sl_seq = SLQ + [(n_ - 6) % 5 for n_ in range(6, 16)]
    slot = {f: sl_seq[n_] for n_, (idx, f) in enumerate(quse)}
    jobs = []
    lastuse = {}
    for n_, (idx, f) in enumerate(quse):
        if n_ >= NS:
            for x in wq_read(A, f, slot[f]): jobs.append((lastuse[slot[f]], idx, "wq", f, x))
        lastuse[slot[f]] = idx
    first = {}
    for idx, (m, te, t) in enumerate(seq): first.setdefault(t, idx)
    for t in range(3 if B1 is None else 2, 8): jobs.append(((0 if B1 is None else B1) if t < 4 else B2, first[t] - 3, "mem", t, mrd(t)))
    if not last:
        for n_, (c, u) in enumerate([(c, u) for c in range(2) for u in range(4)]):
            jobs.append((max(lastuse[1 + n_ // 2], opt.get("kx0", 24)), 100 + lastuse[1 + n_ // 2], "kx", n_, f"ds_read_b128 {v(vKx + (c*4+u)*4, 4)}, v{vKr} offset:{u*2048 + c*256}"))
        for n_ in range(2):
            jobs.append((max(lastuse[0], opt.get("kx0", 24)), 90, "kx", 8 + n_, f"ds_read_b128 {v(vVx+4*n_,4)}, v{vG512} offset:{LDS_V + w*2048 + 256*n_}"))
    D = [[] for _ in range(N1)]
    nod = set()
    for g_ in range(N1):
        cap = 2 if g_ in (B1, B2) else (0 if g_ in nod else 1)
        for _ in range(cap):
            av = [j for j in jobs if j[0] <= g_]
            if not av: break
            j = min(av, key=lambda j: j[1]); jobs.remove(j); D[g_].append(j[2:])
    assert all(j[2] == "kx" for j in jobs)
    X[B2].append(lambda: A(f"s_waitcnt vmcnt({nxt[0]})"))
    X[B2].append("s_barrier")
    for t in range(4, 8):
        r = vMEM + 4 * t
        V[first[t]].append(f"v_max_u32 v{vT0}, v{r}, v{r+1}" if t == 4 else f"v_max3_u32 v{vT0}, v{vT0}, v{r}, v{r+1}")
        V[first[t] + 1].append(f"v_max3_u32 v{vT0}, v{vT0}, v{r+2}, v{r+3}")
    V[24].append(f"v_cmp_eq_u32 vcc, -1, v{vT0}")
    f0 = [f"v_add_f32 v{vAk0}, v{vAk0}, v{vAk0+2}", f"v_add_f32 v{vAk0+1}, v{vAk0+1}, v{vAk0+3}",
          f"v_add_f32 v{vAq0}, v{vAq0}, v{vAq0+2}", f"v_add_f32 v{vAq0+1}, v{vAq0+1}, v{vAq0+3}",
          f"v_mul_f32 v{vAq0}, s{sC}, v{vAq0}", f"v_mul_f32 v{vAq0+1}, s{sC}, v{vAq0+1}",
          f"v_cvt_pk_bf16_f32 v{vKQ}, v{vAk0}, v{vAk0+1}"]
    for n_, x in enumerate(f0): V[25 + n_].append(x)
    for r in range(8): V[3 + r].append(f"v_mov_b32 v{vAv0+r}, 0")
    ext = []
    if not last and not opt.get("nokv"):
        ext.append(f"buffer_load_dwordx4 v{vL16}, {SRD}, s{sKV} offen sc1 lds")
        ext.append(f"buffer_load_dwordx4 v{vL16}, {SRD}, s{sKV} offen offset:1024 sc1 lds")
    if not opt.get("nopub"):
        ext.append(f"buffer_store_dwordx4 {v(vKQ,4)}, v{vL16}, {SRD}, s40 offen sc1")
        if w == 2: ext.append(f"v_mov_b32 v{vT1}, s41\ns_mov_b64 exec, 1\nbuffer_store_dword v{vT1}, off, {SRD}, s55 sc1\ns_mov_b64 exec, -1")
    pz = opt.get("pz", 2)
    pos_ = [pz + w + 4 * n_ for n_ in range(len(ext))]
    pos_ = [x if x < B2 - 1 else x + 4 for x in pos_]
    for n_, x in enumerate(ext): X[pos_[n_]].append(x)
    nxt[0] = sum(1 for x in pos_ if x < B2)
    S[26].append(f"s_add_u32 s{sGat}, s{sMemN}, s54"); S[28].append(f"s_add_u32 s{sGat2}, s{sMemN}, s52")
    wqtok = {}
    def need_wait(idx):
        m, te, t = seq[idx]
        need = [mt.get(t, "missing")]
        if m == "q" and (2 * t + te) in wqtok: need.append(wqtok[2 * t + te])
        if "missing" in need: return False
        ns = [A.lgk_n(x) for x in need if A.lgk_n(x) is not None]
        if ns: A(f"s_waitcnt lgkmcnt({min(ns)})")
        return True
    hoist = opt.get("hoist", 1)
    for idx, (m, te, t) in enumerate(seq):
        need_wait(idx)
        if idx == 0 and not opt.get("abs"): st(1)
        if m == "k": smf(A, [vAk0, vAk1][te], vMEM + 4 * t, a((t * 2 + te) * 8, 8), vIK)
        else: smf(A, [vAq0, vAq1][te], vMEM + 4 * t, v(slot_reg(slot[2 * t + te]), 8), vIK)
        for x in X[idx]: (x() if callable(x) else A(x))
        if hoist and idx + 1 < N1 and V[idx] and not (B2 <= idx < B2 + 5): need_wait(idx + 1)
        for x in S[idx]: A(x)
        for (kind, key, txt) in D[idx]:
            tok = A(txt)
            {"wq": wqtok, "mem": mt, "kx": {}}[kind][key] = tok
        for x in V[idx]: A(x)
    st(2)
    def sv(j): smf(A, [vAv0, vAv1][j & 1], vMEM + 4 * (j >> 1), a(128 + j * 8, 8), vIK)
    kxr = [j[4] for j in jobs]
    if last: kxr = []
    def rdk(n_):
        for _ in range(n_):
            if kxr: A(kxr.pop(0))
    fsplit = opt.get("fsplit", 1) and not last
    sv(0); rdk(1); A(f"v_cvt_pk_bf16_f32 v{vKQ+1}, v{vAq0}, v{vAq0+1}")
    sv(1)
    if fsplit: A(f"ds_write_b64 v{vFw}, {v(vKQ,2)}")
    else: rdk(1)
    A(f"v_add_f32 v{vAk1}, v{vAk1}, v{vAk1+2}")
    A(f"""v_add_f32 v{vAk1+1}, v{vAk1+1}, v{vAk1+3}
v_add_f32 v{vAq1}, v{vAq1}, v{vAq1+2}
v_add_f32 v{vAq1+1}, v{vAq1+1}, v{vAq1+3}
v_cvt_pk_bf16_f32 v{vKQ+2}, v{vAk1}, v{vAk1+1}
v_mul_f32 v{vAq1}, s{sC}, v{vAq1}
v_mul_f32 v{vAq1+1}, s{sC}, v{vAq1+1}
v_cvt_pk_bf16_f32 v{vKQ+3}, v{vAq1}, v{vAq1+1}""")
    vfold = [f"v_add_f32 v{vAv0}, v{vAv0}, v{vAv0+2}", f"v_add_f32 v{vAv0+1}, v{vAv0+1}, v{vAv0+3}",
             f"v_cvt_pk_bf16_f32 v{vVP}, v{vAv0}, v{vAv0+1}", f"v_add_f32 v{vAv1}, v{vAv1}, v{vAv1+2}",
             f"v_add_f32 v{vAv1+1}, v{vAv1+1}, v{vAv1+3}", f"v_cvt_pk_bf16_f32 v{vVP+2}, v{vAv1}, v{vAv1+1}"]
    if last:
        A(f"s_cbranch_vccnz {P}_redo_l")
        A(f"ds_write2_b64 v{vFw}, {v(vKQ,2)}, {v(vKQ+2,2)} offset1:64")
        for j in range(2, 9): sv(j)
        A("s_waitcnt lgkmcnt(0)\ns_barrier")
        for jj in range(2): A(f"ds_read_b64_tr_b16 {v(vKQ + 2*jj, 2)}, v{vFr} offset:{1024*w + 256*jj}")
        for j in range(9, 16): sv(j)
        for x in vfold: A(x)
        A("s_waitcnt lgkmcnt(0)")
        for x in pubmix(): A(x)
        A(f"buffer_store_dwordx4 {v(vKQ,4)}, v{vL16}, {SRD}, s{sPub} offen sc1")
        return
    if fsplit:
        fw = A(f"ds_write_b64 v{vFw}, {v(vKQ+2,2)} offset:512")
        sv(2)
    else:
        sv(2)
        fw = A(f"ds_write2_b64 v{vFw}, {v(vKQ,2)}, {v(vKQ+2,2)} offset1:64")
    NBF = opt.get("nbf", 7)
    for j in range(3, NBF):
        sv(j)
        rdk(1)
    rdk(10)
    A(f"s_cbranch_vccnz {P}_redo")
    A.wlg(fw); A("s_barrier")
    st(3)
    ft = []
    for tr in range(2): ft.append(A(f"ds_read_b64_tr_b16 {v(vF + 2*tr, 2)}, v{vFr} offset:{256*tr}"))
    dma = [f"buffer_load_dwordx4 v{vL16}, {SRD}, s13 offen sc1 lds",
           f"buffer_load_dwordx4 v{vL16}, {SRD}, s13 offen offset:1024 sc1 lds"]
    if w == 3: dma.append(f"v_lshrrev_b32 v{vKF}, 2, v{vL16}\nbuffer_load_dword v{vKF}, v{vKF}, {SRD}, s{sKVF} offen sc1")
    if opt.get("nokv"): dma = []
    if opt.get("latep", 0): dma.append(f"v_mov_b32 v{vT1}, -1\nbuffer_store_dword v{vT1}, v{vMst}, {SRD}, s45 offen{SC}")
    NV1 = opt.get("nv1", 13)
    A(f"s_add_u32 m0, s54, {LDS_V}\ns_add_u32 s13, s{sKV}, {WS_V - WS_K}")
    dpos = {opt.get("dz", 2) + w + 4 * n_: x for n_, x in enumerate(dma)}
    gi = [0]
    def gap():
        if gi[0] in dpos: A(dpos.pop(gi[0]))
        gi[0] += 1
    for j in range(NBF, NV1):
        sv(j); gap()
        u = j - NBF + 1
        if u < 4:
            for jj in range(2):
                ft.append(A(f"ds_read_b64_tr_b16 {v(vF + 4*u + 2*jj, 2)}, v{vFr} offset:{1024*u + 256*jj}"))
    st(4)
    def mf(d, aa, bb, first_):
        A(f"v_mfma_f32_16x16x32_bf16 {v(d,4)}, {v(aa,4)}, {v(bb,4)}, " + ("0" if first_ else v(d, 4)))
    ex = lambda k_, src: f"v_exp_f32 v{vE+k_}, v{src}"
    cv = lambda d, x: f"v_cvt_pk_bf16_f32 v{d}, v{x}, v{x+1}"
    sq = [("x", 0, u) for u in range(4)] + [("x", 1, u) for u in range(4)]
    sq += [("v", j, 0) for j in range(NV1, 16)] + [("m", 0, u) for u in range(4)]
    G = {}
    fill = [ex(0, vSx0), ex(1, vSx0 + 1), ex(2, vSx0 + 2), ex(3, vSx0 + 3), ex(4, vSx1), ex(5, vSx1 + 1), ex(6, vSx1 + 2), ex(7, vSx1 + 3)]
    pos = 6
    while fill and pos < len(sq):
        G.setdefault(pos, []).append(fill.pop(0)); pos += 1
    tail = fill + [cv(vPx, vE), cv(vPx + 1, vE + 2), cv(vPx + 2, vE + 4), cv(vPx + 3, vE + 6)]
    while tail and pos < len(sq):
        G.setdefault(pos, []).extend(tail[:2]); tail = tail[2:]; pos += 1
    A.wlg(ft[-1])
    for r in range(4): G.setdefault(r, []).append(f"v_mov_b32 v{vKQ+r}, v{vF+4*w+r}")
    for n_, (kind, tile, u) in enumerate(sq):
        if kind == "x": mf([vSx0, vSx1][tile], vKx + (tile * 4 + u) * 4, vF + 4 * u, u == 0)
        elif kind == "m": mf(vSm, vF + 4 * u, vF + 4 * u, u == 0)
        else: sv(tile)
        gap()
        for x in G.get(n_, []): A(x)
    for k_ in sorted(dpos): A(dpos[k_])
    for x in tail: A(x)
    m16 = lambda d, aa, bb: A(f"v_mfma_f32_16x16x16_bf16 {v(d,4)}, {v(aa,2)}, {v(bb,2)}, {v(d,4)}")
    A(vfold[0]); A(vfold[1])
    mf(vL, vAS, vPx, True); A(vfold[2]); A(vfold[3])
    mf(vO0, vVx, vPx, True); A(ex(8, vSm))
    mf(vO1, vVx + 4, vPx, True); A(ex(9, vSm + 1))
    A(vfold[4]); A(cv(vPm, vE + 8)); A(vfold[5])
    A(f"v_max3_f32 v{vT1}, |v{vSx0}|, |v{vSx0+1}|, |v{vSx0+2}|")
    m16(vL, vAS, vPm)
    A(f"v_max3_f32 v{vT1}, v{vT1}, |v{vSx0+3}|, |v{vSx1}|\nv_max3_f32 v{vT1}, v{vT1}, |v{vSx1+1}|, |v{vSx1+2}|")
    m16(vO0, vVP, vPm)
    A(f"v_max3_f32 v{vT1}, v{vT1}, |v{vSx1+3}|, |v{vSm}|\nv_max_f32 v{vT1}, v{vT1}, |v{vSm+1}|")
    m16(vO1, vVP + 2, vPm)
    A(f"v_rcp_f32 v{vT0}, v{vL+2}")
    A(f"v_cmp_lt_f32 vcc, s{sT}, v{vT1}")
    if opt.get("force_slow"): A(f"v_cmp_lt_f32 vcc, -1.0, v{vT1}")
    for r in range(4): A(f"v_mul_f32 v{vO0+r}, v{vT0}, v{vO0+r}")
    A(cv(vE, vO0)); A(cv(vE + 1, vO0 + 2))
    if opt.get("ow2", 1): A(f"ds_write_b64 v{vOw}, {v(vE,2)}")
    for r in range(2): A(f"v_pk_mul_f32 {v(vO1+2*r,2)}, {v(vO1+2*r,2)}, {v(vT0,2)} op_sel_hi:[1,0]")
    A(cv(vE + 2, vO1)); A(cv(vE + 3, vO1 + 2))
    ow = A(f"ds_write_b64 v{vOw}, {v(vE+2,2)} offset:8") if opt.get("ow2", 1) else A(f"ds_write_b128 v{vOw}, {v(vE,4)}")
    A(f"s_and_b64 vcc, vcc, s[{sMask}:{sMask+1}]\ns_cbranch_vccnz {P}_slow")
    A(f"{P}_norm:")
    zg = opt.get("zgap", 0)
    for r in range(0, 4 if zg else 8, 2): A(f"v_mov_b64 {v(vOUT+r,2)}, 0")
    A.wlg(ow); A("s_barrier")
    st(5)
    ot = [A(f"ds_read_b128 {v(vOF+4*kk,4)}, v{vOr} offset:{kk*512}") for kk in range(4)]
    A(f"s_add_u32 s13, s{sPart}, 0")
    for r in (range(4, 10, 2) if zg else range(8, 16, 2)): A(f"v_mov_b64 {v(vOUT+r,2)}, 0")
    Z = {0: 10, 1: 11, 2: 12, 3: 13, 4: 14, 6: 15} if zg else {}
    pre = []
    for n_ in range(1, 6): pre += wq_read(A, quse[n_][1], SLQ[n_])
    def epi(pp):
        return [f"v_cvt_pk_bf16_f32 v{vPK+2*pp}, v{vOUT+4*pp}, v{vOUT+4*pp+1}",
                f"v_cvt_pk_bf16_f32 v{vPK+2*pp+1}, v{vOUT+4*pp+2}, v{vOUT+4*pp+3}",
                f"v_bfi_b32 v{vPK+2*pp}, 1, s{sPh}, v{vPK+2*pp}",
                f"buffer_store_dwordx2 {v(vPK+2*pp,2)}, v{vPst}, {SRD}, s13 offen{SC}{opt.get('pf', '') if fast else ''}"]
    if opt.get("e1fast", 1):
        e1 = 6; E = {5: epi(0), 9: epi(1), 13: epi(2)[0:1], 14: epi(2)[1:2], 15: epi(2)[2:3]}
    else:
        e1 = 9; E = {5: epi(0), 9: epi(1)[0:1], 10: epi(1)[1:2], 11: epi(1)[2:3], 12: epi(1)[3:4], 13: epi(2)[0:1], 14: epi(2)[1:2], 15: epi(2)[2:3]}
    rsch = opt.get("rs", [[16, 200], [120, 250], [260, 390], [320, 450]])[w]
    rtk = []
    def rissue():
        if opt.get("abs") and not rtk: A("s_memtime s[68:69]")
        for x in rload(rS[len(rtk)]): t_ = A(x)
        rtk.append(t_)
    for n_ in range(16):
        pp, kk = n_ >> 2, n_ & 3
        if n_ == 0: A.wlg(ot[1])
        if n_ == 2: A.wlg(ot[3])
        smf(A, vOUT + 4 * pp, vOF + 4 * kk, v(vWo + n_ * 8, 8), vIN)
        if n_ == 8: A(f"s_add_u32 s13, s{sPart}, {65536}")
        if n_ == 13: A(f"s_add_u32 s13, s{sPart}, {2*65536}")
        if n_ in rsch: rissue()
        elif pre and n_ >= 3 and n_ not in (5, e1 + 3): A(pre.pop(0))
        if n_ in Z: A(f"v_mov_b32 v{vOUT + Z[n_]}, 0")
        for x in E.get(n_, []): A(x)
        if n_ == 5: st(10)
    hold2 = opt.get("hold2", 0)
    if not hold2:
        A(epi(2)[3])
        A(f"s_add_u32 s13, s{sPart}, {3*65536}")
    while pre: A(pre.pop(0))
    A(f"s_mov_b32 s40, s{sPub}\ns_add_u32 s{sPub}, s{sPub}, {PUBSEG}\ns_mov_b32 s14, 0\ns_mov_b32 s15, 0")
    for x in epi(3)[:3]: A(x)
    if 16 in rsch: rissue()
    elif hold2: delay(A, opt.get("h2d", 16))
    if hold2:
        A(epi(2)[3])
        A(f"s_add_u32 s13, s{sPart}, {3*65536}")
    A(epi(3)[3])
    st(6)
    idle = [f"v_mov_b64 {v(vAk0+r,2)}, 0" for r in range(0, 16, 2)]
    idle2 = pubmix()
    def wait_fill(d):
        while idle and d >= 4: A(idle.pop(0)); d -= 4
        delay(A, d)
    cur = 0
    for tm in [x - 100 for x in rsch if x >= 100]:
        wait_fill(tm - cur); cur = max(cur, tm) + 12
        rissue()
    while idle: A(idle.pop(0))
    opt["_rfirst"] = [A.vm_n(rtk[k_]) + 2 * k_ for k_ in range(1, len(rtk))]
    rproc(A, rS[0], A.vm_n(rtk[0]), st)
    A(f"""s_cbranch_vccnz {P}_rr
{P}_rok:
{"s_memtime s[66:67]" if opt.get("abs") else "s_nop 0"}
v_add_f32_dpp v{vRT}, v{vRA}, v{vRA} row_ror:4 row_mask:0xf bank_mask:0xf ;NOHAZ
v_add_f32_dpp v{vRT+1}, v{vRA+1}, v{vRA+1} row_ror:4 row_mask:0xf bank_mask:0xf ;NOHAZ
v_add_f32_dpp v{vRT+2}, v{vRT}, v{vRT} row_ror:8 row_mask:0xf bank_mask:0xf
v_add_f32_dpp v{vRT+3}, v{vRT+1}, v{vRT+1} row_ror:8 row_mask:0xf bank_mask:0xf
v_cvt_pk_bf16_f32 v{vT0}, v{vRT+2}, v{vRT+3}
buffer_store_dword v{vT0}, v{vMst}, {SRD}, s{sMemN} offen{SC}""")
    st(8)
    lp = opt.get("latep", 0)
    if not lp: A(f"v_mov_b32 v{vT1}, -1\nbuffer_store_dword v{vT1}, v{vMst}, {SRD}, s{sMemP} offen{SC}")
    else: A(f"s_mov_b32 s45, s{sMemP}")
    if opt.get("dumpmem"):
        A(f"s_lshl_b32 s13, s{sStep}, 16\ns_add_u32 s13, s13, {WS_OP + 65536}\nbuffer_store_dword v{vT0}, v{vMst}, {SRD}, s13 offen")
    idle += [f"s_mov_b32 s41, s{sStep}", f"s_add_u32 s{sStep}, s{sStep}, 1"] + idle2
    post = step_scalars(A, layer, 0) + pf_setup(w, opt)
    if stamp:
        idle += ["s_waitcnt lgkmcnt(0)"]
        for k_ in list(range(1, 9)) + [10]:
            idle += [f"s_sub_u32 s13, s{60+2*k_}, s60", f"s_add_u32 s{82+k_}, s{82+k_}, s13"]
        idle += ["s_sub_u32 s13, s60, s78", "s_add_u32 s91, s91, s13"]
    absd = []
    if opt.get("abs"):
        absd = ["s_waitcnt lgkmcnt(0)", f"s_lshl_b32 s13, s41, 13", f"s_lshl_b32 s38, s12, 8", "s_add_u32 s13, s13, s38", f"s_add_u32 s13, s13, {WS_OP + 8*MB + w*64}"]
        for k_ in range(11):
            absd += [f"v_writelane_b32 v{vT1}, s{60+2*k_}, {k_}"]
        absd += [f"v_lshrrev_b32 v{vT0}, 2, v{vL16}", f"s_mov_b64 exec, 0xffff", f"buffer_store_dword v{vT1}, v{vT0}, {SRD}, s13 offen", "s_mov_b64 exec, -1"]
    idle += post
    cur = 0
    done5 = False
    for n_, (tm, r) in enumerate(ev):
        if n_ == 1:
            A(f"s_waitcnt vmcnt({4 - lp})")
            for x in wq_read(A, 0, 5): A(x)
            cur += 12; done5 = True
        wait_fill(tm - cur); cur = max(cur, tm) + 12
        if r == gS[0]: st(1) if opt.get("abs") else None
        for x in gload(r): A(x)
    while idle: A(idle.pop(0))
    if w == 3: A(kvf_check(P))
    if not done5:
        A(f"s_waitcnt vmcnt({2 - lp + 2 * n1})")
        for x in wq_read(A, 0, 5): A(x)
    for x in absd: A(x)

def variant(A, P, layer, p, w, fast, opt):
    A(f".p2align 6\n{P}_top:")
    body(A, P, layer, p, w, fast, False, opt)
    A(f"""{P}_cutend:
{"s_waitcnt lgkmcnt(0)" if "cut" in opt else ""}
s_cmp_lt_u32 s{sStep}, 63
s_cbranch_scc1 {P}_top""")
    body(A, P, layer, p, w, fast, True, opt)
    A(f"""s_waitcnt vmcnt(0)
s_barrier
v_mov_b32 v{vT1}, 64
s_branch {opt['_K']}_fin""")
    for sfx in ["", "_l"]:
        A(f"{P}_entry{sfx}:")
        for t in range(3): A(f"ds_read_b128 {v(vMEM+4*t,4)}, v{vL16} offset:{LDS_MEM + t*1024}")
        A(f"s_branch {P}_entry2{sfx}")
    cn = lambda r: A(f"s_add_u32 s{r}, s{r}, 1") if opt.get("cnt") else None
    def tmo(cnt, ok):
        A(f"""s_add_u32 s{cnt}, s{cnt}, s{sDead}
s_cmp_ge_u32 s{cnt}, {TMO}
s_cbranch_scc1 {ok}""")
    def retry(lab, sets, load, proc, okl, cnt, cidx, first):
        n = len(sets)
        A(f"{lab}:")
        for k_ in range(n - 1):
            cn(cidx)
            for x in load(sets[k_]): A(x)
            proc(A, sets[k_ + 1], first[k_])
            A(f"s_cbranch_vccz {okl}")
        sets = sets[n - 1:] + sets[:n - 1]
        A(f"{lab}_lp:")
        for k_ in range(n):
            cn(cidx)
            for x in load(sets[k_]): A(x)
            proc(A, sets[(k_ + 1) % n], len(load(0)) * (n - 1))
            A(f"s_cbranch_vccz {okl}")
        tmo(cnt, f"{lab}_to"); A(f"s_branch {lab}_lp\n{lab}_to:\ns_mov_b32 s{sDead}, {TMO}\ns_branch {okl}")
    retry(f"{P}_rr", rS[:len(opt["_rfirst"]) + 1], rload, rproc, f"{P}_rok", 14, 94, opt["_rfirst"])
    for sfx in ["", "_l"]:
        ev, n1 = gather_events(p, w, opt)
        if w < 2: retry(f"{P}_gr{sfx}", gS[:n1], gload, gproc, f"{P}_gok{sfx}", 15, 95, [2 * (n1 - 1)] * (n1 - 1))
        A(f"{P}_redo{sfx}:")
        cn(89)
        A(f"""s_add_u32 s15, s15, s{sDead}
s_cmp_ge_u32 s15, {TMO}
s_cbranch_scc1 {opt['_K']}_end
s_waitcnt vmcnt(0) lgkmcnt(0)
s_barrier
s_add_u32 s40, s53, {WS_FLAG + 65536}
s_add_u32 s{sGat2}, s{sMemP}, s39
s_add_u32 s{sGat}, s{sMemP}, s39
s_add_u32 s{sGat2}, s{sGat2}, 4096
s_add_u32 m0, s39, {LDS_MEM}
s_nop 0
buffer_load_dwordx4 v{vGat}, {SRD}, s{sGat} offen sc1 lds
s_add_u32 m0, s39, {LDS_MEM + 4096}""")
        for r in range(0, 16, 2): A(f"v_mov_b64 {v(vAk0+r,2)}, 0")
        A(g2dma())
        for i in range(6):
            for x in wq_read(A, i, SLQ[i]): A(x)
        A(f"s_waitcnt vmcnt(0) lgkmcnt(0)\ns_barrier\ns_branch {P}_entry{sfx}")
    if w == 3: kvf_wait(A, P, tmo)
    A(f"{P}_slow:\ns_waitcnt lgkmcnt(0)\ns_nop 7")
    A(f"""v_max3_f32 v{vT0}, v{vSx0}, v{vSx0+1}, v{vSx0+2}
v_max3_f32 v{vT1}, v{vSx0+3}, v{vSx1}, v{vSx1+1}
v_max3_f32 v{vT0}, v{vT0}, v{vSx1+2}, v{vSx1+3}
v_max3_f32 v{vT1}, v{vT1}, v{vSm}, v{vSm+1}
v_max_f32 v{vT0}, v{vT0}, v{vT1}
v_mov_b32 v{vT1}, v{vT0}
v_permlane32_swap_b32 v{vT0}, v{vT1}
v_max_f32 v{vT0}, v{vT0}, v{vT1}
v_mov_b32 v{vT1}, v{vT0}
v_permlane16_swap_b32 v{vT0}, v{vT1}
v_max_f32 v{vT0}, v{vT0}, v{vT1}""")
    srcs = [vSx0 + i for i in range(4)] + [vSx1 + i for i in range(4)] + [vSm, vSm + 1]
    for k_, x in enumerate(srcs): A(f"v_sub_f32 v{vE+k_}, v{x}, v{vT0}")
    for k_ in range(10): A(f"v_exp_f32 v{vE+k_}, v{vE+k_}")
    for k_ in range(4): A(f"v_cvt_pk_bf16_f32 v{vPx+k_}, v{vE+2*k_}, v{vE+2*k_+1}")
    A(f"v_cvt_pk_bf16_f32 v{vPm}, v{vE+8}, v{vE+9}")
    for (d, aa) in [(vO0, vVx), (vO1, vVx + 4), (vL, vAS)]:
        A(f"v_mfma_f32_16x16x32_bf16 {v(d,4)}, {v(aa,4)}, {v(vPx,4)}, 0")
    for (d, aa) in [(vL, vAS), (vO0, vVP), (vO1, vVP + 2)]:
        A(f"v_mfma_f32_16x16x16_bf16 {v(d,4)}, {v(aa,2)}, {v(vPm,2)}, {v(d,4)}")
    A("s_nop 7")
    A(f"v_rcp_f32 v{vT0}, v{vL+2}")
    for r in range(8): A(f"v_mul_f32 v{vO0+r}, v{vT0}, v{vO0+r}")
    for r in range(4): A(f"v_cvt_pk_bf16_f32 v{vE+r}, v{vO0+2*r}, v{vO0+2*r+1}")
    A(f"ds_write_b128 v{vOw}, {v(vE,4)}\ns_waitcnt lgkmcnt(0)\ns_branch {P}_norm")

def chain_member(A, P, opt, modefn, initfn=None):
    layer = 0
    opt = dict(opt); opt["_K"] = P
    A(f"s_mov_b32 s{sDead}, 1")
    weights_prologue(A, lambda B: lane_consts(B, layer, opt), opt, lambda B: modefn(B, 0))
    if opt.get("rt"): A("s_memrealtime s[98:99]")
    modefn(A, 1)
    A(f"s_mov_b32 s44, s13\nv_mov_b32 v0, v30\n{P}_restart:")
    A(f"""v_add_u32 v{vKr}, {LDS_K}, v{vG512}
s_lshl_b32 s54, s9, 11
s_lshl_b32 s53, s12, 13
s_add_u32 s53, s53, s54
s_lshl_b32 s39, s9, 10
s_lshl_b32 s{sKV}, s12, 19
s_add_u32 s{sKV}, s{sKV}, s54
s_add_u32 s{sKV}, s{sKV}, {WS_K}
s_lshl_b32 s{sPub}, s12, 18
s_add_u32 s{sPub}, s{sPub}, s39
s_add_u32 s{sPub}, s{sPub}, {WS_KVM}
s_add_u32 s40, s53, {WS_FLAG + 65536}
v_mov_b32 v32, 0
v_readfirstlane_b32 s{sStep}, v32
s_mov_b32 s41, 0
s_add_u32 s45, s53, {WS_FLAG + 65536}
s_lshl_b32 s43, s9, 16
s_lshl_b32 s13, s12, 11
s_add_u32 s43, s43, s13
s_add_u32 s{sPartB}, s{sSync}, {SY_PART}
s_add_u32 s{sMemB}, s{sSync}, {SY_MEM}
s_lshl_b32 s13, s12, 8
s_add_u32 s13, s13, s{sSync}
s_add_u32 s55, s13, {SY_PROG}
s_add_u32 s{sKVF}, s13, {SY_KVF}""")
    for x in step_scalars(A, layer, 0): A(x)
    set_srd(A, 20, 48, 8192)
    A(f"""v_lshrrev_b32 v34, 4, v{vL16}
v_lshrrev_b32 v32, 2, v34
v_and_b32 v32, 3, v32
v_lshlrev_b32 v32, 1, v32
v_and_b32 v33, 1, v34
v_add_u32 v32, v32, v33
v_lshlrev_b32 v32, 10, v32
v_lshrrev_b32 v33, 4, v34
v_lshl_add_u32 v32, v33, 5, v32
v_bfe_u32 v33, v34, 1, 1
v_lshl_add_u32 v32, v33, 4, v32
s_lshl_b32 s13, s9, 7
s_add_u32 m0, s39, {LDS_MEM}
s_nop 0
buffer_load_dwordx4 v32, {SRDW}, s13 offen lds
s_add_u32 m0, s39, {LDS_MEM + 4096}
s_add_u32 s13, s13, 512
buffer_load_dwordx4 v32, {SRDW}, s13 offen lds
s_waitcnt lgkmcnt(0)""")
    for r in range(0, 16, 2): A(f"v_mov_b64 {v(vAk0+r,2)}, 0")
    A(f"v_mov_b32 v{vVP}, 0\nv_mov_b32 v{vVP+2}, 0\nv_mov_b32 v{vVP+1}, 0\nv_mov_b32 v{vVP+3}, 0\nv_mov_b32 v{vPm+1}, 0")
    for i in range(6):
        for x in wq_read(A, i, SLQ[i]): A(x)
    A(f"""s_mov_b32 s15, 0
s_add_u32 s{sKm}, s54, {LDS_K + 8192}
s_add_u32 s52, s39, 4096
s_waitcnt vmcnt(0) lgkmcnt(0)
s_cmp_lg_u32 s9, 0
s_cbranch_scc1 {P}_k1
{P}_k0:
buffer_load_dword v33, off, {SRD}, s{sKVF} sc1
s_waitcnt vmcnt(0)
v_readfirstlane_b32 s13, v33
s_cmp_ge_u32 s13, 4
s_cbranch_scc1 {P}_k1
s_add_u32 s15, s15, 1
s_cmp_lt_u32 s15, {4*TMO}
s_cbranch_scc1 {P}_k0
{P}_k1:
s_barrier""")
    kv_dma(A)
    A(f"s_add_u32 s{sKV}, s{sKV}, {KVSEG}\ns_mov_b32 s14, 0\ns_mov_b32 s15, 0")
    if opt.get("cnt"):
        for r in list(range(60, 90)) + [94, 95]: A(f"s_mov_b32 s{r}, 0")
        A("s_memtime s[78:79]")
    if opt.get("rt"): A(f"s_memrealtime s[86:87]")
    if opt.get("cnt") or opt.get("rt"): A("s_waitcnt lgkmcnt(0)")
    A(f"s_cmp_eq_u32 s44, 0\ns_cbranch_scc1 {P}_fb")
    for (tg, c) in [("", "f"), (f"{P}_fb:", "s")]:
        if tg: A(tg)
        for q in range(3): A(f"s_cmp_eq_u32 s9, {q}\ns_cbranch_scc1 {P}_{c}{q}_entry")
        A(f"s_branch {P}_{c}3_entry")
    for q in range(4): variant(A, f"{P}_f{q}", layer, 0, q, True, opt)
    o2 = dict(opt); o2.update(d2=[0,0,0,0])
    for q in range(4): variant(A, f"{P}_s{q}", layer, 0, q, False, o2)
    A(f"""{P}_fin:
s_cmp_lg_u32 s9, 2
s_cbranch_scc1 {P}_fin2
s_mov_b64 exec, 1
buffer_store_dword v{vT1}, off, {SRD}, s55 sc1
s_mov_b64 exec, -1
{P}_fin2:""")
    if opt.get("trace"):
        A(f"s_lshl_b32 s13, s12, 2\ns_add_u32 s13, s13, s9\ns_lshl_b32 s13, s13, 6\ns_add_u32 s13, s13, {WS_FLAG + 16384}")
        for k_ in range(14):
            A(f"v_mov_b32 v32, s{60+2*k_}\nbuffer_store_dword v32, off, {SRD}, s13 offset:{4*k_}\ns_nop 1")
    if opt.get("cnt"):
        A(f"""s_memtime s[60:61]
s_waitcnt lgkmcnt(0)
s_sub_u32 s82, s60, s78
s_sub_u32 s83, s78, s100
s_lshl_b32 s13, s12, 2
s_add_u32 s13, s13, s9
s_lshl_b32 s13, s13, 6
s_add_u32 s13, s13, {WS_FLAG}""")
        for k_ in range(16):
            A(f"v_mov_b32 v32, s{82+k_}\nbuffer_store_dword v32, off, {SRD}, s13 offset:{4*k_}\ns_nop 1")
    if opt.get("rt"):
        A(f"s_memrealtime s[88:89]\ns_waitcnt lgkmcnt(0)\ns_cmp_lg_u32 s{sSync}, {WS_SYNC}\ns_cbranch_scc1 {P}_rt2\ns_mov_b32 s90, s86\ns_mov_b32 s91, s88\n{P}_rt2:\ns_mov_b32 s84, s86\ns_mov_b32 s85, s88")
    if opt.get("mega"):
        A(f"s_cmp_lg_u32 s{sSync}, {WS_SYNC}\ns_cbranch_scc1 {P}_done\ns_add_u32 s{sSync}, s{sSync}, {MB}\ns_waitcnt vmcnt(0)\ns_barrier\ns_branch {P}_restart")
```
